```python
import torch

def _softmax(x, axis=-1):
    return torch.softmax(x, dim=axis)
def _gelu(x):
    return torch.nn.functional.gelu(x, approximate="tanh")
def _silu(x):
    return torch.nn.functional.silu(x)
def _sigmoid(x):
    return torch.sigmoid(x)
def _layernorm(x, axis=-1, eps=1e-5):
    m = x.mean(dim=axis, keepdim=True)
    v = x.var(dim=axis, keepdim=True, unbiased=False)
    return (x - m) / torch.sqrt(v + eps)
def _scatter_add(tgt, idx, src, axis=0):
    return tgt.clone().index_add_(axis, idx, src)
def _segment_sum(src, seg, n):
    out = torch.zeros((n,) + src.shape[1:], dtype=src.dtype)
    return out.index_add_(0, seg, src)
def _pad(x, pw):
    flat = tuple(v for pair in reversed(pw) for v in pair)
    return torch.nn.functional.pad(x, flat)

kernel_name = 'sequential_preLN__spectral_fnet__moe_arch_mod__prompt'

def setup_inputs():

    _w = (lambda a: (lambda t: t.to(torch.bfloat16) if t.is_floating_point() else t)(torch.as_tensor(a)))
    def _A_setup():
        B, S, D = 1, 2048, 576
        ns = torch.arange(S)[:, None] * torch.arange(S)[None, :]
        nd = torch.arange(D)[:, None] * torch.arange(D)[None, :]
        Ws_re = torch.cos(-2.0 * torch.pi * ns / S).to(float)
        Ws_im = torch.sin(-2.0 * torch.pi * ns / S).to(float)
        Wd_re = torch.cos(-2.0 * torch.pi * nd / D).to(float)
        Wd_im = torch.sin(-2.0 * torch.pi * nd / D).to(float)
        return {
            "x": _w((lambda *s: torch.randn(*s, dtype=torch.bfloat16) * 0.05)(B, S, D)),
            "dft_seq_re": _w(Ws_re),
            "dft_seq_im": _w(Ws_im),
            "dft_hid_re": _w(Wd_re),
            "dft_hid_im": _w(Wd_im),
        }
    _A_in = _A_setup()

    def _B_setup():
        B, S, D, F, C = 1, 2048, 576, 4608, 1
        return {
            "x": _w((lambda *s: torch.randn(*s, dtype=torch.bfloat16) * 0.05)(B, S, D)),
            "w_r": _w((lambda *s: torch.randn(*s, dtype=torch.bfloat16) * 1.6)(D)),
            "w_gate": _w((lambda *s: torch.randn(*s, dtype=torch.bfloat16) * 0.4)(D, F)),
            "w_up": _w((lambda *s: torch.randn(*s, dtype=torch.bfloat16) * 0.4)(D, F)),
            "w_down": _w((lambda *s: torch.randn(*s, dtype=torch.bfloat16) * 0.4)(F, D)),
        }
    _B_in = _B_setup()

    return {
        "A_x": _A_in["x"],
        "A_dft_seq_re": _A_in["dft_seq_re"],
        "A_dft_seq_im": _A_in["dft_seq_im"],
        "A_dft_hid_re": _A_in["dft_hid_re"],
        "A_dft_hid_im": _A_in["dft_hid_im"],
        "B_x": _B_in["x"],
        "B_w_r": _B_in["w_r"],
        "B_w_gate": _B_in["w_gate"],
        "B_w_up": _B_in["w_up"],
        "B_w_down": _B_in["w_down"],
    }

def reference(A_x, A_dft_seq_re, A_dft_seq_im, A_dft_hid_re, A_dft_hid_im, B_x, B_w_r, B_w_gate, B_w_up, B_w_down):
    def _A_ref(x, dft_seq_re, dft_seq_im, dft_hid_re, dft_hid_im):
        a = torch.einsum("bsd,ed->bse", x, dft_hid_re)
        b = torch.einsum("bsd,ed->bse", x, dft_hid_im)
        y = torch.einsum("ts,bse->bte", dft_seq_re, a) - torch.einsum("ts,bse->bte", dft_seq_im, b)
        return y

    def _B_ref(x, w_r, w_gate, w_up, w_down):
        B, S, D = x.shape
        C = 1
        r = x @ w_r
        idx = torch.argsort(-r, axis=-1)[:, :C]
        idx_e = (lambda x, n, axis: torch.repeat_interleave(x, n, dim=axis))(idx.reshape(B, C, 1), D, axis=2)
        x_sel = (lambda x, i, axis: torch.take_along_dim(x, i, dim=axis))(x, idx_e, axis=1)
        g = _silu(x_sel @ w_gate)
        u = x_sel @ w_up
        y = (g * u) @ w_down
        r_sel = _sigmoid((lambda x, i, axis: torch.take_along_dim(x, i, dim=axis))(r, idx, axis=1))
        y = y * r_sel.reshape(B, C, 1)
        b_off = (torch.arange(B) * S).reshape(B, 1)
        flat_idx = (idx + b_off).reshape(B * C)
        zero = (x * 0.0).reshape(B * S, D)
        upd = _scatter_add(zero, flat_idx, y.reshape(B * C, D), axis=0)
        return x + upd.reshape(B, S, D)

    x = A_x
    h = x + _A_ref(_layernorm(x, axis=-1), A_dft_seq_re, A_dft_seq_im, A_dft_hid_re, A_dft_hid_im)
    h2 = h + _B_ref(_layernorm(h, axis=-1), B_w_r, B_w_gate, B_w_up, B_w_down)
    return h2
```

```python
import re

def _regs(tok):
    tok = tok.strip()
    t = tok
    t = t.lstrip('-')
    if t.startswith('abs(') and t.endswith(')'):
        t = t[4:-1]
    if t.startswith('|') and t.endswith('|'):
        t = t[1:-1]
    m = re.fullmatch(r'([vsa])(\d+)', t)
    if m:
        return {(m.group(1), int(m.group(2)))}
    m = re.fullmatch(r'([vsa])\[(\d+):(\d+)\]', t)
    if m:
        return {(m.group(1), i) for i in range(int(m.group(2)), int(m.group(3)) + 1)}
    if t in ('vcc',):
        return {('x', 'vcc')}
    if t in ('vcc_lo', 'vcc_hi'):
        return {('x', 'vcc')}
    if t in ('exec', 'exec_lo', 'exec_hi'):
        return {('x', 'exec')}
    if t == 'm0':
        return {('x', 'm0')}
    return set()

TRANS = ('v_exp_f32', 'v_log_f32', 'v_rcp_f32', 'v_rsq_f32', 'v_sqrt_f32', 'v_sin_f32', 'v_cos_f32', 'v_rcp_iflag_f32')

class Ins:
    __slots__ = ('op', 'kind', 'wr', 'rd', 'srcc', 'passes', 'states', 'dpp', 'text', 'lanesel', 'wide_store_data', 'mask_rd')

class Asm:
    def __init__(self):
        self.lines = []
        self.hist = []
        self.nbytes_guess = 0

    def raw(self, text):
        self.lines.append(text)

    def comment(self, text):
        self.lines.append('    ; ' + text)

    def label(self, name):
        self.lines.append(name + ':')

    def flush_hist(self):
        self.hist = []

    def _classify(self, op, ops, mods):
        i = Ins()
        i.op = op; i.wr = set(); i.rd = set(); i.srcc = set(); i.passes = 0; i.states = 1
        i.dpp = ('_dpp' in op) or ('row_' in mods) or ('quad_perm' in mods)
        i.lanesel = set(); i.wide_store_data = set(); i.mask_rd = set()
        R = [_regs(o) for o in ops]
        if op == 's_nop':
            i.kind = 'nop'; i.states = int(ops[0], 0) + 1
        elif op.startswith('v_mfma'):
            i.kind = 'mfma'
            i.wr = R[0]; i.rd = R[1] | R[2] | R[3]; i.srcc = R[3]
            i.passes = 8 if '32x32x16' in op else 4
        elif op.startswith('v_'):
            i.kind = 'valu'
            if op.startswith('v_cmp'):
                i.wr = R[0]; i.rd = set().union(*R[1:])
                if op.startswith('v_cmpx'):
                    i.wr |= {('x', 'exec')}
            elif op.startswith('v_readfirstlane') or op.startswith('v_readlane'):
                i.wr = R[0]; i.rd = R[1]
                if len(R) > 2: i.lanesel = R[2]; i.rd |= R[2]
            elif op.startswith('v_writelane'):
                i.wr = R[0]; i.rd = R[1] | R[0]
                if len(R) > 2: i.lanesel = R[2]; i.rd |= R[2]
            elif op.startswith('v_permlane') and 'swap' in op:
                i.wr = R[0] | R[1]; i.rd = R[0] | R[1]
            elif op.startswith('v_add_co') or op.startswith('v_sub_co') or op.startswith('v_addc_co') or op.startswith('v_subb_co'):
                i.wr = R[0] | R[1]; i.rd = set().union(*R[2:])
            elif op.startswith('v_cndmask'):
                i.wr = R[0]; i.rd = R[1] | R[2]
                mk = R[3] if len(R) > 3 else {('x', 'vcc')}
                i.rd |= mk; i.mask_rd = mk
            else:
                i.wr = R[0]; i.rd = set().union(*R[1:]) if len(R) > 1 else set()
                if op.startswith('v_fmac') or op.startswith('v_dot2c') or op.startswith('v_pk_fmac') or i.dpp:
                    i.rd |= R[0]
        elif op.startswith('ds_'):
            i.kind = 'ds'
            if op.startswith('ds_read') or op.startswith('ds_bpermute') or op.startswith('ds_permute') or op.startswith('ds_swizzle') or '_rtn' in op:
                i.wr = R[0]; i.rd = set().union(*R[1:])
            else:
                i.rd = set().union(*R)
        elif op.startswith('buffer_') or op.startswith('global_'):
            i.kind = 'vmem'
            if op in ('buffer_wbl2', 'buffer_inv'):
                pass
            elif ' lds' in (' ' + mods) or '_lds_' in op:
                i.rd = set().union(*R) | {('x', 'm0')}
                i.kind = 'vmem_lds'
            elif 'load' in op:
                i.wr = R[0]; i.rd = set().union(*R[1:])
                if 'd16' in op: i.rd |= R[0]
            elif 'store' in op:
                i.rd = set().union(*R)
                data = R[0] if op.startswith('buffer_') else R[1]
                if 'x3' in op or 'x4' in op:
                    i.wide_store_data = data
            elif 'atomic' in op:
                i.rd = set().union(*R)
                if 'sc0' in mods:
                    i.wr = R[0]
        elif op.startswith('s_'):
            i.kind = 'salu'
            if op.startswith('s_cmp') or op.startswith('s_cbranch') or op.startswith('s_branch') or op in ('s_waitcnt', 's_barrier', 's_endpgm', 's_sleep', 's_setprio'):
                i.rd = set().union(*R) if R else set()
            elif op.startswith('s_load') or op.startswith('s_buffer_load') or op.startswith('s_memtime') or op.startswith('s_memrealtime'):
                i.kind = 'smem'
                i.wr = R[0]; i.rd = set().union(*R[1:]) if len(R) > 1 else set()
            else:
                i.wr = R[0]; i.rd = set().union(*R[1:]) if len(R) > 1 else set()
                if 'saveexec' in op:
                    i.wr |= {('x', 'exec')}
        else:
            raise ValueError('unknown op ' + op)
        return i

    def _need(self, p, c):
        n = 0
        vw = {r for r in p.wr if r[0] in 'va'}
        sw = {r for r in p.wr if r[0] == 's' or r == ('x', 'vcc')}
        if p.kind == 'valu':
            if c.kind == 'mfma' and vw & c.rd: n = max(n, 2)
            if c.kind == 'valu':
                if c.dpp and vw & c.rd: n = max(n, 2)
                if (c.op.startswith('v_readlane') or c.op.startswith('v_readfirstlane')) and vw & c.rd: n = max(n, 1)
                if c.op.startswith('v_permlane') and vw & c.rd: n = max(n, 2)
                if p.op.split('_e')[0] in TRANS or p.op in TRANS:
                    if vw & (c.rd | c.wr): n = max(n, 1)
                if sw & c.lanesel: n = max(n, 4)
                if sw & c.rd: n = max(n, 2)
                if ('x', 'exec') in p.wr:
                    if c.dpp: n = max(n, 5)
                    if c.op.startswith('v_readlane') or c.op.startswith('v_readfirstlane') or c.op.startswith('v_writelane') or c.op.startswith('v_permlane'): n = max(n, 4)
            if c.kind == 'mfma' and ('x', 'exec') in p.wr: n = max(n, 4)
            if c.kind in ('vmem', 'vmem_lds') and sw & c.rd: n = max(n, 5)
            if c.kind in ('salu', 'smem') and sw & c.rd: n = max(n, 1)
            if 'sdwa' in p.op or 'op_sel' in getattr(p, 'text', ''):
                if c.kind == 'valu' and vw & c.rd: n = max(n, 1)
        if p.kind == 'valu' and p.op.startswith('v_dot'):
            if vw & (c.rd | c.wr):
                same = (c.op == p.op)
                if not same: n = max(n, 3)
                else:
                    pass
        if p.kind == 'mfma':
            P = p.passes
            if c.kind == 'mfma':
                if vw & c.srcc:
                    if c.srcc == p.wr and c.passes == P: n = max(n, 0)
                    else: n = max(n, {4: 6, 8: 10}[P])
                if vw & (c.rd - c.srcc) or (vw & c.rd and not (vw & c.srcc)): n = max(n, {4: 8, 8: 12}[P])
                ab = c.rd - c.srcc
                if vw & ab: n = max(n, {4: 8, 8: 12}[P])
                if (vw & c.wr) and not (vw & c.srcc): n = max(n, {4: 8, 8: 12}[P])
            elif c.kind in ('valu', 'ds', 'vmem', 'vmem_lds'):
                if vw & (c.rd | c.wr): n = max(n, {4: 8, 8: 12}[P])
            if c.kind == 'valu' and p.srcc & c.wr: n = max(n, {4: 3, 8: 7}[P])
        if p.kind == 'vmem' and p.wide_store_data:
            if c.wr & p.wide_store_data: n = max(n, 2)
        if p.kind == 'salu' and ('x', 'm0') in p.wr and c.kind == 'vmem_lds': n = max(n, 1)
        return n

    def __call__(self, text):
        text = text.strip()
        body = text.split(';')[0].strip()
        parts = body.split(None, 1)
        op = parts[0]
        rest = parts[1] if len(parts) > 1 else ''
        toks = [t.strip() for t in rest.split(',')] if rest else []
        mods = ''
        if toks and op not in ('s_waitcnt',):
            joined = []
            depth = 0; cur = ''
            for ch in rest:
                if ch == '[': depth += 1
                if ch == ']': depth -= 1
                if ch == ',' and depth == 0:
                    joined.append(cur.strip()); cur = ''
                else:
                    cur += ch
            joined.append(cur.strip())
            last = joined[-1].split(None, 1)
            joined[-1] = last[0]
            mods = last[1] if len(last) > 1 else ''
            toks = joined
        if op == 's_waitcnt':
            toks = []
        c = self._classify(op, toks, mods)
        c.text = body
        dist = 0; need = 0
        for p in reversed(self.hist):
            req = self._need(p, c)
            if req - dist > need: need = req - dist
            dist += p.states
            if dist > 24: break
        while need > 0:
            k = min(need, 16)
            self.lines.append(f'    s_nop {k-1}')
            n = Ins(); n.op = 's_nop'; n.kind = 'nop'; n.wr = set(); n.rd = set(); n.srcc = set(); n.passes = 0; n.states = k
            n.dpp = False; n.lanesel = set(); n.wide_store_data = set(); n.mask_rd = set(); n.text = ''
            self.hist.append(n)
            need -= k
        self.lines.append('    ' + text)
        self.hist.append(c)
        if len(self.hist) > 40: self.hist = self.hist[-40:]

    def text(self):
        return '\n'.join(self.lines) + '\n'

def vr(a, n=1):
    return f'v{a}' if n == 1 else f'v[{a}:{a+n-1}]'
def sr(a, n=1):
    return f's{a}' if n == 1 else f's[{a}:{a+n-1}]'

class Cnt:
    def __init__(self, asm, name, maxn):
        self.a = asm; self.name = name; self.q = []; self.maxn = maxn
    def issue(self, tag):
        self.q.append(tag)
        assert len(self.q) <= self.maxn, (self.name, len(self.q))
    def need(self, tag):
        idx = [i for i, t in enumerate(self.q) if t == tag]
        if not idx: return None
        n = len(self.q) - 1 - idx[-1]
        self.q = self.q[idx[-1] + 1:]
        return n
    def wait(self, tag):
        n = self.need(tag)
        if n is not None:
            self.a(f's_waitcnt {self.name}({n})')
    def wait_all(self):
        self.q = []
        self.a(f's_waitcnt {self.name}(0)')
```

```python
import sys
from asmdsl import Asm, Cnt, vr, sr

S, D, F = 2048, 576, 4608
X_BYTES = S * D * 2
SEQ_BYTES = S * S * 2
HID_BYTES = D * D * 2
WG_BYTES = D * F * 2
WS_U = 0
WS_KEYS = 0x240000
WS_FIN = 0x241000
WS_PART = 0x250000
WS_CROWS = 0x300000
WS_RANGE = 0x900000

KA = dict(x=0, sre=8, sim=16, hre=24, him=32, bx=40, wr=48, wg=56, wu=64, wd=72, out=80, dbg=88, ws=96)


def srd(a, d, b, nbytes):
    a(f's_mov_b32 s{d}, s{b}')
    a(f's_mov_b32 s{d+1}, s{b+1}')
    a(f's_mov_b32 s{d+2}, {nbytes}')
    a(f's_mov_b32 s{d+3}, 0x00020000')


def kernel_head(a, name):
    a.raw(f'.globl {name}')
    a.raw('.p2align 8')
    a.raw(f'.type {name},@function')
    a.label(name)
    a.flush_hist()


def descriptor(name, vgpr, sgpr):
    acc = (vgpr + 3) // 4 * 4
    return f'''.p2align 6
.amdhsa_kernel {name}
  .amdhsa_next_free_vgpr {vgpr}
  .amdhsa_next_free_sgpr {sgpr}
  .amdhsa_accum_offset {acc}
  .amdhsa_group_segment_fixed_size 0
  .amdhsa_kernarg_size 104
  .amdhsa_user_sgpr_count 2
  .amdhsa_user_sgpr_kernarg_segment_ptr 1
  .amdhsa_system_sgpr_workgroup_id_x 1
.end_amdhsa_kernel
'''


def bfround(a, dst, src):
    a(f'v_cvt_pk_bf16_f32 v{dst}, v{src}, v{src}')
    a(f'v_and_b32 v{dst}, 0xffff0000, v{dst}')


K1_LDS_F = 73728
K1_LDS_ST = 90112
K1_LDS = 90624
K1_STAGES = [[0, 1, 2], [3, 4, 5], [6, 7], [8]]


def gen_k1(a):
    kernel_head(a, 'k1_kernel')
    a('s_cmp_ge_u32 s2, 192')
    a('s_cbranch_scc1 K1_END')
    a('s_load_dwordx8 s[4:11], s[0:1], 0')
    a('s_load_dwordx2 s[12:13], s[0:1], 32')
    a('s_load_dwordx2 s[14:15], s[0:1], 96')
    a('v_lshrrev_b32 v1, 6, v0')
    a('v_and_b32 v0, 63, v0')
    a('v_readfirstlane_b32 s40, v1')
    a('s_and_b32 s41, s2, 31')
    a('s_lshr_b32 s42, s2, 5')
    a('v_and_b32 v2, 15, v0')
    a('v_lshrrev_b32 v3, 4, v0')
    a('v_lshlrev_b32 v4, 4, v0')
    a('v_add_u32 v5, 36864, v4')
    a('s_cmp_ge_u32 s42, 3')
    a('s_cselect_b32 s43, 1, 0')
    a('s_cmp_ge_u32 s40, 3')
    a('s_cbranch_scc1 K1_STATS')

    vm = Cnt(a, 'vmcnt', 63)
    lg = Cnt(a, 'lgkmcnt', 15)
    a('s_mul_i32 s44, s42, 3')
    a('s_add_u32 s44, s44, s40')
    a('s_mul_i32 s45, s43, 9')
    a('s_sub_u32 s45, s44, s45')
    a('s_lshl_b32 s45, s45, 5')
    a('s_add_u32 s45, s45, s43')
    a('v_lshl_add_u32 v6, v2, 1, s45')
    a('v_cmp_eq_u32 vcc, 0, v6')
    a('v_mov_b32 v9, 288')
    a('v_cndmask_b32 v6, v6, v9, vcc')
    a('v_mul_u32_u24 v6, 1152, v6')
    a('v_lshl_add_u32 v6, v3, 4, v6')
    a('s_waitcnt lgkmcnt(0)')
    srd(a, 28, 10, HID_BYTES)
    srd(a, 32, 12, HID_BYTES)
    Bre = lambda k: 16 + 8 * k
    Bim = lambda k: 20 + 8 * k
    for st, ks in enumerate(K1_STAGES):
        for k in ks:
            a(f'buffer_load_dwordx4 {vr(Bre(k),4)}, v6, s[28:31], 0 offen offset:{k*64}')
            vm.issue(st)
            a(f'buffer_load_dwordx4 {vr(Bim(k),4)}, v6, s[32:35], 0 offen offset:{k*64}')
            vm.issue(st)
    srd(a, 36, 14, WS_RANGE)
    a('s_lshr_b32 s46, s41, 1')
    a('s_and_b32 s46, s46, 1')
    a('s_xor_b32 s46, s46, s44')
    a('s_lshl_b32 s46, s46, 6')
    a('s_mul_i32 s47, s41, 1152')
    a('s_add_u32 s46, s46, s47')
    a('v_mul_u32_u24 v7, 36864, v2')
    a('v_lshl_add_u32 v7, v3, 4, v7')
    a('v_add_u32 v7, s46, v7')
    a('v_lshlrev_b32 v8, 4, v3')
    a(f'v_add_u32 v8, {K1_LDS_ST}, v8')
    a('s_cmp_eq_u32 s43, 0')
    a('s_cselect_b32 s47, 1.0, -1.0')
    a('v_mov_b32 v10, s47')
    a('v_mov_b32 v11, s47')
    for r in range(12, 16):
        a(f'v_mov_b32 v{r}, 0x3f803f80')
    acc = lambda hf, i, ab: 88 + ((hf * 4 + i) * 2 + ab) * 4
    cacc = lambda ab: 152 + 4 * ab
    Abuf = lambda b, i: 160 + b * 16 + i * 4
    Freg = lambda f: 16 + 4 * f
    started = set()
    bufno = [0]

    def rd_group(k, hf):
        b = bufno[0] % 3
        bufno[0] += 1
        base = 'v4' if hf == 0 else 'v5'
        for i in range(4):
            a(f'ds_read_b128 {vr(Abuf(b,i),4)}, {base} offset:{k*4096 + i*1024}')
            lg.issue(('g', k, hf))
        return b

    def rd_F(f):
        a(f'ds_read_b128 {vr(Freg(f),4)}, v5 offset:{K1_LDS_F - 36864 + f*1024}')
        lg.issue('F')

    def mf(dst, A, B):
        c = vr(dst, 4) if dst in started else '0'
        started.add(dst)
        a(f'v_mfma_f32_16x16x32_bf16 {vr(dst,4)}, {vr(A,4)}, {vr(B,4)}, {c}')

    for st, ks in enumerate(K1_STAGES):
        groups = [(k, hf) for k in ks for hf in (0, 1)]
        G = len(groups)
        if st == 3:
            lg.wait_all()
        vm.wait(st)
        a('s_barrier')
        bufs = {}
        for n in range(min(3, G)):
            bufs[n] = rd_group(*groups[n])
        if st == 3:
            for f in range(12, 16):
                rd_F(f)
        for n, (k, hf) in enumerate(groups):
            lg.wait(('g', k, hf))
            b = bufs[n]
            if hf == 0:
                mf(cacc(0), 12, Bre(k))
                mf(cacc(1), 12, Bim(k))
            for i in range(4):
                mf(acc(hf, i, 0), Abuf(b, i), Bre(k))
                mf(acc(hf, i, 1), Abuf(b, i), Bim(k))
            if n + 3 < G:
                bufs[n + 3] = rd_group(*groups[n + 3])
            elif st == 2:
                f0 = (n - 1) * 4
                for f in range(f0, f0 + 4):
                    rd_F(f)
    a('s_barrier')
    for i in range(4):
        a(f'ds_read_b128 {vr(208+4*i,4)}, v8 offset:{i*64}')
        lg.issue('st')
        a(f'ds_read_b128 {vr(224+4*i,4)}, v8 offset:{256+i*64}')
        lg.issue('st')
    for i in range(4):
        for ab in range(2):
            for h in range(2):
                d = acc(0, i, ab) + 2 * h
                s1 = acc(1, i, ab) + 2 * h
                a(f'v_pk_fma_f32 {vr(d,2)}, {vr(s1,2)}, v[10:11], {vr(d,2)}')
    lg.wait('st')
    for i in range(4):
        for ab in range(2):
            for h in range(2):
                t = acc(1, i, ab) + 2 * h
                a(f'v_pk_mul_f32 {vr(t,2)}, {vr(224+4*i+2*h,2)}, {vr(cacc(ab),2)}')
    for i in range(4):
        for ab in range(2):
            for h in range(2):
                d = acc(0, i, ab) + 2 * h
                t = acc(1, i, ab) + 2 * h
                a(f'v_pk_fma_f32 {vr(d,2)}, {vr(208+4*i+2*h,2)}, {vr(d,2)}, {vr(t,2)} neg_lo:[0,0,1] neg_hi:[0,0,1]')
    za = lambda kap: 160 + 4 * kap
    zb = lambda kap: 168 + 4 * kap
    znb = lambda kap: 176 + 4 * kap
    for kap in range(2):
        for ab, z in ((0, za), (1, zb)):
            for hh in range(2):
                src = acc(0, 2 * kap + hh, ab)
                a(f'v_cvt_pk_bf16_f32 v{z(kap)+2*hh}, v{src}, v{src+1}')
                a(f'v_cvt_pk_bf16_f32 v{z(kap)+2*hh+1}, v{src+2}, v{src+3}')
    for r in range(8):
        a(f'v_xor_b32 v{176+r}, 0x80008000, v{168+r}')
    lg.wait('F')
    out = lambda it, c: 88 + (it * 2 + c) * 4
    started.clear()
    Fidx = lambda it, kap, part: (it * 2 + kap) * 2 + part
    for kap in range(2):
        for it in range(4):
            mf(out(it, 0), za(kap), Freg(Fidx(it, kap, 0)))
            mf(out(it, 1), za(kap), Freg(Fidx(it, kap, 1)))
        for it in range(4):
            mf(out(it, 0), znb(kap), Freg(Fidx(it, kap, 1)))
            mf(out(it, 1), zb(kap), Freg(Fidx(it, kap, 0)))
    for it in range(1, 4):
        a(f's_mov_b32 s{47+it}, {it*16*36864}')
    for it in range(4):
        d = 184 + 4 * it
        a(f'v_cvt_pk_bf16_f32 v{d}, v{out(it,0)}, v{out(it,0)+1}')
        a(f'v_cvt_pk_bf16_f32 v{d+1}, v{out(it,0)+2}, v{out(it,0)+3}')
        a(f'v_cvt_pk_bf16_f32 v{d+2}, v{out(it,1)}, v{out(it,1)+1}')
        a(f'v_cvt_pk_bf16_f32 v{d+3}, v{out(it,1)+2}, v{out(it,1)+3}')
        so = '0' if it == 0 else f's{47+it}'
        a(f'buffer_store_dwordx4 {vr(d,4)}, v7, s[36:39], {so} offen')
    a('s_endpgm')

    a.label('K1_STATS')
    a.flush_hist()
    vm = Cnt(a, 'vmcnt', 63)
    lg = Cnt(a, 'lgkmcnt', 15)
    a('s_sub_u32 s44, s40, 3')
    a('s_lshr_b32 s45, s44, 1')
    a('s_lshl_b32 s45, s45, 5')
    a('s_and_b32 s46, s44, 1')
    a('s_lshl_b32 s46, s46, 2')
    a('s_add_u32 s45, s45, s46')
    a('v_lshrrev_b32 v6, 2, v2')
    a('v_lshlrev_b32 v6, 3, v6')
    a('v_and_b32 v9, 3, v2')
    a('v_add3_u32 v6, v6, v9, s45')
    a('v_mul_u32_u24 v6, 36864, v6')
    a('s_mul_i32 s47, s41, 1152')
    a('v_lshl_add_u32 v6, v3, 4, v6')
    a('v_add_u32 v6, s47, v6')
    a('s_lshl_b32 s46, s44, 4')
    a('v_add_u32 v7, s46, v2')
    a('v_lshlrev_b32 v7, 17, v7')
    a('v_lshl_add_u32 v7, v3, 4, v7')
    a('s_lshl_b32 s48, s44, 10')
    a('s_lshl_b32 s49, s44, 12')
    a('v_add_u32 v4, s48, v4')
    a('v_add_u32 v5, s48, v5')
    a('s_waitcnt lgkmcnt(0)')
    srd(a, 16, 4, X_BYTES)
    srd(a, 20, 6, SEQ_BYTES)
    srd(a, 24, 8, SEQ_BYTES)
    for st, ks in enumerate(K1_STAGES):
        if st == 2:
            for kap in range(2):
                for part in range(2):
                    a(f's_add_u32 m0, s49, {K1_LDS_F + (kap*2+part)*1024 - kap*64}')
                    a(f'buffer_load_dwordx4 v7, s[{20+4*part}:{23+4*part}], 0 offen offset:{kap*64} lds')
                    vm.issue(st)
        for k in ks:
            for hf in range(2):
                kk = k + 9 * hf
                a(f's_add_u32 m0, s48, {kk*4096 - kk*64}')
                a(f'buffer_load_dwordx4 v6, s[16:19], 0 offen offset:{kk*64} lds')
                vm.issue(st)
    a('v_mov_b32 v12, 0x3f803f80')
    for r in range(8, 12):
        a(f'v_mov_b32 v{r}, 0')
    for st, ks in enumerate(K1_STAGES):
        vm.wait(st)
        a('s_barrier')
        regs = []
        n = 0
        for k in ks:
            for hf in range(2):
                base = 'v4' if hf == 0 else 'v5'
                d = 16 + 4 * n
                a(f'ds_read_b128 {vr(d,4)}, {base} offset:{k*4096}')
                lg.issue(n)
                regs.append(d)
                n += 1
        for n, d in enumerate(regs):
            lg.wait(n)
            for r in range(4):
                a(f'v_dot2c_f32_bf16 v{8+(r&1)}, v{d+r}, v12')
                a(f'v_dot2c_f32_bf16 v{10+(r&1)}, v{d+r}, v{d+r}')
    a('v_add_f32 v8, v8, v9')
    a('v_add_f32 v10, v10, v11')
    for sw in ('v_permlane16_swap_b32', 'v_permlane32_swap_b32'):
        a('v_mov_b32 v9, v8')
        a('v_mov_b32 v11, v10')
        a(f'{sw} v9, v8')
        a(f'{sw} v11, v10')
        a('v_add_f32 v8, v8, v9')
        a('v_add_f32 v10, v10, v11')
    inv = 1.0 / 576.0
    import struct
    invb = struct.unpack('<I', struct.pack('<f', inv))[0]
    epsb = struct.unpack('<I', struct.pack('<f', 1e-5))[0]
    a(f'v_mul_f32 v8, 0x{invb:08x}, v8')
    a(f'v_mul_f32 v10, 0x{invb:08x}, v10')
    a('v_fma_f32 v10, -v8, v8, v10')
    a('v_max_f32 v10, 0, v10')
    bfround(a, 10, 10)
    a(f'v_add_f32 v10, 0x{epsb:08x}, v10')
    bfround(a, 10, 10)
    a('v_sqrt_f32 v10, v10')
    bfround(a, 10, 10)
    a('v_rcp_f32 v10, v10')
    a('s_cmp_eq_u32 s43, 0')
    a('s_cselect_b32 s47, 2.0, 0')
    a('v_mul_f32 v8, v8, v10')
    a('v_mul_f32 v8, s47, v8')
    a('s_lshl_b32 s46, s44, 6')
    a(f's_add_u32 s46, s46, {K1_LDS_ST}')
    a('v_lshl_add_u32 v9, v2, 2, s46')
    a('s_mov_b64 exec, 0xffff')
    a('ds_write_b32 v9, v10')
    a('ds_write_b32 v9, v8 offset:256')
    a('s_waitcnt lgkmcnt(0)')
    a('s_barrier')
    a.label('K1_END')
    a('s_endpgm')


K2_LDS_Y = 73728
K2_YS = 1168
K2_LDS_C = K2_LDS_Y + 8 * K2_YS
K2_LDS = K2_LDS_C + 64


def dpp_reduce(a, op, regs):
    for m in ('row_shr:1', 'row_shr:2', 'row_shr:4', 'row_shr:8'):
        for r in regs:
            a(f'{op}_dpp v{r}, v{r}, v{r} {m} row_mask:0xf bank_mask:0xf')
    for r in regs:
        a(f'{op}_dpp v{r}, v{r}, v{r} row_bcast:15 row_mask:0xa bank_mask:0xf')
    for r in regs:
        a(f'{op}_dpp v{r}, v{r}, v{r} row_bcast:31 row_mask:0xc bank_mask:0xf')


def gen_k2(a):
    import struct
    kernel_head(a, 'k2_kernel')
    vm = Cnt(a, 'vmcnt', 63)
    lg = Cnt(a, 'lgkmcnt', 15)
    a('s_cmp_ge_u32 s2, 256')
    a('s_cbranch_scc1 K2_END')
    a('s_load_dwordx4 s[4:7], s[0:1], 0')
    a('s_load_dwordx2 s[8:9], s[0:1], 16')
    a('s_load_dwordx2 s[10:11], s[0:1], 48')
    a('s_load_dwordx2 s[12:13], s[0:1], 80')
    a('s_load_dwordx2 s[14:15], s[0:1], 96')
    a('v_lshrrev_b32 v1, 6, v0')
    a('v_and_b32 v0, 63, v0')
    a('v_readfirstlane_b32 s40, v1')
    a('s_and_b32 s41, s2, 31')
    a('s_lshr_b32 s42, s2, 5')
    a('v_lshlrev_b32 v4, 4, v0')
    a('s_sub_u32 s43, 64, s41')
    a('s_cmp_eq_u32 s41, 0')
    a('s_cselect_b32 s43, 32, s43')
    a('s_cmp_lt_u32 s40, 4')
    a('s_cselect_b32 s44, s41, s43')
    a('s_mul_i32 s44, s44, 36864')
    a('s_and_b32 s45, s40, 3')
    a('s_mul_i32 s45, s45, 9216')
    a('s_add_u32 s44, s44, s45')
    a('s_mul_i32 s45, s40, 9216')
    a('s_waitcnt lgkmcnt(0)')
    srd(a, 36, 14, WS_RANGE)
    for grp in range(3):
        a(f's_add_u32 m0, s45, {grp*4096}')
        if grp:
            a(f's_add_u32 s44, s44, 4096')
        for k in range(4 if grp < 2 else 1):
            a(f'buffer_load_dwordx4 v4, s[36:39], s44 offen offset:{k*1024} lds')
            vm.issue('u')
    a('v_and_b32 v2, 15, v0')
    a('v_lshrrev_b32 v3, 4, v0')
    a('v_and_b32 v7, 7, v0')
    a('s_cmp_eq_u32 s41, 0')
    a('s_cbranch_scc1 K2_P0')
    a('v_and_b32 v8, 3, v7')
    a('s_lshl_b32 s46, s42, 2')
    a('v_add_u32 v8, s46, v8')
    a('v_lshl_add_u32 v5, v8, 6, s41')
    a('v_sub_u32 v8, 2048, v5')
    a('v_cmp_lt_u32 vcc, 3, v7')
    a('v_cndmask_b32 v5, v5, v8, vcc')
    a('v_xor_b32 v6, 4, v7')
    a('s_branch K2_ROWS')
    a.label('K2_P0')
    a.flush_hist()
    a('v_bfe_u32 v8, v7, 1, 1')
    a('s_lshl_b32 s46, s42, 1')
    a('v_add_u32 v8, s46, v8')
    a('v_cmp_lt_u32 vcc, 3, v7')
    a('v_sub_u32 v9, 32, v8')
    a('v_sub_u32 v10, 31, v8')
    a('v_cndmask_b32 v9, v9, v10, vcc')
    a('v_mov_b32 v11, 0')
    a('v_cndmask_b32 v11, v11, 32, vcc')
    a('v_cmp_eq_u32 vcc, 32, v9')
    a('v_cndmask_b32 v9, v9, 16, vcc')
    a('v_xor_b32 v6, 1, v7')
    a('v_cndmask_b32 v6, v6, v7, vcc')
    a('v_and_b32 v10, 1, v7')
    a('v_cmp_eq_u32 vcc, 1, v10')
    a('v_cndmask_b32 v8, v8, v9, vcc')
    a('v_lshl_add_u32 v5, v8, 6, v11')
    a.label('K2_ROWS')
    a.flush_hist()
    a('s_nop 1')
    a('v_readlane_b32 s46, v5, s40')
    a('v_readlane_b32 s47, v6, s40')
    a('v_lshrrev_b32 v8, 1, v3')
    a('v_and_b32 v9, 1, v3')
    a('v_lshlrev_b32 v8, 4, v8')
    a('v_lshl_add_u32 v8, v9, 2, v8')
    a('v_lshl_add_u32 v8, v5, 12, v8')
    srd(a, 20, 6, SEQ_BYTES)
    srd(a, 24, 8, SEQ_BYTES)
    srd(a, 16, 4, X_BYTES)
    srd(a, 28, 10, D * 2)
    TW = lambda kap, part: 16 + (kap * 2 + part) * 4
    for kap in range(2):
        for part in range(2):
            a(f'buffer_load_dwordx3 {vr(TW(kap,part),3)}, v8, s[{20+4*part}:{23+4*part}], 0 offen offset:{kap*32}')
            vm.issue('tw')
    XR = lambda k: 100 + k
    WR = lambda k: 110 + k
    for k in range(9):
        a(f'v_mov_b32 v{XR(k)}, 0')
        a(f'v_mov_b32 v{WR(k)}, 0')
    a('v_lshlrev_b32 v12, 1, v0')
    a('s_mul_i32 s48, s46, 1152')
    for k in range(9):
        a(f'buffer_load_short_d16_hi v{XR(k)}, v12, s[16:19], s48 offen offset:{k*128}')
        vm.issue('x')
    for k in range(9):
        a(f'buffer_load_short_d16_hi v{WR(k)}, v12, s[28:31], 0 offen offset:{k*128}')
        vm.issue('x')
    srd(a, 32, 12, X_BYTES)
    a('v_lshrrev_b32 v13, 1, v3')
    a('v_lshlrev_b32 v13, 3, v13')
    a('v_lshl_add_u32 v13, v9, 1, v13')
    a('v_bfe_u32 v10, v0, 3, 1')
    a('v_add_u32 v13, v13, v10')
    a('v_mul_u32_u24 v13, 1152, v13')
    a('v_and_b32 v10, 3, v0')
    a('v_lshl_add_u32 v13, v10, 4, v13')
    a('v_bfe_u32 v10, v0, 2, 1')
    a('v_lshl_add_u32 v13, v10, 3, v13')
    a('v_xor_b32 v10, s40, v9')
    a('v_lshl_add_u32 v13, v10, 6, v13')
    a(f'v_mul_u32_u24 v14, {K2_YS}, v2')
    a('v_lshl_add_u32 v14, v3, 4, v14')
    a('s_lshl_b32 s49, s40, 6')
    a(f's_add_u32 s49, s49, {K2_LDS_Y}')
    a('v_add_u32 v14, s49, v14')
    a('v_and_b32 v10, 1, v0')
    a('v_mul_u32_u24 v10, 576, v10')
    a('v_lshrrev_b32 v11, 1, v0')
    a('v_lshl_add_u32 v90, v11, 2, v10')
    a(f's_mul_i32 s49, s40, {K2_YS}')
    a(f's_add_u32 s49, s49, {K2_LDS_Y}')
    a('v_add_u32 v90, s49, v90')
    a('v_add_u32 v11, 1, v0')
    a('v_lshrrev_b32 v11, 1, v11')
    a('v_sub_u32 v11, 32, v11')
    a('v_lshl_add_u32 v91, v11, 2, v10')
    a(f's_mul_i32 s50, s47, {K2_YS}')
    a(f's_add_u32 s50, s50, {K2_LDS_Y}')
    a('v_add_u32 v91, s50, v91')
    a('v_cmp_lt_u32 vcc, 32, v0')
    a('v_cndmask_b32 v92, v90, v91, vcc')
    a('v_add_u32 v92, 512, v92')
    a('v_mov_b32 v11, s49')
    a('v_cmp_eq_u32 vcc, 32, v0')
    a('v_cndmask_b32 v92, v92, v11, vcc')
    vm.wait('tw')
    a('s_mov_b32 s50, 0x05040100')
    a('s_mov_b32 s51, 0x07060302')
    a('v_cmp_gt_u32 s[52:53], 4, v2')
    a('v_add_u32 v10, -4, v2')
    a('v_cmp_gt_u32 s[54:55], 4, v10')
    T = lambda cls, kap: 32 + (cls * 2 + kap) * 4
    for kap in range(2):
        cr, ci = TW(kap, 0), TW(kap, 1)
        a(f'v_xor_b32 v{ci}, 0x80008000, v{ci}')
        a(f'v_xor_b32 v{ci+2}, 0x80008000, v{ci+2}')
        t = 48
        a(f'v_perm_b32 v{t}, v{ci}, v{cr}, s50')
        a(f'v_perm_b32 v{t+1}, v{ci}, v{cr}, s51')
        a(f'v_perm_b32 v{t+2}, v{ci+2}, v{cr+2}, s50')
        a(f'v_perm_b32 v{t+3}, v{ci+2}, v{cr+2}, s51')
        for r in range(4):
            a(f'v_cndmask_b32 v{T(0,kap)+r}, 0, v{t+r}, s[52:53]')
            a(f'v_cndmask_b32 v{T(1,kap)+r}, 0, v{t+r}, s[54:55]')
    a('s_barrier')
    a('s_cmp_ge_u32 s40, 6')
    a('s_cbranch_scc1 K2_SKIPMM')
    UF = lambda slot: 120 + 4 * slot
    ACC = lambda jj: 52 + 4 * jj
    order = [(jj, cls, kap) for jj in range(3) for cls in range(2) for kap in range(2)]

    def rd(n):
        jj, cls, kap = order[n]
        for h in range(2):
            off = cls * 36864 + kap * 18432 + h * 4608 + jj * 384
            a(f'ds_read_b64_tr_b16 {vr(UF(n)+2*h,2)}, v13 offset:{off}')
            lg.issue(n)
    for n in range(7):
        rd(n)
    for n, (jj, cls, kap) in enumerate(order):
        lg.wait(n)
        c = '0' if (cls == 0 and kap == 0) else vr(ACC(jj), 4)
        a(f'v_mfma_f32_16x16x32_bf16 {vr(ACC(jj),4)}, {vr(UF(n),4)}, {vr(T(cls,kap),4)}, {c}')
        if n + 7 < 12:
            rd(n + 7)
    a('s_mov_b32 s52, 0x00ff00ff')
    a('s_mov_b32 s53, 0x00ff00ff')
    a('s_mov_b64 exec, s[52:53]')
    for jj in range(3):
        a(f'ds_write_b128 v14, {vr(ACC(jj),4)} offset:{jj*384}')
    a('s_mov_b64 exec, -1')
    a('s_waitcnt lgkmcnt(0)')
    a.label('K2_SKIPMM')
    a.flush_hist()
    a('s_barrier')
    YR = lambda k: 64 + k
    for k in range(9):
        if k < 4:
            a(f'ds_read_b32 v{YR(k)}, v90 offset:{k*128}')
        elif k == 4:
            a(f'ds_read_b32 v{YR(k)}, v92')
        else:
            a(f'ds_read_b32 v{YR(k)}, v91 offset:{(8-k)*128}')
    a('s_waitcnt vmcnt(0) lgkmcnt(0)')
    vm.q = []
    a(f'v_writelane_b32 v{YR(0)}, 0, 0')
    for k in range(9):
        a(f'v_add_f32 v{YR(k)}, v{YR(k)}, v{XR(k)}')
    HP = lambda j: 76 + j
    H = lambda k: 64 + k
    for j in range(5):
        k0, k1 = 2 * j, min(2 * j + 1, 8)
        a(f'v_cvt_pk_bf16_f32 v{HP(j)}, v{YR(k0)}, v{YR(k1)}')
    for j in range(5):
        a(f'v_lshlrev_b32 v{H(2*j)}, 16, v{HP(j)}')
        if j < 4:
            a(f'v_and_b32 v{H(2*j+1)}, 0xffff0000, v{HP(j)}')
    a(f'v_add_f32 v82, v{H(0)}, v{H(1)}')
    a(f'v_mul_f32 v83, v{H(0)}, v{H(0)}')
    a(f'v_mul_f32 v84, v{H(0)}, v{WR(0)}')
    a(f'v_add_f32 v85, v{WR(0)}, v{WR(1)}')
    for k in range(1, 9):
        if k >= 2:
            a(f'v_add_f32 v82, v82, v{H(k)}')
            a(f'v_add_f32 v85, v85, v{WR(k)}')
        a(f'v_fmac_f32 v83, v{H(k)}, v{H(k)}')
        a(f'v_fmac_f32 v84, v{H(k)}, v{WR(k)}')
    dpp_reduce(a, 'v_add_f32', [82, 83, 84, 85])
    invb = struct.unpack('<I', struct.pack('<f', 1.0 / 576.0))[0]
    epsb = struct.unpack('<I', struct.pack('<f', 1e-5))[0]
    a(f'v_mul_f32 v82, 0x{invb:08x}, v82')
    a(f'v_mul_f32 v83, 0x{invb:08x}, v83')
    a('v_fma_f32 v83, -v82, v82, v83')
    a('v_max_f32 v83, 0, v83')
    bfround(a, 83, 83)
    bfround(a, 82, 82)
    a(f'v_add_f32 v83, 0x{epsb:08x}, v83')
    bfround(a, 83, 83)
    a('v_sqrt_f32 v83, v83')
    a('v_fma_f32 v84, -v82, v85, v84')
    bfround(a, 83, 83)
    a('v_rcp_f32 v83, v83')
    a('v_mul_f32 v84, v84, v83')
    a('v_mul_f32 v82, v82, v83')
    a('v_readlane_b32 s50, v83, 63')
    a('v_readlane_b32 s51, v82, 63')
    a('v_readlane_b32 s52, v84, 63')
    a('s_ashr_i32 s53, s52, 31')
    a('s_or_b32 s53, s53, 0x80000000')
    a('s_xor_b32 s53, s53, s52')
    a('s_and_b32 s53, s53, 0xfffff800')
    a('s_sub_u32 s54, 2047, s46')
    a('s_or_b32 s53, s53, s54')
    a('s_lshl_b32 s54, s40, 2')
    a(f's_add_u32 s54, s54, {K2_LDS_C}')
    a('v_mov_b32 v86, s54')
    a('v_mov_b32 v87, s53')
    a('ds_write_b32 v86, v87')
    a('v_mov_b32 v88, s51')
    HN = lambda k: 100 + k
    for k in range(9):
        a(f'v_fma_f32 v{HN(k)}, v{H(k)}, s50, -v88')
    NP = lambda j: 110 + j
    for j in range(5):
        k0, k1 = 2 * j, min(2 * j + 1, 8)
        a(f'v_cvt_pk_bf16_f32 v{NP(j)}, v{HN(k0)}, v{HN(k1)}')
    a('s_waitcnt lgkmcnt(0)')
    a('s_barrier')
    a(f'v_mov_b32 v86, {K2_LDS_C}')
    a('ds_read_b128 v[92:95], v86')
    a('ds_read_b128 v[96:99], v86 offset:16')
    for j in range(5):
        a(f'v_lshlrev_b32 v{HN(2*j)}, 16, v{NP(j)}')
        if j < 4:
            a(f'v_and_b32 v{HN(2*j+1)}, 0xffff0000, v{NP(j)}')
    for k in range(9):
        a(f'v_add_f32 v{HN(k)}, v{HN(k)}, v{H(k)}')
    OP = lambda j: 116 + j
    for j in range(5):
        k0, k1 = 2 * j, min(2 * j + 1, 8)
        a(f'v_cvt_pk_bf16_f32 v{OP(j)}, v{HN(k0)}, v{HN(k1)}')
    for k in range(9):
        op = 'buffer_store_short' if k % 2 == 0 else 'buffer_store_short_d16_hi'
        a(f'{op} v{OP(k//2)}, v12, s[32:35], s48 offen offset:{k*128}')
    a('s_waitcnt lgkmcnt(0)')
    a('v_max3_u32 v92, v92, v93, v94')
    a('v_max3_u32 v96, v96, v97, v98')
    a('v_max3_u32 v92, v92, v95, v99')
    a('v_max_u32 v92, v92, v96')
    a('v_readfirstlane_b32 s54, v92')
    a('s_cmp_lg_u32 s54, s53')
    a('s_cbranch_scc1 K2_END')
    a('s_mul_i32 s55, s46, 2560')
    a(f's_add_u32 s55, s55, {WS_CROWS}')
    for k in range(9):
        op = 'buffer_store_short' if k % 2 == 0 else 'buffer_store_short_d16_hi'
        a(f'{op} v{NP(k//2)}, v12, s[36:39], s55 offen offset:{k*128}')
        a(f'{op} v{HP(k//2)}, v12, s[36:39], s55 offen offset:{1152+k*128}')
    a('s_lshl_b32 s56, s2, 2')
    a(f's_add_u32 s56, s56, {WS_KEYS}')
    a('v_mov_b32 v88, s52')
    a('v_mov_b32 v89, 0')
    a('s_mov_b64 exec, 1')
    a('buffer_store_dword v88, v89, s[36:39], s55 offen offset:2304')
    a('buffer_store_dword v87, v89, s[36:39], s56 offen')
    a.label('K2_END')
    a('s_endpgm')


K3_LDS_RED = 9 * 12288
K3_LDS_ACT = K3_LDS_RED + 9 * 256
K3_LDS = K3_LDS_ACT + 9 * 64


def gen_k3(a):
    kernel_head(a, 'k3_kernel')
    vm = Cnt(a, 'vmcnt', 63)
    lg = Cnt(a, 'lgkmcnt', 15)
    a('s_cmp_ge_u32 s2, 144')
    a('s_cbranch_scc1 K3_END')
    a('s_load_dwordx4 s[4:7], s[0:1], 56')
    a('s_load_dwordx2 s[8:9], s[0:1], 72')
    a('s_load_dwordx2 s[14:15], s[0:1], 96')
    a('v_lshrrev_b32 v1, 6, v0')
    a('v_and_b32 v0, 63, v0')
    a('v_readfirstlane_b32 s40, v1')
    a('v_lshlrev_b32 v4, 4, v0')
    a('v_lshrrev_b32 v5, 2, v0')
    a('v_mul_u32_u24 v5, 9216, v5')
    a('v_and_b32 v6, 3, v0')
    a('v_lshl_add_u32 v5, v6, 4, v5')
    a('s_mul_i32 s41, s40, 589824')
    a('s_lshl_b32 s42, s2, 6')
    a('s_add_u32 s41, s41, s42')
    a('v_lshrrev_b32 v7, 3, v0')
    a('v_mul_u32_u24 v7, 1152, v7')
    a('v_and_b32 v6, 7, v0')
    a('v_lshl_add_u32 v7, v6, 4, v7')
    a('s_mul_i32 s43, s2, 36864')
    a('s_lshl_b32 s42, s40, 7')
    a('s_add_u32 s43, s43, s42')
    a('s_mul_i32 s44, s40, 12288')
    a('s_waitcnt lgkmcnt(0)')
    srd(a, 36, 14, WS_RANGE)
    a(f's_mov_b32 s45, {WS_KEYS}')
    a('buffer_load_dwordx4 v[8:11], v4, s[36:39], s45 offen')
    vm.issue('keys')
    srd(a, 16, 4, WG_BYTES)
    srd(a, 20, 6, WG_BYTES)
    srd(a, 24, 8, WG_BYTES)
    for q in range(4):
        for mat in range(2):
            a(f's_add_u32 m0, s44, {mat*4096 + q*1024}')
            a(f'buffer_load_dwordx4 v5, s[{16+4*mat}:{19+4*mat}], s41 offen lds')
            vm.issue('gu')
        if q < 3:
            a('s_add_u32 s41, s41, 147456')
    for q in range(4):
        a(f's_add_u32 m0, s44, {8192 + q*1024}')
        a('buffer_load_dwordx4 v7, s[24:27], s43 offen lds')
        vm.issue('dn')
        if q < 3:
            a('s_add_u32 s43, s43, 9216')
    a('v_lshrrev_b32 v3, 4, v0')
    a('v_and_b32 v2, 15, v0')
    vm.wait('keys')
    a('v_max3_u32 v8, v8, v9, v10')
    a('v_max_u32 v8, v8, v11')
    dpp_reduce(a, 'v_max_u32', [8])
    a('v_readlane_b32 s46, v8, 63')
    a('s_and_b32 s46, s46, 0x7ff')
    a('s_sub_u32 s46, 2047, s46')
    a('s_mul_i32 s47, s46, 2560')
    a(f's_add_u32 s47, s47, {WS_CROWS}')
    a('s_lshl_b32 s48, s40, 7')
    a('s_add_u32 s48, s48, s47')
    a('v_lshlrev_b32 v12, 4, v3')
    a('buffer_load_dwordx4 v[16:19], v12, s[36:39], s48 offen')
    vm.issue('xs')
    a('buffer_load_dwordx4 v[20:23], v12, s[36:39], s48 offen offset:64')
    vm.issue('xs')
    a('s_cmp_lg_u32 s2, 0')
    a('s_cbranch_scc1 K3_NOFWD')
    a('v_lshlrev_b32 v13, 2, v0')
    a('s_lshl_b32 s49, s40, 8')
    a('s_add_u32 s50, s49, s47')
    a('buffer_load_dword v14, v13, s[36:39], s50 offen')
    a('v_mov_b32 v15, 0')
    a('buffer_load_dword v24, v15, s[36:39], s47 offen offset:2304')
    a(f's_add_u32 s49, s49, {WS_FIN}')
    a(f's_mov_b32 s51, {WS_FIN}')
    a('v_mov_b32 v25, s46')
    a('s_waitcnt vmcnt(0)')
    a('buffer_store_dword v14, v13, s[36:39], s49 offen')
    a('buffer_store_dwordx2 v[24:25], v15, s[36:39], s51 offen offset:2304')
    a.label('K3_NOFWD')
    a.flush_hist()
    a('v_bfe_u32 v13, v0, 2, 2')
    a('v_lshl_add_u32 v13, v3, 3, v13')
    a('v_and_b32 v6, 3, v0')
    a('v_lshlrev_b32 v14, 6, v13')
    a('v_lshl_add_u32 v14, v6, 3, v14')
    a('v_add_u32 v14, s44, v14')
    a('v_lshlrev_b32 v15, 7, v13')
    a('v_lshl_add_u32 v15, v6, 3, v15')
    a('v_add_u32 v15, s44, v15')
    a('v_cmp_eq_u32 s[52:53], 1, v3')
    a('v_cmp_eq_u32 s[54:55], 2, v3')
    a('v_cmp_eq_u32 s[56:57], 3, v3')
    a('s_waitcnt vmcnt(0)')
    vm.q = []
    WF = lambda n: 32 + 4 * n
    n = 0
    frs = []
    for kap in range(2):
        for tile in range(4):
            mat, nu = tile >> 1, tile & 1
            frs.append((kap, tile, mat * 4096 + kap * 2048 + nu * 32))
    for n in range(7):
        kap, tile, off = frs[n]
        for h in range(2):
            a(f'ds_read_b64_tr_b16 {vr(WF(n)+2*h,2)}, v14 offset:{off + h*256}')
            lg.issue(n)
    ACC = lambda t: 64 + 4 * t
    DF = lambda nu: 80 + 4 * nu
    for n, (kap, tile, off) in enumerate(frs):
        lg.wait(n)
        c = '0' if kap == 0 else vr(ACC(tile), 4)
        a(f'v_mfma_f32_16x16x32_bf16 {vr(ACC(tile),4)}, {vr(16+4*kap,4)}, {vr(WF(n),4)}, {c}')
        if n == 0:
            kap2, tile2, off2 = frs[7]
            for h in range(2):
                a(f'ds_read_b64_tr_b16 {vr(WF(7)+2*h,2)}, v14 offset:{off2 + h*256}')
                lg.issue(7)
        elif 1 <= n <= 4:
            nu = n - 1
            for h in range(2):
                a(f'ds_read_b64_tr_b16 {vr(DF(nu)+2*h,2)}, v15 offset:{8192 + nu*32 + h*512}')
                lg.issue('dn')
    a(f'v_cndmask_b32 v26, v{ACC(0)}, v{ACC(1)}, s[52:53]')
    a(f'v_cndmask_b32 v26, v26, v{ACC(2)}, s[54:55]')
    a(f'v_cndmask_b32 v26, v26, v{ACC(3)}, s[56:57]')
    a('v_lshlrev_b32 v27, 2, v0')
    a(f'v_add_u32 v27, {K3_LDS_RED}, v27')
    a('s_lshl_b32 s49, s40, 8')
    a('v_add_u32 v28, s49, v27')
    a('ds_write_b32 v28, v26')
    lg.wait_all()
    a('s_barrier')
    for w in range(9):
        a(f'ds_read_b32 v{32+w}, v27 offset:{w*256}')
    a('s_waitcnt lgkmcnt(0)')
    a('v_add_f32 v32, v32, v33')
    a('v_add_f32 v34, v34, v35')
    a('v_add_f32 v36, v36, v37')
    a('v_add_f32 v38, v38, v39')
    a('v_add_f32 v32, v32, v34')
    a('v_add_f32 v36, v36, v38')
    a('v_add_f32 v32, v32, v40')
    a('v_add_f32 v32, v32, v36')
    bfround(a, 32, 32)
    a('v_mul_f32 v33, 0xbfb8aa3b, v32')
    a('v_exp_f32 v33, v33')
    a('v_add_f32 v33, 1.0, v33')
    a('v_rcp_f32 v33, v33')
    a('v_mul_f32 v33, v33, v32')
    bfround(a, 33, 33)
    a('v_mov_b32 v34, v32')
    a('v_permlane32_swap_b32 v34, v32')
    a('v_mul_f32 v33, v33, v32')
    a('v_cvt_pk_bf16_f32 v33, v33, v33')
    a('s_lshl_b32 s49, s40, 6')
    a(f's_add_u32 s49, s49, {K3_LDS_ACT}')
    a('v_lshl_add_u32 v35, v0, 1, s49')
    a('v_lshl_add_u32 v36, v3, 4, s49')
    a('s_mov_b32 exec_hi, 0')
    a('ds_write_b16 v35, v33')
    a('s_mov_b64 exec, -1')
    a('s_waitcnt lgkmcnt(0)')
    a('ds_read_b128 v[40:43], v36')
    a('s_waitcnt lgkmcnt(0)')
    for nu in range(4):
        a(f'v_mfma_f32_16x16x32_bf16 {vr(ACC(nu),4)}, v[40:43], {vr(DF(nu),4)}, 0')
    a('s_mul_i32 s49, s2, 2304')
    a('s_lshl_b32 s50, s40, 8')
    a('s_add_u32 s49, s49, s50')
    a(f's_add_u32 s49, s49, {WS_PART}')
    a('v_lshlrev_b32 v27, 2, v0')
    a(f'v_cndmask_b32 v26, v{ACC(0)}, v{ACC(1)}, s[52:53]')
    a(f'v_cndmask_b32 v26, v26, v{ACC(2)}, s[54:55]')
    a(f'v_cndmask_b32 v26, v26, v{ACC(3)}, s[56:57]')
    a('buffer_store_dword v26, v27, s[36:39], s49 offen')
    a.label('K3_END')
    a('s_endpgm')


K4_LDS = 8 * 256


def gen_k4(a):
    kernel_head(a, 'k4_kernel')
    a('s_cmp_ge_u32 s2, 9')
    a('s_cbranch_scc1 K4_END')
    a('s_load_dwordx2 s[12:13], s[0:1], 80')
    a('s_load_dwordx2 s[14:15], s[0:1], 96')
    a('v_lshrrev_b32 v1, 6, v0')
    a('v_and_b32 v0, 63, v0')
    a('v_readfirstlane_b32 s40, v1')
    a('v_lshlrev_b32 v2, 2, v0')
    a('v_lshlrev_b32 v3, 1, v0')
    a('s_mul_i32 s41, s40, 41472')
    a('s_lshl_b32 s42, s2, 8')
    a('s_add_u32 s41, s41, s42')
    a(f's_add_u32 s41, s41, {WS_PART}')
    a('s_waitcnt lgkmcnt(0)')
    srd(a, 36, 14, WS_RANGE)
    for p in range(18):
        a(f'buffer_load_dword v{16+p}, v2, s[36:39], s41 offen')
        if p < 17:
            a('s_add_u32 s41, s41, 2304')
    a('s_lshl_b32 s43, s2, 7')
    a(f's_add_u32 s43, s43, {WS_FIN}')
    a(f's_mov_b32 s44, {WS_FIN}')
    a('v_mov_b32 v4, 0')
    a('v_mov_b32 v5, 0')
    a('v_mov_b32 v8, 0')
    a('buffer_load_short_d16_hi v4, v3, s[36:39], s43 offen')
    a('buffer_load_short_d16_hi v5, v3, s[36:39], s43 offen offset:1152')
    a('buffer_load_dwordx2 v[6:7], v8, s[36:39], s44 offen offset:2304')
    srd(a, 32, 12, X_BYTES)
    a('s_waitcnt vmcnt(3)')
    for st in (9,):
        for p in range(9):
            a(f'v_add_f32 v{16+p}, v{16+p}, v{25+p}')
    for p in range(4):
        a(f'v_add_f32 v{16+p}, v{16+p}, v{20+p}')
    a('v_add_f32 v16, v16, v18')
    a('v_add_f32 v17, v17, v19')
    a('v_add_f32 v16, v16, v24')
    a('v_add_f32 v16, v16, v17')
    a('s_lshl_b32 s45, s40, 8')
    a('v_add_u32 v9, s45, v2')
    a('ds_write_b32 v9, v16')
    a('s_waitcnt lgkmcnt(0)')
    a('s_barrier')
    a('s_cmp_lg_u32 s40, 0')
    a('s_cbranch_scc1 K4_END')
    for w in range(8):
        a(f'ds_read_b32 v{16+w}, v2 offset:{w*256}')
    a('s_waitcnt vmcnt(0)')
    bfround(a, 6, 6)
    a('v_mul_f32 v10, 0xbfb8aa3b, v6')
    a('v_exp_f32 v10, v10')
    a('v_add_f32 v10, 1.0, v10')
    a('v_rcp_f32 v10, v10')
    bfround(a, 10, 10)
    a('v_mul_u32_u24 v7, 1152, v7')
    a('v_add_u32 v7, v7, v3')
    a('s_lshl_b32 s43, s2, 7')
    a('s_waitcnt lgkmcnt(0)')
    for p in range(4):
        a(f'v_add_f32 v{16+p}, v{16+p}, v{20+p}')
    a('v_add_f32 v16, v16, v18')
    a('v_add_f32 v17, v17, v19')
    a('v_add_f32 v16, v16, v17')
    bfround(a, 16, 16)
    a('v_mul_f32 v16, v16, v10')
    bfround(a, 16, 16)
    a('v_add_f32 v16, v16, v4')
    bfround(a, 16, 16)
    a('v_add_f32 v16, v16, v5')
    a('v_cvt_pk_bf16_f32 v16, v16, v16')
    a('buffer_store_short v16, v7, s[32:35], s43 offen')
    a.label('K4_END')
    a('s_endpgm')


def main(path):
    a = Asm()
    hdr = [
        '; FNet (pre-LN) + Mixture-of-Depths top-1 SwiGLU block, gfx950. Generated by dev/gen.py.',
        f'; @launch kernel=k1_kernel grid=(192,1,1) block=(448,1,1) lds={K1_LDS}',
        f'; @launch kernel=k2_kernel grid=(256,1,1) block=(512,1,1) lds={K2_LDS}',
        f'; @launch kernel=k3_kernel grid=(144,1,1) block=(576,1,1) lds={K3_LDS}',
        f'; @launch kernel=k4_kernel grid=(9,1,1) block=(512,1,1) lds={K4_LDS}',
        '.amdgcn_target "amdgcn-amd-amdhsa--gfx950"',
        '.text',
    ]
    for h in hdr:
        a.raw(h)
    gen_k1(a)
    gen_k2(a)
    gen_k3(a)
    gen_k4(a)
    a.raw('.section .rodata,"a"')
    a.raw(descriptor('k1_kernel', 240, 64))
    a.raw(descriptor('k2_kernel', 168, 64))
    a.raw(descriptor('k3_kernel', 96, 64))
    a.raw(descriptor('k4_kernel', 40, 64))
    open(path, 'w').write(a.text())


if __name__ == '__main__':
    main(sys.argv[1] if len(sys.argv) > 1 else 'sequential_preLN__spectral_fnet__moe_arch_mod__prompt.s')
```

```python
import sys
from asmdsl import Asm, Cnt, vr, sr

S, D, F = 2048, 576, 4608
X_BYTES = S * D * 2
SEQ_BYTES = S * S * 2
HID_BYTES = D * D * 2
WG_BYTES = D * F * 2
WS_U = 0
WS_KEYS = 0x240000
WS_PART = WS_KEYS + 16384
WS_HN = WS_PART + 72 * 2304
WS_FILL_END = WS_HN + 128 * 1152
WS_H = 0x2a0000
WS_RANGE = 0x900000

KA = dict(x=0, sre=8, sim=16, hre=24, him=32, bx=40, wr=48, wg=56, wu=64, wd=72, out=80, dbg=88, ws=96)


def srd(a, d, b, nbytes):
    a(f's_mov_b32 s{d}, s{b}')
    a(f's_mov_b32 s{d+1}, s{b+1}')
    a(f's_mov_b32 s{d+2}, {nbytes}')
    a(f's_mov_b32 s{d+3}, 0x00020000')


def kernel_head(a, name):
    a.raw(f'.globl {name}')
    a.raw('.p2align 8')
    a.raw(f'.type {name},@function')
    a.label(name)
    a.flush_hist()


def descriptor(name, vgpr, sgpr):
    acc = (vgpr + 3) // 4 * 4
    return f'''.p2align 6
.amdhsa_kernel {name}
  .amdhsa_next_free_vgpr {vgpr}
  .amdhsa_next_free_sgpr {sgpr}
  .amdhsa_accum_offset {acc}
  .amdhsa_group_segment_fixed_size 0
  .amdhsa_kernarg_size 104
  .amdhsa_user_sgpr_count 2
  .amdhsa_user_sgpr_kernarg_segment_ptr 1
  .amdhsa_system_sgpr_workgroup_id_x 1
.end_amdhsa_kernel
'''


STAMP = False
OPT = dict(nt_x=1, nt_wd=1, nt_f=1, nt_tw=1, nt_w=1, nt_u=0, rot=1, pf=1, skip_f=0, skip_b=0, skip_x=0, ahead=2, warm=1, nt_pf=1, retouch=0, sc0=0, sleep=1, pfwait=1)


def nt(key):
    return ' nt' if OPT[key] else ''
WS_STAMP = 0x800000


def stamp(a, k):
    if STAMP:
        if k == 0:
            a('v_mov_b32 v1, 0')
        a('s_memrealtime s[92:93]')
        a('s_waitcnt lgkmcnt(0)')
        a(f'v_writelane_b32 v1, s92, {k}')


def stamp_flush(a, kern, n, wave_sgpr=40):
    if not STAMP:
        return
    a('s_mov_b64 exec, 0xffff')
    srd(a, 96, 14, WS_RANGE)
    a('s_lshl_b32 s95, s2, 4')
    a(f's_add_u32 s95, s95, s{wave_sgpr}')
    a('s_lshl_b32 s95, s95, 6')
    a(f's_add_u32 s95, s95, {WS_STAMP + kern*0x80000}')
    a('v_lshlrev_b32 v0, 2, v0')
    a('buffer_store_dword v1, v0, s[96:99], s95 offen')


def bfround(a, dst, src):
    a(f'v_cvt_pk_bf16_f32 v{dst}, v{src}, v{src}')
    a(f'v_and_b32 v{dst}, 0xffff0000, v{dst}')


K1_LDS_B = 73728
K1_LDS_F = 135168
K1_LDS_ST = 151552
K1_LDS = 152064
K1_GROUPS = [(0, 0, 0), (1, 0, 5), (None, 0, 1), (2, 0, 6), (None, 0, 2), (3, 0, 7), (None, 0, 3), (4, 1, 8), (None, 0, 4)]
K1_STAGES = [[0, 1], [2, 3], [4, 5], [6, 7], [8]]


def gen_k1(a):
    import struct
    kernel_head(a, 'k1_kernel')
    a('s_cmp_lt_u32 s2, 64')
    a('s_cbranch_scc1 K1_PF')
    a('s_cmp_ge_u32 s2, 256')
    a('s_cbranch_scc1 K1_END')
    a('s_load_dwordx8 s[4:11], s[0:1], 0')
    a('s_load_dwordx2 s[12:13], s[0:1], 32')
    a('s_load_dwordx2 s[14:15], s[0:1], 96')
    a('v_lshrrev_b32 v1, 6, v0')
    a('v_and_b32 v0, 63, v0')
    a('v_readfirstlane_b32 s40, v1')
    a('s_and_b32 s41, s2, 31')
    a('s_lshr_b32 s42, s2, 5')
    a('s_sub_u32 s42, s42, 2')
    a('v_and_b32 v2, 15, v0')
    a('v_lshrrev_b32 v3, 4, v0')
    a('v_lshrrev_b32 v8, 3, v0')
    a('v_and_b32 v9, 7, v0')
    a('v_xor_b32 v9, v9, v3')
    a('v_lshlrev_b32 v9, 4, v9')
    a('v_lshrrev_b32 v4, 1, v2')
    a('v_xor_b32 v4, v4, v3')
    a('v_lshlrev_b32 v4, 4, v4')
    a('v_lshl_add_u32 v4, v2, 7, v4')
    a('v_xor_b32 v5, 64, v4')
    a('s_cmp_ge_u32 s42, 3')
    a('s_cselect_b32 s43, 1, 0')
    stamp(a, 0)
    a('s_cmp_ge_u32 s40, 3')
    a('s_cbranch_scc1 K1_STATS')

    vm = Cnt(a, 'vmcnt', 63)
    lg = Cnt(a, 'lgkmcnt', 15)
    a('s_mul_i32 s44, s42, 3')
    a('s_add_u32 s44, s44, s40')
    a('s_mul_i32 s48, s40, 20480')
    a(f's_add_u32 s48, s48, {K1_LDS_B}')
    a('s_waitcnt lgkmcnt(0)')
    srd(a, 36, 14, WS_RANGE)
    XA, XB, BB, FB = 240, 242, 244, 246
    for b in range(2):
        a(f'v_mov_b32 v{XA+b}, v{4+b}')
        a(f'v_add_u32 v{XB+b}, 0x10000, v{4+b}')
        a(f'v_add_u32 v{BB+b}, s48, v{4+b}')
        a(f'v_add_u32 v{FB+b}, {K1_LDS_F}, v{4+b}')
    a('s_lshr_b32 s46, s41, 1')
    a('s_and_b32 s46, s46, 1')
    a('s_xor_b32 s46, s46, s44')
    a('s_lshl_b32 s46, s46, 6')
    a('s_mul_i32 s47, s41, 1152')
    a('s_add_u32 s46, s46, s47')
    a('v_mul_u32_u24 v7, 36864, v2')
    a('v_lshl_add_u32 v7, v3, 4, v7')
    a('v_add_u32 v7, s46, v7')
    a('v_lshlrev_b32 v8, 4, v3')
    a(f'v_add_u32 v8, {K1_LDS_ST}, v8')
    a('s_cmp_eq_u32 s43, 0')
    a('s_cselect_b32 s47, 1.0, -1.0')
    a('v_mov_b32 v10, s47')
    a('v_mov_b32 v11, s47')
    for r in range(12, 16):
        a(f'v_mov_b32 v{r}, 0x3f803f80')
    Bre = lambda k: 16 + 8 * k
    Bim = lambda k: 20 + 8 * k
    acc = lambda hf, i, ab: 88 + ((hf * 4 + i) * 2 + ab) * 4
    cacc = lambda ab: 152 + 4 * ab
    Abuf = lambda b, i: 160 + b * 16 + i * 4
    started = set()
    bufno = [0]
    Fregs = [Bre(k) for k in range(1, 8)] + [Bim(k) for k in range(1, 8)] + [248, 252]
    Freg = lambda f: Fregs[f]

    def rd_x(kk):
        b = bufno[0] % 3
        bufno[0] += 1
        c, par = kk >> 1, kk & 1
        for i in range(4):
            off = c * 8192 + i * 2048
            base = XA + par
            if off >= 65536:
                off -= 65536
                base = XB + par
            a(f'ds_read_b128 {vr(Abuf(b,i),4)}, v{base} offset:{off}')
            lg.issue(('x', kk))
        return b

    def rd_B(k):
        c, par = k >> 1, k & 1
        for part, reg in ((0, Bre(k)), (1, Bim(k))):
            a(f'ds_read_b128 {vr(reg,4)}, v{BB+par} offset:{(c*4 + part*2)*1024}')
            lg.issue(('B', k))

    def rd_F(f):
        it, kap, part = f >> 2, (f >> 1) & 1, f & 1
        a(f'ds_read_b128 {vr(Freg(f),4)}, v{FB+kap} offset:{(it*2+part)*2048}')
        lg.issue('F')

    def mf(dst, A, B):
        c = vr(dst, 4) if dst in started else '0'
        started.add(dst)
        a(f'v_mfma_f32_16x16x32_bf16 {vr(dst,4)}, {vr(A,4)}, {vr(B,4)}, {c}')

    haveB = set()
    for st, gs in enumerate(K1_STAGES):
        kks = [kk for gi in gs for kk in (2 * K1_GROUPS[gi][2], 2 * K1_GROUPS[gi][2] + 1)]
        if STAMP: lg.wait_all()
        stamp(a, 1 + 2 * st if st < 4 else 13)
        a('s_barrier')
        stamp(a, 2 + 2 * st if st < 4 else 14)
        bufs = {}

        def fetch(n):
            kk = kks[n]
            k = kk % 9
            if k not in haveB:
                haveB.add(k)
                rd_B(k)
            bufs[n] = rd_x(kk)
        G = len(kks)
        for n in range(min(2, G)):
            fetch(n)
        fq = list(range(16)) if st == len(K1_STAGES) - 1 else []
        for n, kk in enumerate(kks):
            k, hf = kk % 9, kk // 9
            lg.wait(('x', kk))
            b = bufs[n]
            for i in range(4):
                mf(acc(hf, i, 0), Abuf(b, i), Bre(k))
                mf(acc(hf, i, 1), Abuf(b, i), Bim(k))
                if i == 1 and n + 2 < G:
                    fetch(n + 2)
                if fq and len(lg.q) < 13:
                    rd_F(fq.pop(0)); rd_F(fq.pop(0))
            if hf == 0:
                mf(cacc(0), 12, Bre(k))
                mf(cacc(1), 12, Bim(k))
        while fq:
            if len(lg.q) >= 13:
                lg.wait_all()
            rd_F(fq.pop(0)); rd_F(fq.pop(0))
    lg.wait_all()
    stamp(a, 9)
    a('s_barrier')
    stamp(a, 10)
    for i in range(4):
        a(f'ds_read_b128 {vr(208+4*i,4)}, v8 offset:{i*64}')
        lg.issue('st')
        a(f'ds_read_b128 {vr(224+4*i,4)}, v8 offset:{256+i*64}')
        lg.issue('st')
    for i in range(4):
        for ab in range(2):
            for h in range(2):
                d = acc(0, i, ab) + 2 * h
                s1 = acc(1, i, ab) + 2 * h
                a(f'v_pk_fma_f32 {vr(d,2)}, {vr(s1,2)}, v[10:11], {vr(d,2)}')
    lg.wait('st')
    for i in range(4):
        for ab in range(2):
            for h in range(2):
                t = acc(1, i, ab) + 2 * h
                a(f'v_pk_mul_f32 {vr(t,2)}, {vr(224+4*i+2*h,2)}, {vr(cacc(ab),2)}')
    for i in range(4):
        for ab in range(2):
            for h in range(2):
                d = acc(0, i, ab) + 2 * h
                t = acc(1, i, ab) + 2 * h
                a(f'v_pk_fma_f32 {vr(d,2)}, {vr(208+4*i+2*h,2)}, {vr(d,2)}, {vr(t,2)} neg_lo:[0,0,1] neg_hi:[0,0,1]')
    za = lambda kap: 160 + 4 * kap
    zb = lambda kap: 168 + 4 * kap
    znb = lambda kap: 176 + 4 * kap
    for kap in range(2):
        for ab, z in ((0, za), (1, zb)):
            for hh in range(2):
                src = acc(0, 2 * kap + hh, ab)
                a(f'v_cvt_pk_bf16_f32 v{z(kap)+2*hh}, v{src}, v{src+1}')
                a(f'v_cvt_pk_bf16_f32 v{z(kap)+2*hh+1}, v{src+2}, v{src+3}')
    for r in range(8):
        a(f'v_xor_b32 v{176+r}, 0x80008000, v{168+r}')
    out = lambda it, c: 88 + (it * 2 + c) * 4
    started.clear()
    Fidx = lambda it, kap, part: (it * 2 + kap) * 2 + part
    for it in range(1, 4):
        a(f's_mov_b32 s{59+it}, {it*16*36864}')
    for itp in range(2):
        for kap in range(2):
            for it in (2 * itp, 2 * itp + 1):
                mf(out(it, 0), za(kap), Freg(Fidx(it, kap, 0)))
                mf(out(it, 1), za(kap), Freg(Fidx(it, kap, 1)))
            for it in (2 * itp, 2 * itp + 1):
                mf(out(it, 0), znb(kap), Freg(Fidx(it, kap, 1)))
                mf(out(it, 1), zb(kap), Freg(Fidx(it, kap, 0)))
    for it in range(4):
        d = 184 + 4 * it
        a(f'v_cvt_pk_bf16_f32 v{d}, v{out(it,0)}, v{out(it,0)+1}')
        a(f'v_cvt_pk_bf16_f32 v{d+1}, v{out(it,0)+2}, v{out(it,0)+3}')
        a(f'v_cvt_pk_bf16_f32 v{d+2}, v{out(it,1)}, v{out(it,1)+1}')
        a(f'v_cvt_pk_bf16_f32 v{d+3}, v{out(it,1)+2}, v{out(it,1)+3}')
        so = '0' if it == 0 else f's{59+it}'
        a(f'buffer_store_dwordx4 {vr(d,4)}, v7, s[36:39], {so} offen')
    stamp(a, 11)
    if STAMP: a('s_waitcnt vmcnt(0)')
    stamp(a, 12)
    stamp_flush(a, 0, 15)
    a('s_endpgm')

    a.label('K1_STATS')
    a.flush_hist()
    vm = Cnt(a, 'vmcnt', 63)
    lg = Cnt(a, 'lgkmcnt', 15)
    a('s_sub_u32 s44, s40, 3')
    a('s_lshr_b32 s45, s44, 1')
    a('s_lshl_b32 s45, s45, 5')
    a('s_and_b32 s46, s44, 1')
    a('s_lshl_b32 s46, s46, 2')
    a('s_add_u32 s45, s45, s46')
    a('v_lshrrev_b32 v6, 2, v8')
    a('v_lshlrev_b32 v6, 3, v6')
    a('v_and_b32 v10, 3, v8')
    a('v_add3_u32 v6, v6, v10, s45')
    a('v_mul_u32_u24 v6, 36864, v6')
    a('s_mul_i32 s47, s41, 1152')
    a('v_xor_b32 v10, 64, v9')
    a('v_add_u32 v7, s47, v6')
    a('v_add_u32 v6, v7, v9')
    a('v_add_u32 v7, v7, v10')
    a(f'v_add_u32 v7, {16*36864}, v7')
    a('s_lshl_b32 s46, s44, 4')
    a('v_add_u32 v14, s46, v8')
    a('v_lshlrev_b32 v14, 17, v14')
    a('v_add_u32 v15, v14, v10')
    a('v_add_u32 v14, v14, v9')
    a(f'v_add_u32 v15, {8*131072}, v15')
    a('s_lshl_b32 s48, s44, 11')
    a('s_lshl_b32 s49, s44, 12')
    a('v_add_u32 v4, s48, v4')
    a('v_add_u32 v5, s48, v5')
    a('s_mul_i32 s50, s42, 3')
    a('s_mul_i32 s51, s43, 9')
    a('s_sub_u32 s50, s50, s51')
    a('s_lshl_b32 s50, s50, 5')
    a('s_add_u32 s50, s50, s43')
    a('s_and_b32 s51, s44, 1')
    a('s_lshl_b32 s52, s51, 4')
    a('s_add_u32 s50, s50, s52')
    a('v_lshl_add_u32 v40, v8, 1, s50')
    a('s_lshl_b32 s52, s51, 6')
    a('v_xor_b32 v43, s52, v9')
    a('v_mul_u32_u24 v41, 1152, v40')
    a('v_cmp_eq_u32 vcc, 0, v40')
    a(f'v_mov_b32 v42, {288*1152}')
    a('v_cndmask_b32 v40, v41, v42, vcc')
    a('v_add_u32 v40, v40, v43')
    a('v_add_u32 v41, v41, v43')
    a('v_add_u32 v42, 73728, v41')
    a('v_add_u32 v41, 36864, v41')
    a('s_lshl_b32 s53, s44, 10')
    a(f's_add_u32 s53, s53, {K1_LDS_B}')
    a('s_waitcnt lgkmcnt(0)')
    srd(a, 16, 4, X_BYTES)
    a('s_cmp_ge_u32 s44, 2')
    a('s_cselect_b32 s28, s12, s10')
    a('s_cselect_b32 s29, s13, s11')
    a(f's_mov_b32 s30, {HID_BYTES}')
    a('s_mov_b32 s31, 0x00020000')
    srd(a, 20, 6, SEQ_BYTES)
    srd(a, 24, 8, SEQ_BYTES)

    def issue(st):
        for gi in K1_STAGES[st]:
            cb, withF, c = K1_GROUPS[gi]
            if cb is not None:
                for w in range(3):
                    a(f's_add_u32 m0, s53, {w*20480 + cb*4096 - cb*128}')
                    a(f'buffer_load_dwordx4 v{40+w}, s[28:31], 0 offen offset:{cb*128}{nt("nt_wd")} lds')
                    vm.issue(st)
            for hh in range(2):
                a(f's_add_u32 m0, s48, {c*8192 + hh*1024 - c*128}')
                a(f'buffer_load_dwordx4 v{6+hh}, s[16:19], 0 offen offset:{c*128}{nt("nt_x")} lds')
                vm.issue(st)
            if withF:
                for part in range(2):
                    for hh in range(2):
                        a(f's_add_u32 m0, s49, {K1_LDS_F + (part*2+hh)*1024}')
                        a(f'buffer_load_dwordx4 v{14+hh}, s[{20+4*part}:{23+4*part}], 0 offen{nt("nt_f")} lds')
                        vm.issue(st)
    NS = len(K1_STAGES)
    AH = OPT['ahead']
    for st in range(min(AH, NS)):
        issue(st)
    stamp(a, 11)
    a('v_add_u32 v44, 0x10000, v4')
    a('v_add_u32 v45, 0x10000, v5')
    a('v_mov_b32 v12, 0x3f803f80')
    for r in range(8, 12):
        a(f'v_mov_b32 v{r}, 0')
    for st, gs in enumerate(K1_STAGES):
        vm.wait(st)
        stamp(a, 1 + 2 * st if st < 4 else 13)
        a('s_barrier')
        stamp(a, 2 + 2 * st if st < 4 else 14)
        regs = []
        n = 0
        for gi in gs:
            c = K1_GROUPS[gi][2]
            for par in range(2):
                off = c * 8192
                base = 4 + par
                if off >= 65536:
                    off -= 65536
                    base = 44 + par
                d = 16 + 4 * n
                a(f'ds_read_b128 {vr(d,4)}, v{base} offset:{off}')
                lg.issue(n)
                regs.append(d)
                n += 1
        if st + AH < NS:
            issue(st + AH)
        for n, d in enumerate(regs):
            lg.wait(n)
            for r in range(4):
                a(f'v_dot2c_f32_bf16 v{8+(r&1)}, v{d+r}, v12')
                a(f'v_dot2c_f32_bf16 v{10+(r&1)}, v{d+r}, v{d+r}')
    stamp(a, 12)
    a('v_add_f32 v8, v8, v9')
    a('v_add_f32 v10, v10, v11')
    for sw in ('v_permlane16_swap_b32', 'v_permlane32_swap_b32'):
        a('v_mov_b32 v9, v8')
        a('v_mov_b32 v11, v10')
        a(f'{sw} v9, v8')
        a(f'{sw} v11, v10')
        a('v_add_f32 v8, v8, v9')
        a('v_add_f32 v10, v10, v11')
    invb = struct.unpack('<I', struct.pack('<f', 1.0 / 576.0))[0]
    epsb = struct.unpack('<I', struct.pack('<f', 1e-5))[0]
    a(f'v_mul_f32 v8, 0x{invb:08x}, v8')
    a(f'v_mul_f32 v10, 0x{invb:08x}, v10')
    a('v_fma_f32 v10, -v8, v8, v10')
    a('v_max_f32 v10, 0, v10')
    bfround(a, 10, 10)
    a(f'v_add_f32 v10, 0x{epsb:08x}, v10')
    bfround(a, 10, 10)
    a('v_sqrt_f32 v10, v10')
    bfround(a, 10, 10)
    a('v_rcp_f32 v10, v10')
    a('s_cmp_eq_u32 s43, 0')
    a('s_cselect_b32 s47, 2.0, 0')
    a('v_mul_f32 v8, v8, v10')
    a('v_mul_f32 v8, s47, v8')
    a('s_lshl_b32 s46, s44, 6')
    a(f's_add_u32 s46, s46, {K1_LDS_ST}')
    a('v_lshl_add_u32 v9, v2, 2, s46')
    a('s_mov_b64 exec, 0xffff')
    a('ds_write_b32 v9, v10')
    a('ds_write_b32 v9, v8 offset:256')
    a('s_waitcnt lgkmcnt(0)')
    stamp(a, 9)
    a('s_barrier')
    stamp(a, 10)
    stamp_flush(a, 0, 15)
    a.label('K1_END')
    a('s_endpgm')
    a.label('K1_PF')
    a.flush_hist()
    a('s_load_dwordx8 s[4:11], s[0:1], 0')
    a('s_load_dwordx2 s[12:13], s[0:1], 32')
    a('s_load_dwordx4 s[44:47], s[0:1], 56')
    a('s_load_dwordx2 s[64:65], s[0:1], 72')
    a('s_load_dwordx2 s[14:15], s[0:1], 96')
    a('s_and_b32 s41, s2, 7')
    a('s_lshr_b32 s42, s2, 3')
    a('s_mov_b32 s43, 0x1c72')
    a('v_mov_b32 v6, 0x7ffffff0')
    a('v_add_u32 v1, 448, v0')
    for r in (0, 1):
        a(f'v_mul_u32_u24 v{2+r}, s43, v{r}')
        a(f'v_lshrrev_b32 v{2+r}, 16, v{2+r}')
        a(f'v_mul_u32_u24 v{4+r}, 9, v{2+r}')
        a(f'v_sub_u32 v{4+r}, v{r}, v{4+r}')
    if OPT['warm']:
        a('s_lshl_b32 s48, s42, 8')
        a('s_add_u32 s48, s48, s41')
        a('s_mul_i32 s48, s48, 1152')
        a('v_mul_u32_u24 v8, 9216, v2')
        a('v_lshl_add_u32 v8, v4, 7, v8')
        a('v_cmp_gt_u32 vcc, 288, v0')
        a('v_cndmask_b32 v8, v6, v8, vcc')
        a('v_subrev_u32 v9, 224, v0')
        a('v_cmp_gt_u32 vcc, 224, v0')
        a('v_cndmask_b32 v9, v9, v0, vcc')
        a('s_mov_b32 s49, 0x3334')
        a('v_mul_u32_u24 v10, s49, v9')
        a('v_lshrrev_b32 v10, 16, v10')
        a('v_mul_u32_u24 v11, 5, v10')
        a('v_sub_u32 v11, v9, v11')
        a('v_mul_u32_u24 v10, 1152, v10')
        a('v_lshl_add_u32 v10, v11, 7, v10')
        a('s_movk_i32 s53, 180')
        a('v_cmp_gt_u32 s[50:51], s53, v9')
        a('v_cndmask_b32 v10, v6, v10, s[50:51]')
        a('v_cndmask_b32 v11, v10, v6, vcc')
        a('v_cndmask_b32 v10, v6, v10, vcc')
        a('s_mul_i32 s49, s42, 41472')
        a('s_add_u32 s49, s49, 1152')
        a('v_lshlrev_b32 v12, 17, v0')
        a('v_cmp_gt_u32 vcc, 8, v0')
        a('v_cndmask_b32 v12, v6, v12, vcc')
        a('s_lshl_b32 s52, s42, 20')
    a('s_mul_i32 s66, s41, 663552')
    a('s_mul_i32 s67, s42, 82944')
    a('s_add_u32 s66, s66, s67')
    a('v_lshlrev_b32 v14, 7, v0')
    a('v_lshlrev_b32 v15, 7, v1')
    a('s_mul_i32 s41, s41, 1152')
    a('s_mul_i32 s42, s42, 663552')
    a('s_add_u32 s41, s41, s42')
    for r in (0, 1):
        a(f'v_mul_u32_u24 v{2+r}, 9216, v{2+r}')
        a(f'v_lshl_add_u32 v{2+r}, v{4+r}, 7, v{2+r}')
    a('v_cmp_gt_u32 vcc, 648, v1')
    a('v_cndmask_b32 v3, v6, v3, vcc')
    a('v_cndmask_b32 v15, v6, v15, vcc')
    a('s_waitcnt lgkmcnt(0)')
    if OPT['warm']:
        srd(a, 16, 4, X_BYTES)
        srd(a, 28, 10, HID_BYTES)
        srd(a, 32, 12, HID_BYTES)
        a(f'buffer_load_dword v16, v10, s[28:31], s49 offen{nt("nt_wd")}')
        a(f'buffer_load_dword v17, v11, s[32:35], s49 offen{nt("nt_wd")}')
        a(f'buffer_load_dword v18, v8, s[16:19], s48 offen{nt("nt_x")}')
        srd(a, 20, 6, SEQ_BYTES)
        srd(a, 24, 8, SEQ_BYTES)
        a(f'buffer_load_dword v19, v12, s[20:23], s52 offen{nt("nt_f")}')
        a(f'buffer_load_dword v20, v12, s[24:27], s52 offen{nt("nt_f")}')
    srd(a, 60, 14, WS_FILL_END)
    a('s_mul_i32 s54, s2, 7168')
    a(f's_add_u32 s54, s54, {WS_KEYS}')
    a('v_lshlrev_b32 v13, 4, v0')
    for r in range(28, 32):
        a(f'v_mov_b32 v{r}, -1')
    a('buffer_store_dwordx4 v[28:31], v13, s[60:63], s54 offen')
    if OPT['pf']:
        if OPT['pfwait']:
            a('s_waitcnt vmcnt(0)')
        srd(a, 36, 44, WG_BYTES)
        srd(a, 56, 46, WG_BYTES)
        srd(a, 68, 64, WG_BYTES)
        for rep in range(2 if OPT['retouch'] else 1):
            m = nt('nt_pf') if rep == 0 else ''
            a(f'buffer_load_dword v21, v2, s[36:39], s41 offen{m}')
            a(f'buffer_load_dword v22, v2, s[56:59], s41 offen{m}')
            a(f'buffer_load_dword v23, v3, s[36:39], s41 offen{m}')
            a(f'buffer_load_dword v24, v3, s[56:59], s41 offen{m}')
            if OPT['pf'] == 2:
                a(f'buffer_load_dword v25, v14, s[68:71], s66 offen{m}')
                a(f'buffer_load_dword v26, v15, s[68:71], s66 offen{m}')
            if OPT['retouch'] and rep == 0:
                a('s_waitcnt vmcnt(0)')
    a('s_endpgm')


K2_LDS_Y = 73728
K2_YS = 1168
K2_LDS_C = K2_LDS_Y + 16 * K2_YS
K2_LDS_T = K2_LDS_C + 64
K2_LDS_X = K2_LDS_T + 4096
K2_LDS_WR = K2_LDS_X + 16 * 1152
K2_ROW_LDS = K2_LDS_WR + 1152
K2_LDS_XS = 9 * 16384
K2_LDS_RED = K2_LDS_XS + 1280
K2_LDS_ACT = K2_LDS_RED + 9 * 512
K2_LDS = K2_LDS_ACT + 9 * 128
SPIN_LIMIT = 400000
NROWWG, NFFNWG, NPFWG, NFINWG = 128, 72, 48, 9
FIN0 = NROWWG + NFFNWG + NPFWG


def dpp_reduce(a, op, regs, rows_only=False):
    for m in ('row_shr:1', 'row_shr:2', 'row_shr:4', 'row_shr:8'):
        for r in regs:
            a(f'{op}_dpp v{r}, v{r}, v{r} {m} row_mask:0xf bank_mask:0xf')
    if rows_only:
        return
    for r in regs:
        a(f'{op}_dpp v{r}, v{r}, v{r} row_bcast:15 row_mask:0xa bank_mask:0xf')
    for r in regs:
        a(f'{op}_dpp v{r}, v{r}, v{r} row_bcast:31 row_mask:0xc bank_mask:0xf')


def gen_k2(a):
    import struct
    SC = ' sc0 sc1' if OPT['sc0'] else ' sc1'
    kernel_head(a, 'k2_kernel')
    vm = Cnt(a, 'vmcnt', 63)
    lg = Cnt(a, 'lgkmcnt', 15)
    a(f's_cmp_ge_u32 s2, {FIN0 + NFINWG}')
    a('s_cbranch_scc1 K2_END')
    a('s_load_dwordx4 s[4:7], s[0:1], 0')
    a('s_load_dwordx2 s[8:9], s[0:1], 16')
    a('s_load_dwordx2 s[14:15], s[0:1], 96')
    a('s_load_dwordx8 s[64:71], s[0:1], 48')
    a('s_load_dwordx2 s[12:13], s[0:1], 80')
    a('v_lshrrev_b32 v1, 6, v0')
    a('v_and_b32 v0, 63, v0')
    a('v_readfirstlane_b32 s40, v1')
    a('v_lshlrev_b32 v4, 4, v0')
    a('v_and_b32 v2, 15, v0')
    a('v_lshrrev_b32 v3, 4, v0')
    a('v_lshlrev_b32 v12, 1, v0')
    a('v_add_u32 v5, 1024, v4')
    a(f's_cmp_ge_u32 s2, {NROWWG}')
    a('s_cbranch_scc1 K2_OTHER')
    a('s_and_b32 s41, s2, 31')
    a('s_lshr_b32 s42, s2, 5')
    a('s_sub_u32 s43, 64, s41')
    a('s_cmp_eq_u32 s41, 0')
    a('s_cselect_b32 s43, 32, s43')
    a('s_sub_u32 s45, s40, 6')
    a('s_cmp_lt_u32 s40, 6')
    a('s_cselect_b32 s44, s41, s43')
    a('s_cselect_b32 s45, s40, s45')
    a('s_mul_i32 s44, s44, 36864')
    a('s_mul_i32 s45, s45, 6144')
    a('s_add_u32 s44, s44, s45')
    a('s_mul_i32 s45, s40, 6144')
    a('s_lshr_b32 s56, s42, 1')
    a('s_add_u32 s56, s56, s42')
    a('s_lshl_b32 s56, s56, 10')
    a('s_waitcnt lgkmcnt(0)')
    stamp(a, 0)
    srd(a, 36, 14, WS_RANGE)
    a('s_cmp_ge_u32 s40, 12')
    a('s_cbranch_scc1 K2_NOU')
    for n in range(6):
        a('s_add_u32 m0, s45, s56')
        a('s_add_u32 s57, s44, s56')
        a(f'buffer_load_dwordx4 v4, s[36:39], s57 offen{nt("nt_u")} lds')
        if n < 5:
            a('s_add_u32 s56, s56, 1024')
            a('s_cmp_eq_u32 s56, 6144')
            a('s_cselect_b32 s56, 0, s56')
    a.label('K2_NOU')
    a.flush_hist()
    a('v_cmp_lt_u32 vcc, 7, v2')
    a('s_cmp_eq_u32 s41, 0')
    a('s_cbranch_scc1 K2_P0')
    a('v_and_b32 v8, 7, v2')
    a('s_lshl_b32 s46, s42, 3')
    a('v_add_u32 v8, s46, v8')
    a('v_lshl_add_u32 v6, v8, 6, s41')
    a('v_sub_u32 v8, 2048, v6')
    a('v_cndmask_b32 v6, v6, v8, vcc')
    a('v_xor_b32 v7, 8, v2')
    a('s_branch K2_ROWS')
    a.label('K2_P0')
    a.flush_hist()
    a('v_bfe_u32 v8, v2, 1, 2')
    a('s_lshl_b32 s46, s42, 2')
    a('v_add_u32 v8, s46, v8')
    a('v_sub_u32 v9, 32, v8')
    a('v_sub_u32 v10, 31, v8')
    a('v_cndmask_b32 v9, v9, v10, vcc')
    a('v_mov_b32 v11, 0')
    a('v_cndmask_b32 v11, v11, 32, vcc')
    a('v_cmp_eq_u32 vcc, 32, v9')
    a('v_cndmask_b32 v9, v9, 16, vcc')
    a('v_xor_b32 v7, 1, v2')
    a('v_cndmask_b32 v7, v7, v2, vcc')
    a('v_and_b32 v10, 1, v2')
    a('v_cmp_eq_u32 vcc, 1, v10')
    a('v_cndmask_b32 v8, v8, v9, vcc')
    a('v_lshl_add_u32 v6, v8, 6, v11')
    a.label('K2_ROWS')
    a.flush_hist()
    a('v_and_b32 v9, 1, v3')
    a(f'v_add_u32 v89, {K2_LDS_T}, v4')
    a('v_readlane_b32 s46, v6, s40')
    a('v_readlane_b32 s47, v7, s40')
    T = lambda cls, kap: 32 + (cls * 2 + kap) * 4
    TW = lambda kap, part: 16 + (kap * 2 + part) * 4
    a('s_cmp_lg_u32 s40, 15')
    a('s_cbranch_scc1 K2_NOTW')
    a('v_lshrrev_b32 v8, 1, v3')
    a('v_lshlrev_b32 v8, 4, v8')
    a('v_lshl_add_u32 v8, v9, 2, v8')
    a('v_lshl_add_u32 v8, v6, 12, v8')
    srd(a, 16, 6, SEQ_BYTES)
    srd(a, 20, 8, SEQ_BYTES)
    for kap in range(2):
        for part in range(2):
            a(f'buffer_load_dwordx3 {vr(TW(kap,part),3)}, v8, s[{16+4*part}:{19+4*part}], 0 offen offset:{kap*32}{nt("nt_tw")}')
    a.label('K2_NOTW')
    a.flush_hist()
    srd(a, 24, 4, X_BYTES)
    XR = lambda k: 100 + k
    WR = lambda k: 110 + k
    a('s_mul_i32 s48, s46, 1152')
    a('s_mul_i32 s49, s40, 1152')
    a(f's_add_u32 s49, s49, {K2_LDS_X}')
    a('s_mov_b32 m0, s49')
    a('v_add_u32 v96, s49, v12')
    a(f'buffer_load_dwordx4 v4, s[24:27], s48 offen{nt("nt_x")} lds')
    a('s_mov_b64 exec, 0xff')
    a(f'buffer_load_dwordx4 v4, s[24:27], s48 offen offset:1024{nt("nt_x")} lds')
    a('s_mov_b64 exec, -1')
    a('s_cmp_lg_u32 s40, 14')
    a('s_cbranch_scc1 K2_NOWR')
    srd(a, 28, 64, D * 2)
    a(f's_mov_b32 m0, {K2_LDS_WR}')
    a('s_nop 0')
    a('buffer_load_dwordx4 v4, s[28:31], 0 offen lds')
    a('s_mov_b64 exec, 0xff')
    a('buffer_load_dwordx4 v4, s[28:31], 0 offen offset:1024 lds')
    a('s_mov_b64 exec, -1')
    a.label('K2_NOWR')
    a.flush_hist()
    a(f'v_add_u32 v97, {K2_LDS_WR}, v12')
    for k in range(10):
        a(f'v_mov_b32 v{XR(k)}, 0')
        a(f'v_mov_b32 v{WR(k)}, 0')
    srd(a, 32, 12, X_BYTES)
    a('v_and_b32 v10, 1, v0')
    a('v_mul_u32_u24 v10, 576, v10')
    a('v_lshrrev_b32 v11, 1, v0')
    a('v_lshl_add_u32 v90, v11, 2, v10')
    a(f's_mul_i32 s49, s40, {K2_YS}')
    a(f's_add_u32 s49, s49, {K2_LDS_Y}')
    a('v_add_u32 v90, s49, v90')
    a('v_add_u32 v11, 1, v0')
    a('v_lshrrev_b32 v11, 1, v11')
    a('v_sub_u32 v11, 32, v11')
    a('v_lshl_add_u32 v91, v11, 2, v10')
    a(f's_mul_i32 s50, s47, {K2_YS}')
    a(f's_add_u32 s50, s50, {K2_LDS_Y}')
    a('v_add_u32 v91, s50, v91')
    a('v_cmp_lt_u32 vcc, 32, v0')
    a('v_cndmask_b32 v92, v90, v91, vcc')
    a('v_add_u32 v92, 512, v92')
    a('v_mov_b32 v11, s49')
    a('v_cmp_eq_u32 vcc, 32, v0')
    a('v_cndmask_b32 v92, v92, v11, vcc')
    a('v_lshrrev_b32 v13, 1, v3')
    a('v_lshlrev_b32 v13, 3, v13')
    a('v_lshl_add_u32 v13, v9, 1, v13')
    a('v_bfe_u32 v10, v0, 3, 1')
    a('v_add_u32 v13, v13, v10')
    a('v_mul_u32_u24 v13, 1152, v13')
    a('v_and_b32 v10, 3, v0')
    a('v_lshl_add_u32 v13, v10, 4, v13')
    a('v_bfe_u32 v10, v0, 2, 1')
    a('v_lshl_add_u32 v13, v10, 3, v13')
    a('s_lshl_b32 s49, s40, 7')
    a('v_add_u32 v13, s49, v13')
    a('v_lshl_add_u32 v13, v9, 6, v13')
    a('v_xor_b32 v11, 64, v13')
    a(f'v_mul_u32_u24 v14, {K2_YS}, v2')
    a('v_lshl_add_u32 v14, v3, 4, v14')
    a(f's_add_u32 s49, s49, {K2_LDS_Y}')
    a('v_add_u32 v14, s49, v14')
    a('s_mul_i32 s54, s40, 3456')
    a('v_add_u32 v93, s54, v12')
    a('v_add_u32 v94, s54, v4')
    stamp(a, 1)
    a('s_cmp_lg_u32 s40, 15')
    a('s_cbranch_scc1 K2_NOTW2')
    a('s_mov_b32 s50, 0x05040100')
    a('s_mov_b32 s51, 0x07060302')
    a('v_cmp_gt_u32 s[52:53], 8, v2')
    a('s_waitcnt vmcnt(2)')
    for kap in range(2):
        cr, ci = TW(kap, 0), TW(kap, 1)
        a(f'v_xor_b32 v{ci}, 0x80008000, v{ci}')
        a(f'v_xor_b32 v{ci+2}, 0x80008000, v{ci+2}')
        t = 48
        a(f'v_perm_b32 v{t}, v{ci}, v{cr}, s50')
        a(f'v_perm_b32 v{t+1}, v{ci}, v{cr}, s51')
        a(f'v_perm_b32 v{t+2}, v{ci+2}, v{cr+2}, s50')
        a(f'v_perm_b32 v{t+3}, v{ci+2}, v{cr+2}, s51')
        for r in range(4):
            a(f'v_cndmask_b32 v{T(0,kap)+r}, 0, v{t+r}, s[52:53]')
            a(f'v_cndmask_b32 v{T(1,kap)+r}, v{t+r}, 0, s[52:53]')
    for cls in range(2):
        for kap in range(2):
            a(f'ds_write_b128 v89, {vr(T(cls,kap),4)} offset:{(cls*2+kap)*1024}')
    a.label('K2_NOTW2')
    a.flush_hist()
    a('s_waitcnt vmcnt(0) lgkmcnt(0)')
    stamp(a, 2)
    a('s_barrier')
    stamp(a, 3)
    a('s_cmp_ge_u32 s40, 9')
    a('s_cbranch_scc1 K2_SKIPMM')
    UF = lambda slot: 56 + 4 * slot
    ACC = lambda jj: 48 + 4 * jj
    order = [(jj, cls, kap) for cls in range(2) for kap in range(2) for jj in range(2)]

    def rd(n):
        jj, cls, kap = order[n]
        for h in range(2):
            off = cls * 36864 + kap * 18432 + h * 4608
            a(f'ds_read_b64_tr_b16 {vr(UF(n)+2*h,2)}, v{13 if jj == 0 else 11} offset:{off}')
            lg.issue(n)

    def rdT(cls, kap):
        a(f'ds_read_b128 {vr(T(cls,kap),4)}, v89 offset:{(cls*2+kap)*1024}')
        lg.issue(('T', cls, kap))
    rdT(0, 0); rd(0); rd(1); rdT(0, 1); rd(2); rd(3); rdT(1, 0); rd(4)
    nxt = [lambda: rd(5), lambda: (rdT(1, 1), rd(6)), lambda: rd(7)]
    for n, (jj, cls, kap) in enumerate(order):
        lg.wait(n)
        c = '0' if (cls == 0 and kap == 0) else vr(ACC(jj), 4)
        a(f'v_mfma_f32_16x16x32_bf16 {vr(ACC(jj),4)}, {vr(UF(n),4)}, {vr(T(cls,kap),4)}, {c}')
        if n < 3:
            nxt[n]()
    for jj in range(2):
        a(f'ds_write_b128 v14, {vr(ACC(jj),4)} offset:{jj*64}')
    a.label('K2_SKIPMM')
    a.flush_hist()
    for k in range(9):
        a(f'ds_read_u16_d16_hi v{WR(k)}, v97 offset:{k*128}')
    a('s_waitcnt lgkmcnt(0)')
    for k in range(9):
        a(f'ds_read_u16_d16_hi v{XR(k)}, v96 offset:{k*128}')
    a(f'v_pk_add_f32 v[84:85], {vr(WR(0),2)}, {vr(WR(2),2)}')
    a(f'v_pk_add_f32 v[86:87], {vr(WR(4),2)}, {vr(WR(6),2)}')
    a(f'v_pk_add_f32 v[84:85], v[84:85], {vr(WR(8),2)}')
    a('v_pk_add_f32 v[84:85], v[84:85], v[86:87]')
    a('v_add_f32 v85, v84, v85')
    dpp_reduce(a, 'v_add_f32', [85])
    a('v_mov_b32 v73, 0')
    a('s_waitcnt lgkmcnt(0)')
    stamp(a, 4)
    a('s_barrier')
    stamp(a, 5)
    YR = lambda k: 64 + k
    for k in range(9):
        if k < 4:
            a(f'ds_read_b32 v{YR(k)}, v90 offset:{k*128}')
        elif k == 4:
            a(f'ds_read_b32 v{YR(k)}, v92')
        else:
            a(f'ds_read_b32 v{YR(k)}, v91 offset:{(8-k)*128}')
    a('s_waitcnt lgkmcnt(0)')
    stamp(a, 6)
    a(f'v_writelane_b32 v{YR(0)}, 0, 0')
    for j in range(5):
        a(f'v_pk_add_f32 {vr(YR(2*j),2)}, {vr(YR(2*j),2)}, {vr(XR(2*j),2)}')
    HP = lambda j: 76 + j
    H = lambda k: 64 + k
    for j in range(5):
        a(f'v_cvt_pk_bf16_f32 v{HP(j)}, v{YR(2*j)}, v{YR(2*j+1)}')
    for j in range(5):
        a(f'v_lshlrev_b32 v{H(2*j)}, 16, v{HP(j)}')
        if j < 4:
            a(f'v_and_b32 v{H(2*j+1)}, 0xffff0000, v{HP(j)}')
    H2 = lambda j: vr(H(2 * j), 2)
    W2 = lambda j: vr(WR(2 * j), 2)
    a(f'v_pk_add_f32 v[16:17], {H2(0)}, {H2(1)}')
    a(f'v_pk_mul_f32 v[18:19], {H2(0)}, {H2(0)}')
    a(f'v_pk_mul_f32 v[20:21], {H2(0)}, {W2(0)}')
    for j in range(1, 5):
        if j >= 2:
            a(f'v_pk_add_f32 v[16:17], v[16:17], {H2(j)}')
        a(f'v_pk_fma_f32 v[18:19], {H2(j)}, {H2(j)}, v[18:19]')
        a(f'v_pk_fma_f32 v[20:21], {H2(j)}, {W2(j)}, v[20:21]')
    a('v_add_f32 v82, v16, v17')
    a('v_add_f32 v83, v18, v19')
    a('v_add_f32 v84, v20, v21')
    dpp_reduce(a, 'v_add_f32', [82, 83, 84])
    invb = struct.unpack('<I', struct.pack('<f', 1.0 / 576.0))[0]
    epsb = struct.unpack('<I', struct.pack('<f', 1e-5))[0]
    a(f'v_mul_f32 v82, 0x{invb:08x}, v82')
    a(f'v_mul_f32 v83, 0x{invb:08x}, v83')
    a('v_fma_f32 v83, -v82, v82, v83')
    a('v_max_f32 v83, 0, v83')
    bfround(a, 83, 83)
    bfround(a, 82, 82)
    a(f'v_add_f32 v83, 0x{epsb:08x}, v83')
    bfround(a, 83, 83)
    a('v_sqrt_f32 v83, v83')
    a('v_fma_f32 v84, -v82, v85, v84')
    bfround(a, 83, 83)
    a('v_rcp_f32 v83, v83')
    a('v_mul_f32 v84, v84, v83')
    a('v_mul_f32 v82, v82, v83')
    a('v_readlane_b32 s52, v84, 63')
    a('v_readlane_b32 s50, v83, 63')
    a('v_readlane_b32 s55, v82, 63')
    a('s_ashr_i32 s53, s52, 31')
    a('s_or_b32 s53, s53, 0x80000000')
    a('s_xor_b32 s53, s53, s52')
    a('s_and_b32 s53, s53, 0xfffff800')
    a('s_max_u32 s53, s53, 0x800')
    a('s_lshl_b32 s58, s2, 4')
    a('s_add_u32 s58, s58, s40')
    a('s_sub_u32 s58, 2047, s58')
    a('s_or_b32 s53, s53, s58')
    a('s_mov_b32 s51, s50')
    a('s_lshl_b32 s58, s40, 2')
    a(f's_add_u32 s58, s58, {K2_LDS_C}')
    a('v_mov_b32 v88, s55')
    a('v_mov_b32 v86, s58')
    a('v_mov_b32 v87, s53')
    a('ds_write_b32 v86, v87')
    HN = lambda k: 100 + k
    for j in range(5):
        a(f'v_pk_fma_f32 {vr(HN(2*j),2)}, {H2(j)}, s[50:51], v[88:89] op_sel_hi:[1,1,0] neg_lo:[0,0,1] neg_hi:[0,0,1]')
    NP = lambda j: 110 + j
    for j in range(5):
        a(f'v_cvt_pk_bf16_f32 v{NP(j)}, v{HN(2*j)}, v{HN(2*j+1)}')

    def lds_row(P, off):
        for k in range(9):
            op = 'ds_write_b16' if k % 2 == 0 else 'ds_write_b16_d16_hi'
            a(f'{op} v93, v{P(k//2)} offset:{off + k*128}')
    lds_row(NP, 0)
    a('v_lshlrev_b32 v86, 2, v2')
    a(f'v_add_u32 v86, {K2_LDS_C}, v86')
    a('v_not_b32 v87, v87')
    a('s_waitcnt lgkmcnt(0)')
    stamp(a, 7)
    a('s_barrier')
    stamp(a, 8)
    a('ds_read_b32 v95, v86')
    a('ds_read_b128 v[16:19], v94')
    a('ds_read_b128 v[20:23], v94 offset:1024')
    a('s_mul_i32 s56, s2, 1152')
    a(f's_add_u32 s56, s56, {WS_HN}')
    a('s_lshl_b32 s57, s2, 7')
    a(f's_add_u32 s57, s57, {WS_KEYS}')
    a('v_mov_b32 v86, 0')
    a('s_waitcnt lgkmcnt(2)')
    dpp_reduce(a, 'v_max_u32', [95], rows_only=True)
    a('v_readlane_b32 s58, v95, 15')
    a('s_cmp_lg_u32 s58, s53')
    a('s_cbranch_scc1 K2_NOTWIN')
    a('s_waitcnt lgkmcnt(0)')
    a(f'buffer_store_dwordx4 v[16:19], v4, s[36:39], s56 offen{SC}')
    a('s_mov_b64 exec, 0xff')
    a(f'buffer_store_dwordx4 v[20:23], v5, s[36:39], s56 offen{SC}')
    a('s_mov_b64 exec, 1')
    a(f'buffer_store_dword v87, v86, s[36:39], s57 offen{SC}')
    a('s_mov_b64 exec, -1')
    stamp(a, 9)
    lds_row(HP, 1152)
    a.label('K2_NOTWIN')
    a.flush_hist()
    OP = lambda j: 116 + j
    for j in range(5):
        a(f'v_lshlrev_b32 v{HN(2*j)}, 16, v{NP(j)}')
        if j < 4:
            a(f'v_and_b32 v{HN(2*j+1)}, 0xffff0000, v{NP(j)}')
    for j in range(5):
        a(f'v_pk_add_f32 {vr(HN(2*j),2)}, {vr(HN(2*j),2)}, {H2(j)}')
    for j in range(5):
        a(f'v_cvt_pk_bf16_f32 v{OP(j)}, v{HN(2*j)}, v{HN(2*j+1)}')
    a('s_waitcnt lgkmcnt(0)')
    lds_row(OP, 2304)
    a('s_waitcnt lgkmcnt(0)')
    a('ds_read_b128 v[32:35], v94 offset:2304')
    a('ds_read_b128 v[36:39], v94 offset:3328')
    a('s_cmp_lg_u32 s58, s53')
    a('s_cbranch_scc1 K2_PLAIN')
    a('ds_read_b128 v[24:27], v94 offset:1152')
    a('ds_read_b128 v[28:31], v94 offset:2176')
    a('s_mul_i32 s56, s2, 1280')
    a(f's_add_u32 s56, s56, {WS_H}')
    a('v_mov_b32 v88, s52')
    a('v_mov_b32 v89, s46')
    a('s_waitcnt lgkmcnt(0)')
    a(f'buffer_store_dwordx4 v[24:27], v4, s[36:39], s56 offen{SC}')
    a(f'buffer_store_dwordx4 v[32:35], v4, s[32:35], s48 offen{SC}')
    a('s_mov_b64 exec, 0xff')
    a(f'buffer_store_dwordx4 v[28:31], v5, s[36:39], s56 offen{SC}')
    a(f'buffer_store_dwordx4 v[36:39], v5, s[32:35], s48 offen{SC}')
    a('s_mov_b64 exec, 1')
    a(f'buffer_store_dwordx2 v[88:89], v86, s[36:39], s56 offen offset:1152{SC}')
    a('s_waitcnt vmcnt(0)')
    a(f'buffer_store_dword v86, v86, s[36:39], s57 offen offset:64{SC}')
    a('s_mov_b64 exec, -1')
    a('s_branch K2_EXIT')
    a.label('K2_PLAIN')
    a.flush_hist()
    a('s_waitcnt lgkmcnt(0)')
    a('buffer_store_dwordx4 v[32:35], v4, s[32:35], s48 offen')
    a('s_mov_b64 exec, 0xff')
    a('buffer_store_dwordx4 v[36:39], v5, s[32:35], s48 offen')
    a('s_mov_b64 exec, -1')
    a('s_branch K2_EXIT')

    a.label('K2_OTHER')
    a.flush_hist()
    a(f's_cmp_lt_u32 s2, {NROWWG + NFFNWG}')
    a('s_cbranch_scc1 K2_NOPF')
    a(f's_cmp_ge_u32 s2, {FIN0}')
    a('s_cbranch_scc1 K2_NOPF')
    a('s_cmp_ge_u32 s40, 14')
    a('s_cbranch_scc1 K2_END')
    a('s_and_b32 s41, s2, 7')
    a('s_mul_i32 s41, s41, 663552')
    a(f's_sub_u32 s42, s2, {NROWWG + NFFNWG}')
    a('s_lshr_b32 s42, s42, 3')
    a('s_mul_i32 s42, s42, 110592')
    a('s_add_u32 s41, s41, s42')
    a('s_lshl_b32 s42, s40, 13')
    a('s_add_u32 s41, s41, s42')
    a('v_lshlrev_b32 v6, 7, v0')
    a('s_waitcnt lgkmcnt(0)')
    srd(a, 24, 70, WG_BYTES)
    a(f'buffer_load_dword v7, v6, s[24:27], s41 offen{nt("nt_pf")}')
    a('s_endpgm')
    a.label('K2_NOPF')
    a.flush_hist()
    a('s_cmp_ge_u32 s40, 10')
    a('s_cbranch_scc1 K2_END')
    a('v_lshlrev_b32 v27, 2, v0')
    a('s_waitcnt lgkmcnt(0)')
    stamp(a, 0)
    srd(a, 36, 14, WS_RANGE)
    a('s_cmp_eq_u32 s40, 9')
    a('s_cbranch_scc1 K2_W9')
    a(f's_cmp_ge_u32 s2, {FIN0}')
    a('s_cbranch_scc1 K2_FIN')
    a(f's_sub_u32 s41, s2, {NROWWG}')
    a('s_and_b32 s3, s41, 7')
    a('s_mul_i32 s3, s3, 9')
    a('s_lshr_b32 s41, s41, 3')
    a('s_add_u32 s3, s3, s41')
    srd(a, 16, 66, WG_BYTES)
    srd(a, 20, 68, WG_BYTES)
    srd(a, 24, 70, WG_BYTES)
    a('v_lshrrev_b32 v8, 3, v0')
    a('v_and_b32 v9, 7, v0')
    a('v_mul_u32_u24 v15, 9216, v8')
    a('v_lshl_add_u32 v15, v9, 4, v15')
    a('v_mul_u32_u24 v14, 1152, v8')
    a('v_lshl_add_u32 v14, v9, 4, v14')
    a('s_mul_i32 s59, s40, 589824')
    a('s_lshl_b32 s58, s3, 7')
    a('s_add_u32 s59, s59, s58')
    a('s_lshl_b32 s55, s40, 14')
    for mat in range(2):
        a('s_mov_b32 s57, s59')
        for q in range(8):
            a(f's_add_u32 m0, s55, {mat*8192 + q*1024}')
            a(f'buffer_load_dwordx4 v15, s[{16+4*mat}:{19+4*mat}], s57 offen{nt("nt_w")} lds')
            if q < 7:
                a('s_add_u32 s57, s57, 73728')
    a('v_bfe_u32 v13, v0, 2, 2')
    a('v_lshl_add_u32 v13, v3, 3, v13')
    a('v_and_b32 v10, 3, v0')
    a('v_lshlrev_b32 v13, 7, v13')
    a('v_lshl_add_u32 v13, v10, 3, v13')
    a('v_add_u32 v13, s55, v13')
    a('s_mul_i32 s57, s3, 73728')
    a('s_lshl_b32 s58, s40, 7')
    a('s_add_u32 s57, s57, s58')
    WF = lambda mat, kap, nu: 64 + ((mat * 2 + kap) * 4 + nu) * 4

    def rd_tile(mat_off, reg):
        for kap in range(2):
            for nu in range(4):
                for h in range(2):
                    a(f'ds_read_b64_tr_b16 {vr(reg(kap,nu)+2*h,2)}, v13 offset:{mat_off + kap*4096 + h*512 + nu*32}')
            a('s_waitcnt lgkmcnt(0)')
    a('s_waitcnt vmcnt(8)')
    rd_tile(0, lambda kap, nu: WF(0, kap, nu))
    for q in range(8):
        a(f's_add_u32 m0, s55, {q*1024}')
        a(f'buffer_load_dwordx4 v14, s[24:27], s57 offen{nt("nt_w")} lds')
        if q < 7:
            a('s_add_u32 s57, s57, 9216')
    a('s_waitcnt vmcnt(8)')
    rd_tile(8192, lambda kap, nu: WF(1, kap, nu))
    a('v_cmp_eq_u32 s[52:53], 1, v3')
    a('v_cmp_eq_u32 s[54:55], 2, v3')
    a('v_cmp_eq_u32 s[56:57], 3, v3')
    a('s_lshl_b32 s49, s40, 7')
    a(f's_add_u32 s49, s49, {K2_LDS_XS}')
    a('v_lshl_add_u32 v6, v3, 4, s49')
    a(f'v_add_u32 v28, {K2_LDS_RED}, v27')
    a('s_lshl_b32 s49, s40, 9')
    a('v_add_u32 v29, s49, v28')
    a('s_lshl_b32 s49, s40, 7')
    a(f's_add_u32 s49, s49, {K2_LDS_ACT}')
    a('v_add_u32 v30, s49, v12')
    a('v_lshl_add_u32 v31, v3, 4, s49')
    a('s_mul_i32 s49, s3, 2304')
    a('s_lshl_b32 s50, s40, 8')
    a('s_add_u32 s49, s49, s50')
    a(f's_add_u32 s49, s49, {WS_PART}')
    a('s_waitcnt vmcnt(0)')
    stamp(a, 10)
    a('s_barrier')
    stamp(a, 11)
    a('ds_read_b128 v[16:19], v6')
    a('ds_read_b128 v[20:23], v6 offset:64')
    FACC = lambda mat, nu: 32 + 4 * (mat * 4 + nu)
    for kap in range(2):
        a(f's_waitcnt lgkmcnt({1-kap})')
        for mat in range(2):
            for nu in range(4):
                c = '0' if kap == 0 else vr(FACC(mat, nu), 4)
                a(f'v_mfma_f32_16x16x32_bf16 {vr(FACC(mat,nu),4)}, {vr(16+4*kap,4)}, {vr(WF(mat,kap,nu),4)}, {c}')
    DF = lambda kap, nu: 64 + (kap * 4 + nu) * 4
    for nu in range(4):
        for h in range(2):
            a(f'ds_read_b64_tr_b16 {vr(DF(0,nu)+2*h,2)}, v13 offset:{h*512 + nu*32}')
    for mat in range(2):
        a(f'v_cndmask_b32 v{24+mat}, v{FACC(mat,0)}, v{FACC(mat,1)}, s[52:53]')
        a(f'v_cndmask_b32 v{24+mat}, v{24+mat}, v{FACC(mat,2)}, s[54:55]')
        a(f'v_cndmask_b32 v{24+mat}, v{24+mat}, v{FACC(mat,3)}, s[56:57]')
        a(f'ds_write_b32 v29, v{24+mat} offset:{mat*256}')
    a('s_waitcnt lgkmcnt(0)')
    a('s_barrier')
    stamp(a, 12)
    for w in range(9):
        a(f'ds_read2_b32 {vr(32+2*w,2)}, v28 offset0:{(w*128)%256} offset1:{(w*128+64)%256}' if False else
          f'ds_read2st64_b32 {vr(32+2*w,2)}, v28 offset0:{2*w} offset1:{2*w+1}')
    for nu in range(2):
        for h in range(2):
            a(f'ds_read_b64_tr_b16 {vr(DF(1,nu)+2*h,2)}, v13 offset:{4096 + h*512 + nu*32}')
    a('s_waitcnt lgkmcnt(4)')
    for nu in range(2, 4):
        for h in range(2):
            a(f'ds_read_b64_tr_b16 {vr(DF(1,nu)+2*h,2)}, v13 offset:{4096 + h*512 + nu*32}')
    for (d, s0, s1) in ((32, 32, 34), (36, 36, 38), (40, 40, 42), (44, 44, 46), (32, 32, 36), (40, 40, 44), (32, 32, 48), (32, 32, 40)):
        a(f'v_pk_add_f32 {vr(d,2)}, {vr(s0,2)}, {vr(s1,2)}')
    a('v_cvt_pk_bf16_f32 v34, v32, v33')
    a('v_lshlrev_b32 v32, 16, v34')
    a('v_and_b32 v33, 0xffff0000, v34')
    a('v_mul_f32 v35, 0xbfb8aa3b, v32')
    a('v_exp_f32 v35, v35')
    a('v_add_f32 v35, 1.0, v35')
    a('v_rcp_f32 v35, v35')
    a('v_mul_f32 v35, v35, v32')
    bfround(a, 35, 35)
    a('v_mul_f32 v35, v35, v33')
    a('v_cvt_pk_bf16_f32 v35, v35, v35')
    a('ds_write_b16 v30, v35')
    a('s_waitcnt lgkmcnt(0)')
    a('ds_read_b128 v[16:19], v31')
    a('ds_read_b128 v[20:23], v31 offset:64')
    for kap in range(2):
        a(f's_waitcnt lgkmcnt({1-kap})')
        for nu in range(4):
            c = '0' if kap == 0 else vr(FACC(1, nu), 4)
            a(f'v_mfma_f32_16x16x32_bf16 {vr(FACC(1,nu),4)}, {vr(16+4*kap,4)}, {vr(DF(kap,nu),4)}, {c}')
    a('v_mov_b32 v25, 0x7fc00000')
    a(f'v_cndmask_b32 v26, v{FACC(1,0)}, v{FACC(1,1)}, s[52:53]')
    a(f'v_cndmask_b32 v26, v26, v{FACC(1,2)}, s[54:55]')
    a(f'v_cndmask_b32 v26, v26, v{FACC(1,3)}, s[56:57]')
    a('v_cmp_eq_u32 vcc, -1, v26')
    a('v_cndmask_b32 v26, v26, v25, vcc')
    a(f'buffer_store_dword v26, v27, s[36:39], s49 offen{SC}')
    stamp(a, 13)
    a('s_branch K2_EXIT')

    a.label('K2_W9')
    a.flush_hist()
    a(f's_mov_b32 s56, {WS_KEYS}')
    a(f's_mov_b32 s55, {WS_KEYS + 8192}')
    a('s_mov_b32 s57, -1')
    a('s_mov_b32 s58, 0')
    a('s_mov_b32 s46, 0')
    a(f's_mov_b32 s47, {WS_HN}')
    a('v_lshlrev_b32 v8, 7, v0')
    a.label('K2_POLL')
    a.flush_hist()
    a(f'buffer_load_dword v16, v8, s[36:39], s56 offen{SC}')
    a(f'buffer_load_dword v17, v8, s[36:39], s55 offen{SC}')
    a('s_waitcnt vmcnt(0)')
    a('v_min_u32 v20, v16, v17')
    a('v_max_u32 v21, v16, v17')
    a('v_cmp_eq_u32 vcc, -1, v21')
    dpp_reduce(a, 'v_min_u32', [20])
    a('v_readlane_b32 s44, v20, 63')
    a('s_cmp_eq_u32 s44, s57')
    a('s_cbranch_scc1 K2_SAME')
    a('s_mov_b32 s57, s44')
    a('s_and_b32 s46, s44, 0x7ff')
    a('s_lshr_b32 s46, s46, 4')
    a('s_mul_i32 s47, s46, 1152')
    a(f's_add_u32 s47, s47, {WS_HN}')
    a.label('K2_ROWLD')
    a.flush_hist()
    a(f'buffer_load_dwordx4 v[24:27], v4, s[36:39], s47 offen{SC}')
    for r in range(28, 32):
        a(f'v_mov_b32 v{r}, 0')
    a('s_mov_b64 exec, 0xff')
    a(f'buffer_load_dwordx4 v[28:31], v5, s[36:39], s47 offen{SC}')
    a('s_mov_b64 exec, -1')
    a.label('K2_SAME')
    a.flush_hist()
    a('s_add_u32 s58, s58, 1')
    a(f's_cmp_lt_u32 s58, {SPIN_LIMIT}')
    a('s_cbranch_scc0 K2_GOT')
    a('s_cmp_eq_u64 vcc, 0')
    a('s_cbranch_scc1 K2_ALLK')
    if OPT['sleep']:
        a(f's_sleep {OPT["sleep"]}')
    a('s_branch K2_POLL')
    a.label('K2_ALLK')
    a.flush_hist()
    a('s_waitcnt vmcnt(0)')
    a('v_max3_u32 v20, v24, v25, v26')
    a('v_max3_u32 v21, v27, v28, v29')
    a('v_max3_u32 v20, v20, v30, v31')
    a('v_max_u32 v20, v20, v21')
    a('v_cmp_eq_u32 s[50:51], -1, v20')
    a('s_nop 2')
    a('s_cmp_eq_u64 s[50:51], 0')
    a('s_cbranch_scc0 K2_ROWLD')
    a.label('K2_GOT')
    a.flush_hist()
    a('s_waitcnt vmcnt(0)')
    stamp(a, 9)
    a(f's_cmp_ge_u32 s2, {FIN0}')
    a('s_cbranch_scc1 K2_FIN9')
    a(f'v_add_u32 v6, {K2_LDS_XS}, v4')
    a('ds_write_b128 v6, v[24:27]')
    a('s_mov_b64 exec, 0xff')
    a('ds_write_b128 v6, v[28:31] offset:1024')
    a('s_mov_b64 exec, -1')
    a('s_waitcnt lgkmcnt(0)')
    a('s_barrier')
    a('s_branch K2_EXIT')

    a.label('K2_FIN')
    a.flush_hist()
    a('s_mul_i32 s41, s40, 18432')
    a(f's_sub_u32 s42, s2, {FIN0}')
    a('s_lshl_b32 s42, s42, 8')
    a('s_add_u32 s41, s41, s42')
    a(f's_add_u32 s41, s41, {WS_PART}')
    a('s_mov_b32 s58, 0')
    a('s_lshl_b32 s45, s40, 8')
    a('v_add_u32 v9, s45, v27')
    a('s_barrier')
    a.label('K2_PPOLL')
    a.flush_hist()
    a('s_mov_b32 s43, s41')
    P = lambda p: 32 + p
    for p in range(8):
        a(f'buffer_load_dword v{P(p)}, v27, s[36:39], s43 offen{SC}')
        if p < 7:
            a('s_add_u32 s43, s43, 2304')
    a('s_add_u32 s58, s58, 1')
    a('s_waitcnt vmcnt(0)')
    a(f'v_max3_u32 v16, v{P(0)}, v{P(1)}, v{P(2)}')
    a(f'v_max3_u32 v17, v{P(3)}, v{P(4)}, v{P(5)}')
    a(f'v_max3_u32 v16, v16, v{P(6)}, v{P(7)}')
    a('v_max_u32 v16, v16, v17')
    a('v_cmp_eq_u32 vcc, -1, v16')
    for p in range(4):
        a(f'v_add_f32 v{P(p)}, v{P(p)}, v{P(p+4)}')
    a('s_cmp_eq_u64 vcc, 0')
    a('s_cbranch_scc1 K2_PGOT')
    a(f's_cmp_lt_u32 s58, {SPIN_LIMIT}')
    a('s_cbranch_scc1 K2_PPOLL')
    a.label('K2_PGOT')
    a.flush_hist()
    a(f'v_add_f32 v{P(0)}, v{P(0)}, v{P(2)}')
    a(f'v_add_f32 v{P(1)}, v{P(1)}, v{P(3)}')
    a(f'v_add_f32 v{P(0)}, v{P(0)}, v{P(1)}')
    a(f'ds_write_b32 v9, v{P(0)}')
    a('s_waitcnt lgkmcnt(0)')
    stamp(a, 12)
    a('s_barrier')
    a('s_branch K2_EXIT')
    a.label('K2_FIN9')
    a.flush_hist()
    a('s_barrier')
    srd(a, 32, 12, X_BYTES)
    a('s_lshl_b32 s48, s46, 7')
    a(f's_add_u32 s48, s48, {WS_KEYS + 64}')
    a('v_mov_b32 v8, 0')
    a('s_mov_b32 s58, 0')
    a.label('K2_FPOLL')
    a.flush_hist()
    a(f'buffer_load_dword v9, v8, s[36:39], s48 offen{SC}')
    a('s_add_u32 s58, s58, 1')
    a('s_waitcnt vmcnt(0)')
    a('v_readfirstlane_b32 s44, v9')
    a('s_cmp_lg_u32 s44, -1')
    a('s_cbranch_scc1 K2_FGOT')
    a(f's_cmp_lt_u32 s58, {SPIN_LIMIT}')
    a('s_cbranch_scc1 K2_FPOLL')
    a.label('K2_FGOT')
    a.flush_hist()
    a(f's_sub_u32 s42, s2, {FIN0}')
    a('s_lshl_b32 s43, s42, 7')
    a('s_add_u32 s44, s43, s47')
    a('s_mul_i32 s45, s46, 1280')
    a(f's_add_u32 s45, s45, {WS_H}')
    a('s_add_u32 s41, s45, s43')
    a('v_mov_b32 v4, 0')
    a('v_mov_b32 v5, 0')
    a(f'buffer_load_short_d16_hi v4, v12, s[36:39], s44 offen{SC}')
    a(f'buffer_load_short_d16_hi v5, v12, s[36:39], s41 offen{SC}')
    a(f'buffer_load_dwordx2 v[6:7], v8, s[36:39], s45 offen offset:1152{SC}')
    a('v_lshlrev_b32 v27, 2, v0')
    a('s_waitcnt vmcnt(0)')
    bfround(a, 6, 6)
    a('v_mul_f32 v10, 0xbfb8aa3b, v6')
    a('v_exp_f32 v10, v10')
    a('v_mul_u32_u24 v7, 1152, v7')
    a('v_add_f32 v10, 1.0, v10')
    a('v_rcp_f32 v10, v10')
    a('v_add_u32 v7, v7, v12')
    bfround(a, 10, 10)
    stamp(a, 11)
    a('s_barrier')
    for w in range(9):
        a(f'ds_read_b32 v{16+w}, v27 offset:{w*256}')
    a('s_waitcnt lgkmcnt(0)')
    for p in range(4):
        a(f'v_add_f32 v{16+p}, v{16+p}, v{20+p}')
    a('v_add_f32 v16, v16, v18')
    a('v_add_f32 v17, v17, v19')
    a('v_add_f32 v16, v16, v24')
    a('v_add_f32 v16, v16, v17')
    bfround(a, 16, 16)
    a('v_mul_f32 v16, v16, v10')
    bfround(a, 16, 16)
    a('v_add_f32 v16, v16, v4')
    bfround(a, 16, 16)
    a('v_add_f32 v16, v16, v5')
    a('v_cvt_pk_bf16_f32 v16, v16, v16')
    a('buffer_store_short v16, v7, s[32:35], s43 offen')
    stamp(a, 13)
    a.label('K2_EXIT')
    a.flush_hist()
    if STAMP:
        a('s_waitcnt vmcnt(0)')
        stamp(a, 14)
        stamp_flush(a, 1, 15)
    a.label('K2_END')
    a('s_endpgm')


def main(path):
    a = Asm()
    hdr = [
        '; FNet (pre-LN) + Mixture-of-Depths top-1 SwiGLU block, gfx950. Generated by dev/gen.py.',
        f'; @launch kernel=k1_kernel grid=(256,1,1) block=(448,1,1) lds={K1_LDS}',
        f'; @launch kernel=k2_kernel grid=({FIN0+NFINWG},1,1) block=(1024,1,1) lds={max(K2_LDS, K2_ROW_LDS)}',
        '.amdgcn_target "amdgcn-amd-amdhsa--gfx950"',
        '.text',
    ]
    for h in hdr:
        a.raw(h)
    gen_k1(a)
    gen_k2(a)
    a.raw('.section .rodata,"a"')
    ns = 100 if STAMP else 80
    a.raw(descriptor('k1_kernel', 256, ns))
    a.raw(descriptor('k2_kernel', 128, ns))
    open(path, 'w').write(a.text())


if __name__ == '__main__':
    for arg in sys.argv[2:]:
        if arg == 'stamp':
            STAMP = True
        else:
            k, v = arg.split('=')
            OPT[k] = int(v)
    main(sys.argv[1] if len(sys.argv) > 1 else 'sequential_preLN__spectral_fnet__moe_arch_mod__prompt.s')
```

```python
import sys
from asmdsl import Asm, Cnt, vr, sr

S, D, F = 2048, 576, 4608
X_BYTES = S * D * 2
SEQ_BYTES = S * S * 2
HID_BYTES = D * D * 2
WG_BYTES = D * F * 2
WS_U = 0
WS_KEYS = 0x240000
WS_PART = WS_KEYS + 16384
WS_HN = WS_PART + 72 * 2304
WS_FILL_END = WS_HN + 128 * 1152
WS_H = 0x2a0000
WS_RANGE = 0x900000

KA = dict(x=0, sre=8, sim=16, hre=24, him=32, bx=40, wr=48, wg=56, wu=64, wd=72, out=80, dbg=88, ws=96)


def srd(a, d, b, nbytes):
    a(f's_mov_b32 s{d}, s{b}')
    a(f's_mov_b32 s{d+1}, s{b+1}')
    a(f's_mov_b32 s{d+2}, {nbytes}')
    a(f's_mov_b32 s{d+3}, 0x00020000')


def kernel_head(a, name):
    a.raw(f'.globl {name}')
    a.raw('.p2align 8')
    a.raw(f'.type {name},@function')
    a.label(name)
    a.flush_hist()
    if OPT.get('scramble'):
        a('s_and_b32 s3, s2, 7')
        a('s_lshl_b32 s3, s3, 5')
        a('s_bfe_u32 s4, s2, 0x50003')
        a('s_or_b32 s3, s3, s4')
        a('s_cmp_lt_u32 s2, 256')
        a('s_cselect_b32 s2, s3, s2')


def descriptor(name, vgpr, sgpr):
    acc = (vgpr + 3) // 4 * 4
    return f'''.p2align 6
.amdhsa_kernel {name}
  .amdhsa_next_free_vgpr {vgpr}
  .amdhsa_next_free_sgpr {sgpr}
  .amdhsa_accum_offset {acc}
  .amdhsa_group_segment_fixed_size 0
  .amdhsa_kernarg_size 104
  .amdhsa_user_sgpr_count 2
  .amdhsa_user_sgpr_kernarg_segment_ptr 1
  .amdhsa_system_sgpr_workgroup_id_x 1
.end_amdhsa_kernel
'''


STAMP = False
OPT = dict(nt_x=1, nt_wd=1, nt_f=1, nt_tw=1, nt_w=1, nt_u=0, rot=1, pf=1, skip_f=0, skip_b=0, skip_x=0, ahead=2, warm=1, nt_pf=1, retouch=0, sc0=0, sleep=1, pfwait=1)


def nt(key):
    return ' nt' if OPT[key] else ''
WS_STAMP = 0x800000


def stamp(a, k):
    if STAMP:
        if k == 0:
            a('v_mov_b32 v1, 0')
        a('s_memrealtime s[92:93]')
        a('s_waitcnt lgkmcnt(0)')
        a(f'v_writelane_b32 v1, s92, {k}')


def stamp_flush(a, kern, n, wave_sgpr=40):
    if not STAMP:
        return
    a('s_mov_b64 exec, 0xffff')
    srd(a, 96, 14, WS_RANGE)
    a('s_lshl_b32 s95, s2, 4')
    a(f's_add_u32 s95, s95, s{wave_sgpr}')
    a('s_lshl_b32 s95, s95, 6')
    a(f's_add_u32 s95, s95, {WS_STAMP + kern*0x80000}')
    a('v_lshlrev_b32 v0, 2, v0')
    a('buffer_store_dword v1, v0, s[96:99], s95 offen')


def bfround(a, dst, src):
    a(f'v_cvt_pk_bf16_f32 v{dst}, v{src}, v{src}')
    a(f'v_and_b32 v{dst}, 0xffff0000, v{dst}')


K1_LDS_B = 73728
K1_LDS_F = 135168
K1_LDS_ST = 151552
K1_LDS = 152064
K1_GROUPS = [(0, 0, 0), (1, 0, 5), (None, 0, 1), (2, 0, 6), (None, 0, 2), (3, 0, 7), (None, 0, 3), (4, 1, 8), (None, 0, 4)]
K1_STAGES = [[0, 1], [2, 3], [4, 5], [6, 7], [8]]


def gen_k1(a):
    import struct
    kernel_head(a, 'k1_kernel')
    a('s_cmp_lt_u32 s2, 64')
    a('s_cbranch_scc1 K1_PF')
    a('s_cmp_ge_u32 s2, 256')
    a('s_cbranch_scc1 K1_END')
    a('s_load_dwordx8 s[4:11], s[0:1], 0')
    a('s_load_dwordx2 s[12:13], s[0:1], 32')
    a('s_load_dwordx2 s[14:15], s[0:1], 96')
    a('v_lshrrev_b32 v1, 6, v0')
    a('v_and_b32 v0, 63, v0')
    a('v_readfirstlane_b32 s40, v1')
    a('s_and_b32 s41, s2, 31')
    a('s_lshr_b32 s42, s2, 5')
    a('s_sub_u32 s42, s42, 2')
    a('v_and_b32 v2, 15, v0')
    a('v_lshrrev_b32 v3, 4, v0')
    a('v_lshrrev_b32 v8, 3, v0')
    a('v_and_b32 v9, 7, v0')
    a('v_xor_b32 v9, v9, v3')
    a('v_lshlrev_b32 v9, 4, v9')
    a('v_lshrrev_b32 v4, 1, v2')
    a('v_xor_b32 v4, v4, v3')
    a('v_lshlrev_b32 v4, 4, v4')
    a('v_lshl_add_u32 v4, v2, 7, v4')
    a('v_xor_b32 v5, 64, v4')
    a('s_cmp_ge_u32 s42, 3')
    a('s_cselect_b32 s43, 1, 0')
    stamp(a, 0)
    a('s_cmp_ge_u32 s40, 3')
    a('s_cbranch_scc1 K1_STATS')

    vm = Cnt(a, 'vmcnt', 63)
    lg = Cnt(a, 'lgkmcnt', 15)
    a('s_mul_i32 s44, s42, 3')
    a('s_add_u32 s44, s44, s40')
    a('s_mul_i32 s48, s40, 20480')
    a(f's_add_u32 s48, s48, {K1_LDS_B}')
    a('s_waitcnt lgkmcnt(0)')
    srd(a, 36, 14, WS_RANGE)
    XA, XB, BB, FB = 240, 242, 244, 246
    for b in range(2):
        a(f'v_mov_b32 v{XA+b}, v{4+b}')
        a(f'v_add_u32 v{XB+b}, 0x10000, v{4+b}')
        a(f'v_add_u32 v{BB+b}, s48, v{4+b}')
        a(f'v_add_u32 v{FB+b}, {K1_LDS_F}, v{4+b}')
    a('s_lshr_b32 s46, s41, 1')
    a('s_and_b32 s46, s46, 1')
    a('s_xor_b32 s46, s46, s44')
    a('s_lshl_b32 s46, s46, 6')
    a('s_mul_i32 s47, s41, 1152')
    a('s_add_u32 s46, s46, s47')
    a('v_mul_u32_u24 v7, 36864, v2')
    a('v_lshl_add_u32 v7, v3, 4, v7')
    a('v_add_u32 v7, s46, v7')
    a('v_lshlrev_b32 v8, 4, v3')
    a(f'v_add_u32 v8, {K1_LDS_ST}, v8')
    a('s_cmp_eq_u32 s43, 0')
    a('s_cselect_b32 s47, 1.0, -1.0')
    a('v_mov_b32 v10, s47')
    a('v_mov_b32 v11, s47')
    for r in range(12, 16):
        a(f'v_mov_b32 v{r}, 0x3f803f80')
    Bre = lambda k: 16 + 8 * k
    Bim = lambda k: 20 + 8 * k
    acc = lambda hf, i, ab: 88 + ((hf * 4 + i) * 2 + ab) * 4
    cacc = lambda ab: 152 + 4 * ab
    Abuf = lambda b, i: 160 + b * 16 + i * 4
    started = set()
    bufno = [0]
    Fregs = [Bre(k) for k in range(1, 8)] + [Bim(k) for k in range(1, 8)] + [248, 252]
    Freg = lambda f: Fregs[f]

    def rd_x(kk):
        b = bufno[0] % 3
        bufno[0] += 1
        c, par = kk >> 1, kk & 1
        for i in range(4):
            off = c * 8192 + i * 2048
            base = XA + par
            if off >= 65536:
                off -= 65536
                base = XB + par
            a(f'ds_read_b128 {vr(Abuf(b,i),4)}, v{base} offset:{off}')
            lg.issue(('x', kk))
        return b

    def rd_B(k):
        c, par = k >> 1, k & 1
        for part, reg in ((0, Bre(k)), (1, Bim(k))):
            a(f'ds_read_b128 {vr(reg,4)}, v{BB+par} offset:{(c*4 + part*2)*1024}')
            lg.issue(('B', k))

    def rd_F(f):
        it, kap, part = f >> 2, (f >> 1) & 1, f & 1
        a(f'ds_read_b128 {vr(Freg(f),4)}, v{FB+kap} offset:{(it*2+part)*2048}')
        lg.issue('F')

    def mf(dst, A, B):
        c = vr(dst, 4) if dst in started else '0'
        started.add(dst)
        a(f'v_mfma_f32_16x16x32_bf16 {vr(dst,4)}, {vr(A,4)}, {vr(B,4)}, {c}')

    haveB = set()
    for st, gs in enumerate(K1_STAGES):
        kks = [kk for gi in gs for kk in (2 * K1_GROUPS[gi][2], 2 * K1_GROUPS[gi][2] + 1)]
        if STAMP: lg.wait_all()
        stamp(a, 1 + 2 * st if st < 4 else 13)
        a('s_barrier')
        stamp(a, 2 + 2 * st if st < 4 else 14)
        bufs = {}

        def fetch(n):
            kk = kks[n]
            k = kk % 9
            if k not in haveB:
                haveB.add(k)
                rd_B(k)
            bufs[n] = rd_x(kk)
        G = len(kks)
        for n in range(min(2, G)):
            fetch(n)
        fq = list(range(16)) if st == len(K1_STAGES) - 1 else []
        for n, kk in enumerate(kks):
            k, hf = kk % 9, kk // 9
            lg.wait(('x', kk))
            b = bufs[n]
            for i in range(4):
                mf(acc(hf, i, 0), Abuf(b, i), Bre(k))
                mf(acc(hf, i, 1), Abuf(b, i), Bim(k))
                if i == 1 and n + 2 < G:
                    fetch(n + 2)
                if fq and len(lg.q) < 13:
                    rd_F(fq.pop(0)); rd_F(fq.pop(0))
            if hf == 0:
                mf(cacc(0), 12, Bre(k))
                mf(cacc(1), 12, Bim(k))
        while fq:
            if len(lg.q) >= 13:
                lg.wait_all()
            rd_F(fq.pop(0)); rd_F(fq.pop(0))
    lg.wait_all()
    stamp(a, 9)
    a('s_barrier')
    stamp(a, 10)
    for i in range(4):
        a(f'ds_read_b128 {vr(208+4*i,4)}, v8 offset:{i*64}')
        lg.issue('st')
        a(f'ds_read_b128 {vr(224+4*i,4)}, v8 offset:{256+i*64}')
        lg.issue('st')
    for i in range(4):
        for ab in range(2):
            for h in range(2):
                d = acc(0, i, ab) + 2 * h
                s1 = acc(1, i, ab) + 2 * h
                a(f'v_pk_fma_f32 {vr(d,2)}, {vr(s1,2)}, v[10:11], {vr(d,2)}')
    lg.wait('st')
    for i in range(4):
        for ab in range(2):
            for h in range(2):
                t = acc(1, i, ab) + 2 * h
                a(f'v_pk_mul_f32 {vr(t,2)}, {vr(224+4*i+2*h,2)}, {vr(cacc(ab),2)}')
    for i in range(4):
        for ab in range(2):
            for h in range(2):
                d = acc(0, i, ab) + 2 * h
                t = acc(1, i, ab) + 2 * h
                a(f'v_pk_fma_f32 {vr(d,2)}, {vr(208+4*i+2*h,2)}, {vr(d,2)}, {vr(t,2)} neg_lo:[0,0,1] neg_hi:[0,0,1]')
    za = lambda kap: 160 + 4 * kap
    zb = lambda kap: 168 + 4 * kap
    znb = lambda kap: 176 + 4 * kap
    for kap in range(2):
        for ab, z in ((0, za), (1, zb)):
            for hh in range(2):
                src = acc(0, 2 * kap + hh, ab)
                a(f'v_cvt_pk_bf16_f32 v{z(kap)+2*hh}, v{src}, v{src+1}')
                a(f'v_cvt_pk_bf16_f32 v{z(kap)+2*hh+1}, v{src+2}, v{src+3}')
    for r in range(8):
        a(f'v_xor_b32 v{176+r}, 0x80008000, v{168+r}')
    out = lambda it, c: 88 + (it * 2 + c) * 4
    started.clear()
    Fidx = lambda it, kap, part: (it * 2 + kap) * 2 + part
    for it in range(1, 4):
        a(f's_mov_b32 s{59+it}, {it*16*36864}')
    for itp in range(2):
        for kap in range(2):
            for it in (2 * itp, 2 * itp + 1):
                mf(out(it, 0), za(kap), Freg(Fidx(it, kap, 0)))
                mf(out(it, 1), za(kap), Freg(Fidx(it, kap, 1)))
            for it in (2 * itp, 2 * itp + 1):
                mf(out(it, 0), znb(kap), Freg(Fidx(it, kap, 1)))
                mf(out(it, 1), zb(kap), Freg(Fidx(it, kap, 0)))
    for it in range(4):
        d = 184 + 4 * it
        a(f'v_cvt_pk_bf16_f32 v{d}, v{out(it,0)}, v{out(it,0)+1}')
        a(f'v_cvt_pk_bf16_f32 v{d+1}, v{out(it,0)+2}, v{out(it,0)+3}')
        a(f'v_cvt_pk_bf16_f32 v{d+2}, v{out(it,1)}, v{out(it,1)+1}')
        a(f'v_cvt_pk_bf16_f32 v{d+3}, v{out(it,1)+2}, v{out(it,1)+3}')
        so = '0' if it == 0 else f's{59+it}'
        a(f'buffer_store_dwordx4 {vr(d,4)}, v7, s[36:39], {so} offen')
    stamp(a, 11)
    if STAMP: a('s_waitcnt vmcnt(0)')
    stamp(a, 12)
    stamp_flush(a, 0, 15)
    a('s_endpgm')

    a.label('K1_STATS')
    a.flush_hist()
    vm = Cnt(a, 'vmcnt', 63)
    lg = Cnt(a, 'lgkmcnt', 15)
    a('s_sub_u32 s44, s40, 3')
    a('s_lshr_b32 s45, s44, 1')
    a('s_lshl_b32 s45, s45, 5')
    a('s_and_b32 s46, s44, 1')
    a('s_lshl_b32 s46, s46, 2')
    a('s_add_u32 s45, s45, s46')
    a('v_lshrrev_b32 v6, 2, v8')
    a('v_lshlrev_b32 v6, 3, v6')
    a('v_and_b32 v10, 3, v8')
    a('v_add3_u32 v6, v6, v10, s45')
    a('v_mul_u32_u24 v6, 36864, v6')
    a('s_mul_i32 s47, s41, 1152')
    a('v_xor_b32 v10, 64, v9')
    a('v_add_u32 v7, s47, v6')
    a('v_add_u32 v6, v7, v9')
    a('v_add_u32 v7, v7, v10')
    a(f'v_add_u32 v7, {16*36864}, v7')
    a('s_lshl_b32 s46, s44, 4')
    a('v_add_u32 v14, s46, v8')
    a('v_lshlrev_b32 v14, 17, v14')
    a('v_add_u32 v15, v14, v10')
    a('v_add_u32 v14, v14, v9')
    a(f'v_add_u32 v15, {8*131072}, v15')
    a('s_lshl_b32 s48, s44, 11')
    a('s_lshl_b32 s49, s44, 12')
    a('v_add_u32 v4, s48, v4')
    a('v_add_u32 v5, s48, v5')
    a('s_mul_i32 s50, s42, 3')
    a('s_mul_i32 s51, s43, 9')
    a('s_sub_u32 s50, s50, s51')
    a('s_lshl_b32 s50, s50, 5')
    a('s_add_u32 s50, s50, s43')
    a('s_and_b32 s51, s44, 1')
    a('s_lshl_b32 s52, s51, 4')
    a('s_add_u32 s50, s50, s52')
    a('v_lshl_add_u32 v40, v8, 1, s50')
    a('s_lshl_b32 s52, s51, 6')
    a('v_xor_b32 v43, s52, v9')
    a('v_mul_u32_u24 v41, 1152, v40')
    a('v_cmp_eq_u32 vcc, 0, v40')
    a(f'v_mov_b32 v42, {288*1152}')
    a('v_cndmask_b32 v40, v41, v42, vcc')
    a('v_add_u32 v40, v40, v43')
    a('v_add_u32 v41, v41, v43')
    a('v_add_u32 v42, 73728, v41')
    a('v_add_u32 v41, 36864, v41')
    a('s_lshl_b32 s53, s44, 10')
    a(f's_add_u32 s53, s53, {K1_LDS_B}')
    a('s_waitcnt lgkmcnt(0)')
    srd(a, 16, 4, X_BYTES)
    a('s_cmp_ge_u32 s44, 2')
    a('s_cselect_b32 s28, s12, s10')
    a('s_cselect_b32 s29, s13, s11')
    a(f's_mov_b32 s30, {HID_BYTES}')
    a('s_mov_b32 s31, 0x00020000')
    srd(a, 20, 6, SEQ_BYTES)
    srd(a, 24, 8, SEQ_BYTES)

    def issue(st):
        for gi in K1_STAGES[st]:
            cb, withF, c = K1_GROUPS[gi]
            if cb is not None:
                for w in range(3):
                    a(f's_add_u32 m0, s53, {w*20480 + cb*4096 - cb*128}')
                    a(f'buffer_load_dwordx4 v{40+w}, s[28:31], 0 offen offset:{cb*128}{nt("nt_wd")} lds')
                    vm.issue(st)
            for hh in range(2):
                a(f's_add_u32 m0, s48, {c*8192 + hh*1024 - c*128}')
                a(f'buffer_load_dwordx4 v{6+hh}, s[16:19], 0 offen offset:{c*128}{nt("nt_x")} lds')
                vm.issue(st)
            if withF:
                for part in range(2):
                    for hh in range(2):
                        a(f's_add_u32 m0, s49, {K1_LDS_F + (part*2+hh)*1024}')
                        a(f'buffer_load_dwordx4 v{14+hh}, s[{20+4*part}:{23+4*part}], 0 offen{nt("nt_f")} lds')
                        vm.issue(st)
    NS = len(K1_STAGES)
    AH = OPT['ahead']
    for st in range(min(AH, NS)):
        issue(st)
    stamp(a, 11)
    a('v_add_u32 v44, 0x10000, v4')
    a('v_add_u32 v45, 0x10000, v5')
    a('v_mov_b32 v12, 0x3f803f80')
    for r in range(8, 12):
        a(f'v_mov_b32 v{r}, 0')
    for st, gs in enumerate(K1_STAGES):
        vm.wait(st)
        stamp(a, 1 + 2 * st if st < 4 else 13)
        a('s_barrier')
        stamp(a, 2 + 2 * st if st < 4 else 14)
        regs = []
        n = 0
        for gi in gs:
            c = K1_GROUPS[gi][2]
            for par in range(2):
                off = c * 8192
                base = 4 + par
                if off >= 65536:
                    off -= 65536
                    base = 44 + par
                d = 16 + 4 * n
                a(f'ds_read_b128 {vr(d,4)}, v{base} offset:{off}')
                lg.issue(n)
                regs.append(d)
                n += 1
        if st + AH < NS:
            issue(st + AH)
        for n, d in enumerate(regs):
            lg.wait(n)
            for r in range(4):
                a(f'v_dot2c_f32_bf16 v{8+(r&1)}, v{d+r}, v12')
                a(f'v_dot2c_f32_bf16 v{10+(r&1)}, v{d+r}, v{d+r}')
    stamp(a, 12)
    a('v_add_f32 v8, v8, v9')
    a('v_add_f32 v10, v10, v11')
    for sw in ('v_permlane16_swap_b32', 'v_permlane32_swap_b32'):
        a('v_mov_b32 v9, v8')
        a('v_mov_b32 v11, v10')
        a(f'{sw} v9, v8')
        a(f'{sw} v11, v10')
        a('v_add_f32 v8, v8, v9')
        a('v_add_f32 v10, v10, v11')
    invb = struct.unpack('<I', struct.pack('<f', 1.0 / 576.0))[0]
    epsb = struct.unpack('<I', struct.pack('<f', 1e-5))[0]
    a(f'v_mul_f32 v8, 0x{invb:08x}, v8')
    a(f'v_mul_f32 v10, 0x{invb:08x}, v10')
    a('v_fma_f32 v10, -v8, v8, v10')
    a('v_max_f32 v10, 0, v10')
    bfround(a, 10, 10)
    a(f'v_add_f32 v10, 0x{epsb:08x}, v10')
    bfround(a, 10, 10)
    a('v_sqrt_f32 v10, v10')
    bfround(a, 10, 10)
    a('v_rcp_f32 v10, v10')
    a('s_cmp_eq_u32 s43, 0')
    a('s_cselect_b32 s47, 2.0, 0')
    a('v_mul_f32 v8, v8, v10')
    a('v_mul_f32 v8, s47, v8')
    a('s_lshl_b32 s46, s44, 6')
    a(f's_add_u32 s46, s46, {K1_LDS_ST}')
    a('v_lshl_add_u32 v9, v2, 2, s46')
    a('s_mov_b64 exec, 0xffff')
    a('ds_write_b32 v9, v10')
    a('ds_write_b32 v9, v8 offset:256')
    a('s_waitcnt lgkmcnt(0)')
    stamp(a, 9)
    a('s_barrier')
    stamp(a, 10)
    stamp_flush(a, 0, 15)
    a.label('K1_END')
    a('s_endpgm')
    a.label('K1_PF')
    a.flush_hist()
    a('s_load_dwordx8 s[4:11], s[0:1], 0')
    a('s_load_dwordx2 s[12:13], s[0:1], 32')
    a('s_load_dwordx4 s[44:47], s[0:1], 56')
    a('s_load_dwordx2 s[64:65], s[0:1], 72')
    a('s_load_dwordx2 s[14:15], s[0:1], 96')
    a('s_and_b32 s41, s2, 7')
    a('s_lshr_b32 s42, s2, 3')
    a('s_mov_b32 s43, 0x1c72')
    a('v_mov_b32 v6, 0x7ffffff0')
    a('v_add_u32 v1, 448, v0')
    for r in (0, 1):
        a(f'v_mul_u32_u24 v{2+r}, s43, v{r}')
        a(f'v_lshrrev_b32 v{2+r}, 16, v{2+r}')
        a(f'v_mul_u32_u24 v{4+r}, 9, v{2+r}')
        a(f'v_sub_u32 v{4+r}, v{r}, v{4+r}')
    if OPT['warm']:
        a('s_lshl_b32 s48, s42, 8')
        a('s_add_u32 s48, s48, s41')
        a('s_mul_i32 s48, s48, 1152')
        a('v_mul_u32_u24 v8, 9216, v2')
        a('v_lshl_add_u32 v8, v4, 7, v8')
        a('v_cmp_gt_u32 vcc, 288, v0')
        a('v_cndmask_b32 v8, v6, v8, vcc')
        a('v_subrev_u32 v9, 224, v0')
        a('v_cmp_gt_u32 vcc, 224, v0')
        a('v_cndmask_b32 v9, v9, v0, vcc')
        a('s_mov_b32 s49, 0x3334')
        a('v_mul_u32_u24 v10, s49, v9')
        a('v_lshrrev_b32 v10, 16, v10')
        a('v_mul_u32_u24 v11, 5, v10')
        a('v_sub_u32 v11, v9, v11')
        a('v_mul_u32_u24 v10, 1152, v10')
        a('v_lshl_add_u32 v10, v11, 7, v10')
        a('s_movk_i32 s53, 180')
        a('v_cmp_gt_u32 s[50:51], s53, v9')
        a('v_cndmask_b32 v10, v6, v10, s[50:51]')
        a('v_cndmask_b32 v11, v10, v6, vcc')
        a('v_cndmask_b32 v10, v6, v10, vcc')
        a('s_mul_i32 s49, s42, 41472')
        a('s_add_u32 s49, s49, 1152')
        a('v_lshlrev_b32 v12, 17, v0')
        a('v_cmp_gt_u32 vcc, 8, v0')
        a('v_cndmask_b32 v12, v6, v12, vcc')
        a('s_lshl_b32 s52, s42, 20')
    a('s_mul_i32 s66, s41, 663552')
    a('s_mul_i32 s67, s42, 82944')
    a('s_add_u32 s66, s66, s67')
    a('v_lshlrev_b32 v14, 7, v0')
    a('v_lshlrev_b32 v15, 7, v1')
    a('s_mul_i32 s41, s41, 1152')
    a('s_mul_i32 s42, s42, 663552')
    a('s_add_u32 s41, s41, s42')
    for r in (0, 1):
        a(f'v_mul_u32_u24 v{2+r}, 9216, v{2+r}')
        a(f'v_lshl_add_u32 v{2+r}, v{4+r}, 7, v{2+r}')
    a('v_cmp_gt_u32 vcc, 648, v1')
    a('v_cndmask_b32 v3, v6, v3, vcc')
    a('v_cndmask_b32 v15, v6, v15, vcc')
    a('s_waitcnt lgkmcnt(0)')
    if OPT['warm']:
        srd(a, 16, 4, X_BYTES)
        srd(a, 28, 10, HID_BYTES)
        srd(a, 32, 12, HID_BYTES)
        a(f'buffer_load_dword v16, v10, s[28:31], s49 offen{nt("nt_wd")}')
        a(f'buffer_load_dword v17, v11, s[32:35], s49 offen{nt("nt_wd")}')
        a(f'buffer_load_dword v18, v8, s[16:19], s48 offen{nt("nt_x")}')
        srd(a, 20, 6, SEQ_BYTES)
        srd(a, 24, 8, SEQ_BYTES)
        a(f'buffer_load_dword v19, v12, s[20:23], s52 offen{nt("nt_f")}')
        a(f'buffer_load_dword v20, v12, s[24:27], s52 offen{nt("nt_f")}')
    srd(a, 60, 14, WS_FILL_END)
    a('s_mul_i32 s54, s2, 7168')
    a(f's_add_u32 s54, s54, {WS_KEYS}')
    a('v_lshlrev_b32 v13, 4, v0')
    for r in range(28, 32):
        a(f'v_mov_b32 v{r}, -1')
    a('buffer_store_dwordx4 v[28:31], v13, s[60:63], s54 offen')
    if OPT['pf']:
        if OPT['pfwait']:
            a('s_waitcnt vmcnt(0)')
        srd(a, 36, 44, WG_BYTES)
        srd(a, 56, 46, WG_BYTES)
        srd(a, 68, 64, WG_BYTES)
        for rep in range(2 if OPT['retouch'] else 1):
            m = nt('nt_pf') if rep == 0 else ''
            a(f'buffer_load_dword v21, v2, s[36:39], s41 offen{m}')
            a(f'buffer_load_dword v22, v2, s[56:59], s41 offen{m}')
            a(f'buffer_load_dword v23, v3, s[36:39], s41 offen{m}')
            a(f'buffer_load_dword v24, v3, s[56:59], s41 offen{m}')
            if OPT['pf'] == 2:
                a(f'buffer_load_dword v25, v14, s[68:71], s66 offen{m}')
                a(f'buffer_load_dword v26, v15, s[68:71], s66 offen{m}')
            if OPT['retouch'] and rep == 0:
                a('s_waitcnt vmcnt(0)')
    a('s_endpgm')


K2_LDS_Y = 73728
K2_YS = 1168
K2_LDS_C = K2_LDS_Y + 16 * K2_YS
K2_LDS_T = K2_LDS_C + 64
K2_LDS_X = K2_LDS_T + 4096
K2_LDS_WR = K2_LDS_X + 16 * 1152
K2_ROW_LDS = K2_LDS_WR + 1152
K2_LDS_XS = 9 * 16384
K2_LDS_RED = K2_LDS_XS + 1280
K2_LDS_ACT = K2_LDS_RED + 9 * 512
K2_LDS = K2_LDS_ACT + 9 * 128
SPIN_LIMIT = 400000
NROWWG, NFFNWG, NPFWG, NFINWG = 128, 72, 48, 9
FIN0 = NROWWG + NFFNWG + NPFWG


def dpp_reduce(a, op, regs, rows_only=False):
    for m in ('row_shr:1', 'row_shr:2', 'row_shr:4', 'row_shr:8'):
        for r in regs:
            a(f'{op}_dpp v{r}, v{r}, v{r} {m} row_mask:0xf bank_mask:0xf')
    if rows_only:
        return
    for r in regs:
        a(f'{op}_dpp v{r}, v{r}, v{r} row_bcast:15 row_mask:0xa bank_mask:0xf')
    for r in regs:
        a(f'{op}_dpp v{r}, v{r}, v{r} row_bcast:31 row_mask:0xc bank_mask:0xf')


def gen_k2(a):
    import struct
    SC = ' sc0 sc1' if OPT['sc0'] else ' sc1'
    kernel_head(a, 'k2_kernel')
    vm = Cnt(a, 'vmcnt', 63)
    lg = Cnt(a, 'lgkmcnt', 15)
    a(f's_cmp_ge_u32 s2, {FIN0 + NFINWG}')
    a('s_cbranch_scc1 K2_END')
    a('s_load_dwordx4 s[4:7], s[0:1], 0')
    a('s_load_dwordx2 s[8:9], s[0:1], 16')
    a('s_load_dwordx2 s[14:15], s[0:1], 96')
    a('s_load_dwordx8 s[64:71], s[0:1], 48')
    a('s_load_dwordx2 s[12:13], s[0:1], 80')
    a('v_lshrrev_b32 v1, 6, v0')
    a('v_and_b32 v0, 63, v0')
    a('v_readfirstlane_b32 s40, v1')
    a('v_lshlrev_b32 v4, 4, v0')
    a('v_and_b32 v2, 15, v0')
    a('v_lshrrev_b32 v3, 4, v0')
    a('v_lshlrev_b32 v12, 1, v0')
    a('v_add_u32 v5, 1024, v4')
    a(f's_cmp_ge_u32 s2, {NROWWG}')
    a('s_cbranch_scc1 K2_OTHER')
    a('s_and_b32 s41, s2, 31')
    a('s_lshr_b32 s42, s2, 5')
    a('s_sub_u32 s43, 64, s41')
    a('s_cmp_eq_u32 s41, 0')
    a('s_cselect_b32 s43, 32, s43')
    a('s_sub_u32 s45, s40, 6')
    a('s_cmp_lt_u32 s40, 6')
    a('s_cselect_b32 s44, s41, s43')
    a('s_cselect_b32 s45, s40, s45')
    a('s_mul_i32 s44, s44, 36864')
    a('s_mul_i32 s45, s45, 6144')
    a('s_add_u32 s44, s44, s45')
    a('s_mul_i32 s45, s40, 6144')
    a('s_lshr_b32 s56, s42, 1')
    a('s_add_u32 s56, s56, s42')
    a('s_lshl_b32 s56, s56, 10')
    a('s_waitcnt lgkmcnt(0)')
    stamp(a, 0)
    srd(a, 36, 14, WS_RANGE)
    a('s_cmp_ge_u32 s40, 12')
    a('s_cbranch_scc1 K2_NOU')
    for n in range(6):
        a('s_add_u32 m0, s45, s56')
        a('s_add_u32 s57, s44, s56')
        a(f'buffer_load_dwordx4 v4, s[36:39], s57 offen{nt("nt_u")} lds')
        if n < 5:
            a('s_add_u32 s56, s56, 1024')
            a('s_cmp_eq_u32 s56, 6144')
            a('s_cselect_b32 s56, 0, s56')
    a.label('K2_NOU')
    a.flush_hist()
    a('v_cmp_lt_u32 vcc, 7, v2')
    a('s_cmp_eq_u32 s41, 0')
    a('s_cbranch_scc1 K2_P0')
    a('v_and_b32 v8, 7, v2')
    a('s_lshl_b32 s46, s42, 3')
    a('v_add_u32 v8, s46, v8')
    a('v_lshl_add_u32 v6, v8, 6, s41')
    a('v_sub_u32 v8, 2048, v6')
    a('v_cndmask_b32 v6, v6, v8, vcc')
    a('v_xor_b32 v7, 8, v2')
    a('s_branch K2_ROWS')
    a.label('K2_P0')
    a.flush_hist()
    a('v_bfe_u32 v8, v2, 1, 2')
    a('s_lshl_b32 s46, s42, 2')
    a('v_add_u32 v8, s46, v8')
    a('v_sub_u32 v9, 32, v8')
    a('v_sub_u32 v10, 31, v8')
    a('v_cndmask_b32 v9, v9, v10, vcc')
    a('v_mov_b32 v11, 0')
    a('v_cndmask_b32 v11, v11, 32, vcc')
    a('v_cmp_eq_u32 vcc, 32, v9')
    a('v_cndmask_b32 v9, v9, 16, vcc')
    a('v_xor_b32 v7, 1, v2')
    a('v_cndmask_b32 v7, v7, v2, vcc')
    a('v_and_b32 v10, 1, v2')
    a('v_cmp_eq_u32 vcc, 1, v10')
    a('v_cndmask_b32 v8, v8, v9, vcc')
    a('v_lshl_add_u32 v6, v8, 6, v11')
    a.label('K2_ROWS')
    a.flush_hist()
    a('v_and_b32 v9, 1, v3')
    a(f'v_add_u32 v89, {K2_LDS_T}, v4')
    a('v_readlane_b32 s46, v6, s40')
    a('v_readlane_b32 s47, v7, s40')
    T = lambda cls, kap: 32 + (cls * 2 + kap) * 4
    TW = lambda kap, part: 16 + (kap * 2 + part) * 4
    a('s_cmp_lg_u32 s40, 15')
    a('s_cbranch_scc1 K2_NOTW')
    a('v_lshrrev_b32 v8, 1, v3')
    a('v_lshlrev_b32 v8, 4, v8')
    a('v_lshl_add_u32 v8, v9, 2, v8')
    a('v_lshl_add_u32 v8, v6, 12, v8')
    srd(a, 16, 6, SEQ_BYTES)
    srd(a, 20, 8, SEQ_BYTES)
    for kap in range(2):
        for part in range(2):
            a(f'buffer_load_dwordx3 {vr(TW(kap,part),3)}, v8, s[{16+4*part}:{19+4*part}], 0 offen offset:{kap*32}{nt("nt_tw")}')
    a.label('K2_NOTW')
    a.flush_hist()
    srd(a, 24, 4, X_BYTES)
    XR = lambda k: 100 + k
    WR = lambda k: 110 + k
    a('s_mul_i32 s48, s46, 1152')
    a('s_mul_i32 s49, s40, 1152')
    a(f's_add_u32 s49, s49, {K2_LDS_X}')
    a('s_mov_b32 m0, s49')
    a('v_add_u32 v96, s49, v12')
    a(f'buffer_load_dwordx4 v4, s[24:27], s48 offen{nt("nt_x")} lds')
    a('s_mov_b64 exec, 0xff')
    a(f'buffer_load_dwordx4 v4, s[24:27], s48 offen offset:1024{nt("nt_x")} lds')
    a('s_mov_b64 exec, -1')
    a('s_cmp_lg_u32 s40, 14')
    a('s_cbranch_scc1 K2_NOWR')
    srd(a, 28, 64, D * 2)
    a(f's_mov_b32 m0, {K2_LDS_WR}')
    a('s_nop 0')
    a('buffer_load_dwordx4 v4, s[28:31], 0 offen lds')
    a('s_mov_b64 exec, 0xff')
    a('buffer_load_dwordx4 v4, s[28:31], 0 offen offset:1024 lds')
    a('s_mov_b64 exec, -1')
    a.label('K2_NOWR')
    a.flush_hist()
    a(f'v_add_u32 v97, {K2_LDS_WR}, v12')
    for k in range(10):
        a(f'v_mov_b32 v{XR(k)}, 0')
        a(f'v_mov_b32 v{WR(k)}, 0')
    srd(a, 32, 12, X_BYTES)
    a('v_and_b32 v10, 1, v0')
    a('v_mul_u32_u24 v10, 576, v10')
    a('v_lshrrev_b32 v11, 1, v0')
    a('v_lshl_add_u32 v90, v11, 2, v10')
    a(f's_mul_i32 s49, s40, {K2_YS}')
    a(f's_add_u32 s49, s49, {K2_LDS_Y}')
    a('v_add_u32 v90, s49, v90')
    a('v_add_u32 v11, 1, v0')
    a('v_lshrrev_b32 v11, 1, v11')
    a('v_sub_u32 v11, 32, v11')
    a('v_lshl_add_u32 v91, v11, 2, v10')
    a(f's_mul_i32 s50, s47, {K2_YS}')
    a(f's_add_u32 s50, s50, {K2_LDS_Y}')
    a('v_add_u32 v91, s50, v91')
    a('v_cmp_lt_u32 vcc, 32, v0')
    a('v_cndmask_b32 v92, v90, v91, vcc')
    a('v_add_u32 v92, 512, v92')
    a('v_mov_b32 v11, s49')
    a('v_cmp_eq_u32 vcc, 32, v0')
    a('v_cndmask_b32 v92, v92, v11, vcc')
    a('v_lshrrev_b32 v13, 1, v3')
    a('v_lshlrev_b32 v13, 3, v13')
    a('v_lshl_add_u32 v13, v9, 1, v13')
    a('v_bfe_u32 v10, v0, 3, 1')
    a('v_add_u32 v13, v13, v10')
    a('v_mul_u32_u24 v13, 1152, v13')
    a('v_and_b32 v10, 3, v0')
    a('v_lshl_add_u32 v13, v10, 4, v13')
    a('v_bfe_u32 v10, v0, 2, 1')
    a('v_lshl_add_u32 v13, v10, 3, v13')
    a('s_lshl_b32 s49, s40, 7')
    a('v_add_u32 v13, s49, v13')
    a('v_lshl_add_u32 v13, v9, 6, v13')
    a('v_xor_b32 v11, 64, v13')
    a(f'v_mul_u32_u24 v14, {K2_YS}, v2')
    a('v_lshl_add_u32 v14, v3, 4, v14')
    a(f's_add_u32 s49, s49, {K2_LDS_Y}')
    a('v_add_u32 v14, s49, v14')
    a('s_mul_i32 s54, s40, 3456')
    a('v_add_u32 v93, s54, v12')
    a('v_add_u32 v94, s54, v4')
    stamp(a, 1)
    a('s_cmp_lg_u32 s40, 15')
    a('s_cbranch_scc1 K2_NOTW2')
    a('s_mov_b32 s50, 0x05040100')
    a('s_mov_b32 s51, 0x07060302')
    a('v_cmp_gt_u32 s[52:53], 8, v2')
    a('s_waitcnt vmcnt(2)')
    for kap in range(2):
        cr, ci = TW(kap, 0), TW(kap, 1)
        a(f'v_xor_b32 v{ci}, 0x80008000, v{ci}')
        a(f'v_xor_b32 v{ci+2}, 0x80008000, v{ci+2}')
        t = 48
        a(f'v_perm_b32 v{t}, v{ci}, v{cr}, s50')
        a(f'v_perm_b32 v{t+1}, v{ci}, v{cr}, s51')
        a(f'v_perm_b32 v{t+2}, v{ci+2}, v{cr+2}, s50')
        a(f'v_perm_b32 v{t+3}, v{ci+2}, v{cr+2}, s51')
        for r in range(4):
            a(f'v_cndmask_b32 v{T(0,kap)+r}, 0, v{t+r}, s[52:53]')
            a(f'v_cndmask_b32 v{T(1,kap)+r}, v{t+r}, 0, s[52:53]')
    for cls in range(2):
        for kap in range(2):
            a(f'ds_write_b128 v89, {vr(T(cls,kap),4)} offset:{(cls*2+kap)*1024}')
    a.label('K2_NOTW2')
    a.flush_hist()
    a('s_waitcnt vmcnt(0) lgkmcnt(0)')
    stamp(a, 2)
    a('s_barrier')
    stamp(a, 3)
    a('s_cmp_ge_u32 s40, 9')
    a('s_cbranch_scc1 K2_SKIPMM')
    UF = lambda slot: 56 + 4 * slot
    ACC = lambda jj: 48 + 4 * jj
    order = [(jj, cls, kap) for cls in range(2) for kap in range(2) for jj in range(2)]

    def rd(n):
        jj, cls, kap = order[n]
        for h in range(2):
            off = cls * 36864 + kap * 18432 + h * 4608
            a(f'ds_read_b64_tr_b16 {vr(UF(n)+2*h,2)}, v{13 if jj == 0 else 11} offset:{off}')
            lg.issue(n)

    def rdT(cls, kap):
        a(f'ds_read_b128 {vr(T(cls,kap),4)}, v89 offset:{(cls*2+kap)*1024}')
        lg.issue(('T', cls, kap))
    rdT(0, 0); rd(0); rd(1); rdT(0, 1); rd(2); rd(3); rdT(1, 0); rd(4)
    nxt = [lambda: rd(5), lambda: (rdT(1, 1), rd(6)), lambda: rd(7)]
    for n, (jj, cls, kap) in enumerate(order):
        lg.wait(n)
        c = '0' if (cls == 0 and kap == 0) else vr(ACC(jj), 4)
        a(f'v_mfma_f32_16x16x32_bf16 {vr(ACC(jj),4)}, {vr(UF(n),4)}, {vr(T(cls,kap),4)}, {c}')
        if n < 3:
            nxt[n]()
    for jj in range(2):
        a(f'ds_write_b128 v14, {vr(ACC(jj),4)} offset:{jj*64}')
    a.label('K2_SKIPMM')
    a.flush_hist()
    for k in range(9):
        a(f'ds_read_u16_d16_hi v{WR(k)}, v97 offset:{k*128}')
    a('s_waitcnt lgkmcnt(0)')
    for k in range(9):
        a(f'ds_read_u16_d16_hi v{XR(k)}, v96 offset:{k*128}')
    a(f'v_pk_add_f32 v[84:85], {vr(WR(0),2)}, {vr(WR(2),2)}')
    a(f'v_pk_add_f32 v[86:87], {vr(WR(4),2)}, {vr(WR(6),2)}')
    a(f'v_pk_add_f32 v[84:85], v[84:85], {vr(WR(8),2)}')
    a('v_pk_add_f32 v[84:85], v[84:85], v[86:87]')
    a('v_add_f32 v85, v84, v85')
    dpp_reduce(a, 'v_add_f32', [85])
    a('v_mov_b32 v73, 0')
    a('s_waitcnt lgkmcnt(0)')
    stamp(a, 4)
    a('s_barrier')
    stamp(a, 5)
    YR = lambda k: 64 + k
    for k in range(9):
        if k < 4:
            a(f'ds_read_b32 v{YR(k)}, v90 offset:{k*128}')
        elif k == 4:
            a(f'ds_read_b32 v{YR(k)}, v92')
        else:
            a(f'ds_read_b32 v{YR(k)}, v91 offset:{(8-k)*128}')
    a('s_waitcnt lgkmcnt(0)')
    stamp(a, 6)
    a(f'v_writelane_b32 v{YR(0)}, 0, 0')
    for j in range(5):
        a(f'v_pk_add_f32 {vr(YR(2*j),2)}, {vr(YR(2*j),2)}, {vr(XR(2*j),2)}')
    HP = lambda j: 76 + j
    H = lambda k: 64 + k
    for j in range(5):
        a(f'v_cvt_pk_bf16_f32 v{HP(j)}, v{YR(2*j)}, v{YR(2*j+1)}')
    for j in range(5):
        a(f'v_lshlrev_b32 v{H(2*j)}, 16, v{HP(j)}')
        if j < 4:
            a(f'v_and_b32 v{H(2*j+1)}, 0xffff0000, v{HP(j)}')
    H2 = lambda j: vr(H(2 * j), 2)
    W2 = lambda j: vr(WR(2 * j), 2)
    a(f'v_pk_add_f32 v[16:17], {H2(0)}, {H2(1)}')
    a(f'v_pk_mul_f32 v[18:19], {H2(0)}, {H2(0)}')
    a(f'v_pk_mul_f32 v[20:21], {H2(0)}, {W2(0)}')
    for j in range(1, 5):
        if j >= 2:
            a(f'v_pk_add_f32 v[16:17], v[16:17], {H2(j)}')
        a(f'v_pk_fma_f32 v[18:19], {H2(j)}, {H2(j)}, v[18:19]')
        a(f'v_pk_fma_f32 v[20:21], {H2(j)}, {W2(j)}, v[20:21]')
    a('v_add_f32 v82, v16, v17')
    a('v_add_f32 v83, v18, v19')
    a('v_add_f32 v84, v20, v21')
    dpp_reduce(a, 'v_add_f32', [82, 83, 84])
    invb = struct.unpack('<I', struct.pack('<f', 1.0 / 576.0))[0]
    epsb = struct.unpack('<I', struct.pack('<f', 1e-5))[0]
    a(f'v_mul_f32 v82, 0x{invb:08x}, v82')
    a(f'v_mul_f32 v83, 0x{invb:08x}, v83')
    a('v_fma_f32 v83, -v82, v82, v83')
    a('v_max_f32 v83, 0, v83')
    bfround(a, 83, 83)
    bfround(a, 82, 82)
    a(f'v_add_f32 v83, 0x{epsb:08x}, v83')
    bfround(a, 83, 83)
    a('v_sqrt_f32 v83, v83')
    a('v_fma_f32 v84, -v82, v85, v84')
    bfround(a, 83, 83)
    a('v_rcp_f32 v83, v83')
    a('v_mul_f32 v84, v84, v83')
    a('v_mul_f32 v82, v82, v83')
    a('v_readlane_b32 s52, v84, 63')
    a('v_readlane_b32 s50, v83, 63')
    a('v_readlane_b32 s55, v82, 63')
    a('s_ashr_i32 s53, s52, 31')
    a('s_or_b32 s53, s53, 0x80000000')
    a('s_xor_b32 s53, s53, s52')
    a('s_and_b32 s53, s53, 0xfffff800')
    a('s_max_u32 s53, s53, 0x800')
    a('s_lshl_b32 s58, s2, 4')
    a('s_add_u32 s58, s58, s40')
    a('s_sub_u32 s58, 2047, s58')
    a('s_or_b32 s53, s53, s58')
    a('s_mov_b32 s51, s50')
    a('s_lshl_b32 s58, s40, 2')
    a(f's_add_u32 s58, s58, {K2_LDS_C}')
    a('v_mov_b32 v88, s55')
    a('v_mov_b32 v86, s58')
    a('v_mov_b32 v87, s53')
    a('ds_write_b32 v86, v87')
    HN = lambda k: 100 + k
    for j in range(5):
        a(f'v_pk_fma_f32 {vr(HN(2*j),2)}, {H2(j)}, s[50:51], v[88:89] op_sel_hi:[1,1,0] neg_lo:[0,0,1] neg_hi:[0,0,1]')
    NP = lambda j: 110 + j
    for j in range(5):
        a(f'v_cvt_pk_bf16_f32 v{NP(j)}, v{HN(2*j)}, v{HN(2*j+1)}')

    def lds_row(P, off):
        for k in range(9):
            op = 'ds_write_b16' if k % 2 == 0 else 'ds_write_b16_d16_hi'
            a(f'{op} v93, v{P(k//2)} offset:{off + k*128}')
    lds_row(NP, 0)
    a('v_lshlrev_b32 v86, 2, v2')
    a(f'v_add_u32 v86, {K2_LDS_C}, v86')
    a('v_not_b32 v87, v87')
    a('s_waitcnt lgkmcnt(0)')
    stamp(a, 7)
    a('s_barrier')
    stamp(a, 8)
    a('ds_read_b32 v95, v86')
    a('ds_read_b128 v[16:19], v94')
    a('ds_read_b128 v[20:23], v94 offset:1024')
    a('s_mul_i32 s56, s2, 1152')
    a(f's_add_u32 s56, s56, {WS_HN}')
    a('s_lshl_b32 s57, s2, 7')
    a(f's_add_u32 s57, s57, {WS_KEYS}')
    a('v_mov_b32 v86, 0')
    a('s_waitcnt lgkmcnt(2)')
    dpp_reduce(a, 'v_max_u32', [95], rows_only=True)
    a('v_readlane_b32 s58, v95, 15')
    a('s_cmp_lg_u32 s58, s53')
    a('s_cbranch_scc1 K2_NOTWIN')
    a('s_waitcnt lgkmcnt(0)')
    a(f'buffer_store_dwordx4 v[16:19], v4, s[36:39], s56 offen{SC}')
    a('s_mov_b64 exec, 0xff')
    a(f'buffer_store_dwordx4 v[20:23], v5, s[36:39], s56 offen{SC}')
    a('s_mov_b64 exec, 1')
    a(f'buffer_store_dword v87, v86, s[36:39], s57 offen{SC}')
    a('s_mov_b64 exec, -1')
    stamp(a, 9)
    lds_row(HP, 1152)
    a.label('K2_NOTWIN')
    a.flush_hist()
    OP = lambda j: 116 + j
    for j in range(5):
        a(f'v_lshlrev_b32 v{HN(2*j)}, 16, v{NP(j)}')
        if j < 4:
            a(f'v_and_b32 v{HN(2*j+1)}, 0xffff0000, v{NP(j)}')
    for j in range(5):
        a(f'v_pk_add_f32 {vr(HN(2*j),2)}, {vr(HN(2*j),2)}, {H2(j)}')
    for j in range(5):
        a(f'v_cvt_pk_bf16_f32 v{OP(j)}, v{HN(2*j)}, v{HN(2*j+1)}')
    a('s_waitcnt lgkmcnt(0)')
    lds_row(OP, 2304)
    a('s_waitcnt lgkmcnt(0)')
    a('ds_read_b128 v[32:35], v94 offset:2304')
    a('ds_read_b128 v[36:39], v94 offset:3328')
    a('s_cmp_lg_u32 s58, s53')
    a('s_cbranch_scc1 K2_PLAIN')
    a('ds_read_b128 v[24:27], v94 offset:1152')
    a('ds_read_b128 v[28:31], v94 offset:2176')
    a('s_mul_i32 s56, s2, 1280')
    a(f's_add_u32 s56, s56, {WS_H}')
    a('v_mov_b32 v88, s52')
    a('v_mov_b32 v89, s46')
    a('s_waitcnt lgkmcnt(0)')
    a(f'buffer_store_dwordx4 v[24:27], v4, s[36:39], s56 offen{SC}')
    a(f'buffer_store_dwordx4 v[32:35], v4, s[32:35], s48 offen{SC}')
    a('s_mov_b64 exec, 0xff')
    a(f'buffer_store_dwordx4 v[28:31], v5, s[36:39], s56 offen{SC}')
    a(f'buffer_store_dwordx4 v[36:39], v5, s[32:35], s48 offen{SC}')
    a('s_mov_b64 exec, 1')
    a(f'buffer_store_dwordx2 v[88:89], v86, s[36:39], s56 offen offset:1152{SC}')
    a('s_waitcnt vmcnt(0)')
    a(f'buffer_store_dword v86, v86, s[36:39], s57 offen offset:64{SC}')
    a('s_mov_b64 exec, -1')
    a('s_branch K2_EXIT')
    a.label('K2_PLAIN')
    a.flush_hist()
    a('s_waitcnt lgkmcnt(0)')
    a('buffer_store_dwordx4 v[32:35], v4, s[32:35], s48 offen')
    a('s_mov_b64 exec, 0xff')
    a('buffer_store_dwordx4 v[36:39], v5, s[32:35], s48 offen')
    a('s_mov_b64 exec, -1')
    a('s_branch K2_EXIT')

    a.label('K2_OTHER')
    a.flush_hist()
    a(f's_cmp_lt_u32 s2, {NROWWG + NFFNWG}')
    a('s_cbranch_scc1 K2_NOPF')
    a(f's_cmp_ge_u32 s2, {FIN0}')
    a('s_cbranch_scc1 K2_NOPF')
    a('s_cmp_ge_u32 s40, 14')
    a('s_cbranch_scc1 K2_END')
    a('s_and_b32 s41, s2, 7')
    a('s_mul_i32 s41, s41, 663552')
    a(f's_sub_u32 s42, s2, {NROWWG + NFFNWG}')
    a('s_lshr_b32 s42, s42, 3')
    a('s_mul_i32 s42, s42, 110592')
    a('s_add_u32 s41, s41, s42')
    a('s_lshl_b32 s42, s40, 13')
    a('s_add_u32 s41, s41, s42')
    a('v_lshlrev_b32 v6, 7, v0')
    a('s_waitcnt lgkmcnt(0)')
    srd(a, 24, 70, WG_BYTES)
    a(f'buffer_load_dword v7, v6, s[24:27], s41 offen{nt("nt_pf")}')
    a('s_endpgm')
    a.label('K2_NOPF')
    a.flush_hist()
    a('s_cmp_ge_u32 s40, 10')
    a('s_cbranch_scc1 K2_END')
    a('v_lshlrev_b32 v27, 2, v0')
    a('s_waitcnt lgkmcnt(0)')
    stamp(a, 0)
    srd(a, 36, 14, WS_RANGE)
    a('s_cmp_eq_u32 s40, 9')
    a('s_cbranch_scc1 K2_W9')
    a(f's_cmp_ge_u32 s2, {FIN0}')
    a('s_cbranch_scc1 K2_FIN')
    a(f's_sub_u32 s41, s2, {NROWWG}')
    a('s_and_b32 s3, s41, 7')
    a('s_mul_i32 s3, s3, 9')
    a('s_lshr_b32 s41, s41, 3')
    a('s_add_u32 s3, s3, s41')
    srd(a, 16, 66, WG_BYTES)
    srd(a, 20, 68, WG_BYTES)
    srd(a, 24, 70, WG_BYTES)
    a('v_lshrrev_b32 v8, 3, v0')
    a('v_and_b32 v9, 7, v0')
    a('v_mul_u32_u24 v15, 9216, v8')
    a('v_lshl_add_u32 v15, v9, 4, v15')
    a('v_mul_u32_u24 v14, 1152, v8')
    a('v_lshl_add_u32 v14, v9, 4, v14')
    a('s_mul_i32 s59, s40, 589824')
    a('s_lshl_b32 s58, s3, 7')
    a('s_add_u32 s59, s59, s58')
    a('s_lshl_b32 s55, s40, 14')
    for mat in range(2):
        a('s_mov_b32 s57, s59')
        for q in range(8):
            a(f's_add_u32 m0, s55, {mat*8192 + q*1024}')
            a(f'buffer_load_dwordx4 v15, s[{16+4*mat}:{19+4*mat}], s57 offen{nt("nt_w")} lds')
            if q < 7:
                a('s_add_u32 s57, s57, 73728')
    a('v_bfe_u32 v13, v0, 2, 2')
    a('v_lshl_add_u32 v13, v3, 3, v13')
    a('v_and_b32 v10, 3, v0')
    a('v_lshlrev_b32 v13, 7, v13')
    a('v_lshl_add_u32 v13, v10, 3, v13')
    a('v_add_u32 v13, s55, v13')
    a('s_mul_i32 s57, s3, 73728')
    a('s_lshl_b32 s58, s40, 7')
    a('s_add_u32 s57, s57, s58')
    WF = lambda mat, kap, nu: 64 + ((mat * 2 + kap) * 4 + nu) * 4

    def rd_tile(mat_off, reg):
        for kap in range(2):
            for nu in range(4):
                for h in range(2):
                    a(f'ds_read_b64_tr_b16 {vr(reg(kap,nu)+2*h,2)}, v13 offset:{mat_off + kap*4096 + h*512 + nu*32}')
            a('s_waitcnt lgkmcnt(0)')
    a('s_waitcnt vmcnt(8)')
    rd_tile(0, lambda kap, nu: WF(0, kap, nu))
    for q in range(8):
        a(f's_add_u32 m0, s55, {q*1024}')
        a(f'buffer_load_dwordx4 v14, s[24:27], s57 offen{nt("nt_w")} lds')
        if q < 7:
            a('s_add_u32 s57, s57, 9216')
    a('s_waitcnt vmcnt(8)')
    rd_tile(8192, lambda kap, nu: WF(1, kap, nu))
    a('v_cmp_eq_u32 s[52:53], 1, v3')
    a('v_cmp_eq_u32 s[54:55], 2, v3')
    a('v_cmp_eq_u32 s[56:57], 3, v3')
    a('s_lshl_b32 s49, s40, 7')
    a(f's_add_u32 s49, s49, {K2_LDS_XS}')
    a('v_lshl_add_u32 v6, v3, 4, s49')
    a(f'v_add_u32 v28, {K2_LDS_RED}, v27')
    a('s_lshl_b32 s49, s40, 9')
    a('v_add_u32 v29, s49, v28')
    a('s_lshl_b32 s49, s40, 7')
    a(f's_add_u32 s49, s49, {K2_LDS_ACT}')
    a('v_add_u32 v30, s49, v12')
    a('v_lshl_add_u32 v31, v3, 4, s49')
    a('s_mul_i32 s49, s3, 2304')
    a('s_lshl_b32 s50, s40, 8')
    a('s_add_u32 s49, s49, s50')
    a(f's_add_u32 s49, s49, {WS_PART}')
    a('s_waitcnt vmcnt(0)')
    stamp(a, 10)
    a('s_barrier')
    stamp(a, 11)
    a('ds_read_b128 v[16:19], v6')
    a('ds_read_b128 v[20:23], v6 offset:64')
    FACC = lambda mat, nu: 32 + 4 * (mat * 4 + nu)
    for kap in range(2):
        a(f's_waitcnt lgkmcnt({1-kap})')
        for mat in range(2):
            for nu in range(4):
                c = '0' if kap == 0 else vr(FACC(mat, nu), 4)
                a(f'v_mfma_f32_16x16x32_bf16 {vr(FACC(mat,nu),4)}, {vr(16+4*kap,4)}, {vr(WF(mat,kap,nu),4)}, {c}')
    DF = lambda kap, nu: 64 + (kap * 4 + nu) * 4
    for nu in range(4):
        for h in range(2):
            a(f'ds_read_b64_tr_b16 {vr(DF(0,nu)+2*h,2)}, v13 offset:{h*512 + nu*32}')
    for mat in range(2):
        a(f'v_cndmask_b32 v{24+mat}, v{FACC(mat,0)}, v{FACC(mat,1)}, s[52:53]')
        a(f'v_cndmask_b32 v{24+mat}, v{24+mat}, v{FACC(mat,2)}, s[54:55]')
        a(f'v_cndmask_b32 v{24+mat}, v{24+mat}, v{FACC(mat,3)}, s[56:57]')
        a(f'ds_write_b32 v29, v{24+mat} offset:{mat*256}')
    a('s_waitcnt lgkmcnt(0)')
    a('s_barrier')
    stamp(a, 12)
    for w in range(9):
        a(f'ds_read2_b32 {vr(32+2*w,2)}, v28 offset0:{(w*128)%256} offset1:{(w*128+64)%256}' if False else
          f'ds_read2st64_b32 {vr(32+2*w,2)}, v28 offset0:{2*w} offset1:{2*w+1}')
    for nu in range(2):
        for h in range(2):
            a(f'ds_read_b64_tr_b16 {vr(DF(1,nu)+2*h,2)}, v13 offset:{4096 + h*512 + nu*32}')
    a('s_waitcnt lgkmcnt(4)')
    for nu in range(2, 4):
        for h in range(2):
            a(f'ds_read_b64_tr_b16 {vr(DF(1,nu)+2*h,2)}, v13 offset:{4096 + h*512 + nu*32}')
    for (d, s0, s1) in ((32, 32, 34), (36, 36, 38), (40, 40, 42), (44, 44, 46), (32, 32, 36), (40, 40, 44), (32, 32, 48), (32, 32, 40)):
        a(f'v_pk_add_f32 {vr(d,2)}, {vr(s0,2)}, {vr(s1,2)}')
    a('v_cvt_pk_bf16_f32 v34, v32, v33')
    a('v_lshlrev_b32 v32, 16, v34')
    a('v_and_b32 v33, 0xffff0000, v34')
    a('v_mul_f32 v35, 0xbfb8aa3b, v32')
    a('v_exp_f32 v35, v35')
    a('v_add_f32 v35, 1.0, v35')
    a('v_rcp_f32 v35, v35')
    a('v_mul_f32 v35, v35, v32')
    bfround(a, 35, 35)
    a('v_mul_f32 v35, v35, v33')
    a('v_cvt_pk_bf16_f32 v35, v35, v35')
    a('ds_write_b16 v30, v35')
    a('s_waitcnt lgkmcnt(0)')
    a('ds_read_b128 v[16:19], v31')
    a('ds_read_b128 v[20:23], v31 offset:64')
    for kap in range(2):
        a(f's_waitcnt lgkmcnt({1-kap})')
        for nu in range(4):
            c = '0' if kap == 0 else vr(FACC(1, nu), 4)
            a(f'v_mfma_f32_16x16x32_bf16 {vr(FACC(1,nu),4)}, {vr(16+4*kap,4)}, {vr(DF(kap,nu),4)}, {c}')
    a('v_mov_b32 v25, 0x7fc00000')
    a(f'v_cndmask_b32 v26, v{FACC(1,0)}, v{FACC(1,1)}, s[52:53]')
    a(f'v_cndmask_b32 v26, v26, v{FACC(1,2)}, s[54:55]')
    a(f'v_cndmask_b32 v26, v26, v{FACC(1,3)}, s[56:57]')
    a('v_cmp_eq_u32 vcc, -1, v26')
    a('v_cndmask_b32 v26, v26, v25, vcc')
    a(f'buffer_store_dword v26, v27, s[36:39], s49 offen{SC}')
    stamp(a, 13)
    a('s_branch K2_EXIT')

    a.label('K2_W9')
    a.flush_hist()
    a(f's_mov_b32 s56, {WS_KEYS}')
    a(f's_mov_b32 s55, {WS_KEYS + 8192}')
    a('s_mov_b32 s57, -1')
    a('s_mov_b32 s58, 0')
    a('s_mov_b32 s46, 0')
    a(f's_mov_b32 s47, {WS_HN}')
    a('v_lshlrev_b32 v8, 7, v0')
    a.label('K2_POLL')
    a.flush_hist()
    a(f'buffer_load_dword v16, v8, s[36:39], s56 offen{SC}')
    a(f'buffer_load_dword v17, v8, s[36:39], s55 offen{SC}')
    a('s_waitcnt vmcnt(0)')
    a('v_min_u32 v20, v16, v17')
    a('v_max_u32 v21, v16, v17')
    a('v_cmp_eq_u32 vcc, -1, v21')
    dpp_reduce(a, 'v_min_u32', [20])
    a('v_readlane_b32 s44, v20, 63')
    a('s_cmp_eq_u32 s44, s57')
    a('s_cbranch_scc1 K2_SAME')
    a('s_mov_b32 s57, s44')
    a('s_and_b32 s46, s44, 0x7ff')
    a('s_lshr_b32 s46, s46, 4')
    a('s_mul_i32 s47, s46, 1152')
    a(f's_add_u32 s47, s47, {WS_HN}')
    a.label('K2_ROWLD')
    a.flush_hist()
    a(f'buffer_load_dwordx4 v[24:27], v4, s[36:39], s47 offen{SC}')
    for r in range(28, 32):
        a(f'v_mov_b32 v{r}, 0')
    a('s_mov_b64 exec, 0xff')
    a(f'buffer_load_dwordx4 v[28:31], v5, s[36:39], s47 offen{SC}')
    a('s_mov_b64 exec, -1')
    a.label('K2_SAME')
    a.flush_hist()
    a('s_add_u32 s58, s58, 1')
    a(f's_cmp_lt_u32 s58, {SPIN_LIMIT}')
    a('s_cbranch_scc0 K2_GOT')
    a('s_cmp_eq_u64 vcc, 0')
    a('s_cbranch_scc1 K2_ALLK')
    if OPT['sleep']:
        a(f's_sleep {OPT["sleep"]}')
    a('s_branch K2_POLL')
    a.label('K2_ALLK')
    a.flush_hist()
    a('s_waitcnt vmcnt(0)')
    a('v_max3_u32 v20, v24, v25, v26')
    a('v_max3_u32 v21, v27, v28, v29')
    a('v_max3_u32 v20, v20, v30, v31')
    a('v_max_u32 v20, v20, v21')
    a('v_cmp_eq_u32 s[50:51], -1, v20')
    a('s_nop 2')
    a('s_cmp_eq_u64 s[50:51], 0')
    a('s_cbranch_scc0 K2_ROWLD')
    a.label('K2_GOT')
    a.flush_hist()
    a('s_waitcnt vmcnt(0)')
    stamp(a, 9)
    a(f's_cmp_ge_u32 s2, {FIN0}')
    a('s_cbranch_scc1 K2_FIN9')
    a(f'v_add_u32 v6, {K2_LDS_XS}, v4')
    a('ds_write_b128 v6, v[24:27]')
    a('s_mov_b64 exec, 0xff')
    a('ds_write_b128 v6, v[28:31] offset:1024')
    a('s_mov_b64 exec, -1')
    a('s_waitcnt lgkmcnt(0)')
    a('s_barrier')
    a('s_branch K2_EXIT')

    a.label('K2_FIN')
    a.flush_hist()
    a('s_mul_i32 s41, s40, 18432')
    a(f's_sub_u32 s42, s2, {FIN0}')
    a('s_lshl_b32 s42, s42, 8')
    a('s_add_u32 s41, s41, s42')
    a(f's_add_u32 s41, s41, {WS_PART}')
    a('s_mov_b32 s58, 0')
    a('s_lshl_b32 s45, s40, 8')
    a('v_add_u32 v9, s45, v27')
    a('s_barrier')
    a.label('K2_PPOLL')
    a.flush_hist()
    a('s_mov_b32 s43, s41')
    P = lambda p: 32 + p
    for p in range(8):
        a(f'buffer_load_dword v{P(p)}, v27, s[36:39], s43 offen{SC}')
        if p < 7:
            a('s_add_u32 s43, s43, 2304')
    a('s_add_u32 s58, s58, 1')
    a('s_waitcnt vmcnt(0)')
    a(f'v_max3_u32 v16, v{P(0)}, v{P(1)}, v{P(2)}')
    a(f'v_max3_u32 v17, v{P(3)}, v{P(4)}, v{P(5)}')
    a(f'v_max3_u32 v16, v16, v{P(6)}, v{P(7)}')
    a('v_max_u32 v16, v16, v17')
    a('v_cmp_eq_u32 vcc, -1, v16')
    for p in range(4):
        a(f'v_add_f32 v{P(p)}, v{P(p)}, v{P(p+4)}')
    a('s_cmp_eq_u64 vcc, 0')
    a('s_cbranch_scc1 K2_PGOT')
    a(f's_cmp_lt_u32 s58, {SPIN_LIMIT}')
    a('s_cbranch_scc1 K2_PPOLL')
    a.label('K2_PGOT')
    a.flush_hist()
    a(f'v_add_f32 v{P(0)}, v{P(0)}, v{P(2)}')
    a(f'v_add_f32 v{P(1)}, v{P(1)}, v{P(3)}')
    a(f'v_add_f32 v{P(0)}, v{P(0)}, v{P(1)}')
    a(f'ds_write_b32 v9, v{P(0)}')
    a('s_waitcnt lgkmcnt(0)')
    stamp(a, 12)
    a('s_barrier')
    a('s_branch K2_EXIT')
    a.label('K2_FIN9')
    a.flush_hist()
    a('s_barrier')
    srd(a, 32, 12, X_BYTES)
    a('s_lshl_b32 s48, s46, 7')
    a(f's_add_u32 s48, s48, {WS_KEYS + 64}')
    a('v_mov_b32 v8, 0')
    a('s_mov_b32 s58, 0')
    a.label('K2_FPOLL')
    a.flush_hist()
    a(f'buffer_load_dword v9, v8, s[36:39], s48 offen{SC}')
    a('s_add_u32 s58, s58, 1')
    a('s_waitcnt vmcnt(0)')
    a('v_readfirstlane_b32 s44, v9')
    a('s_cmp_lg_u32 s44, -1')
    a('s_cbranch_scc1 K2_FGOT')
    a(f's_cmp_lt_u32 s58, {SPIN_LIMIT}')
    a('s_cbranch_scc1 K2_FPOLL')
    a.label('K2_FGOT')
    a.flush_hist()
    a(f's_sub_u32 s42, s2, {FIN0}')
    a('s_lshl_b32 s43, s42, 7')
    a('s_add_u32 s44, s43, s47')
    a('s_mul_i32 s45, s46, 1280')
    a(f's_add_u32 s45, s45, {WS_H}')
    a('s_add_u32 s41, s45, s43')
    a('v_mov_b32 v4, 0')
    a('v_mov_b32 v5, 0')
    a(f'buffer_load_short_d16_hi v4, v12, s[36:39], s44 offen{SC}')
    a(f'buffer_load_short_d16_hi v5, v12, s[36:39], s41 offen{SC}')
    a(f'buffer_load_dwordx2 v[6:7], v8, s[36:39], s45 offen offset:1152{SC}')
    a('v_lshlrev_b32 v27, 2, v0')
    a('s_waitcnt vmcnt(0)')
    bfround(a, 6, 6)
    a('v_mul_f32 v10, 0xbfb8aa3b, v6')
    a('v_exp_f32 v10, v10')
    a('v_mul_u32_u24 v7, 1152, v7')
    a('v_add_f32 v10, 1.0, v10')
    a('v_rcp_f32 v10, v10')
    a('v_add_u32 v7, v7, v12')
    bfround(a, 10, 10)
    stamp(a, 11)
    a('s_barrier')
    for w in range(9):
        a(f'ds_read_b32 v{16+w}, v27 offset:{w*256}')
    a('s_waitcnt lgkmcnt(0)')
    for p in range(4):
        a(f'v_add_f32 v{16+p}, v{16+p}, v{20+p}')
    a('v_add_f32 v16, v16, v18')
    a('v_add_f32 v17, v17, v19')
    a('v_add_f32 v16, v16, v24')
    a('v_add_f32 v16, v16, v17')
    bfround(a, 16, 16)
    a('v_mul_f32 v16, v16, v10')
    bfround(a, 16, 16)
    a('v_add_f32 v16, v16, v4')
    bfround(a, 16, 16)
    a('v_add_f32 v16, v16, v5')
    a('v_cvt_pk_bf16_f32 v16, v16, v16')
    a('buffer_store_short v16, v7, s[32:35], s43 offen')
    stamp(a, 13)
    a.label('K2_EXIT')
    a.flush_hist()
    if STAMP:
        a('s_waitcnt vmcnt(0)')
        stamp(a, 14)
        stamp_flush(a, 1, 15)
    a.label('K2_END')
    a('s_endpgm')


def main(path):
    a = Asm()
    hdr = [
        '; FNet (pre-LN) + Mixture-of-Depths top-1 SwiGLU block, gfx950. Generated by dev/gen.py.',
        f'; @launch kernel=k1_kernel grid=(256,1,1) block=(448,1,1) lds={K1_LDS}',
        f'; @launch kernel=k2_kernel grid=({FIN0+NFINWG},1,1) block=(1024,1,1) lds={max(K2_LDS, K2_ROW_LDS)}',
        '.amdgcn_target "amdgcn-amd-amdhsa--gfx950"',
        '.text',
    ]
    for h in hdr:
        a.raw(h)
    gen_k1(a)
    gen_k2(a)
    a.raw('.section .rodata,"a"')
    ns = 100 if STAMP else 80
    a.raw(descriptor('k1_kernel', 256, ns))
    a.raw(descriptor('k2_kernel', 128, ns))
    open(path, 'w').write(a.text())


if __name__ == '__main__':
    for arg in sys.argv[2:]:
        if arg == 'stamp':
            STAMP = True
        else:
            k, v = arg.split('=')
            OPT[k] = int(v)
    main(sys.argv[1] if len(sys.argv) > 1 else 'sequential_preLN__spectral_fnet__moe_arch_mod__prompt.s')
```

```python
import sys
from asmdsl import Asm, Cnt, vr, sr

S, D, F = 2048, 576, 4608
X_BYTES = S * D * 2
SEQ_BYTES = S * S * 2
HID_BYTES = D * D * 2
WG_BYTES = D * F * 2
WS_U = 0
WS_KEYS = 0x240000
WS_PART = WS_KEYS + 16384
WS_HN = WS_PART + 72 * 2304
WS_FILL_END = WS_HN + 128 * 1152
WS_H = 0x2a0000
WS_RANGE = 0x900000

KA = dict(x=0, sre=8, sim=16, hre=24, him=32, bx=40, wr=48, wg=56, wu=64, wd=72, out=80, dbg=88, ws=96)


def srd(a, d, b, nbytes):
    a(f's_mov_b32 s{d}, s{b}')
    a(f's_mov_b32 s{d+1}, s{b+1}')
    a(f's_mov_b32 s{d+2}, {nbytes}')
    a(f's_mov_b32 s{d+3}, 0x00020000')


def kernel_head(a, name):
    a.raw(f'.globl {name}')
    a.raw('.p2align 8')
    a.raw(f'.type {name},@function')
    a.label(name)
    a.flush_hist()
    if OPT.get('scramble'):
        a('s_and_b32 s3, s2, 7')
        a('s_lshl_b32 s3, s3, 5')
        a('s_bfe_u32 s4, s2, 0x50003')
        a('s_or_b32 s3, s3, s4')
        a('s_cmp_lt_u32 s2, 256')
        a('s_cselect_b32 s2, s3, s2')


def descriptor(name, vgpr, sgpr):
    acc = (vgpr + 3) // 4 * 4
    return f'''.p2align 6
.amdhsa_kernel {name}
  .amdhsa_next_free_vgpr {vgpr}
  .amdhsa_next_free_sgpr {sgpr}
  .amdhsa_accum_offset {acc}
  .amdhsa_group_segment_fixed_size 0
  .amdhsa_kernarg_size 104
  .amdhsa_user_sgpr_count 2
  .amdhsa_user_sgpr_kernarg_segment_ptr 1
  .amdhsa_system_sgpr_workgroup_id_x 1
.end_amdhsa_kernel
'''


STAMP = False
OPT = dict(nt_x=0, nt_wd=0, nt_f=0, nt_tw=0, nt_w=0, nt_u=0, rot=1, pf=1, skip_f=0, skip_b=0, skip_x=0, ahead=2, warm=1, nt_pf=0, retouch=0, sc0=0, sleep=1, pfwait=1, codepf=1, warm2=1)


def nt(key):
    return ' nt' if OPT[key] else ''
WS_STAMP = 0x800000


def stamp(a, k):
    if STAMP:
        if k == 0:
            a('v_mov_b32 v1, 0')
        a('s_memrealtime s[92:93]')
        a('s_waitcnt lgkmcnt(0)')
        a(f'v_writelane_b32 v1, s92, {k}')


def cstamp(a, k):
    if STAMP:
        a('s_memtime s[92:93]')
        a('s_waitcnt lgkmcnt(0)')
        a(f'v_writelane_b32 v1, s92, {k}')


def stamp_flush(a, kern, n, wave_sgpr=40):
    if not STAMP:
        return
    a('s_mov_b64 exec, 0xffff')
    srd(a, 96, 14, WS_RANGE)
    a('s_lshl_b32 s95, s2, 4')
    a(f's_add_u32 s95, s95, s{wave_sgpr}')
    a('s_lshl_b32 s95, s95, 6')
    a(f's_add_u32 s95, s95, {WS_STAMP + kern*0x80000}')
    a('v_lshlrev_b32 v0, 2, v0')
    a('buffer_store_dword v1, v0, s[96:99], s95 offen')


def bfround(a, dst, src):
    a(f'v_cvt_pk_bf16_f32 v{dst}, v{src}, v{src}')
    a(f'v_and_b32 v{dst}, 0xffff0000, v{dst}')


K1_LDS_B = 73728
K1_LDS_F = 135168
K1_LDS_ST = 151552
K1_LDS = 152064
K1_GROUPS = [(0, 0, 0), (1, 0, 5), (None, 0, 1), (2, 0, 6), (None, 0, 2), (3, 0, 7), (None, 0, 3), (4, 1, 8), (None, 0, 4)]
K1_STAGES = [[0], [1], [2, 3], [4, 5], [6, 7], [8]]


def gen_k1(a):
    import struct
    kernel_head(a, 'k1_kernel')
    a('s_cmp_lt_u32 s2, 64')
    a('s_cbranch_scc1 K1_PF')
    a('s_cmp_ge_u32 s2, 256')
    a('s_cbranch_scc1 K1_END')
    a('s_load_dwordx8 s[4:11], s[0:1], 0')
    a('s_load_dwordx2 s[12:13], s[0:1], 32')
    a('s_load_dwordx2 s[14:15], s[0:1], 96')
    a('v_lshrrev_b32 v1, 6, v0')
    a('v_and_b32 v0, 63, v0')
    a('v_readfirstlane_b32 s40, v1')
    a('s_and_b32 s41, s2, 31')
    a('s_lshr_b32 s42, s2, 5')
    a('s_sub_u32 s42, s42, 2')
    a('v_and_b32 v2, 15, v0')
    a('v_lshrrev_b32 v3, 4, v0')
    a('v_lshrrev_b32 v8, 3, v0')
    a('v_and_b32 v9, 7, v0')
    a('v_xor_b32 v9, v9, v3')
    a('v_lshlrev_b32 v9, 4, v9')
    a('v_lshrrev_b32 v4, 1, v2')
    a('v_xor_b32 v4, v4, v3')
    a('v_lshlrev_b32 v4, 4, v4')
    a('v_lshl_add_u32 v4, v2, 7, v4')
    a('v_xor_b32 v5, 64, v4')
    a('s_cmp_ge_u32 s42, 3')
    a('s_cselect_b32 s43, 1, 0')
    stamp(a, 0)
    a('s_cmp_ge_u32 s40, 4')
    a('s_cbranch_scc1 K1_LOAD')
    a('s_cmp_eq_u32 s40, 3')
    a('s_cbranch_scc1 K1_STATS')

    vm = Cnt(a, 'vmcnt', 63)
    lg = Cnt(a, 'lgkmcnt', 15)
    a('s_mul_i32 s44, s42, 3')
    a('s_add_u32 s44, s44, s40')
    a('s_mul_i32 s48, s40, 20480')
    a(f's_add_u32 s48, s48, {K1_LDS_B}')
    a('s_waitcnt lgkmcnt(0)')
    srd(a, 36, 14, WS_RANGE)
    XA, XB, BB, FB = 240, 242, 244, 246
    for b in range(2):
        a(f'v_mov_b32 v{XA+b}, v{4+b}')
        a(f'v_add_u32 v{XB+b}, 0x10000, v{4+b}')
        a(f'v_add_u32 v{BB+b}, s48, v{4+b}')
        a(f'v_add_u32 v{FB+b}, {K1_LDS_F}, v{4+b}')
    a('s_lshr_b32 s46, s41, 1')
    a('s_and_b32 s46, s46, 1')
    a('s_xor_b32 s46, s46, s44')
    a('s_lshl_b32 s46, s46, 6')
    a('s_mul_i32 s47, s41, 1152')
    a('s_add_u32 s46, s46, s47')
    a('v_mul_u32_u24 v7, 36864, v2')
    a('v_lshl_add_u32 v7, v3, 4, v7')
    a('v_add_u32 v7, s46, v7')
    a('v_lshlrev_b32 v8, 4, v3')
    a(f'v_add_u32 v8, {K1_LDS_ST}, v8')
    a('s_cmp_eq_u32 s43, 0')
    a('s_cselect_b32 s47, 1.0, -1.0')
    a('v_mov_b32 v10, s47')
    a('v_mov_b32 v11, s47')
    for r in range(12, 16):
        a(f'v_mov_b32 v{r}, 0x3f803f80')
    Bre = lambda k: 16 + 8 * k
    Bim = lambda k: 20 + 8 * k
    acc = lambda hf, i, ab: 88 + ((hf * 4 + i) * 2 + ab) * 4
    cacc = lambda ab: 152 + 4 * ab
    Abuf = lambda b, i: 160 + b * 16 + i * 4
    started = set()
    bufno = [0]
    Fregs = [Bre(k) for k in range(1, 8)] + [Bim(k) for k in range(1, 8)] + [248, 252]
    Freg = lambda f: Fregs[f]

    def rd_x(kk):
        nonlocal_guard = None
        b = bufno[0] % 3
        bufno[0] += 1
        c, par = kk >> 1, kk & 1
        for i in range(4):
            off = c * 8192 + i * 2048
            base = XA + par
            if off >= 65536:
                off -= 65536
                base = XB + par
            a(f'ds_read_b128 {vr(Abuf(b,i),4)}, v{base} offset:{off}')
            lg.issue(('x', kk))
        return b

    def rd_B(k):
        c, par = k >> 1, k & 1
        for part, reg in ((0, Bre(k)), (1, Bim(k))):
            a(f'ds_read_b128 {vr(reg,4)}, v{BB+par} offset:{(c*4 + part*2)*1024}')
            lg.issue(('B', k))

    def rd_F(f):
        it, kap, part = f >> 2, (f >> 1) & 1, f & 1
        a(f'ds_read_b128 {vr(Freg(f),4)}, v{FB+kap} offset:{(it*2+part)*2048}')
        lg.issue('F')

    def mf(dst, A, B):
        c = vr(dst, 4) if dst in started else '0'
        started.add(dst)
        a(f'v_mfma_f32_16x16x32_bf16 {vr(dst,4)}, {vr(A,4)}, {vr(B,4)}, {c}')

    haveB = set()
    steps = [(st, kk) for st, gs in enumerate(K1_STAGES) for gi in gs for kk in (2 * K1_GROUPS[gi][2], 2 * K1_GROUPS[gi][2] + 1)]
    NSTEP = len(steps)
    passed = [-1]
    bufs = {}

    def fetch(n):
        st, kk = steps[n]
        while passed[0] < st:
            passed[0] += 1
            a('s_barrier')
            if passed[0] == 0:
                stamp(a, 2)
        k = kk % 9
        if k not in haveB:
            haveB.add(k)
            rd_B(k)
        bufs[n] = rd_x(kk)
    stamp(a, 1)
    fetch(0)
    fetch(1)
    fq = list(range(16))
    for n, (st, kk) in enumerate(steps):
        k, hf = kk % 9, kk // 9
        lg.wait(('x', kk))
        if STAMP and n in (2, 5, 8, 11, 14, 16):
            lg.q = []
            stamp(a, 3 + (2, 5, 8, 11, 14, 16).index(n))
            if n == 11: cstamp(a, 13)
            if n == 16: cstamp(a, 14)
        b = bufs[n]
        for i in range(4):
            mf(acc(hf, i, 0), Abuf(b, i), Bre(k))
            mf(acc(hf, i, 1), Abuf(b, i), Bim(k))
            if i == 0 and n + 2 < NSTEP:
                fetch(n + 2)
            if n >= NSTEP - 2 and fq and len(lg.q) < 13:
                rd_F(fq.pop(0)); rd_F(fq.pop(0))
        if hf == 0:
            mf(cacc(0), 12, Bre(k))
            mf(cacc(1), 12, Bim(k))
    while fq:
        if len(lg.q) >= 13:
            lg.wait_all()
        rd_F(fq.pop(0)); rd_F(fq.pop(0))
    if STAMP:
        lg.wait_all()
    stamp(a, 9)
    a('s_barrier')
    stamp(a, 10)
    if len(lg.q) > 7:
        a(f's_waitcnt lgkmcnt(7)')
        lg.q = lg.q[-7:]
    for i in range(4):
        a(f'ds_read_b128 {vr(208+4*i,4)}, v8 offset:{i*64}')
        lg.issue(('st', i))
        a(f'ds_read_b128 {vr(224+4*i,4)}, v8 offset:{256+i*64}')
        lg.issue(('st', i))
    for it in range(1, 4):
        a(f's_mov_b32 s{59+it}, {it*16*36864}')
    for i in range(4):
        for ab in range(2):
            for h in range(2):
                d = acc(0, i, ab) + 2 * h
                s1 = acc(1, i, ab) + 2 * h
                a(f'v_pk_fma_f32 {vr(d,2)}, {vr(s1,2)}, v[10:11], {vr(d,2)}')
    za = lambda kap: 160 + 4 * kap
    zb = lambda kap: 168 + 4 * kap
    znb = lambda kap: 176 + 4 * kap
    out = lambda it, c: 120 + (it * 2 + c) * 4
    TMP = 184
    started.clear()
    Fidx = lambda it, kap, part: (it * 2 + kap) * 2 + part

    def zops(kap):
        L = []
        for hh in range(2):
            i = 2 * kap + hh
            for ab in range(2):
                for h in range(2):
                    t = TMP + ((hh * 2 + ab) * 2 + h) * 2
                    L.append(f'v_pk_mul_f32 {vr(t,2)}, {vr(224+4*i+2*h,2)}, {vr(cacc(ab),2)}')
        for hh in range(2):
            i = 2 * kap + hh
            for ab in range(2):
                for h in range(2):
                    d = acc(0, i, ab) + 2 * h
                    t = TMP + ((hh * 2 + ab) * 2 + h) * 2
                    L.append(f'v_pk_fma_f32 {vr(d,2)}, {vr(208+4*i+2*h,2)}, {vr(d,2)}, {vr(t,2)} neg_lo:[0,0,1] neg_hi:[0,0,1]')
        for ab, z in ((0, za), (1, zb)):
            for hh in range(2):
                src = acc(0, 2 * kap + hh, ab)
                L.append(f'v_cvt_pk_bf16_f32 v{z(kap)+2*hh}, v{src}, v{src+1}')
                L.append(f'v_cvt_pk_bf16_f32 v{z(kap)+2*hh+1}, v{src+2}, v{src+3}')
        for r in range(4):
            L.append(f'v_xor_b32 v{znb(kap)+r}, 0x80008000, v{zb(kap)+r}')
        return L

    def mops(kap):
        L = []
        for it in range(4):
            L.append((out(it, 0), za(kap), Freg(Fidx(it, kap, 0))))
            L.append((out(it, 1), za(kap), Freg(Fidx(it, kap, 1))))
        for it in range(4):
            L.append((out(it, 0), znb(kap), Freg(Fidx(it, kap, 1))))
            L.append((out(it, 1), zb(kap), Freg(Fidx(it, kap, 0))))
        return L
    lg.wait(('st', 1))
    for ins in zops(0):
        a(ins)
    lg.wait(('st', 3))
    z1 = zops(1)
    for m in mops(0):
        mf(*m)
        for _ in range(2):
            if z1:
                a(z1.pop(0))
    while z1:
        a(z1.pop(0))
    m1 = mops(1)
    m1 = [m1[0], m1[1], m1[8], m1[9], m1[2], m1[3], m1[10], m1[11], m1[4], m1[5], m1[12], m1[13], m1[6], m1[7], m1[14], m1[15]]
    for m in m1:
        mf(*m)
    for it in range(4):
        d = 184 + 4 * it
        a(f'v_cvt_pk_bf16_f32 v{d}, v{out(it,0)}, v{out(it,0)+1}')
        a(f'v_cvt_pk_bf16_f32 v{d+1}, v{out(it,0)+2}, v{out(it,0)+3}')
        a(f'v_cvt_pk_bf16_f32 v{d+2}, v{out(it,1)}, v{out(it,1)+1}')
        a(f'v_cvt_pk_bf16_f32 v{d+3}, v{out(it,1)+2}, v{out(it,1)+3}')
        so = '0' if it == 0 else f's{59+it}'
        a(f'buffer_store_dwordx4 {vr(d,4)}, v7, s[36:39], {so} offen')
    stamp(a, 11)
    if STAMP: a('s_waitcnt vmcnt(0)')
    stamp(a, 12)
    stamp_flush(a, 0, 15)
    a('s_endpgm')

    a.label('K1_STATS')
    a.flush_hist()
    lg = Cnt(a, 'lgkmcnt', 15)
    XA, XB = 4, 6
    a('v_add_u32 v6, 0x10000, v4')
    a('v_add_u32 v7, 0x10000, v5')
    for r in range(12, 16):
        a(f'v_mov_b32 v{r}, 0x3f803f80')
    a('v_and_b32 v8, 3, v2')
    a('v_lshrrev_b32 v9, 2, v2')
    a('v_sub_u32 v9, v9, v3')
    a('v_and_b32 v9, 3, v9')
    for r in range(1, 4):
        a(f'v_cmp_eq_u32 s[{42+2*r}:{43+2*r}], {r}, v8')
        a(f'v_cmp_eq_u32 s[{48+2*r}:{49+2*r}], {r}, v9')
    a('v_lshlrev_b32 v10, 4, v9')
    a('v_lshl_add_u32 v10, v3, 2, v10')
    a('v_add_u32 v10, v10, v8')
    a('v_lshlrev_b32 v10, 2, v10')
    a(f'v_add_u32 v10, {K1_LDS_ST}, v10')
    a('s_cmp_eq_u32 s43, 0')
    a('s_cselect_b32 s56, 2.0, 0')
    GR = lambda i: 16 + 4 * i
    SM = lambda i: 32 + 4 * i
    Abuf = lambda b, i: 48 + b * 16 + i * 4
    started = set()
    bufno = [0]
    passed = [-1]
    bufs = {}

    def sfetch(n):
        st, kk = steps[n]
        while passed[0] < st:
            passed[0] += 1
            a('s_barrier')
        bufs[n] = rd_x(kk)
    sfetch(0)
    sfetch(1)
    for n, (st, kk) in enumerate(steps):
        lg.wait(('x', kk))
        b = bufs[n]
        for i in range(4):
            mf(GR(i), Abuf(b, i), Abuf(b, i))
            mf(SM(i), 12, Abuf(b, i))
        if n + 2 < NSTEP:
            sfetch(n + 2)
    stamp(a, 12)
    for i in range(4):
        for r in range(1, 4):
            a(f'v_cndmask_b32 v{GR(i)}, v{GR(i)}, v{GR(i)+r}, s[{42+2*r}:{43+2*r}]')
    for i in range(1, 4):
        a(f'v_mov_b32_dpp v{GR(i)+1}, v{GR(i)} row_ror:{4*i} row_mask:0xf bank_mask:0xf')
        a(f'v_mov_b32_dpp v{SM(i)+1}, v{SM(i)} row_ror:{4*i} row_mask:0xf bank_mask:0xf')
    for i in range(1, 4):
        a(f'v_cndmask_b32 v{GR(0)}, v{GR(0)}, v{GR(i)+1}, s[{48+2*i}:{49+2*i}]')
        a(f'v_cndmask_b32 v{SM(0)}, v{SM(0)}, v{SM(i)+1}, s[{48+2*i}:{49+2*i}]')
    invb = struct.unpack('<I', struct.pack('<f', 1.0 / 576.0))[0]
    epsb = struct.unpack('<I', struct.pack('<f', 1e-5))[0]
    q, m = GR(0), SM(0)
    a(f'v_mul_f32 v{m}, 0x{invb:08x}, v{m}')
    a(f'v_mul_f32 v{q}, 0x{invb:08x}, v{q}')
    a(f'v_fma_f32 v{q}, -v{m}, v{m}, v{q}')
    a(f'v_max_f32 v{q}, 0, v{q}')
    bfround(a, q, q)
    a(f'v_add_f32 v{q}, 0x{epsb:08x}, v{q}')
    bfround(a, q, q)
    a(f'v_sqrt_f32 v{q}, v{q}')
    a(f'v_mul_f32 v{m}, s56, v{m}')
    bfround(a, q, q)
    a(f'v_rcp_f32 v{q}, v{q}')
    a(f'v_mul_f32 v{m}, v{m}, v{q}')
    a(f'ds_write_b32 v10, v{q}')
    a(f'ds_write_b32 v10, v{m} offset:256')
    a('s_waitcnt lgkmcnt(0)')
    stamp(a, 9)
    a('s_barrier')
    stamp_flush(a, 0, 15)
    a('s_endpgm')

    a.label('K1_LOAD')
    a.flush_hist()
    vm = Cnt(a, 'vmcnt', 63)
    a('s_sub_u32 s44, s40, 4')
    a('s_lshr_b32 s45, s44, 1')
    a('s_lshl_b32 s45, s45, 5')
    a('s_and_b32 s46, s44, 1')
    a('s_lshl_b32 s46, s46, 2')
    a('s_add_u32 s45, s45, s46')
    a('v_lshrrev_b32 v6, 2, v8')
    a('v_lshlrev_b32 v6, 3, v6')
    a('v_and_b32 v10, 3, v8')
    a('v_add3_u32 v6, v6, v10, s45')
    a('v_mul_u32_u24 v6, 36864, v6')
    a('s_mul_i32 s47, s41, 1152')
    a('v_xor_b32 v10, 64, v9')
    a('v_add_u32 v7, s47, v6')
    a('v_add_u32 v6, v7, v9')
    a('v_add_u32 v7, v7, v10')
    a(f'v_add_u32 v7, {16*36864}, v7')
    a('s_lshl_b32 s46, s44, 4')
    a('v_add_u32 v14, s46, v8')
    a('v_lshlrev_b32 v14, 17, v14')
    a('v_add_u32 v15, v14, v10')
    a('v_add_u32 v14, v14, v9')
    a(f'v_add_u32 v15, {8*131072}, v15')
    a('s_lshl_b32 s48, s44, 11')
    a('s_lshl_b32 s49, s44, 12')
    a('v_add_u32 v4, s48, v4')
    a('v_add_u32 v5, s48, v5')
    a('s_mul_i32 s50, s42, 3')
    a('s_mul_i32 s51, s43, 9')
    a('s_sub_u32 s50, s50, s51')
    a('s_lshl_b32 s50, s50, 5')
    a('s_add_u32 s50, s50, s43')
    a('s_and_b32 s51, s44, 1')
    a('s_lshl_b32 s52, s51, 4')
    a('s_add_u32 s50, s50, s52')
    a('v_lshl_add_u32 v40, v8, 1, s50')
    a('s_lshl_b32 s52, s51, 6')
    a('v_xor_b32 v43, s52, v9')
    a('v_mul_u32_u24 v41, 1152, v40')
    a('v_cmp_eq_u32 vcc, 0, v40')
    a(f'v_mov_b32 v42, {288*1152}')
    a('v_cndmask_b32 v40, v41, v42, vcc')
    a('v_add_u32 v40, v40, v43')
    a('v_add_u32 v41, v41, v43')
    a('v_add_u32 v42, 73728, v41')
    a('v_add_u32 v41, 36864, v41')
    a('s_lshl_b32 s53, s44, 10')
    a(f's_add_u32 s53, s53, {K1_LDS_B}')
    a('s_waitcnt lgkmcnt(0)')
    srd(a, 16, 4, X_BYTES)
    a('s_cmp_ge_u32 s44, 2')
    a('s_cselect_b32 s28, s12, s10')
    a('s_cselect_b32 s29, s13, s11')
    a(f's_mov_b32 s30, {HID_BYTES}')
    a('s_mov_b32 s31, 0x00020000')
    srd(a, 20, 6, SEQ_BYTES)
    srd(a, 24, 8, SEQ_BYTES)

    def issue(st):
        for gi in K1_STAGES[st]:
            cb, withF, c = K1_GROUPS[gi]
            if cb is not None:
                for w in range(3):
                    a(f's_add_u32 m0, s53, {w*20480 + cb*4096 - cb*128}')
                    a(f'buffer_load_dwordx4 v{40+w}, s[28:31], 0 offen offset:{cb*128}{nt("nt_wd")} lds')
                    vm.issue(st)
            for hh in range(2):
                a(f's_add_u32 m0, s48, {c*8192 + hh*1024 - c*128}')
                a(f'buffer_load_dwordx4 v{6+hh}, s[16:19], 0 offen offset:{c*128}{nt("nt_x")} lds')
                vm.issue(st)
            if withF:
                for part in range(2):
                    for hh in range(2):
                        a(f's_add_u32 m0, s49, {K1_LDS_F + (part*2+hh)*1024}')
                        a(f'buffer_load_dwordx4 v{14+hh}, s[{20+4*part}:{23+4*part}], 0 offen{nt("nt_f")} lds')
                        vm.issue(st)
    NS = len(K1_STAGES)
    AH = OPT['ahead']
    for st in range(min(AH, NS)):
        issue(st)
    stamp(a, 11)
    for st, gs in enumerate(K1_STAGES):
        vm.wait(st)
        stamp(a, 1 + st)
        a('s_barrier')
        if st + AH < NS:
            issue(st + AH)
    stamp_flush(a, 0, 15)
    a.label('K1_END')
    a('s_endpgm')
    a.label('K1_PF')
    a.flush_hist()
    if OPT['codepf']:
        a('s_getpc_b64 s[72:73]')
        a.label('K1_PC')
        a('s_sub_u32 s72, s72, K1_PC-k1_kernel')
        a('s_subb_u32 s73, s73, 0')
        a('v_lshlrev_b32 v7, 6, v0')
        a('v_cmp_gt_u32 vcc, CODE_END-k1_kernel, v7')
        a('s_and_saveexec_b64 s[74:75], vcc')
        a('s_cbranch_execz K1_PCDONE')
        a('global_load_dword v27, v7, s[72:73]')
        a.label('K1_PCDONE')
        a('s_mov_b64 exec, -1')
    a('s_load_dwordx8 s[4:11], s[0:1], 0')
    a('s_load_dwordx2 s[12:13], s[0:1], 32')
    a('s_load_dwordx4 s[44:47], s[0:1], 56')
    a('s_load_dwordx2 s[64:65], s[0:1], 72')
    a('s_load_dwordx2 s[14:15], s[0:1], 96')
    a('s_and_b32 s41, s2, 7')
    a('s_lshr_b32 s42, s2, 3')
    a('s_mov_b32 s43, 0x1c72')
    a('v_mov_b32 v6, 0x7ffffff0')
    a('v_add_u32 v1, 512, v0')
    for r in (0, 1):
        a(f'v_mul_u32_u24 v{2+r}, s43, v{r}')
        a(f'v_lshrrev_b32 v{2+r}, 16, v{2+r}')
        a(f'v_mul_u32_u24 v{4+r}, 9, v{2+r}')
        a(f'v_sub_u32 v{4+r}, v{r}, v{4+r}')
    if OPT['warm']:
        a('s_lshl_b32 s48, s42, 8')
        a('s_add_u32 s48, s48, s41')
        a('s_mul_i32 s48, s48, 1152')
        a('v_mul_u32_u24 v8, 9216, v2')
        a('v_lshl_add_u32 v8, v4, 7, v8')
        a('v_cmp_gt_u32 vcc, 288, v0')
        a('v_cndmask_b32 v8, v6, v8, vcc')
        a('v_subrev_u32 v9, 224, v0')
        a('v_cmp_gt_u32 vcc, 224, v0')
        a('v_cndmask_b32 v9, v9, v0, vcc')
        a('s_mov_b32 s49, 0x3334')
        a('v_mul_u32_u24 v10, s49, v9')
        a('v_lshrrev_b32 v10, 16, v10')
        a('v_mul_u32_u24 v11, 5, v10')
        a('v_sub_u32 v11, v9, v11')
        a('v_mul_u32_u24 v10, 1152, v10')
        a('v_lshl_add_u32 v10, v11, 7, v10')
        a('s_movk_i32 s53, 180')
        a('v_cmp_gt_u32 s[50:51], s53, v9')
        a('v_cndmask_b32 v10, v6, v10, s[50:51]')
        a('v_cndmask_b32 v11, v10, v6, vcc')
        a('v_cndmask_b32 v10, v6, v10, vcc')
        a('s_mul_i32 s49, s42, 41472')
        a('s_add_u32 s49, s49, 1152')
        a('v_lshlrev_b32 v12, 17, v0')
        a('v_cmp_gt_u32 vcc, 8, v0')
        a('v_cndmask_b32 v12, v6, v12, vcc')
        a('s_lshl_b32 s52, s42, 20')
    if OPT['warm2']:
        a('s_and_b32 s76, s42, 3')
        a('s_lshl_b32 s76, s76, 3')
        a('s_add_u32 s76, s76, s41')
        a('s_sub_u32 s77, 64, s76')
        a('s_cmp_eq_u32 s77, 64')
        a('s_cselect_b32 s77, 32, s77')
        a('s_cmp_lt_u32 s42, 4')
        a('s_cselect_b32 s76, s76, s77')
        a('s_mul_i32 s77, s76, 1152')
        a('s_lshl_b32 s76, s76, 12')
        a('v_mul_u32_u24 v36, 73728, v2')
        a('v_lshl_add_u32 v36, v4, 7, v36')
        a('v_cmp_gt_u32 vcc, 288, v0')
        a('v_cndmask_b32 v36, v6, v36, vcc')
        a('v_lshlrev_b32 v37, 18, v0')
        a('v_cmp_gt_u32 vcc, 32, v0')
        a('v_cndmask_b32 v37, v6, v37, vcc')
    a('s_mul_i32 s66, s41, 663552')
    a('s_mul_i32 s67, s42, 82944')
    a('s_add_u32 s66, s66, s67')
    a('v_lshlrev_b32 v14, 7, v0')
    a('v_lshlrev_b32 v15, 7, v1')
    a('s_mul_i32 s41, s41, 1152')
    a('s_mul_i32 s42, s42, 663552')
    a('s_add_u32 s41, s41, s42')
    for r in (0, 1):
        a(f'v_mul_u32_u24 v{2+r}, 9216, v{2+r}')
        a(f'v_lshl_add_u32 v{2+r}, v{4+r}, 7, v{2+r}')
    a('v_cmp_gt_u32 vcc, 648, v1')
    a('v_cndmask_b32 v3, v6, v3, vcc')
    a('v_cndmask_b32 v15, v6, v15, vcc')
    a('s_waitcnt lgkmcnt(0)')
    if OPT['warm']:
        srd(a, 16, 4, X_BYTES)
        srd(a, 28, 10, HID_BYTES)
        srd(a, 32, 12, HID_BYTES)
        a(f'buffer_load_dword v16, v10, s[28:31], s49 offen{nt("nt_wd")}')
        a(f'buffer_load_dword v17, v11, s[32:35], s49 offen{nt("nt_wd")}')
        a(f'buffer_load_dword v18, v8, s[16:19], s48 offen{nt("nt_x")}')
        srd(a, 20, 6, SEQ_BYTES)
        srd(a, 24, 8, SEQ_BYTES)
        a(f'buffer_load_dword v19, v12, s[20:23], s52 offen{nt("nt_f")}')
        a(f'buffer_load_dword v20, v12, s[24:27], s52 offen{nt("nt_f")}')
    if OPT['warm2']:
        a('buffer_load_dword v38, v37, s[20:23], s76 offen')
        a('buffer_load_dword v39, v37, s[24:27], s76 offen')
        a('buffer_load_dword v40, v36, s[16:19], s77 offen')
    srd(a, 60, 14, WS_FILL_END)
    a('s_mul_i32 s54, s2, 8192')
    a(f's_add_u32 s54, s54, {WS_KEYS}')
    a('v_lshlrev_b32 v13, 4, v0')
    for r in range(28, 32):
        a(f'v_mov_b32 v{r}, -1')
    a('buffer_store_dwordx4 v[28:31], v13, s[60:63], s54 offen')
    if OPT['pf']:
        if OPT['pfwait']:
            a('s_waitcnt vmcnt(0)')
        srd(a, 36, 44, WG_BYTES)
        srd(a, 56, 46, WG_BYTES)
        srd(a, 68, 64, WG_BYTES)
        for rep in range(2 if OPT['retouch'] else 1):
            m = nt('nt_pf') if rep == 0 else ''
            a(f'buffer_load_dword v21, v2, s[36:39], s41 offen{m}')
            a(f'buffer_load_dword v22, v2, s[56:59], s41 offen{m}')
            a(f'buffer_load_dword v23, v3, s[36:39], s41 offen{m}')
            a(f'buffer_load_dword v24, v3, s[56:59], s41 offen{m}')
            if OPT['pf'] == 2:
                a(f'buffer_load_dword v25, v14, s[68:71], s66 offen{m}')
                a(f'buffer_load_dword v26, v15, s[68:71], s66 offen{m}')
            if OPT['retouch'] and rep == 0:
                a('s_waitcnt vmcnt(0)')
    a('s_endpgm')


K2_LDS_Y = 73728
K2_YS = 1168
K2_LDS_C = K2_LDS_Y + 16 * K2_YS
K2_LDS_T = K2_LDS_C + 64
K2_LDS_X = K2_LDS_T + 4096
K2_LDS_WR = K2_LDS_X + 16 * 1152
K2_ROW_LDS = K2_LDS_WR + 16 * 1152
K2_LDS_XS = 9 * 16384
K2_LDS_RED = K2_LDS_XS + 1280
K2_LDS_ACT = K2_LDS_RED + 9 * 512
K2_LDS = K2_LDS_ACT + 9 * 128
SPIN_LIMIT = 400000
NROWWG, NFFNWG, NPFWG, NFINWG = 128, 72, 48, 9
FIN0 = NROWWG + NFFNWG + NPFWG


def dpp_reduce(a, op, regs, rows_only=False):
    for m in ('row_shr:1', 'row_shr:2', 'row_shr:4', 'row_shr:8'):
        for r in regs:
            a(f'{op}_dpp v{r}, v{r}, v{r} {m} row_mask:0xf bank_mask:0xf')
    if rows_only:
        return
    for r in regs:
        a(f'{op}_dpp v{r}, v{r}, v{r} row_bcast:15 row_mask:0xa bank_mask:0xf')
    for r in regs:
        a(f'{op}_dpp v{r}, v{r}, v{r} row_bcast:31 row_mask:0xc bank_mask:0xf')


def gen_k2(a):
    import struct
    SC = ' sc0 sc1' if OPT['sc0'] else ' sc1'
    kernel_head(a, 'k2_kernel')
    vm = Cnt(a, 'vmcnt', 63)
    lg = Cnt(a, 'lgkmcnt', 15)
    a(f's_cmp_ge_u32 s2, {FIN0 + NFINWG}')
    a('s_cbranch_scc1 K2_END')
    a('s_load_dwordx4 s[4:7], s[0:1], 0')
    a('s_load_dwordx2 s[8:9], s[0:1], 16')
    a('s_load_dwordx2 s[14:15], s[0:1], 96')
    a('s_load_dwordx8 s[64:71], s[0:1], 48')
    a('s_load_dwordx2 s[12:13], s[0:1], 80')
    a('v_lshrrev_b32 v1, 6, v0')
    a('v_and_b32 v0, 63, v0')
    a('v_readfirstlane_b32 s40, v1')
    a('v_lshlrev_b32 v4, 4, v0')
    a('v_and_b32 v2, 15, v0')
    a('v_lshrrev_b32 v3, 4, v0')
    a('v_lshlrev_b32 v12, 1, v0')
    a('v_add_u32 v5, 1024, v4')
    a(f's_cmp_ge_u32 s2, {NROWWG}')
    a('s_cbranch_scc1 K2_OTHER')
    a('s_and_b32 s41, s2, 31')
    a('s_lshr_b32 s42, s2, 5')
    a('s_sub_u32 s43, 64, s41')
    a('s_cmp_eq_u32 s41, 0')
    a('s_cselect_b32 s43, 32, s43')
    a('s_sub_u32 s45, s40, 6')
    a('s_cmp_lt_u32 s40, 6')
    a('s_cselect_b32 s44, s41, s43')
    a('s_cselect_b32 s45, s40, s45')
    a('s_mul_i32 s44, s44, 36864')
    a('s_mul_i32 s45, s45, 6144')
    a('s_add_u32 s44, s44, s45')
    a('s_mul_i32 s45, s40, 6144')
    a('s_lshr_b32 s56, s42, 1')
    a('s_add_u32 s56, s56, s42')
    a('s_lshl_b32 s56, s56, 10')
    a('v_cmp_lt_u32 vcc, 7, v2')
    a('s_cmp_eq_u32 s41, 0')
    a('s_cbranch_scc1 K2_P0')
    a('v_and_b32 v8, 7, v2')
    a('s_lshl_b32 s46, s42, 3')
    a('v_add_u32 v8, s46, v8')
    a('v_lshl_add_u32 v6, v8, 6, s41')
    a('v_sub_u32 v8, 2048, v6')
    a('v_cndmask_b32 v6, v6, v8, vcc')
    a('v_xor_b32 v7, 8, v2')
    a('s_branch K2_ROWS')
    a.label('K2_P0')
    a.flush_hist()
    a('v_bfe_u32 v8, v2, 1, 2')
    a('s_lshl_b32 s46, s42, 2')
    a('v_add_u32 v8, s46, v8')
    a('v_sub_u32 v9, 32, v8')
    a('v_sub_u32 v10, 31, v8')
    a('v_cndmask_b32 v9, v9, v10, vcc')
    a('v_mov_b32 v11, 0')
    a('v_cndmask_b32 v11, v11, 32, vcc')
    a('v_cmp_eq_u32 vcc, 32, v9')
    a('v_cndmask_b32 v9, v9, 16, vcc')
    a('v_xor_b32 v7, 1, v2')
    a('v_cndmask_b32 v7, v7, v2, vcc')
    a('v_and_b32 v10, 1, v2')
    a('v_cmp_eq_u32 vcc, 1, v10')
    a('v_cndmask_b32 v8, v8, v9, vcc')
    a('v_lshl_add_u32 v6, v8, 6, v11')
    a.label('K2_ROWS')
    a.flush_hist()
    a('v_and_b32 v9, 1, v3')
    a(f'v_add_u32 v89, {K2_LDS_T}, v4')
    a('v_readlane_b32 s46, v6, s40')
    a('v_readlane_b32 s47, v7, s40')
    a('s_waitcnt lgkmcnt(0)')
    stamp(a, 0)
    srd(a, 36, 14, WS_RANGE)

    def u_dma(n0, n1, lab):
        a('s_cmp_ge_u32 s40, 12')
        a(f's_cbranch_scc1 {lab}')
        for n in range(n0, n1):
            a('s_add_u32 m0, s45, s56')
            a('s_add_u32 s57, s44, s56')
            a(f'buffer_load_dwordx4 v4, s[36:39], s57 offen{nt("nt_u")} lds')
            if n < 5:
                a('s_add_u32 s56, s56, 1024')
                a('s_cmp_eq_u32 s56, 6144')
                a('s_cselect_b32 s56, 0, s56')
        a.label(lab)
        a.flush_hist()
    u_dma(0, 2, 'K2_NOU1')
    T = lambda cls, kap: 32 + (cls * 2 + kap) * 4
    TW = lambda kap, part: 16 + (kap * 2 + part) * 4
    a('s_cmp_lg_u32 s40, 15')
    a('s_cbranch_scc1 K2_NOTW')
    a('v_lshrrev_b32 v8, 1, v3')
    a('v_lshlrev_b32 v8, 4, v8')
    a('v_lshl_add_u32 v8, v9, 2, v8')
    a('v_lshl_add_u32 v8, v6, 12, v8')
    srd(a, 16, 6, SEQ_BYTES)
    srd(a, 20, 8, SEQ_BYTES)
    for kap in range(2):
        for part in range(2):
            a(f'buffer_load_dwordx3 {vr(TW(kap,part),3)}, v8, s[{16+4*part}:{19+4*part}], 0 offen offset:{kap*32}{nt("nt_tw")}')
    a.label('K2_NOTW')
    a.flush_hist()
    srd(a, 24, 4, X_BYTES)
    XR = lambda k: 100 + k
    WR = lambda k: 110 + k
    a('s_mul_i32 s48, s46, 1152')
    a('s_mul_i32 s49, s40, 1152')
    a(f's_add_u32 s49, s49, {K2_LDS_X}')
    a('s_mov_b32 m0, s49')
    a('v_add_u32 v96, s49, v12')
    a(f'buffer_load_dwordx4 v4, s[24:27], s48 offen{nt("nt_x")} lds')
    a('s_mov_b64 exec, 0xff')
    a(f'buffer_load_dwordx4 v4, s[24:27], s48 offen offset:1024{nt("nt_x")} lds')
    a('s_mov_b64 exec, -1')
    srd(a, 28, 64, D * 2)
    a(f's_add_u32 m0, s49, {K2_LDS_WR - K2_LDS_X}')
    a(f'v_add_u32 v97, {K2_LDS_WR - K2_LDS_X}, v96')
    a('buffer_load_dwordx4 v4, s[28:31], 0 offen lds')
    a('s_mov_b64 exec, 0xff')
    a('buffer_load_dwordx4 v4, s[28:31], 0 offen offset:1024 lds')
    a('s_mov_b64 exec, -1')
    u_dma(2, 6, 'K2_NOU2')
    for k in range(10):
        a(f'v_mov_b32 v{XR(k)}, 0')
        a(f'v_mov_b32 v{WR(k)}, 0')
    srd(a, 32, 12, X_BYTES)
    a('v_and_b32 v10, 1, v0')
    a('v_mul_u32_u24 v10, 576, v10')
    a('v_lshrrev_b32 v11, 1, v0')
    a('v_lshl_add_u32 v90, v11, 2, v10')
    a(f's_mul_i32 s49, s40, {K2_YS}')
    a(f's_add_u32 s49, s49, {K2_LDS_Y}')
    a('v_add_u32 v90, s49, v90')
    a('v_add_u32 v11, 1, v0')
    a('v_lshrrev_b32 v11, 1, v11')
    a('v_sub_u32 v11, 32, v11')
    a('v_lshl_add_u32 v91, v11, 2, v10')
    a(f's_mul_i32 s50, s47, {K2_YS}')
    a(f's_add_u32 s50, s50, {K2_LDS_Y}')
    a('v_add_u32 v91, s50, v91')
    a('v_cmp_lt_u32 vcc, 32, v0')
    a('v_cndmask_b32 v92, v90, v91, vcc')
    a('v_add_u32 v92, 512, v92')
    a('v_mov_b32 v11, s49')
    a('v_cmp_eq_u32 vcc, 32, v0')
    a('v_cndmask_b32 v92, v92, v11, vcc')
    a('v_lshrrev_b32 v13, 1, v3')
    a('v_lshlrev_b32 v13, 3, v13')
    a('v_lshl_add_u32 v13, v9, 1, v13')
    a('v_bfe_u32 v10, v0, 3, 1')
    a('v_add_u32 v13, v13, v10')
    a('v_mul_u32_u24 v13, 1152, v13')
    a('v_and_b32 v10, 3, v0')
    a('v_lshl_add_u32 v13, v10, 4, v13')
    a('v_bfe_u32 v10, v0, 2, 1')
    a('v_lshl_add_u32 v13, v10, 3, v13')
    a('s_lshl_b32 s49, s40, 7')
    a('v_add_u32 v13, s49, v13')
    a('v_lshl_add_u32 v13, v9, 6, v13')
    a('v_xor_b32 v11, 64, v13')
    a(f'v_mul_u32_u24 v14, {K2_YS}, v2')
    a('v_lshl_add_u32 v14, v3, 4, v14')
    a(f's_add_u32 s49, s49, {K2_LDS_Y}')
    a('v_add_u32 v14, s49, v14')
    a('s_mul_i32 s54, s40, 3456')
    a('v_add_u32 v93, s54, v12')
    a('v_add_u32 v94, s54, v4')
    stamp(a, 1)
    a('s_cmp_lg_u32 s40, 15')
    a('s_cbranch_scc1 K2_NOTW2')
    a('s_mov_b32 s50, 0x05040100')
    a('s_mov_b32 s51, 0x07060302')
    a('v_cmp_gt_u32 s[52:53], 8, v2')
    a('s_waitcnt vmcnt(4)')
    for kap in range(2):
        cr, ci = TW(kap, 0), TW(kap, 1)
        a(f'v_xor_b32 v{ci}, 0x80008000, v{ci}')
        a(f'v_xor_b32 v{ci+2}, 0x80008000, v{ci+2}')
        t = 48
        a(f'v_perm_b32 v{t}, v{ci}, v{cr}, s50')
        a(f'v_perm_b32 v{t+1}, v{ci}, v{cr}, s51')
        a(f'v_perm_b32 v{t+2}, v{ci+2}, v{cr+2}, s50')
        a(f'v_perm_b32 v{t+3}, v{ci+2}, v{cr+2}, s51')
        for r in range(4):
            a(f'v_cndmask_b32 v{T(0,kap)+r}, 0, v{t+r}, s[52:53]')
            a(f'v_cndmask_b32 v{T(1,kap)+r}, v{t+r}, 0, s[52:53]')
    for cls in range(2):
        for kap in range(2):
            a(f'ds_write_b128 v89, {vr(T(cls,kap),4)} offset:{(cls*2+kap)*1024}')
    a.label('K2_NOTW2')
    a.flush_hist()

    def xw_reads():
        for k in range(9):
            a(f'ds_read_u16_d16_hi v{WR(k)}, v97 offset:{k*128}')
        a('s_waitcnt lgkmcnt(0)')
        for k in range(9):
            a(f'ds_read_u16_d16_hi v{XR(k)}, v96 offset:{k*128}')
        a(f'v_pk_add_f32 v[98:99], {vr(WR(0),2)}, {vr(WR(2),2)}')
        a(f'v_pk_add_f32 v[86:87], {vr(WR(4),2)}, {vr(WR(6),2)}')
        a(f'v_pk_add_f32 v[98:99], v[98:99], {vr(WR(8),2)}')
        a('v_pk_add_f32 v[98:99], v[98:99], v[86:87]')
        a('v_add_f32 v99, v98, v99')
        dpp_reduce(a, 'v_add_f32', [99])
    a('s_cmp_ge_u32 s40, 9')
    a('s_cbranch_scc1 K2_W1')
    a('s_waitcnt vmcnt(4)')
    xw_reads()
    a.label('K2_W1')
    a.flush_hist()
    a('s_waitcnt vmcnt(0) lgkmcnt(0)')
    stamp(a, 2)
    a('s_barrier')
    stamp(a, 3)
    a('s_cmp_ge_u32 s40, 9')
    a('s_cbranch_scc1 K2_SKIPMM')
    UF = lambda slot: 56 + 4 * slot
    ACC = lambda jj: 48 + 4 * jj
    order = [(jj, cls, kap) for cls in range(2) for kap in range(2) for jj in range(2)]

    def rd(n):
        jj, cls, kap = order[n]
        for h in range(2):
            off = cls * 36864 + kap * 18432 + h * 4608
            a(f'ds_read_b64_tr_b16 {vr(UF(n)+2*h,2)}, v{13 if jj == 0 else 11} offset:{off}')
            lg.issue(n)

    def rdT(cls, kap):
        a(f'ds_read_b128 {vr(T(cls,kap),4)}, v89 offset:{(cls*2+kap)*1024}')
        lg.issue(('T', cls, kap))
    rdT(0, 0); rd(0); rd(1); rdT(0, 1); rd(2); rd(3); rdT(1, 0); rd(4)
    nxt = [lambda: rd(5), lambda: (rdT(1, 1), rd(6)), lambda: rd(7)]
    for n, (jj, cls, kap) in enumerate(order):
        lg.wait(n)
        c = '0' if (cls == 0 and kap == 0) else vr(ACC(jj), 4)
        a(f'v_mfma_f32_16x16x32_bf16 {vr(ACC(jj),4)}, {vr(UF(n),4)}, {vr(T(cls,kap),4)}, {c}')
        if n < 3:
            nxt[n]()
    for jj in range(2):
        a(f'ds_write_b128 v14, {vr(ACC(jj),4)} offset:{jj*64}')
    a('s_branch K2_MMDONE')
    a.label('K2_SKIPMM')
    a.flush_hist()
    xw_reads()
    a.label('K2_MMDONE')
    a.flush_hist()
    a('v_mov_b32 v73, 0')
    a('s_waitcnt lgkmcnt(0)')
    stamp(a, 4)
    a('s_barrier')
    stamp(a, 5)
    YR = lambda k: 64 + k
    for k in range(9):
        if k < 4:
            a(f'ds_read_b32 v{YR(k)}, v90 offset:{k*128}')
        elif k == 4:
            a(f'ds_read_b32 v{YR(k)}, v92')
        else:
            a(f'ds_read_b32 v{YR(k)}, v91 offset:{(8-k)*128}')
    a('s_waitcnt lgkmcnt(0)')
    stamp(a, 6)
    a(f'v_writelane_b32 v{YR(0)}, 0, 0')
    for j in range(5):
        a(f'v_pk_add_f32 {vr(YR(2*j),2)}, {vr(YR(2*j),2)}, {vr(XR(2*j),2)}')
    HP = lambda j: 76 + j
    H = lambda k: 64 + k
    for j in range(5):
        a(f'v_cvt_pk_bf16_f32 v{HP(j)}, v{YR(2*j)}, v{YR(2*j+1)}')
    for j in range(5):
        a(f'v_lshlrev_b32 v{H(2*j)}, 16, v{HP(j)}')
        if j < 4:
            a(f'v_and_b32 v{H(2*j+1)}, 0xffff0000, v{HP(j)}')
    H2 = lambda j: vr(H(2 * j), 2)
    W2 = lambda j: vr(WR(2 * j), 2)
    a(f'v_pk_add_f32 v[16:17], {H2(0)}, {H2(1)}')
    a(f'v_pk_mul_f32 v[18:19], {H2(0)}, {H2(0)}')
    a(f'v_pk_mul_f32 v[20:21], {H2(0)}, {W2(0)}')
    for j in range(1, 5):
        if j >= 2:
            a(f'v_pk_add_f32 v[16:17], v[16:17], {H2(j)}')
        a(f'v_pk_fma_f32 v[18:19], {H2(j)}, {H2(j)}, v[18:19]')
        a(f'v_pk_fma_f32 v[20:21], {H2(j)}, {W2(j)}, v[20:21]')
    a('v_add_f32 v82, v16, v17')
    a('v_add_f32 v83, v18, v19')
    a('v_add_f32 v84, v20, v21')
    dpp_reduce(a, 'v_add_f32', [82, 83, 84])
    invb = struct.unpack('<I', struct.pack('<f', 1.0 / 576.0))[0]
    epsb = struct.unpack('<I', struct.pack('<f', 1e-5))[0]
    a(f'v_mul_f32 v82, 0x{invb:08x}, v82')
    a(f'v_mul_f32 v83, 0x{invb:08x}, v83')
    a('v_fma_f32 v83, -v82, v82, v83')
    a('v_max_f32 v83, 0, v83')
    bfround(a, 83, 83)
    bfround(a, 82, 82)
    a(f'v_add_f32 v83, 0x{epsb:08x}, v83')
    bfround(a, 83, 83)
    a('v_sqrt_f32 v83, v83')
    a('v_fma_f32 v84, -v82, v99, v84')
    bfround(a, 83, 83)
    a('v_rcp_f32 v83, v83')
    a('v_mul_f32 v84, v84, v83')
    a('v_mul_f32 v82, v82, v83')
    a('v_readlane_b32 s52, v84, 63')
    a('v_readlane_b32 s50, v83, 63')
    a('v_readlane_b32 s55, v82, 63')
    a('s_ashr_i32 s53, s52, 31')
    a('s_or_b32 s53, s53, 0x80000000')
    a('s_xor_b32 s53, s53, s52')
    a('s_and_b32 s53, s53, 0xfffff800')
    a('s_max_u32 s53, s53, 0x800')
    a('s_lshl_b32 s58, s2, 4')
    a('s_add_u32 s58, s58, s40')
    a('s_sub_u32 s58, 2047, s58')
    a('s_or_b32 s53, s53, s58')
    a('s_mov_b32 s51, s50')
    a('s_lshl_b32 s58, s40, 2')
    a(f's_add_u32 s58, s58, {K2_LDS_C}')
    a('v_mov_b32 v88, s55')
    a('v_mov_b32 v86, s58')
    a('v_mov_b32 v87, s53')
    a('ds_write_b32 v86, v87')
    HN = lambda k: 100 + k
    for j in range(5):
        a(f'v_pk_fma_f32 {vr(HN(2*j),2)}, {H2(j)}, s[50:51], v[88:89] op_sel_hi:[1,1,0] neg_lo:[0,0,1] neg_hi:[0,0,1]')
    NP = lambda j: 110 + j
    for j in range(5):
        a(f'v_cvt_pk_bf16_f32 v{NP(j)}, v{HN(2*j)}, v{HN(2*j+1)}')

    def lds_row(P, off):
        for k in range(9):
            op = 'ds_write_b16' if k % 2 == 0 else 'ds_write_b16_d16_hi'
            a(f'{op} v93, v{P(k//2)} offset:{off + k*128}')
    lds_row(NP, 0)
    a('v_lshlrev_b32 v86, 2, v2')
    a(f'v_add_u32 v86, {K2_LDS_C}, v86')
    a('v_not_b32 v87, v87')
    a('s_waitcnt lgkmcnt(0)')
    stamp(a, 7)
    a('s_barrier')
    stamp(a, 8)
    a('ds_read_b32 v95, v86')
    a('ds_read_b128 v[16:19], v94')
    a('ds_read_b128 v[20:23], v94 offset:1024')
    a('s_mul_i32 s56, s2, 1152')
    a(f's_add_u32 s56, s56, {WS_HN}')
    a('s_lshl_b32 s57, s2, 7')
    a(f's_add_u32 s57, s57, {WS_KEYS}')
    a('v_mov_b32 v86, 0')
    a('s_waitcnt lgkmcnt(2)')
    dpp_reduce(a, 'v_max_u32', [95], rows_only=True)
    a('v_readlane_b32 s58, v95, 15')
    a('s_cmp_lg_u32 s58, s53')
    a('s_cbranch_scc1 K2_NOTWIN')
    a('s_waitcnt lgkmcnt(0)')
    a(f'buffer_store_dwordx4 v[16:19], v4, s[36:39], s56 offen{SC}')
    a('s_mov_b64 exec, 0xff')
    a(f'buffer_store_dwordx4 v[20:23], v5, s[36:39], s56 offen{SC}')
    a('s_mov_b64 exec, 1')
    a(f'buffer_store_dword v87, v86, s[36:39], s57 offen{SC}')
    a('s_mov_b64 exec, -1')
    stamp(a, 9)
    lds_row(HP, 1152)
    a.label('K2_NOTWIN')
    a.flush_hist()
    OP = lambda j: 116 + j
    for j in range(5):
        a(f'v_lshlrev_b32 v{HN(2*j)}, 16, v{NP(j)}')
        if j < 4:
            a(f'v_and_b32 v{HN(2*j+1)}, 0xffff0000, v{NP(j)}')
    for j in range(5):
        a(f'v_pk_add_f32 {vr(HN(2*j),2)}, {vr(HN(2*j),2)}, {H2(j)}')
    for j in range(5):
        a(f'v_cvt_pk_bf16_f32 v{OP(j)}, v{HN(2*j)}, v{HN(2*j+1)}')
    a('s_waitcnt lgkmcnt(0)')
    lds_row(OP, 2304)
    a('s_waitcnt lgkmcnt(0)')
    a('ds_read_b128 v[32:35], v94 offset:2304')
    a('ds_read_b128 v[36:39], v94 offset:3328')
    a('s_cmp_lg_u32 s58, s53')
    a('s_cbranch_scc1 K2_PLAIN')
    a('ds_read_b128 v[24:27], v94 offset:1152')
    a('ds_read_b128 v[28:31], v94 offset:2176')
    a('s_mul_i32 s56, s2, 1280')
    a(f's_add_u32 s56, s56, {WS_H}')
    a('v_mov_b32 v88, s52')
    a('v_mov_b32 v89, s46')
    a('s_waitcnt lgkmcnt(0)')
    a(f'buffer_store_dwordx4 v[24:27], v4, s[36:39], s56 offen{SC}')
    a(f'buffer_store_dwordx4 v[32:35], v4, s[32:35], s48 offen{SC}')
    a('s_mov_b64 exec, 0xff')
    a(f'buffer_store_dwordx4 v[28:31], v5, s[36:39], s56 offen{SC}')
    a(f'buffer_store_dwordx4 v[36:39], v5, s[32:35], s48 offen{SC}')
    a('s_mov_b64 exec, 1')
    a(f'buffer_store_dwordx2 v[88:89], v86, s[36:39], s56 offen offset:1152{SC}')
    a('s_waitcnt vmcnt(0)')
    a(f'buffer_store_dword v86, v86, s[36:39], s57 offen offset:64{SC}')
    a('s_mov_b64 exec, -1')
    a('s_branch K2_EXIT')
    a.label('K2_PLAIN')
    a.flush_hist()
    a('s_waitcnt lgkmcnt(0)')
    a('buffer_store_dwordx4 v[32:35], v4, s[32:35], s48 offen')
    a('s_mov_b64 exec, 0xff')
    a('buffer_store_dwordx4 v[36:39], v5, s[32:35], s48 offen')
    a('s_mov_b64 exec, -1')
    a('s_branch K2_EXIT')

    a.label('K2_OTHER')
    a.flush_hist()
    a(f's_cmp_lt_u32 s2, {NROWWG + NFFNWG}')
    a('s_cbranch_scc1 K2_NOPF')
    a(f's_cmp_ge_u32 s2, {FIN0}')
    a('s_cbranch_scc1 K2_NOPF')
    a('s_cmp_ge_u32 s40, 14')
    a('s_cbranch_scc1 K2_END')
    a('s_and_b32 s41, s2, 7')
    a('s_mul_i32 s41, s41, 663552')
    a(f's_sub_u32 s42, s2, {NROWWG + NFFNWG}')
    a('s_lshr_b32 s42, s42, 3')
    a('s_mul_i32 s42, s42, 110592')
    a('s_add_u32 s41, s41, s42')
    a('s_lshl_b32 s42, s40, 13')
    a('s_add_u32 s41, s41, s42')
    a('v_lshlrev_b32 v6, 7, v0')
    a('s_waitcnt lgkmcnt(0)')
    srd(a, 24, 70, WG_BYTES)
    a(f'buffer_load_dword v7, v6, s[24:27], s41 offen{nt("nt_pf")}')
    a('s_endpgm')
    a.label('K2_NOPF')
    a.flush_hist()
    a('s_cmp_ge_u32 s40, 10')
    a('s_cbranch_scc1 K2_END')
    a('v_lshlrev_b32 v27, 2, v0')
    a('s_waitcnt lgkmcnt(0)')
    stamp(a, 0)
    srd(a, 36, 14, WS_RANGE)
    a('s_cmp_eq_u32 s40, 9')
    a('s_cbranch_scc1 K2_W9')
    a(f's_cmp_ge_u32 s2, {FIN0}')
    a('s_cbranch_scc1 K2_FIN')
    a(f's_sub_u32 s41, s2, {NROWWG}')
    a('s_and_b32 s3, s41, 7')
    a('s_mul_i32 s3, s3, 9')
    a('s_lshr_b32 s41, s41, 3')
    a('s_add_u32 s3, s3, s41')
    srd(a, 16, 66, WG_BYTES)
    srd(a, 20, 68, WG_BYTES)
    srd(a, 24, 70, WG_BYTES)
    a('v_lshrrev_b32 v8, 3, v0')
    a('v_and_b32 v9, 7, v0')
    a('v_mul_u32_u24 v15, 9216, v8')
    a('v_lshl_add_u32 v15, v9, 4, v15')
    a('v_mul_u32_u24 v14, 1152, v8')
    a('v_lshl_add_u32 v14, v9, 4, v14')
    a('s_mul_i32 s59, s40, 589824')
    a('s_lshl_b32 s58, s3, 7')
    a('s_add_u32 s59, s59, s58')
    a('s_lshl_b32 s55, s40, 14')
    for mat in range(2):
        a('s_mov_b32 s57, s59')
        for q in range(8):
            a(f's_add_u32 m0, s55, {mat*8192 + q*1024}')
            a(f'buffer_load_dwordx4 v15, s[{16+4*mat}:{19+4*mat}], s57 offen{nt("nt_w")} lds')
            if q < 7:
                a('s_add_u32 s57, s57, 73728')
    a('v_bfe_u32 v13, v0, 2, 2')
    a('v_lshl_add_u32 v13, v3, 3, v13')
    a('v_and_b32 v10, 3, v0')
    a('v_lshlrev_b32 v13, 7, v13')
    a('v_lshl_add_u32 v13, v10, 3, v13')
    a('v_add_u32 v13, s55, v13')
    a('s_mul_i32 s57, s3, 73728')
    a('s_lshl_b32 s58, s40, 7')
    a('s_add_u32 s57, s57, s58')
    WF = lambda mat, kap, nu: 64 + ((mat * 2 + kap) * 4 + nu) * 4

    def rd_tile(mat_off, reg):
        for kap in range(2):
            for nu in range(4):
                for h in range(2):
                    a(f'ds_read_b64_tr_b16 {vr(reg(kap,nu)+2*h,2)}, v13 offset:{mat_off + kap*4096 + h*512 + nu*32}')
            a('s_waitcnt lgkmcnt(0)')
    a('s_waitcnt vmcnt(8)')
    rd_tile(0, lambda kap, nu: WF(0, kap, nu))
    for q in range(8):
        a(f's_add_u32 m0, s55, {q*1024}')
        a(f'buffer_load_dwordx4 v14, s[24:27], s57 offen{nt("nt_w")} lds')
        if q < 7:
            a('s_add_u32 s57, s57, 9216')
    a('s_waitcnt vmcnt(8)')
    rd_tile(8192, lambda kap, nu: WF(1, kap, nu))
    a('v_cmp_eq_u32 s[52:53], 1, v3')
    a('v_cmp_eq_u32 s[54:55], 2, v3')
    a('v_cmp_eq_u32 s[56:57], 3, v3')
    a('s_lshl_b32 s49, s40, 7')
    a(f's_add_u32 s49, s49, {K2_LDS_XS}')
    a('v_lshl_add_u32 v6, v3, 4, s49')
    a(f'v_add_u32 v28, {K2_LDS_RED}, v27')
    a('s_lshl_b32 s49, s40, 9')
    a('v_add_u32 v29, s49, v28')
    a('s_lshl_b32 s49, s40, 7')
    a(f's_add_u32 s49, s49, {K2_LDS_ACT}')
    a('v_add_u32 v30, s49, v12')
    a('v_lshl_add_u32 v31, v3, 4, s49')
    a('s_mul_i32 s49, s3, 2304')
    a('s_lshl_b32 s50, s40, 8')
    a('s_add_u32 s49, s49, s50')
    a(f's_add_u32 s49, s49, {WS_PART}')
    a('s_waitcnt vmcnt(0)')
    stamp(a, 10)
    a('s_barrier')
    stamp(a, 11)
    a('ds_read_b128 v[16:19], v6')
    a('ds_read_b128 v[20:23], v6 offset:64')
    FACC = lambda mat, nu: 32 + 4 * (mat * 4 + nu)
    for kap in range(2):
        a(f's_waitcnt lgkmcnt({1-kap})')
        for mat in range(2):
            for nu in range(4):
                c = '0' if kap == 0 else vr(FACC(mat, nu), 4)
                a(f'v_mfma_f32_16x16x32_bf16 {vr(FACC(mat,nu),4)}, {vr(16+4*kap,4)}, {vr(WF(mat,kap,nu),4)}, {c}')
    DF = lambda kap, nu: 64 + (kap * 4 + nu) * 4
    for nu in range(4):
        for h in range(2):
            a(f'ds_read_b64_tr_b16 {vr(DF(0,nu)+2*h,2)}, v13 offset:{h*512 + nu*32}')
    for mat in range(2):
        a(f'v_cndmask_b32 v{24+mat}, v{FACC(mat,0)}, v{FACC(mat,1)}, s[52:53]')
        a(f'v_cndmask_b32 v{24+mat}, v{24+mat}, v{FACC(mat,2)}, s[54:55]')
        a(f'v_cndmask_b32 v{24+mat}, v{24+mat}, v{FACC(mat,3)}, s[56:57]')
        a(f'ds_write_b32 v29, v{24+mat} offset:{mat*256}')
    a('s_waitcnt lgkmcnt(0)')
    a('s_barrier')
    stamp(a, 12)
    for w in range(9):
        a(f'ds_read2_b32 {vr(32+2*w,2)}, v28 offset0:{(w*128)%256} offset1:{(w*128+64)%256}' if False else
          f'ds_read2st64_b32 {vr(32+2*w,2)}, v28 offset0:{2*w} offset1:{2*w+1}')
    for nu in range(2):
        for h in range(2):
            a(f'ds_read_b64_tr_b16 {vr(DF(1,nu)+2*h,2)}, v13 offset:{4096 + h*512 + nu*32}')
    a('s_waitcnt lgkmcnt(4)')
    for nu in range(2, 4):
        for h in range(2):
            a(f'ds_read_b64_tr_b16 {vr(DF(1,nu)+2*h,2)}, v13 offset:{4096 + h*512 + nu*32}')
    for (d, s0, s1) in ((32, 32, 34), (36, 36, 38), (40, 40, 42), (44, 44, 46), (32, 32, 36), (40, 40, 44), (32, 32, 48), (32, 32, 40)):
        a(f'v_pk_add_f32 {vr(d,2)}, {vr(s0,2)}, {vr(s1,2)}')
    a('v_cvt_pk_bf16_f32 v34, v32, v33')
    a('v_lshlrev_b32 v32, 16, v34')
    a('v_and_b32 v33, 0xffff0000, v34')
    a('v_mul_f32 v35, 0xbfb8aa3b, v32')
    a('v_exp_f32 v35, v35')
    a('v_add_f32 v35, 1.0, v35')
    a('v_rcp_f32 v35, v35')
    a('v_mul_f32 v35, v35, v32')
    bfround(a, 35, 35)
    a('v_mul_f32 v35, v35, v33')
    a('v_cvt_pk_bf16_f32 v35, v35, v35')
    a('ds_write_b16 v30, v35')
    a('s_waitcnt lgkmcnt(0)')
    a('ds_read_b128 v[16:19], v31')
    a('ds_read_b128 v[20:23], v31 offset:64')
    for kap in range(2):
        a(f's_waitcnt lgkmcnt({1-kap})')
        for nu in range(4):
            c = '0' if kap == 0 else vr(FACC(1, nu), 4)
            a(f'v_mfma_f32_16x16x32_bf16 {vr(FACC(1,nu),4)}, {vr(16+4*kap,4)}, {vr(DF(kap,nu),4)}, {c}')
    a('v_mov_b32 v25, 0x7fc00000')
    a(f'v_cndmask_b32 v26, v{FACC(1,0)}, v{FACC(1,1)}, s[52:53]')
    a(f'v_cndmask_b32 v26, v26, v{FACC(1,2)}, s[54:55]')
    a(f'v_cndmask_b32 v26, v26, v{FACC(1,3)}, s[56:57]')
    a('v_cmp_eq_u32 vcc, -1, v26')
    a('v_cndmask_b32 v26, v26, v25, vcc')
    a(f'buffer_store_dword v26, v27, s[36:39], s49 offen{SC}')
    stamp(a, 13)
    a('s_branch K2_EXIT')

    a.label('K2_W9')
    a.flush_hist()
    a(f's_mov_b32 s56, {WS_KEYS}')
    a(f's_mov_b32 s55, {WS_KEYS + 8192}')
    a('s_mov_b32 s57, -1')
    a('s_mov_b32 s58, 0')
    a('s_mov_b32 s46, 0')
    a(f's_mov_b32 s47, {WS_HN}')
    a('v_lshlrev_b32 v8, 7, v0')
    a.label('K2_POLL')
    a.flush_hist()
    a(f'buffer_load_dword v16, v8, s[36:39], s56 offen{SC}')
    a(f'buffer_load_dword v17, v8, s[36:39], s55 offen{SC}')
    a('s_waitcnt vmcnt(0)')
    a('v_min_u32 v20, v16, v17')
    a('v_max_u32 v21, v16, v17')
    a('v_cmp_eq_u32 vcc, -1, v21')
    dpp_reduce(a, 'v_min_u32', [20])
    a('v_readlane_b32 s44, v20, 63')
    a('s_cmp_eq_u32 s44, s57')
    a('s_cbranch_scc1 K2_SAME')
    a('s_mov_b32 s57, s44')
    a('s_and_b32 s46, s44, 0x7ff')
    a('s_lshr_b32 s46, s46, 4')
    a('s_mul_i32 s47, s46, 1152')
    a(f's_add_u32 s47, s47, {WS_HN}')
    a.label('K2_ROWLD')
    a.flush_hist()
    a(f'buffer_load_dwordx4 v[24:27], v4, s[36:39], s47 offen{SC}')
    for r in range(28, 32):
        a(f'v_mov_b32 v{r}, 0')
    a('s_mov_b64 exec, 0xff')
    a(f'buffer_load_dwordx4 v[28:31], v5, s[36:39], s47 offen{SC}')
    a('s_mov_b64 exec, -1')
    a.label('K2_SAME')
    a.flush_hist()
    a('s_add_u32 s58, s58, 1')
    a(f's_cmp_lt_u32 s58, {SPIN_LIMIT}')
    a('s_cbranch_scc0 K2_GOT')
    a('s_cmp_eq_u64 vcc, 0')
    a('s_cbranch_scc1 K2_ALLK')
    if OPT['sleep']:
        a(f's_sleep {OPT["sleep"]}')
    a('s_branch K2_POLL')
    a.label('K2_ALLK')
    a.flush_hist()
    a('s_waitcnt vmcnt(0)')
    a('v_max3_u32 v20, v24, v25, v26')
    a('v_max3_u32 v21, v27, v28, v29')
    a('v_max3_u32 v20, v20, v30, v31')
    a('v_max_u32 v20, v20, v21')
    a('v_cmp_eq_u32 s[50:51], -1, v20')
    a('s_nop 2')
    a('s_cmp_eq_u64 s[50:51], 0')
    a('s_cbranch_scc0 K2_ROWLD')
    a.label('K2_GOT')
    a.flush_hist()
    a('s_waitcnt vmcnt(0)')
    stamp(a, 9)
    a(f's_cmp_ge_u32 s2, {FIN0}')
    a('s_cbranch_scc1 K2_FIN9')
    a(f'v_add_u32 v6, {K2_LDS_XS}, v4')
    a('ds_write_b128 v6, v[24:27]')
    a('s_mov_b64 exec, 0xff')
    a('ds_write_b128 v6, v[28:31] offset:1024')
    a('s_mov_b64 exec, -1')
    a('s_waitcnt lgkmcnt(0)')
    a('s_barrier')
    a('s_branch K2_EXIT')

    a.label('K2_FIN')
    a.flush_hist()
    a('s_mul_i32 s41, s40, 18432')
    a(f's_sub_u32 s42, s2, {FIN0}')
    a('s_lshl_b32 s42, s42, 8')
    a('s_add_u32 s41, s41, s42')
    a(f's_add_u32 s41, s41, {WS_PART}')
    a('s_mov_b32 s58, 0')
    a('s_lshl_b32 s45, s40, 8')
    a('v_add_u32 v9, s45, v27')
    a('s_barrier')
    a.label('K2_PPOLL')
    a.flush_hist()
    a('s_mov_b32 s43, s41')
    P = lambda p: 32 + p
    for p in range(8):
        a(f'buffer_load_dword v{P(p)}, v27, s[36:39], s43 offen{SC}')
        if p < 7:
            a('s_add_u32 s43, s43, 2304')
    a('s_add_u32 s58, s58, 1')
    a('s_waitcnt vmcnt(0)')
    a(f'v_max3_u32 v16, v{P(0)}, v{P(1)}, v{P(2)}')
    a(f'v_max3_u32 v17, v{P(3)}, v{P(4)}, v{P(5)}')
    a(f'v_max3_u32 v16, v16, v{P(6)}, v{P(7)}')
    a('v_max_u32 v16, v16, v17')
    a('v_cmp_eq_u32 vcc, -1, v16')
    for p in range(4):
        a(f'v_add_f32 v{P(p)}, v{P(p)}, v{P(p+4)}')
    a('s_cmp_eq_u64 vcc, 0')
    a('s_cbranch_scc1 K2_PGOT')
    a(f's_cmp_lt_u32 s58, {SPIN_LIMIT}')
    a('s_cbranch_scc1 K2_PPOLL')
    a.label('K2_PGOT')
    a.flush_hist()
    a(f'v_add_f32 v{P(0)}, v{P(0)}, v{P(2)}')
    a(f'v_add_f32 v{P(1)}, v{P(1)}, v{P(3)}')
    a(f'v_add_f32 v{P(0)}, v{P(0)}, v{P(1)}')
    a(f'ds_write_b32 v9, v{P(0)}')
    a('s_waitcnt lgkmcnt(0)')
    stamp(a, 12)
    a('s_barrier')
    a('s_branch K2_EXIT')
    a.label('K2_FIN9')
    a.flush_hist()
    a('s_barrier')
    srd(a, 32, 12, X_BYTES)
    a('s_and_b32 s46, s57, 0x7ff')
    a('s_lshr_b32 s46, s46, 4')
    a('s_mul_i32 s47, s46, 1152')
    a(f's_add_u32 s47, s47, {WS_HN}')
    a('s_lshl_b32 s48, s46, 7')
    a(f's_add_u32 s48, s48, {WS_KEYS + 64}')
    a('v_mov_b32 v8, 0')
    a('s_mov_b32 s58, 0')
    a.label('K2_FPOLL')
    a.flush_hist()
    a(f'buffer_load_dword v9, v8, s[36:39], s48 offen{SC}')
    a('s_add_u32 s58, s58, 1')
    a('s_waitcnt vmcnt(0)')
    a('v_readfirstlane_b32 s44, v9')
    a('s_cmp_lg_u32 s44, -1')
    a('s_cbranch_scc1 K2_FGOT')
    a(f's_cmp_lt_u32 s58, {SPIN_LIMIT}')
    a('s_cbranch_scc1 K2_FPOLL')
    a.label('K2_FGOT')
    a.flush_hist()
    a(f's_sub_u32 s42, s2, {FIN0}')
    a('s_lshl_b32 s43, s42, 7')
    a('s_add_u32 s44, s43, s47')
    a('s_mul_i32 s45, s46, 1280')
    a(f's_add_u32 s45, s45, {WS_H}')
    a('s_add_u32 s41, s45, s43')
    a('v_mov_b32 v4, 0')
    a('v_mov_b32 v5, 0')
    a(f'buffer_load_short_d16_hi v4, v12, s[36:39], s44 offen{SC}')
    a(f'buffer_load_short_d16_hi v5, v12, s[36:39], s41 offen{SC}')
    a(f'buffer_load_dwordx2 v[6:7], v8, s[36:39], s45 offen offset:1152{SC}')
    a('v_lshlrev_b32 v27, 2, v0')
    a('s_waitcnt vmcnt(0)')
    bfround(a, 6, 6)
    a('v_mul_f32 v10, 0xbfb8aa3b, v6')
    a('v_exp_f32 v10, v10')
    a('v_mul_u32_u24 v7, 1152, v7')
    a('v_add_f32 v10, 1.0, v10')
    a('v_rcp_f32 v10, v10')
    a('v_add_u32 v7, v7, v12')
    bfround(a, 10, 10)
    stamp(a, 11)
    a('s_barrier')
    for w in range(9):
        a(f'ds_read_b32 v{16+w}, v27 offset:{w*256}')
    a('s_waitcnt lgkmcnt(0)')
    for p in range(4):
        a(f'v_add_f32 v{16+p}, v{16+p}, v{20+p}')
    a('v_add_f32 v16, v16, v18')
    a('v_add_f32 v17, v17, v19')
    a('v_add_f32 v16, v16, v24')
    a('v_add_f32 v16, v16, v17')
    bfround(a, 16, 16)
    a('v_mul_f32 v16, v16, v10')
    bfround(a, 16, 16)
    a('v_add_f32 v16, v16, v4')
    bfround(a, 16, 16)
    a('v_add_f32 v16, v16, v5')
    a('v_cvt_pk_bf16_f32 v16, v16, v16')
    a('buffer_store_short v16, v7, s[32:35], s43 offen')
    stamp(a, 13)
    a.label('K2_EXIT')
    a.flush_hist()
    if STAMP:
        a('s_waitcnt vmcnt(0)')
        stamp(a, 14)
        stamp_flush(a, 1, 15)
    a.label('K2_END')
    a('s_endpgm')


def main(path):
    a = Asm()
    hdr = [
        '; FNet (pre-LN) + Mixture-of-Depths top-1 SwiGLU block, gfx950. Generated by dev/gen.py.',
        f'; @launch kernel=k1_kernel grid=(256,1,1) block=(512,1,1) lds={K1_LDS}',
        f'; @launch kernel=k2_kernel grid=({FIN0+NFINWG},1,1) block=(1024,1,1) lds={max(K2_LDS, K2_ROW_LDS)}',
        '.amdgcn_target "amdgcn-amd-amdhsa--gfx950"',
        '.text',
    ]
    for h in hdr:
        a.raw(h)
    gen_k1(a)
    gen_k2(a)
    a.label('CODE_END')
    a.raw('.section .rodata,"a"')
    ns = 100 if STAMP else 80
    a.raw(descriptor('k1_kernel', 256, ns))
    a.raw(descriptor('k2_kernel', 128, ns))
    open(path, 'w').write(a.text())


if __name__ == '__main__':
    for arg in sys.argv[2:]:
        if arg == 'stamp':
            STAMP = True
        else:
            k, v = arg.split('=')
            OPT[k] = int(v)
    main(sys.argv[1] if len(sys.argv) > 1 else 'sequential_preLN__spectral_fnet__moe_arch_mod__prompt.s')
```

```python
import sys
import struct
from asmdsl import Asm, Cnt, vr, sr

NAME = 'sequential_preLN__spectral_fnet__moe_arch_mod__prompt_kernel'
S, D, F = 2048, 576, 4608
X_BYTES = S * D * 2
SEQ_BYTES = S * S * 2
HID_BYTES = D * D * 2
WG_BYTES = D * F * 2
WS_U = 0
WS_KEYS = 0x240000
WS_UF = WS_KEYS + 16384
WS_PART = WS_UF + 192 * 64
WS_HN = WS_PART + 72 * 2304
WS_FILL_END = WS_HN + 128 * 1152
WS_H = 0x2a0000
WS_RANGE = 0x900000
WS_STAMP = 0x800000
assert WS_FILL_END <= WS_H and WS_FILL_END - WS_KEYS <= 64 * 8192

STAMP = False
OPT = dict(ahead=2, warm=0, wpf=0, wpf_at=3, usent=0, outsc=1, depth=3, slow=6, gap=3, codepf=1, sleep=1, aslist=0)
SC = ' sc1'
SPIN_LIMIT = 400000
INVB = struct.unpack('<I', struct.pack('<f', 1.0 / 576.0))[0]
EPSB = struct.unpack('<I', struct.pack('<f', 1e-5))[0]

P1_B = 73728
P1_F = 135168
P1_ST = 151552
LDS_T = 152064
LDS_C = LDS_T + 4096
LDS_XS = 152064
LDS_RED = LDS_XS + 1280
LDS_ACT = LDS_RED + 1024
LDS_CNT = LDS_C + 32
LDS_TOTAL = LDS_C + 64
R_Y = 73728
R_YS = 2312
R_STG = R_Y + 16 * R_YS
R_X = R_STG + 16 * 1152 + 1024
R_W = R_X + 16 * 1152
assert R_W + 1152 + 1024 <= P1_ST
GROUPS = [(0, 0, 0), (1, 0, 5), (None, 0, 1), (2, 0, 6), (None, 0, 2), (3, 0, 7), (None, 0, 3), (4, 1, 8), (None, 0, 4)]
STAGES = [[0], [1], [2, 3], [4, 5], [6, 7], [8]]


def srd(a, d, b, nbytes):
    a(f's_mov_b32 s{d}, s{b}')
    a(f's_mov_b32 s{d+1}, s{b+1}')
    a(f's_mov_b32 s{d+2}, {nbytes}')
    a(f's_mov_b32 s{d+3}, 0x00020000')


def stamp(a, k):
    if STAMP:
        if k == 0:
            a('v_mov_b32 v1, 0')
        a('s_memrealtime s[92:93]')
        a('s_waitcnt lgkmcnt(0)')
        a(f'v_writelane_b32 v1, s92, {k}')


def stamp_flush(a):
    if not STAMP:
        return
    a('s_mov_b32 exec_lo, -1')
    a('s_mov_b32 exec_hi, 0')
    srd(a, 96, 14, WS_RANGE)
    a('s_lshl_b32 s95, s2, 3')
    a('s_add_u32 s95, s95, s40')
    a('s_lshl_b32 s95, s95, 7')
    a(f's_add_u32 s95, s95, {WS_STAMP}')
    a('v_lshlrev_b32 v0, 2, v0')
    a('buffer_store_dword v1, v0, s[96:99], s95 offen')


def bfround(a, dst, src):
    a(f'v_cvt_pk_bf16_f32 v{dst}, v{src}, v{src}')
    a(f'v_and_b32 v{dst}, 0xffff0000, v{dst}')


def dpp_reduce(a, op, regs, upto=6):
    ms = [('row_shr:1', '0xf'), ('row_shr:2', '0xf'), ('row_shr:4', '0xf'), ('row_shr:8', '0xf'), ('row_bcast:15', '0xa'), ('row_bcast:31', '0xc')]
    for m, rm in ms[:upto]:
        for r in regs:
            a(f'{op}_dpp v{r}, v{r}, v{r} {m} row_mask:{rm} bank_mask:0xf')


def lab(a, name):
    a.label(name)
    a.flush_hist()


def wait_cleared(a, name):
    srd(a, 76, 74, 256)
    a('v_mov_b32 v250, 0')
    a('s_mov_b32 s58, 0')
    lab(a, name)
    a(f'buffer_load_dword v251, v250, s[76:79], 0 offen{SC}')
    a('s_add_u32 s58, s58, 1')
    a('s_waitcnt vmcnt(0)')
    a('v_readfirstlane_b32 s59, v251')
    a('s_cmp_ge_u32 s59, 64')
    a(f's_cbranch_scc1 {name}_OK')
    a('s_sleep 4')
    a(f's_cmp_lt_u32 s58, {SPIN_LIMIT}')
    a(f's_cbranch_scc1 {name}')
    lab(a, name + '_OK')


def gen(a):
    a.raw(f'.globl {NAME}')
    a.raw('.p2align 8')
    a.raw(f'.type {NAME},@function')
    lab(a, NAME)
    a('s_cmp_ge_u32 s2, 256')
    a('s_cbranch_scc1 L_END')
    a('s_load_dwordx8 s[4:11], s[0:1], 0')
    a('s_load_dwordx2 s[12:13], s[0:1], 32')
    a('s_load_dwordx2 s[14:15], s[0:1], 96')
    a('s_load_dwordx8 s[64:71], s[0:1], 48')
    a('s_load_dwordx4 s[72:75], s[0:1], 80')
    a('v_lshrrev_b32 v1, 6, v0')
    a('v_readfirstlane_b32 s40, v1')
    a('s_cmp_lt_u32 s2, 64')
    a('s_cbranch_scc1 L_HELP')
    a('v_and_b32 v0, 63, v0')
    a('s_and_b32 s41, s2, 31')
    a('s_lshr_b32 s42, s2, 5')
    a('s_sub_u32 s42, s42, 2')
    a('v_lshrrev_b32 v3, 4, v0')
    a('s_cmp_ge_u32 s42, 3')
    a('s_cselect_b32 s43, 1, 0')
    a('s_cmp_lt_u32 s40, 4')
    a('s_cbranch_scc1 L_P1MM')
    vm = Cnt(a, 'vmcnt', 63)
    a('v_lshrrev_b32 v8, 3, v0')
    a('v_and_b32 v9, 7, v0')
    a('v_xor_b32 v9, v9, v3')
    a('v_lshlrev_b32 v9, 4, v9')
    a('s_sub_u32 s44, s40, 4')
    a('s_lshr_b32 s45, s44, 1')
    a('s_lshl_b32 s45, s45, 5')
    a('s_and_b32 s51, s44, 1')
    a('s_lshl_b32 s46, s51, 2')
    a('s_add_u32 s45, s45, s46')
    a('v_lshrrev_b32 v6, 2, v8')
    a('v_lshlrev_b32 v6, 3, v6')
    a('v_and_b32 v10, 3, v8')
    a('v_add3_u32 v6, v6, v10, s45')
    a('v_mul_u32_u24 v6, 36864, v6')
    a('s_mul_i32 s47, s41, 1152')
    a('v_xor_b32 v10, 64, v9')
    a('v_add_u32 v7, s47, v6')
    a('v_add_u32 v6, v7, v9')
    a('v_add_u32 v7, v7, v10')
    a(f'v_add_u32 v7, {16*36864}, v7')
    a('s_lshl_b32 s48, s44, 11')
    a('s_mul_i32 s50, s42, 96')
    a('s_mul_i32 s52, s43, 287')
    a('s_sub_u32 s50, s50, s52')
    a('s_lshl_b32 s52, s51, 4')
    a('s_add_u32 s50, s50, s52')
    a('v_lshl_add_u32 v40, v8, 1, s50')
    a('s_lshl_b32 s52, s51, 6')
    a('v_xor_b32 v43, s52, v9')
    a('v_mul_u32_u24 v41, 1152, v40')
    a('v_cmp_eq_u32 vcc, 0, v40')
    a(f'v_mov_b32 v42, {288*1152}')
    a('v_cndmask_b32 v40, v41, v42, vcc')
    a('v_add_u32 v40, v40, v43')
    a('v_add_u32 v41, v41, v43')
    a('v_add_u32 v42, 73728, v41')
    a('v_add_u32 v41, 36864, v41')
    a('s_lshl_b32 s53, s44, 10')
    a(f's_add_u32 s53, s53, {P1_B}')
    a('s_cmp_ge_u32 s44, 2')
    a(f's_mov_b32 s30, {HID_BYTES}')
    a('s_mov_b32 s31, 0x00020000')
    a('s_waitcnt lgkmcnt(0)')
    a('s_cselect_b32 s28, s12, s10')
    a('s_cselect_b32 s29, s13, s11')
    srd(a, 16, 4, X_BYTES)
    stamp(a, 0)

    def issue(st):
        for gi in STAGES[st]:
            cb, withF, c = GROUPS[gi]
            for hh in range(2):
                a(f's_add_u32 m0, s48, {c*8192 + hh*1024 - c*128}')
                a(f'buffer_load_dwordx4 v{6+hh}, s[16:19], 0 offen offset:{c*128} lds')
                vm.issue(st)
            if cb is not None:
                for w in range(3):
                    a(f's_add_u32 m0, s53, {w*20480 + cb*4096 - cb*128}')
                    a(f'buffer_load_dwordx4 v{40+w}, s[28:31], 0 offen offset:{cb*128} lds')
                    vm.issue(st)
            if withF:
                for part in range(2):
                    for hh in range(2):
                        a(f's_add_u32 m0, s49, {P1_F + (part*2+hh)*1024}')
                        a(f'buffer_load_dwordx4 v{14+hh}, s[{20+4*part}:{23+4*part}], 0 offen lds')
                        vm.issue(st)
    NS = len(STAGES)
    AH = OPT['ahead']
    for st in range(AH):
        issue(st)
    a('s_lshl_b32 s46, s44, 3')
    a('v_add_u32 v14, s46, v8')
    a('v_sub_u32 v15, 64, v14')
    a('v_cmp_eq_u32 vcc, 64, v15')
    a('v_cndmask_b32 v15, v15, 32, vcc')
    a('v_lshl_add_u32 v14, v14, 17, v9')
    a('v_lshl_add_u32 v15, v15, 17, v10')
    a('s_lshl_b32 s49, s44, 12')
    srd(a, 20, 6, SEQ_BYTES)
    srd(a, 24, 8, SEQ_BYTES)
    for st in range(NS):
        vm.wait(st)
        if st in (0, NS - 1):
            stamp(a, 1 if st == 0 else 2)
        a('s_barrier')
        if st + AH < NS:
            issue(st + AH)
        if st == OPT['wpf_at'] and OPT['wpf']:
            srd(a, 32, 66, WG_BYTES)
            srd(a, 36, 68, WG_BYTES)
            srd(a, 60, 70, WG_BYTES)
            a('s_sub_u32 s54, s2, 64')
            a('s_lshr_b32 s54, s54, 3')
            a('s_lshl_b32 s54, s54, 2')
            a('s_add_u32 s54, s54, s44')
            a('s_and_b32 s55, s2, 7')
            a('s_mul_i32 s56, s54, 55296')
            a('s_mul_i32 s57, s55, 1152')
            a('s_add_u32 s56, s56, s57')
            a('s_mul_i32 s57, s55, 663552')
            a('s_mul_i32 s58, s54, 6912')
            a('s_add_u32 s57, s57, s58')
            a('s_mov_b32 s58, 0x1c72')
            a('v_mul_u32_u24 v44, s58, v0')
            a('v_lshrrev_b32 v44, 16, v44')
            a('v_mul_u32_u24 v45, 9, v44')
            a('v_sub_u32 v45, v0, v45')
            a('v_mul_u32_u24 v44, 9216, v44')
            a('v_lshl_add_u32 v44, v45, 7, v44')
            a('v_lshlrev_b32 v45, 7, v0')
            a('s_mov_b32 exec_hi, 0x3fffff')
            a('buffer_load_dword v240, v44, s[32:35], s56 offen')
            vm.issue('pf')
            a('buffer_load_dword v241, v44, s[36:39], s56 offen')
            vm.issue('pf')
            a('buffer_load_dword v242, v45, s[60:63], s57 offen')
            vm.issue('pf')
            a('s_mov_b32 exec_hi, -1')
    a('s_cmp_ge_u32 s2, 128')
    a('s_cbranch_scc1 L_ROWPRE')
    a('s_barrier')
    a('s_branch L_P2')

    lab(a, 'L_P1MM')
    a('s_setprio 2')
    a('v_and_b32 v2, 15, v0')
    a('v_lshrrev_b32 v4, 1, v2')
    a('v_xor_b32 v4, v4, v3')
    a('v_lshlrev_b32 v4, 4, v4')
    a('v_lshl_add_u32 v4, v2, 7, v4')
    a('v_xor_b32 v5, 64, v4')
    for r in range(12, 16):
        a(f'v_mov_b32 v{r}, 0x3f803f80')
    XA, XB, BB, FB = 4, 242, 244, 246
    for b in range(2):
        a(f'v_add_u32 v{XB+b}, 0x10000, v{4+b}')
    a('s_waitcnt lgkmcnt(0)')
    stamp(a, 0)
    a('s_cmp_eq_u32 s40, 3')
    a('s_cbranch_scc1 L_STATS')
    lg = Cnt(a, 'lgkmcnt', 15)
    a('s_mul_i32 s44, s42, 3')
    a('s_add_u32 s44, s44, s40')
    a('s_mul_i32 s48, s40, 20480')
    a(f's_add_u32 s48, s48, {P1_B}')
    srd(a, 36, 14, WS_RANGE)
    for b in range(2):
        a(f'v_add_u32 v{BB+b}, s48, v{4+b}')
        a(f'v_add_u32 v{FB+b}, {P1_F}, v{4+b}')
    a('s_lshr_b32 s46, s41, 1')
    a('s_and_b32 s46, s46, 1')
    a('s_xor_b32 s46, s46, s44')
    a('s_lshl_b32 s46, s46, 7')
    a('s_mul_i32 s47, s41, 2304')
    a('s_add_u32 s46, s46, s47')
    a('s_and_b32 s47, s41, 1')
    a('s_lshl_b32 s47, s47, 2')
    a('v_lshrrev_b32 v7, 3, v0')
    a('v_and_b32 v9, 7, v0')
    a('v_xor_b32 v9, v9, v7')
    a('v_xor_b32 v9, s47, v9')
    a('v_mul_u32_u24 v7, 73728, v7')
    a('v_lshl_add_u32 v7, v9, 4, v7')
    a('v_add_u32 v7, s46, v7')
    a('v_and_b32 v9, 7, v2')
    a('v_lshrrev_b32 v240, 3, v2')
    a('v_lshl_add_u32 v240, v240, 2, v3')
    a('v_xor_b32 v240, v240, v9')
    a('v_lshlrev_b32 v240, 4, v240')
    a('v_lshl_add_u32 v240, v9, 7, v240')
    a('s_lshl_b32 s47, s40, 12')
    a('v_add_u32 v240, s47, v240')
    a('v_lshl_add_u32 v241, v0, 4, s47')
    a('v_lshlrev_b32 v8, 4, v3')
    a(f'v_add_u32 v8, {P1_ST}, v8')
    a('s_cmp_eq_u32 s43, 0')
    a('s_cselect_b32 s47, 1.0, -1.0')
    a('v_mov_b32 v10, s47')
    a('v_mov_b32 v11, s47')
    for it in range(1, 4):
        a(f's_mov_b32 s{59+it}, {it*8*73728}')
    a('s_sub_u32 s49, s2, 64')
    a('s_lshl_b32 s49, s49, 6')
    a(f's_add_u32 s49, s49, {WS_UF}')
    Bre = lambda k: 16 + 8 * k
    Bim = lambda k: 20 + 8 * k
    acc = lambda hf, i, ab: 88 + ((hf * 4 + i) * 2 + ab) * 4
    cacc = lambda ab: 152 + 4 * ab
    Abuf = lambda b, i: 160 + b * 16 + i * 4
    st8 = dict(started=set(), bufno=0, passed=-1, lg=lg, Abuf=Abuf)
    Fregs = [Bre(k) for k in range(1, 8)] + [Bim(k) for k in range(1, 8)] + [248, 252]
    Freg = lambda f: Fregs[f]

    def rd_x(kk):
        b = st8['bufno'] % 3
        st8['bufno'] += 1
        c, par = kk >> 1, kk & 1
        for i in range(4):
            off = c * 8192 + i * 2048
            base = XA + par
            if off >= 65536:
                off -= 65536
                base = XB + par
            a(f'ds_read_b128 {vr(st8["Abuf"](b,i),4)}, v{base} offset:{off}')
            st8['lg'].issue(('x', kk))
        return b

    def rd_B(k):
        c, par = k >> 1, k & 1
        for part, reg in ((0, Bre(k)), (1, Bim(k))):
            a(f'ds_read_b128 {vr(reg,4)}, v{BB+par} offset:{(c*4 + part*2)*1024}')
            lg.issue(('B', k))

    def rd_F(f):
        it, kap, part = f >> 2, (f >> 1) & 1, f & 1
        a(f'ds_read_b128 {vr(Freg(f),4)}, v{FB+kap} offset:{(it*2+part)*2048}')
        lg.issue('F')

    def mf(dst, A, B):
        c = vr(dst, 4) if dst in st8['started'] else '0'
        st8['started'].add(dst)
        a(f'v_mfma_f32_16x16x32_bf16 {vr(dst,4)}, {vr(A,4)}, {vr(B,4)}, {c}')

    steps = [(st, kk) for st, gs in enumerate(STAGES) for gi in gs for kk in (2 * GROUPS[gi][2], 2 * GROUPS[gi][2] + 1)]
    NSTEP = len(steps)
    haveB = set()
    bufs = {}

    def fetch(n, withB=True):
        st, kk = steps[n]
        while st8['passed'] < st:
            st8['passed'] += 1
            a('s_barrier')
        k = kk % 9
        if withB and k not in haveB:
            haveB.add(k)
            rd_B(k)
        bufs[n] = rd_x(kk)
    fetch(0)
    fetch(1)
    fq = list(range(16))
    srd(a, 76, 74, 256)
    a('v_mov_b32 v9, 0')
    for n, (st, kk) in enumerate(steps):
        k, hf = kk % 9, kk // 9
        if n == NSTEP - 3:
            a(f'buffer_load_dword v6, v9, s[76:79], 0 offen{SC}')
        lg.wait(('x', kk))
        b = bufs[n]
        for i in range(4):
            mf(acc(hf, i, 0), Abuf(b, i), Bre(k))
            mf(acc(hf, i, 1), Abuf(b, i), Bim(k))
            if i == 0 and n + 2 < NSTEP:
                fetch(n + 2)
            if n >= NSTEP - 2 and fq and len(lg.q) < 13:
                rd_F(fq.pop(0)); rd_F(fq.pop(0))
        if hf == 0:
            mf(cacc(0), 12, Bre(k))
            mf(cacc(1), 12, Bim(k))
    while fq:
        if len(lg.q) >= 13:
            lg.wait_all()
        rd_F(fq.pop(0)); rd_F(fq.pop(0))
    for i in range(4):
        for ab in range(2):
            for h in range(2):
                d = acc(0, i, ab) + 2 * h
                s1 = acc(1, i, ab) + 2 * h
                a(f'v_pk_fma_f32 {vr(d,2)}, {vr(s1,2)}, v[10:11], {vr(d,2)}')
    lg.wait_all()
    stamp(a, 1)
    a('s_barrier')
    for i in range(4):
        a(f'ds_read_b128 {vr(208+4*i,4)}, v8 offset:{i*64}')
        lg.issue(('st', i))
        a(f'ds_read_b128 {vr(224+4*i,4)}, v8 offset:{256+i*64}')
        lg.issue(('st', i))
    za = lambda kap: 160 + 4 * kap
    zb = lambda kap: 168 + 4 * kap
    znb = lambda kap: 176 + 4 * kap
    out = lambda it, c: 120 + (it * 2 + c) * 4
    TMP = 184
    st8['started'] = set()
    Fidx = lambda it, kap, part: (it * 2 + kap) * 2 + part

    def zops(kap):
        L = []
        for hh in range(2):
            i = 2 * kap + hh
            for ab in range(2):
                for h in range(2):
                    t = TMP + ((hh * 2 + ab) * 2 + h) * 2
                    L.append(f'v_pk_mul_f32 {vr(t,2)}, {vr(224+4*i+2*h,2)}, {vr(cacc(ab),2)}')
        for hh in range(2):
            i = 2 * kap + hh
            for ab in range(2):
                for h in range(2):
                    d = acc(0, i, ab) + 2 * h
                    t = TMP + ((hh * 2 + ab) * 2 + h) * 2
                    L.append(f'v_pk_fma_f32 {vr(d,2)}, {vr(208+4*i+2*h,2)}, {vr(d,2)}, {vr(t,2)} neg_lo:[0,0,1] neg_hi:[0,0,1]')
        for ab, z in ((0, za), (1, zb)):
            for hh in range(2):
                src = acc(0, 2 * kap + hh, ab)
                L.append(f'v_cvt_pk_bf16_f32 v{z(kap)+2*hh}, v{src}, v{src+1}')
                L.append(f'v_cvt_pk_bf16_f32 v{z(kap)+2*hh+1}, v{src+2}, v{src+3}')
        for r in range(4):
            L.append(f'v_xor_b32 v{znb(kap)+r}, 0x80008000, v{zb(kap)+r}')
        return L

    def mops(kap):
        L = []
        for it in range(4):
            L.append((out(it, 0), za(kap), Freg(Fidx(it, kap, 0))))
            L.append((out(it, 1), za(kap), Freg(Fidx(it, kap, 1))))
        for it in range(4):
            L.append((out(it, 0), znb(kap), Freg(Fidx(it, kap, 1))))
            L.append((out(it, 1), zb(kap), Freg(Fidx(it, kap, 0))))
        return L
    lg.wait(('st', 1))
    for ins in zops(0):
        a(ins)
    lg.wait(('st', 3))
    z1 = zops(1)
    for m in mops(0):
        mf(*m)
        for _ in range(2):
            if z1:
                a(z1.pop(0))
    while z1:
        a(z1.pop(0))
    m1 = mops(1)
    if OPT['usent']:
        a('s_waitcnt vmcnt(0)')
        a('v_readfirstlane_b32 s59, v6')
        a('s_cmp_ge_u32 s59, 64')
        a('s_cbranch_scc1 L_WC0_OK')
        a('v_mov_b32 v240, v250')
        a('v_mov_b32 v241, v251')
        wait_cleared(a, 'L_WC0X')
        a('v_mov_b32 v250, v240')
        a('v_mov_b32 v251, v241')
        a('s_nop 1')
        lab(a, 'L_WC0_OK')

    def upack(it):
        d = 184 + 4 * it
        a(f'v_cvt_pk_bf16_f32 v{d}, v{out(it,0)}, v{out(it,0)+1}')
        a(f'v_cvt_pk_bf16_f32 v{d+1}, v{out(it,0)+2}, v{out(it,0)+3}')
        a(f'v_cvt_pk_bf16_f32 v{d+2}, v{out(it,1)}, v{out(it,1)+1}')
        a(f'v_cvt_pk_bf16_f32 v{d+3}, v{out(it,1)+2}, v{out(it,1)+3}')
        a(f'ds_write_b128 v240, {vr(d,4)} offset:{it*1024}')
        lg.issue(('w', it))
        a(f'ds_read_b128 {vr(208+4*it,4)}, v241 offset:{it*1024}')
        lg.issue(('r', it))

    def ustore(it):
        lg.wait(('r', it))
        so = '0' if it == 0 else f's{59+it}'
        a(f'buffer_store_dwordx4 {vr(208+4*it,4)}, v7, s[36:39], {so} offen{SC}')
    for it in range(4):
        for m in (m1[2 * it], m1[2 * it + 1], m1[8 + 2 * it], m1[9 + 2 * it]):
            mf(*m)
        if it >= 2:
            upack(it - 2)
    upack(2)
    ustore(0)
    upack(3)
    ustore(1)
    ustore(2)
    ustore(3)
    a(f'v_mov_b32 v10, {LDS_CNT}')
    a('v_mov_b32 v11, 1')
    stamp(a, 2)
    if not OPT['usent']:
        a('s_waitcnt vmcnt(0)')
        a('v_readfirstlane_b32 s59, v6')
        a('s_cmp_ge_u32 s59, 64')
        a('s_cbranch_scc1 L_WC1_OK')
        wait_cleared(a, 'L_WC1')
    a('s_mov_b64 exec, 1')
    a('ds_add_rtn_u32 v6, v10, v11')
    a('s_waitcnt lgkmcnt(0)')
    a('v_readfirstlane_b32 s59, v6')
    a('s_cmp_lg_u32 s59, 2')
    a('s_cbranch_scc1 L_NOFLAG')
    a(f'buffer_store_dword v9, v9, s[36:39], s49 offen{SC}')
    lab(a, 'L_NOFLAG')
    a('s_mov_b64 exec, -1')
    stamp(a, 3)
    a('s_cmp_lt_u32 s2, 128')
    a('s_cbranch_scc1 L_P2')
    a('s_barrier')
    a('s_setprio 0')
    a('s_mov_b32 s3, 2')
    a('s_branch L_ROWP')

    lab(a, 'L_STATS')
    lg = Cnt(a, 'lgkmcnt', 15)
    a('v_and_b32 v8, 3, v2')
    a('v_lshrrev_b32 v9, 2, v2')
    a('v_sub_u32 v9, v9, v3')
    a('v_and_b32 v9, 3, v9')
    for r in range(1, 4):
        a(f'v_cmp_eq_u32 s[{42+2*r}:{43+2*r}], {r}, v8')
        a(f'v_cmp_eq_u32 s[{48+2*r}:{49+2*r}], {r}, v9')
    a('v_lshlrev_b32 v10, 4, v9')
    a('v_lshl_add_u32 v10, v3, 2, v10')
    a('v_add_u32 v10, v10, v8')
    a('v_lshlrev_b32 v10, 2, v10')
    a(f'v_add_u32 v10, {P1_ST}, v10')
    a('s_cmp_eq_u32 s43, 0')
    a('s_cselect_b32 s56, 2.0, 0')
    a(f'v_mov_b32 v8, {LDS_CNT}')
    a('v_mov_b32 v9, 0')
    a('ds_write_b32 v8, v9')
    a('s_waitcnt lgkmcnt(0)')
    GR = lambda i: 16 + 4 * i
    SM = lambda i: 32 + 4 * i
    SAbuf = lambda b, i: 48 + b * 16 + i * 4
    st8.update(started=set(), bufno=0, passed=-1, lg=lg, Abuf=SAbuf)
    bufs = {}
    fetch(0, False)
    fetch(1, False)
    for n, (st, kk) in enumerate(steps):
        lg.wait(('x', kk))
        b = bufs[n]
        for i in range(4):
            mf(GR(i), SAbuf(b, i), SAbuf(b, i))
            mf(SM(i), 12, SAbuf(b, i))
        if n + 2 < NSTEP:
            fetch(n + 2, False)
    for i in range(4):
        for r in range(1, 4):
            a(f'v_cndmask_b32 v{GR(i)}, v{GR(i)}, v{GR(i)+r}, s[{42+2*r}:{43+2*r}]')
    for i in range(1, 4):
        a(f'v_mov_b32_dpp v{GR(i)+1}, v{GR(i)} row_ror:{4*i} row_mask:0xf bank_mask:0xf')
        a(f'v_mov_b32_dpp v{SM(i)+1}, v{SM(i)} row_ror:{4*i} row_mask:0xf bank_mask:0xf')
    for i in range(1, 4):
        a(f'v_cndmask_b32 v{GR(0)}, v{GR(0)}, v{GR(i)+1}, s[{48+2*i}:{49+2*i}]')
        a(f'v_cndmask_b32 v{SM(0)}, v{SM(0)}, v{SM(i)+1}, s[{48+2*i}:{49+2*i}]')
    q, m = GR(0), SM(0)
    a(f'v_mul_f32 v{m}, 0x{INVB:08x}, v{m}')
    a(f'v_mul_f32 v{q}, 0x{INVB:08x}, v{q}')
    a(f'v_fma_f32 v{q}, -v{m}, v{m}, v{q}')
    a(f'v_max_f32 v{q}, 0, v{q}')
    bfround(a, q, q)
    a(f'v_add_f32 v{q}, 0x{EPSB:08x}, v{q}')
    bfround(a, q, q)
    a(f'v_sqrt_f32 v{q}, v{q}')
    a(f'v_mul_f32 v{m}, s56, v{m}')
    bfround(a, q, q)
    a(f'v_rcp_f32 v{q}, v{q}')
    a(f'v_mul_f32 v{m}, v{m}, v{q}')
    a(f'ds_write_b32 v10, v{q}')
    a(f'ds_write_b32 v10, v{m} offset:256')
    a('s_waitcnt lgkmcnt(0)')
    stamp(a, 1)
    a('s_barrier')
    a('s_cmp_ge_u32 s2, 128')
    a('s_cbranch_scc1 L_ROWPRE2')
    a('s_branch L_P2')

    lab(a, 'L_HELP')
    if OPT['codepf']:
        a('s_getpc_b64 s[76:77]')
        a.label('L_PC')
        a(f's_sub_u32 s76, s76, L_PC-{NAME}')
        a('s_subb_u32 s77, s77, 0')
        a('v_lshlrev_b32 v7, 6, v0')
        a(f'v_cmp_gt_u32 vcc, CODE_END-{NAME}, v7')
        a('s_and_saveexec_b64 s[78:79], vcc')
        a('s_cbranch_execz L_PCDONE')
        a('global_load_dword v27, v7, s[76:77]')
        a.label('L_PCDONE')
        a('s_mov_b64 exec, -1')
    a('s_and_b32 s41, s2, 7')
    a('s_lshr_b32 s42, s2, 3')
    a('v_mov_b32 v6, 0x7ffffff0')
    a('v_lshlrev_b32 v13, 4, v0')
    for r in range(28, 32):
        a(f'v_mov_b32 v{r}, -1')
    a('s_lshl_b32 s54, s2, 13')
    a(f's_add_u32 s54, s54, {WS_KEYS}')
    if OPT['warm']:
        a('s_mov_b32 s43, 0x1c72')
        a('v_mul_u32_u24 v2, s43, v0')
        a('v_lshrrev_b32 v2, 16, v2')
        a('v_mul_u32_u24 v4, 9, v2')
        a('v_sub_u32 v4, v0, v4')
        a('s_lshl_b32 s48, s42, 8')
        a('s_add_u32 s48, s48, s41')
        a('s_mul_i32 s48, s48, 1152')
        a('v_mul_u32_u24 v8, 9216, v2')
        a('v_lshl_add_u32 v8, v4, 7, v8')
        a('v_cmp_gt_u32 vcc, 288, v0')
        a('v_cndmask_b32 v8, v6, v8, vcc')
        a('v_subrev_u32 v9, 224, v0')
        a('v_cmp_gt_u32 vcc, 224, v0')
        a('v_cndmask_b32 v9, v9, v0, vcc')
        a('s_mov_b32 s49, 0x3334')
        a('v_mul_u32_u24 v10, s49, v9')
        a('v_lshrrev_b32 v10, 16, v10')
        a('v_mul_u32_u24 v11, 5, v10')
        a('v_sub_u32 v11, v9, v11')
        a('v_mul_u32_u24 v10, 1152, v10')
        a('v_lshl_add_u32 v10, v11, 7, v10')
        a('s_movk_i32 s53, 180')
        a('v_cmp_gt_u32 s[50:51], s53, v9')
        a('v_cndmask_b32 v10, v6, v10, s[50:51]')
        a('v_cndmask_b32 v11, v10, v6, vcc')
        a('v_cndmask_b32 v10, v6, v10, vcc')
        a('s_mul_i32 s49, s42, 41472')
        a('s_add_u32 s49, s49, 1152')
        a('v_lshlrev_b32 v12, 17, v0')
        a('v_cmp_gt_u32 vcc, 8, v0')
        a('v_cndmask_b32 v12, v6, v12, vcc')
        a('s_lshl_b32 s52, s42, 20')
    a('s_waitcnt lgkmcnt(0)')
    if OPT['warm']:
        srd(a, 16, 4, X_BYTES)
        srd(a, 28, 10, HID_BYTES)
        srd(a, 32, 12, HID_BYTES)
        a('buffer_load_dword v16, v10, s[28:31], s49 offen')
        a('buffer_load_dword v17, v11, s[32:35], s49 offen')
        a('buffer_load_dword v18, v8, s[16:19], s48 offen')
        srd(a, 20, 6, SEQ_BYTES)
        srd(a, 24, 8, SEQ_BYTES)
        a('buffer_load_dword v19, v12, s[20:23], s52 offen')
        a('buffer_load_dword v20, v12, s[24:27], s52 offen')
    srd(a, 60, 14, WS_FILL_END)
    a(f'buffer_store_dwordx4 v[28:31], v13, s[60:63], s54 offen{SC}')
    if OPT['usent']:
        a('s_mul_i32 s54, s2, 36864')
        for q in range(5):
            if q == 4:
                a('v_cmp_gt_u32 vcc, 256, v0')
                a('v_cndmask_b32 v13, v6, v13, vcc')
            a(f'buffer_store_dwordx4 v[28:31], v13, s[60:63], s54 offen{SC}')
            if q < 4:
                a('s_add_u32 s54, s54, 8192')
    a('v_and_b32 v0, 63, v0')
    stamp(a, 0)
    a('s_waitcnt vmcnt(0)')
    a('s_barrier')
    a('s_cmp_ge_u32 s40, 2')
    a('s_cbranch_scc1 L_FFN')
    srd(a, 16, 66, WG_BYTES)
    srd(a, 20, 68, WG_BYTES)
    srd(a, 24, 70, WG_BYTES)
    a('s_mul_i32 s43, s42, 72')
    a('s_mul_i32 s44, s40, 36')
    a('s_add_u32 s43, s43, s44')
    a('s_mul_i32 s44, s41, 9')
    a('s_add_u32 s44, s44, 8')
    a('s_mul_i32 s45, s43, 9216')
    a('s_lshl_b32 s46, s44, 7')
    a('s_add_u32 s45, s45, s46')
    a('s_mul_i32 s46, s44, 73728')
    a('s_lshl_b32 s47, s43, 7')
    a('s_add_u32 s46, s46, s47')
    a('v_mul_u32_u24 v6, 9216, v0')
    a('v_lshlrev_b32 v7, 7, v0')
    a('s_mov_b32 exec_hi, 0xf')
    a('buffer_load_dword v240, v6, s[16:19], s45 offen')
    a('buffer_load_dword v241, v6, s[20:23], s45 offen')
    a('buffer_load_dword v242, v7, s[24:27], s46 offen')
    a('s_mov_b32 exec_hi, -1')
    a('s_cmp_lg_u32 s40, 0')
    a('s_cbranch_scc1 L_FFN')
    srd(a, 76, 74, 256)
    a('v_mov_b32 v6, 0')
    a('v_mov_b32 v7, 1')
    a('s_mov_b64 exec, 1')
    a('buffer_atomic_add v7, v6, s[76:79], 0 offen')
    a('s_mov_b64 exec, -1')
    a('s_branch L_FFN')

    lab(a, 'L_P2')
    a('s_setprio 0')
    a('s_cmp_ge_u32 s2, 81')
    a('s_cbranch_scc1 L_EXIT')
    a('s_barrier')
    a('s_cmp_lt_u32 s2, 72')
    a('s_cbranch_scc1 L_FFN')
    a('s_branch L_FIN')

    XR = lambda k: 100 + k
    WR = lambda k: 120 + k
    T = lambda cls, kap: 32 + (cls * 2 + kap) * 4
    TW = lambda kap, part: 16 + (kap * 2 + part) * 4

    lab(a, 'L_ROWPRE')
    a('s_mov_b32 s3, 1')
    a('s_branch L_ROWP')
    lab(a, 'L_ROWPRE2')
    a('s_setprio 0')
    a('s_mov_b32 s3, 0')
    lab(a, 'L_ROWP')
    a('v_and_b32 v2, 15, v0')
    a('v_lshrrev_b32 v3, 4, v0')
    a('v_lshlrev_b32 v4, 4, v0')
    a('v_add_u32 v5, 1024, v4')
    a('s_and_b32 s41, s2, 31')
    a('s_lshr_b32 s42, s2, 5')
    a('s_sub_u32 s42, s42, 4')
    a('v_cmp_lt_u32 vcc, 7, v2')
    a('s_cmp_eq_u32 s41, 0')
    a('s_cbranch_scc1 L_P0')
    a('v_and_b32 v8, 7, v2')
    a('s_lshl_b32 s46, s42, 3')
    a('v_add_u32 v8, s46, v8')
    a('v_lshl_add_u32 v6, v8, 6, s41')
    a('v_sub_u32 v8, 2048, v6')
    a('v_cndmask_b32 v6, v6, v8, vcc')
    a('v_xor_b32 v7, 8, v2')
    a('s_branch L_ROWS')
    lab(a, 'L_P0')
    a('v_bfe_u32 v8, v2, 1, 2')
    a('s_lshl_b32 s46, s42, 2')
    a('v_add_u32 v8, s46, v8')
    a('v_sub_u32 v9, 32, v8')
    a('v_sub_u32 v10, 31, v8')
    a('v_cndmask_b32 v9, v9, v10, vcc')
    a('v_mov_b32 v11, 0')
    a('v_cndmask_b32 v11, v11, 32, vcc')
    a('v_cmp_eq_u32 vcc, 32, v9')
    a('v_cndmask_b32 v9, v9, 16, vcc')
    a('v_xor_b32 v7, 1, v2')
    a('v_cndmask_b32 v7, v7, v2, vcc')
    a('v_and_b32 v10, 1, v2')
    a('v_cmp_eq_u32 vcc, 1, v10')
    a('v_cndmask_b32 v8, v8, v9, vcc')
    a('v_lshl_add_u32 v6, v8, 6, v11')
    lab(a, 'L_ROWS')
    a('s_lshl_b32 s44, s40, 1')
    a('s_add_u32 s45, s44, 1')
    a('v_and_b32 v9, 1, v3')
    a('v_readlane_b32 s46, v6, s44')
    a('v_readlane_b32 s47, v6, s45')
    a('v_and_b32 v10, 31, v0')
    a('v_mul_u32_u24 v12, 36, v10')
    srd(a, 24, 4, X_BYTES)
    srd(a, 28, 64, D * 2)
    srd(a, 36, 14, WS_RANGE)
    srd(a, 32, 72, X_BYTES)
    a('s_cmp_lg_u32 s40, 7')
    a('s_cbranch_scc1 L_NOTW')
    a('v_lshrrev_b32 v8, 1, v3')
    a('v_lshlrev_b32 v8, 4, v8')
    a('v_lshl_add_u32 v8, v9, 2, v8')
    a('v_lshl_add_u32 v8, v6, 12, v8')
    srd(a, 16, 6, SEQ_BYTES)
    srd(a, 20, 8, SEQ_BYTES)
    for kap in range(2):
        for part in range(2):
            a(f'buffer_load_dwordx3 {vr(TW(kap,part),3)}, v8, s[{16+4*part}:{19+4*part}], 0 offen offset:{kap*32}')
    lab(a, 'L_NOTW')
    XP, WP = 140, 152
    a('s_mul_i32 s45, s40, 9216')
    a('s_mul_i32 s44, s41, 73728')
    a('s_add_u32 s44, s44, s45')
    a('s_lshl_b32 s56, s42, 11')
    a(f'v_add_u32 v89, {LDS_T}, v4')
    a('v_lshrrev_b32 v13, 1, v3')
    a('v_lshlrev_b32 v13, 3, v13')
    a('v_lshl_add_u32 v13, v9, 1, v13')
    a('v_bfe_u32 v11, v0, 3, 1')
    a('v_add_u32 v13, v13, v11')
    a('v_mul_u32_u24 v13, 2304, v13')
    a('v_lshl_add_u32 v13, v11, 6, v13')
    a('v_and_b32 v11, 3, v0')
    a('v_lshl_add_u32 v13, v11, 4, v13')
    a('v_bfe_u32 v11, v0, 2, 1')
    a('v_lshl_add_u32 v13, v11, 3, v13')
    a('v_xor_b32 v11, s40, v9')
    a('v_lshl_add_u32 v13, v11, 7, v13')
    a('v_xor_b32 v81, 64, v13')
    a(f'v_mul_u32_u24 v14, {R_YS}, v2')
    a('v_lshl_add_u32 v14, v3, 5, v14')
    a(f'v_mul_u32_u24 v11, {R_YS}, v7')
    a('v_lshlrev_b32 v8, 5, v3')
    a('v_sub_u32 v11, v11, v8')
    for jj in range(3):
        a(f's_add_u32 s48, s40, {6*jj}')
        a('s_lshl_b32 s49, s48, 7')
        a(f's_sub_u32 s50, s49, {9*128-4}')
        a('s_cmp_lt_u32 s48, 9')
        a('s_cselect_b32 s49, s49, s50')
        a(f's_add_u32 s50, s49, {R_Y}')
        a(f'v_add_u32 v{90+jj}, s50, v14')
        a(f's_sub_u32 s50, {R_Y + 576*4 - 24}, s49')
        a(f'v_add_u32 v{93+jj}, s50, v11')
    a('v_lshrrev_b32 v8, 5, v0')
    a('s_lshl_b32 s48, s40, 1')
    a('v_add_u32 v8, s48, v8')
    a(f'v_mul_u32_u24 v97, {R_YS}, v8')
    a(f'v_add_u32 v97, {R_Y}, v97')
    a('v_lshl_add_u32 v96, v12, 1, v97')
    a('v_mul_u32_u24 v98, 1152, v8')
    a('v_add_u32 v98, v98, v12')
    a(f'v_add_u32 v98, {R_STG}, v98')
    a('v_cmp_eq_u32 s[60:61], 16, v10')
    a('v_cmp_eq_u32 s[62:63], 0, v10')
    a('s_cmp_lg_u32 s3, 1')
    a('s_cbranch_scc1 L_NOSB')
    a('s_barrier')
    lab(a, 'L_NOSB')
    a('s_mul_i32 s48, s40, 2304')
    a(f's_add_u32 s48, s48, {R_X}')
    a('s_mul_i32 s54, s46, 1152')
    a('s_mul_i32 s55, s47, 1152')
    a('s_mov_b32 s82, s54')
    a('s_mov_b32 s83, s55')
    for hrow in range(2):
        a(f's_add_u32 m0, s48, {hrow*1152}')
        a(f'buffer_load_dwordx4 v4, s[24:27], s{54+hrow} offen lds')
        a('s_mov_b64 exec, 0xff')
        a(f'buffer_load_dwordx4 v4, s[24:27], s{54+hrow} offen offset:1024 lds')
        a('s_mov_b64 exec, -1')
    a('s_cmp_lg_u32 s40, 5')
    a('s_cbranch_scc1 L_NOWR')
    a(f's_mov_b32 m0, {R_W}')
    a('s_nop 0')
    a('buffer_load_dwordx4 v4, s[28:31], 0 offen lds')
    a('s_mov_b64 exec, 0xff')
    a('buffer_load_dwordx4 v4, s[28:31], 0 offen offset:1024 lds')
    a('s_mov_b64 exec, -1')
    a('s_waitcnt vmcnt(0)')
    lab(a, 'L_NOWR')
    a(f'v_add_u32 v15, {R_X - R_STG}, v98')
    a(f'v_add_u32 v14, {R_W}, v12')
    a('v_add_u32 v11, s48, v4')
    a('s_cmp_lg_u32 s40, 7')
    a('s_cbranch_scc1 L_NOTW2')
    a('s_mov_b32 s50, 0x05040100')
    a('s_mov_b32 s51, 0x07060302')
    a('v_cmp_gt_u32 s[52:53], 8, v2')
    a('s_waitcnt vmcnt(4)')
    for kap in range(2):
        cr, ci = TW(kap, 0), TW(kap, 1)
        a(f'v_xor_b32 v{ci}, 0x80008000, v{ci}')
        a(f'v_xor_b32 v{ci+2}, 0x80008000, v{ci+2}')
        t = 48
        a(f'v_perm_b32 v{t}, v{ci}, v{cr}, s50')
        a(f'v_perm_b32 v{t+1}, v{ci}, v{cr}, s51')
        a(f'v_perm_b32 v{t+2}, v{ci+2}, v{cr+2}, s50')
        a(f'v_perm_b32 v{t+3}, v{ci+2}, v{cr+2}, s51')
        for r in range(4):
            a(f'v_cndmask_b32 v{T(0,kap)+r}, 0, v{t+r}, s[52:53]')
            a(f'v_cndmask_b32 v{T(1,kap)+r}, v{t+r}, 0, s[52:53]')
    for cls in range(2):
        for kap in range(2):
            a(f'ds_write_b128 v89, {vr(T(cls,kap),4)} offset:{(cls*2+kap)*1024}')
    lab(a, 'L_NOTW2')
    stamp(a, 4)
    a('s_cmp_eq_u32 s3, 2')
    a('s_cbranch_scc1 L_UGO')
    a('s_cmp_lg_u32 s40, 6')
    a('s_cbranch_scc1 L_NOWC')
    wait_cleared(a, 'L_WC3')
    lab(a, 'L_NOWC')
    a('s_barrier')
    a('s_cmp_lg_u32 s40, 6')
    a('s_cbranch_scc1 L_UGO')
    a('v_lshlrev_b32 v8, 6, v0')
    a('s_mov_b32 s58, 0')
    a(f's_mov_b32 s48, {WS_UF}')
    a(f's_mov_b32 s49, {WS_UF + 4096}')
    a(f's_mov_b32 s50, {WS_UF + 8192}')
    for k in range(3):
        a(f's_mov_b64 s[{76+2*k}:{77+2*k}], -1')
    lab(a, 'L_UPOLL')
    for k in range(3):
        a(f's_or_b64 exec, s[{76+2*k}:{77+2*k}], 1')
        a(f'buffer_load_dword v{16+k}, v8, s[36:39], s{48+k} offen{SC}')
    a('s_mov_b64 exec, -1')
    a('s_add_u32 s58, s58, 1')
    a('s_waitcnt vmcnt(0)')
    for k in range(3):
        a(f'v_cmp_ne_u32 s[{76+2*k}:{77+2*k}], 0, v{16+k}')
    a(f's_cmp_lt_u32 s58, {SPIN_LIMIT}')
    a('s_cbranch_scc0 L_UGO')
    a('s_or_b64 s[52:53], s[76:77], s[78:79]')
    a('s_or_b64 s[52:53], s[52:53], s[80:81]')
    a('s_cbranch_scc0 L_UGO')
    a(f's_sleep {OPT["sleep"]}')
    a('s_branch L_UPOLL')
    lab(a, 'L_UGO')
    a('s_waitcnt lgkmcnt(0)')
    a('s_barrier')
    stamp(a, 5)
    a('s_mov_b32 s84, 0')
    a(f'v_mov_b32 v85, {LDS_CNT}')

    def u_dma():
        for n in range(9):
            a('s_add_u32 m0, s45, s56')
            a('s_add_u32 s57, s44, s56')
            a(f'buffer_load_dwordx4 v4, s[36:39], s57 offen{SC} lds')
            a('s_add_u32 s56, s56, 1024')
            a('s_cmp_eq_u32 s56, 9216')
            a('s_cselect_b32 s56, 0, s56')
    u_dma()
    a('s_waitcnt vmcnt(9)')
    for P_, ad in ((XP, 15), (WP, 14)):
        for j in range(0, 8, 2):
            a(f'ds_read2_b32 {vr(P_+j,2)}, v{ad} offset0:{j} offset1:{j+1}')
        a(f'ds_read_b32 v{P_+8}, v{ad} offset:32')
    a('s_waitcnt lgkmcnt(0)')
    for j in range(9):
        a(f'v_lshlrev_b32 v{XR(2*j)}, 16, v{XP+j}')
        a(f'v_and_b32 v{XR(2*j+1)}, 0xffff0000, v{XP+j}')
        a(f'v_lshlrev_b32 v{WR(2*j)}, 16, v{WP+j}')
        a(f'v_and_b32 v{WR(2*j+1)}, 0xffff0000, v{WP+j}')
    W2 = lambda j: vr(WR(2 * j), 2)
    a(f'v_pk_add_f32 v[86:87], {W2(0)}, {W2(1)}')
    for j in range(2, 9):
        a(f'v_pk_add_f32 v[86:87], v[86:87], {W2(j)}')
    a('v_add_f32 v99, v86, v87')
    dpp_reduce(a, 'v_add_f32', [99], 5)
    lg = Cnt(a, 'lgkmcnt', 15)
    for cls in range(2):
        for kap in range(2):
            a(f'ds_read_b128 {vr(T(cls,kap),4)}, v89 offset:{(cls*2+kap)*1024}')
    lab(a, 'L_UWAIT')
    a('v_mov_b32 v86, 0')
    a('ds_write_b32 v85, v86')
    a('s_waitcnt vmcnt(0) lgkmcnt(0)')
    a('s_barrier')
    stamp(a, 6)
    a('s_cmp_ge_u32 s40, 6')
    a('s_cbranch_scc1 L_SKIPMM')
    UF = lambda slot: 164 + 4 * slot
    ACC = lambda jj: 48 + 4 * jj
    order = [(jj, cls, kap) for cls in range(2) for kap in range(2) for jj in range(3)]

    def rd(n):
        jj, cls, kap = order[n]
        for h in range(2):
            off = kap * 36864 + h * 9216 + jj * 768
            a(f'ds_read_b64_tr_b16 {vr(UF(n)+2*h,2)}, v{13 if cls == 0 else 81} offset:{off}')
            lg.issue(n)
    for n in range(7):
        rd(n)
    for n, (jj, cls, kap) in enumerate(order):
        lg.wait(n)
        c = '0' if (cls == 0 and kap == 0) else vr(ACC(jj), 4)
        a(f'v_mfma_f32_16x16x32_bf16 {vr(ACC(jj),4)}, {vr(UF(n),4)}, {vr(T(cls,kap),4)}, {c}')
        if n + 7 < 12:
            rd(n + 7)
    if OPT['usent']:
        a('v_pk_add_f32 v[16:17], v[48:49], v[50:51]')
        a('v_pk_add_f32 v[18:19], v[52:53], v[54:55]')
        a('v_pk_add_f32 v[20:21], v[56:57], v[58:59]')
        a('v_pk_add_f32 v[16:17], v[16:17], v[18:19]')
        a('v_pk_add_f32 v[16:17], v[16:17], v[20:21]')
        a('v_cmp_u_f32 vcc, v16, v17')
        a('v_mov_b32 v86, 1')
        a('s_and_saveexec_b64 s[48:49], vcc')
        a('ds_write_b32 v85, v86')
        a('s_mov_b64 exec, -1')
    for jj in range(3):
        c = ACC(jj)
        a(f'ds_write2_b32 v{90+jj}, v{c}, v{c+1} offset0:0 offset1:2')
        a(f'ds_write2_b32 v{90+jj}, v{c+2}, v{c+3} offset0:4 offset1:6')
        a(f'ds_write2_b32 v{93+jj}, v{c+3}, v{c+2} offset0:0 offset1:2')
        a(f'ds_write2_b32 v{93+jj}, v{c+1}, v{c} offset0:4 offset1:6')
    a('s_waitcnt lgkmcnt(0)')
    lab(a, 'L_SKIPMM')
    a('s_barrier')
    stamp(a, 7)
    H = lambda k: 60 + k
    H2 = lambda j: vr(H(2 * j), 2)
    a('ds_read_b32 v86, v85')
    a('ds_read_b32 v88, v97')
    for j in range(9):
        a(f'ds_read_b64 {H2(j)}, v96 offset:{8*j}')
    a('s_waitcnt lgkmcnt(8)')
    if OPT['usent']:
        a('v_readfirstlane_b32 s48, v86')
        a('s_cmp_eq_u32 s48, 0')
        a('s_cbranch_scc1 L_UOK')
        a('s_add_u32 s84, s84, 1')
        a('s_cmp_ge_u32 s84, 200')
        a('s_cbranch_scc1 L_UOK')
        a('s_waitcnt lgkmcnt(0)')
        a('s_barrier')
        u_dma()
        a('s_branch L_UWAIT')
        lab(a, 'L_UOK')
    a(f'v_cndmask_b32 v{H(0)}, v{H(0)}, v88, s[60:61]')
    a(f'v_cndmask_b32 v{H(0)}, v{H(0)}, 0, s[62:63]')
    HP = lambda j: 16 + j
    for j in range(9):
        if j:
            a(f's_waitcnt lgkmcnt({8-j})')
        a(f'v_pk_add_f32 {H2(j)}, {H2(j)}, {vr(XR(2*j),2)}')
    for j in range(9):
        a(f'v_cvt_pk_bf16_f32 v{HP(j)}, v{H(2*j)}, v{H(2*j+1)}')
    for j in range(9):
        a(f'v_lshlrev_b32 v{H(2*j)}, 16, v{HP(j)}')
        a(f'v_and_b32 v{H(2*j+1)}, 0xffff0000, v{HP(j)}')
    a(f'v_pk_add_f32 v[26:27], {H2(0)}, {H2(1)}')
    a(f'v_pk_mul_f32 v[28:29], {H2(0)}, {H2(0)}')
    a(f'v_pk_mul_f32 v[30:31], {H2(0)}, {W2(0)}')
    for j in range(1, 9):
        if j >= 2:
            a(f'v_pk_add_f32 v[26:27], v[26:27], {H2(j)}')
        a(f'v_pk_fma_f32 v[28:29], {H2(j)}, {H2(j)}, v[28:29]')
        a(f'v_pk_fma_f32 v[30:31], {H2(j)}, {W2(j)}, v[30:31]')
    a('v_add_f32 v82, v26, v27')
    a('v_add_f32 v83, v28, v29')
    a('v_add_f32 v84, v30, v31')
    dpp_reduce(a, 'v_add_f32', [82, 83, 84], 5)
    a(f'v_mul_f32 v82, 0x{INVB:08x}, v82')
    a(f'v_mul_f32 v83, 0x{INVB:08x}, v83')
    a('v_fma_f32 v83, -v82, v82, v83')
    a('v_max_f32 v83, 0, v83')
    bfround(a, 83, 83)
    bfround(a, 82, 82)
    a(f'v_add_f32 v83, 0x{EPSB:08x}, v83')
    bfround(a, 83, 83)
    a('v_sqrt_f32 v83, v83')
    a('v_fma_f32 v84, -v82, v99, v84')
    bfround(a, 83, 83)
    a('v_rcp_f32 v83, v83')
    a('v_mul_f32 v84, v84, v83')
    a('v_mul_f32 v82, v82, v83')
    a('v_ashrrev_i32 v85, 31, v84')
    a('v_or_b32 v85, 0x80000000, v85')
    a('v_xor_b32 v85, v85, v84')
    a('v_and_b32 v85, 0xfffff800, v85')
    a('v_max_u32 v85, 0x800, v85')
    a('v_readlane_b32 s48, v83, 31')
    a('v_readlane_b32 s49, v83, 63')
    a('v_readlane_b32 s50, v82, 31')
    a('v_readlane_b32 s51, v82, 63')
    a('v_readlane_b32 s52, v85, 31')
    a('v_readlane_b32 s53, v85, 63')
    a('v_readlane_b32 s54, v84, 31')
    a('v_readlane_b32 s55, v84, 63')
    a('s_sub_u32 s56, s2, 128')
    a('s_lshl_b32 s57, s56, 4')
    a('s_lshl_b32 s58, s40, 1')
    a('s_add_u32 s57, s57, s58')
    a('s_sub_u32 s57, 2047, s57')
    a('s_or_b32 s52, s52, s57')
    a('s_sub_u32 s57, s57, 1')
    a('s_or_b32 s53, s53, s57')
    a('s_cmp_gt_u32 s52, s53')
    a('s_cselect_b32 s52, s52, s53')
    a('s_cselect_b32 s54, s54, s55')
    a('s_cselect_b32 s46, s46, s47')
    a('s_cselect_b32 s55, 0, 1')
    a('s_lshl_b32 s58, s40, 2')
    a(f's_add_u32 s58, s58, {LDS_C}')
    a('v_mov_b32 v86, s58')
    a('v_mov_b32 v87, s52')
    a('ds_write_b32 v86, v87')
    a('v_mov_b32 v80, s48')
    a('v_mov_b32 v78, s50')
    a('s_mov_b32 exec_lo, 0')
    a('v_mov_b32 v80, s49')
    a('v_mov_b32 v78, s51')
    a('s_mov_b32 exec_lo, -1')
    HN = lambda k: 100 + k
    NP = lambda j: 140 + j
    for j in range(9):
        a(f'v_pk_fma_f32 {vr(HN(2*j),2)}, {H2(j)}, v[80:81], v[78:79] op_sel_hi:[1,0,0] neg_lo:[0,0,1] neg_hi:[0,0,1]')
    for j in range(9):
        a(f'v_cvt_pk_bf16_f32 v{NP(j)}, v{HN(2*j)}, v{HN(2*j+1)}')

    def stage(addr, P, off):
        o = off // 4
        for j in range(0, 8, 2):
            a(f'ds_write2_b32 v{addr}, v{P(j)}, v{P(j+1)} offset0:{o+j} offset1:{o+j+1}')
        a(f'ds_write_b32 v{addr}, v{P(8)} offset:{off+32}')
    stage(98, NP, 0)
    a('v_and_b32 v86, 7, v0')
    a('v_lshlrev_b32 v86, 2, v86')
    a(f'v_add_u32 v86, {LDS_C}, v86')
    a('v_not_b32 v87, v87')
    a('s_lshl_b32 s58, s40, 1')
    a('s_add_u32 s58, s58, s55')
    a('s_mul_i32 s58, s58, 1152')
    a(f's_add_u32 s58, s58, {R_STG}')
    a('v_add_u32 v88, s58, v4')
    a('s_waitcnt lgkmcnt(0)')
    stamp(a, 8)
    a('s_setprio 3')
    a('s_barrier')
    stamp(a, 9)
    a('ds_read_b32 v85, v86')
    a('ds_read_b128 v[32:35], v88')
    a('ds_read_b128 v[36:39], v88 offset:1024')
    a('s_mul_i32 s57, s56, 1152')
    a(f's_add_u32 s57, s57, {WS_HN}')
    a('s_lshl_b32 s59, s56, 7')
    a(f's_add_u32 s59, s59, {WS_KEYS}')
    a('v_mov_b32 v86, 0')
    a('s_waitcnt lgkmcnt(2)')
    dpp_reduce(a, 'v_max_u32', [85], 3)
    a('v_readlane_b32 s58, v85, 7')
    a('s_cmp_lg_u32 s58, s52')
    a('s_cbranch_scc1 L_NOTWIN')
    a('s_waitcnt lgkmcnt(0)')
    a(f'buffer_store_dwordx4 v[32:35], v4, s[36:39], s57 offen{SC}')
    a('s_mov_b64 exec, 0xff')
    a(f'buffer_store_dwordx4 v[36:39], v5, s[36:39], s57 offen{SC}')
    a('s_mov_b64 exec, 1')
    a(f'buffer_store_dword v87, v86, s[36:39], s59 offen{SC}')
    a('s_mov_b64 exec, -1')
    stamp(a, 10)
    lab(a, 'L_NOTWIN')
    a('s_setprio 0')
    OP = lambda j: 152 + j
    for j in range(9):
        a(f'v_lshlrev_b32 v{HN(2*j)}, 16, v{NP(j)}')
        a(f'v_and_b32 v{HN(2*j+1)}, 0xffff0000, v{NP(j)}')
    for j in range(9):
        a(f'v_pk_add_f32 {vr(HN(2*j),2)}, {vr(HN(2*j),2)}, {H2(j)}')
    for j in range(9):
        a(f'v_cvt_pk_bf16_f32 v{OP(j)}, v{HN(2*j)}, v{HN(2*j+1)}')

    stage(15, OP, 0)
    a('s_waitcnt lgkmcnt(0)')
    a('ds_read_b128 v[40:43], v11')
    a('ds_read_b128 v[44:47], v11 offset:1024')
    a('ds_read_b128 v[48:51], v11 offset:1152')
    a('ds_read_b128 v[52:55], v11 offset:2176')

    def out_store(mods):
        a('s_waitcnt lgkmcnt(0)')
        a(f'buffer_store_dwordx4 v[40:43], v4, s[32:35], s82 offen{mods}')
        a(f'buffer_store_dwordx4 v[48:51], v4, s[32:35], s83 offen{mods}')
        a('s_mov_b64 exec, 0xff')
        a(f'buffer_store_dwordx4 v[44:47], v5, s[32:35], s82 offen{mods}')
        a(f'buffer_store_dwordx4 v[52:55], v5, s[32:35], s83 offen{mods}')
        a('s_mov_b64 exec, -1')
    a('s_cmp_lg_u32 s58, s52')
    a('s_cbranch_scc1 L_PLAIN')
    out_store(SC)
    a('s_mul_i32 s57, s56, 1280')
    a(f's_add_u32 s57, s57, {WS_H}')
    a('v_mov_b32 v88, s54')
    a('v_mov_b32 v89, s46')
    a('s_cmp_eq_u32 s55, 0')
    a('s_cselect_b32 exec_lo, -1, 0')
    a('s_cselect_b32 exec_hi, 0, -1')
    a(f'buffer_store_dwordx4 {vr(HP(0),4)}, v12, s[36:39], s57 offen{SC}')
    a(f'buffer_store_dwordx4 {vr(HP(4),4)}, v12, s[36:39], s57 offen offset:16{SC}')
    a(f'buffer_store_dword v{HP(8)}, v12, s[36:39], s57 offen offset:32{SC}')
    a('s_mov_b64 exec, 1')
    a(f'buffer_store_dwordx2 v[88:89], v86, s[36:39], s57 offen offset:1152{SC}')
    a('s_waitcnt vmcnt(0)')
    a(f'buffer_store_dword v86, v86, s[36:39], s59 offen offset:64{SC}')
    a('s_mov_b64 exec, -1')
    a('s_branch L_EXIT')
    lab(a, 'L_PLAIN')
    out_store({0: '', 1: SC, 2: ' nt'}[OPT['outsc']])
    a('s_branch L_EXIT')

    def key_poll(pre):
        ND = OPT['depth']
        KS = lambda j: 32 + 2 * j
        a(f's_mov_b32 s56, {WS_KEYS}')
        a(f's_mov_b32 s55, {WS_KEYS + 8192}')
        a('s_mov_b32 s58, 0')
        a('s_mov_b32 s45, -1')
        a('v_lshlrev_b32 v8, 7, v0')
        for r in range(28, 32):
            a(f'v_mov_b32 v{r}, 0')
        for j in range(ND):
            a(f'v_mov_b32 v{KS(j)}, -1')
            a(f'v_mov_b32 v{KS(j)+1}, -1')
        lab(a, pre + 'SLOW')
        a(f'buffer_load_dword v16, v8, s[36:39], s56 offen{SC}')
        a(f'buffer_load_dword v17, v8, s[36:39], s55 offen{SC}')
        a('s_add_u32 s58, s58, 1')
        a('s_waitcnt vmcnt(0)')
        a('v_min_u32 v20, v16, v17')
        a('v_cmp_ne_u32 vcc, -1, v20')
        a(f's_cmp_lt_u32 s58, {SPIN_LIMIT}')
        a(f's_cbranch_scc0 {pre}FAST')
        a('s_cmp_lg_u64 vcc, 0')
        a(f's_cbranch_scc1 {pre}FAST')
        a(f's_sleep {OPT["slow"]}')
        a(f's_branch {pre}SLOW')
        lab(a, pre + 'FAST')

        def scan():
            a('v_min_u32 v20, v16, v17')
            a('v_cmp_eq_u32 s[50:51], -1, v16')
            a('v_cmp_eq_u32 s[42:43], -1, v17')
            dpp_reduce(a, 'v_min_u32', [20])
            a('v_readlane_b32 s57, v20, 63')
            a('s_and_b32 s46, s57, 0x7ff')
            a('s_lshr_b32 s46, s46, 4')
            a('s_mul_i32 s47, s46, 1152')
            a(f's_add_u32 s47, s47, {WS_HN}')

        def issue(j):
            a('s_or_b64 exec, s[50:51], 1')
            a(f'buffer_load_dword v{KS(j)}, v8, s[36:39], s56 offen{SC}')
            a('s_or_b64 exec, s[42:43], 1')
            a(f'buffer_load_dword v{KS(j)+1}, v8, s[36:39], s55 offen{SC}')
            a('s_cmp_lg_u32 s45, s57')
            a('s_cselect_b64 exec, -1, 1')
            a(f'buffer_load_dwordx4 v[24:27], v4, s[36:39], s47 offen{SC}')
            a('s_cselect_b64 exec, 0xff, 1')
            a(f'buffer_load_dwordx4 v[28:31], v5, s[36:39], s47 offen{SC}')
            a('s_mov_b64 exec, -1')
            a('s_cselect_b32 s44, 0, s44')
            a('s_add_u32 s44, s44, 1')
            a('s_mov_b32 s45, s57')
        a('s_mov_b32 s44, 0')
        scan()
        for j in range(ND):
            issue(j)
            if j < ND - 1:
                a(f's_sleep {OPT["gap"]}')
        lab(a, pre + 'LOOP')
        for j in range(ND):
            a(f's_waitcnt vmcnt({4*(ND-1)})')
            a(f'v_min_u32 v16, v16, v{KS(j)}')
            a(f'v_min_u32 v17, v17, v{KS(j)+1}')
            scan()
            a('s_or_b64 vcc, s[50:51], s[42:43]')
            a(f's_cbranch_scc0 {pre}ALLK')
            issue(j)
        a('s_add_u32 s58, s58, 1')
        a(f's_cmp_lt_u32 s58, {SPIN_LIMIT}')
        a(f's_cbranch_scc1 {pre}LOOP')
        lab(a, pre + 'ALLK')
        a('s_cmp_lg_u32 s45, s57')
        a(f's_cbranch_scc1 {pre}ROWLD')
        a(f's_cmp_ge_u32 s44, {ND}')
        a(f's_cbranch_scc1 {pre}CHK2')
        a(f's_branch {pre}CHK')
        lab(a, pre + 'ROWLD')
        a(f'buffer_load_dwordx4 v[24:27], v4, s[36:39], s47 offen{SC}')
        a('s_mov_b64 exec, 0xff')
        a(f'buffer_load_dwordx4 v[28:31], v5, s[36:39], s47 offen{SC}')
        a('s_mov_b64 exec, -1')
        lab(a, pre + 'CHK')
        a('s_waitcnt vmcnt(0)')
        lab(a, pre + 'CHK2')
        a('s_add_u32 s58, s58, 1')
        a('v_max3_u32 v20, v24, v25, v26')
        a('v_max3_u32 v21, v27, v28, v29')
        a('v_max3_u32 v20, v20, v30, v31')
        a('v_max_u32 v20, v20, v21')
        a('v_cmp_eq_u32 vcc, -1, v20')
        a(f's_cmp_lt_u32 s58, {2*SPIN_LIMIT}')
        a(f's_cbranch_scc0 {pre}GOT')
        a('s_cmp_eq_u64 vcc, 0')
        a(f's_cbranch_scc0 {pre}ROWLD')
        lab(a, pre + 'GOT')

    lab(a, 'L_FFN')
    a('v_and_b32 v2, 15, v0')
    a('v_lshrrev_b32 v3, 4, v0')
    a('v_lshlrev_b32 v4, 4, v0')
    a('v_add_u32 v5, 1024, v4')
    a('s_and_b32 s3, s2, 7')
    a('s_mul_i32 s3, s3, 9')
    a('s_lshr_b32 s41, s2, 3')
    a('s_add_u32 s3, s3, s41')
    srd(a, 16, 66, WG_BYTES)
    srd(a, 20, 68, WG_BYTES)
    srd(a, 24, 70, WG_BYTES)
    srd(a, 36, 14, WS_RANGE)
    a('v_lshrrev_b32 v8, 3, v0')
    a('v_and_b32 v9, 7, v0')
    a('v_and_b32 v10, 2, v8')
    a('v_xor_b32 v9, v9, v10')
    a('s_and_b32 s58, s40, 1')
    a('s_lshl_b32 s58, s58, 2')
    a('v_xor_b32 v9, s58, v9')
    a('v_lshlrev_b32 v9, 4, v9')
    a('v_mul_u32_u24 v15, 9216, v8')
    a('v_add_u32 v15, v15, v9')
    a('v_xor_b32 v14, 64, v15')
    a('v_mul_u32_u24 v11, 1152, v8')
    a('v_add_u32 v11, v11, v9')
    a('s_mul_i32 s59, s40, 663552')
    a('s_lshl_b32 s58, s3, 7')
    a('s_add_u32 s59, s59, s58')
    a('s_mul_i32 s55, s40, 9216')
    for q in range(9):
        for mat in range(2):
            a(f's_add_u32 m0, s55, {mat*73728 + q*1024}')
            a(f'buffer_load_dwordx4 v{15 - (q & 1)}, s[{16+4*mat}:{19+4*mat}], s59 offen lds')
        if q < 8:
            a('s_add_u32 s59, s59, 73728')
    a('s_mul_i32 s59, s3, 73728')
    a('s_add_u32 s59, s59, s55')
    a('v_lshlrev_b32 v6, 7, v0')
    a('buffer_load_dword v243, v6, s[24:27], s59 offen')
    a('v_bfe_u32 v13, v0, 2, 2')
    a('v_lshrrev_b32 v10, 1, v13')
    a('v_and_b32 v6, 1, v3')
    a('v_lshl_add_u32 v10, v6, 1, v10')
    a('s_and_b32 s57, s40, 3')
    a('s_lshr_b32 s56, s40, 2')
    a('v_xor_b32 v10, s57, v10')
    a('v_lshlrev_b32 v10, 5, v10')
    a('v_and_b32 v6, 3, v0')
    a('v_lshl_add_u32 v10, v6, 3, v10')
    a('v_lshl_add_u32 v10, v13, 7, v10')
    a('v_mul_u32_u24 v14, 9216, v3')
    a('v_add_u32 v14, v14, v10')
    a('s_lshl_b32 s58, s56, 10')
    a('v_add_u32 v14, s58, v14')
    a('v_lshl_add_u32 v13, v3, 10, v10')
    a('s_mul_i32 s54, s56, 36864')
    a('v_add_u32 v13, s54, v13')
    a('v_add_u32 v12, 73728, v13')
    a('s_waitcnt vmcnt(0)')
    a('s_barrier')
    WF = lambda mat, k: 64 + (k * 2 + mat) * 4
    for k in range(9):
        for mat in range(2):
            for h in range(2):
                a(f'ds_read_b64_tr_b16 {vr(WF(mat,k)+2*h,2)}, v{13 if mat == 0 else 12} offset:{k*4096 + h*512}')
        if k % 3 == 2:
            a('s_waitcnt lgkmcnt(0)')
    a('s_barrier')
    for c in range(9):
        a(f's_add_u32 m0, s55, {c*1024 - c*128}')
        a(f'buffer_load_dwordx4 v11, s[24:27], s59 offen offset:{c*128} lds')
    a('v_cmp_eq_u32 s[48:49], 1, v3')
    a('v_cmp_eq_u32 s[52:53], 2, v3')
    a('v_cmp_eq_u32 s[60:61], 3, v3')
    a('s_mul_i32 s58, s56, 576')
    a(f's_add_u32 s58, s58, {LDS_XS}')
    a('v_lshl_add_u32 v6, v3, 4, s58')
    a('s_lshl_b32 s58, s56, 9')
    a('s_lshl_b32 s54, s57, 6')
    a('s_add_u32 s58, s58, s54')
    a(f's_add_u32 s58, s58, {LDS_RED}')
    a('v_lshl_add_u32 v7, v2, 2, s58')
    a('v_lshlrev_b32 v9, 2, v0')
    a(f'v_add_u32 v10, {LDS_RED}, v9')
    a('s_lshl_b32 s58, s40, 7')
    a(f's_add_u32 s58, s58, {LDS_ACT}')
    a('v_lshl_add_u32 v11, v0, 1, s58')
    a('v_lshl_add_u32 v12, v3, 4, s58')
    a('s_mul_i32 s62, s3, 2304')
    a(f's_add_u32 s62, s62, {WS_PART}')
    a('s_lshl_b32 s58, s40, 6')
    a('s_add_u32 s63, s62, s58')
    a('s_add_u32 s63, s63, 2048')
    a('s_lshl_b32 s58, s40, 8')
    a('s_add_u32 s62, s62, s58')
    a('s_waitcnt vmcnt(0)')
    a('s_barrier')
    DF = lambda kap, m: 136 + (m * 2 + kap) * 4
    for m in range(5):
        for kap in range(2):
            for h in range(2):
                a(f'ds_read_b64_tr_b16 {vr(DF(kap,m)+2*h,2)}, v14 offset:{kap*36864 + h*512 + m*2048}')
        if m % 2 == 1:
            a('s_waitcnt lgkmcnt(0)')
    a('s_waitcnt lgkmcnt(0)')
    stamp(a, 11)
    a('s_cmp_lg_u32 s40, 7')
    a('s_cbranch_scc1 L_FWAIT')
    wait_cleared(a, 'L_WC2')
    key_poll('L_K')
    a(f'v_add_u32 v8, {LDS_XS}, v4')
    a('ds_write_b128 v8, v[24:27]')
    a('s_mov_b64 exec, 0xff')
    a('ds_write_b128 v8, v[28:31] offset:1024')
    a('s_mov_b64 exec, -1')
    a('s_waitcnt lgkmcnt(0)')
    lab(a, 'L_FWAIT')
    a('s_barrier')
    stamp(a, 12)
    XF = lambda k: 176 + 4 * k
    for k in range(9):
        a(f'ds_read_b128 {vr(XF(k),4)}, v6 offset:{k*64}')
    for k in range(9):
        a(f's_waitcnt lgkmcnt({8-k})')
        for mat in range(2):
            c = '0' if k == 0 else vr(52 + 4 * mat, 4)
            a(f'v_mfma_f32_16x16x32_bf16 {vr(52+4*mat,4)}, {vr(XF(k),4)}, {vr(WF(mat,k),4)}, {c}')
    a('s_mov_b64 exec, 0xffff')
    a('ds_write2st64_b32 v7, v52, v56 offset0:0 offset1:1')
    a('s_mov_b64 exec, -1')
    a('s_waitcnt lgkmcnt(0)')
    a('s_barrier')
    stamp(a, 13)
    a('ds_read2st64_b32 v[16:17], v10 offset0:0 offset1:1')
    a('ds_read2st64_b32 v[18:19], v10 offset0:2 offset1:3')
    a('s_waitcnt vmcnt(0) lgkmcnt(0)')
    a('v_pk_add_f32 v[16:17], v[16:17], v[18:19]')
    a('v_cvt_pk_bf16_f32 v18, v16, v17')
    a('v_lshlrev_b32 v16, 16, v18')
    a('v_and_b32 v17, 0xffff0000, v18')
    a('v_mul_f32 v19, 0xbfb8aa3b, v16')
    a('v_exp_f32 v19, v19')
    a('v_add_f32 v19, 1.0, v19')
    a('v_rcp_f32 v19, v19')
    a('v_mul_f32 v19, v19, v16')
    bfround(a, 19, 19)
    a('v_mul_f32 v19, v19, v17')
    a('v_cvt_pk_bf16_f32 v19, v19, v19')
    a('ds_write_b16 v11, v19')
    a('s_waitcnt lgkmcnt(0)')
    a('ds_read_b128 v[20:23], v12')
    a('ds_read_b128 v[24:27], v12 offset:64')
    DA = lambda m: 28 + 4 * m
    for kap in range(2):
        a(f's_waitcnt lgkmcnt({1-kap})')
        for m in range(5):
            c = '0' if kap == 0 else vr(DA(m), 4)
            a(f'v_mfma_f32_16x16x32_bf16 {vr(DA(m),4)}, {vr(20+4*kap,4)}, {vr(DF(kap,m),4)}, {c}')
    a('v_mov_b32 v17, 0x7fc00000')
    a(f'v_cndmask_b32 v16, v{DA(0)}, v{DA(1)}, s[48:49]')
    a(f'v_cndmask_b32 v16, v16, v{DA(2)}, s[52:53]')
    a(f'v_cndmask_b32 v16, v16, v{DA(3)}, s[60:61]')
    a('v_cmp_eq_u32 vcc, -1, v16')
    a('v_cndmask_b32 v16, v16, v17, vcc')
    a(f'buffer_store_dword v16, v9, s[36:39], s62 offen{SC}')
    a('s_cmp_ge_u32 s40, 4')
    a('s_cbranch_scc1 L_FDONE')
    a(f'v_cmp_eq_u32 vcc, -1, v{DA(4)}')
    a(f'v_cndmask_b32 v18, v{DA(4)}, v17, vcc')
    a('s_mov_b64 exec, 0xffff')
    a(f'buffer_store_dword v18, v9, s[36:39], s63 offen{SC}')
    a('s_mov_b64 exec, -1')
    lab(a, 'L_FDONE')
    stamp(a, 14)
    a('s_branch L_EXIT')

    lab(a, 'L_FIN')
    a('v_and_b32 v2, 15, v0')
    a('v_lshrrev_b32 v3, 4, v0')
    a('v_lshlrev_b32 v4, 4, v0')
    a('v_add_u32 v5, 1024, v4')
    a('v_lshlrev_b32 v9, 2, v0')
    srd(a, 36, 14, WS_RANGE)
    a('s_sub_u32 s42, s2, 72')
    a('s_mul_i32 s41, s40, 20736')
    a('s_lshl_b32 s43, s42, 8')
    a('s_add_u32 s41, s41, s43')
    a(f's_add_u32 s41, s41, {WS_PART}')
    a('s_lshl_b32 s45, s40, 8')
    a('v_add_u32 v10, s45, v9')
    srd(a, 32, 72, X_BYTES)
    a('s_lshl_b32 s44, s42, 4')
    a('s_cmp_lt_u32 s42, 8')
    a('s_cselect_b32 s43, 7, 4')
    a('s_cselect_b32 s44, s44, 512')
    a('v_lshlrev_b32 v12, s43, v3')
    a('v_add3_u32 v12, v12, v2, s44')
    a('v_lshlrev_b32 v12, 1, v12')
    a('v_mov_b32 v63, 0')
    a('s_cmp_lg_u32 s40, 7')
    a('s_cbranch_scc1 L_NWAIT')
    wait_cleared(a, 'L_WC4')
    key_poll('L_N')
    lab(a, 'L_NWAIT')
    a('s_barrier')
    stamp(a, 12)
    a('s_cmp_lg_u32 s40, 7')
    a('s_cbranch_scc1 L_PP')
    a('s_lshl_b32 s48, s46, 7')
    a(f's_add_u32 s48, s48, {WS_KEYS + 64}')
    a('v_mov_b32 v8, 0')
    a('s_mov_b32 s58, 0')
    lab(a, 'L_FPOLL')
    a(f'buffer_load_dword v11, v8, s[36:39], s48 offen{SC}')
    a('s_add_u32 s58, s58, 1')
    a('s_waitcnt vmcnt(0)')
    a('v_readfirstlane_b32 s44, v11')
    a('s_cmp_lg_u32 s44, -1')
    a('s_cbranch_scc1 L_FGOT2')
    a(f's_cmp_lt_u32 s58, {SPIN_LIMIT}')
    a('s_cbranch_scc1 L_FPOLL')
    lab(a, 'L_FGOT2')
    a('s_mul_i32 s45, s46, 1280')
    a(f's_add_u32 s45, s45, {WS_H}')
    a('v_mov_b32 v60, 0')
    a('v_mov_b32 v61, 0')
    a(f'buffer_load_short_d16_hi v60, v12, s[36:39], s47 offen{SC}')
    a(f'buffer_load_short_d16_hi v61, v12, s[36:39], s45 offen{SC}')
    a(f'buffer_load_dwordx2 v[62:63], v8, s[36:39], s45 offen offset:1152{SC}')
    lab(a, 'L_PP')
    a('s_mov_b32 s58, 0')
    lab(a, 'L_PPOLL')
    a('s_mov_b32 s43, s41')
    P = lambda p: 32 + p
    for p in range(9):
        a(f'buffer_load_dword v{P(p)}, v9, s[36:39], s43 offen{SC}')
        if p < 8:
            a('s_add_u32 s43, s43, 2304')
    a('s_add_u32 s58, s58, 1')
    a('s_waitcnt vmcnt(0)')
    a(f'v_max3_u32 v16, v{P(0)}, v{P(1)}, v{P(2)}')
    a(f'v_max3_u32 v17, v{P(3)}, v{P(4)}, v{P(5)}')
    a(f'v_max3_u32 v18, v{P(6)}, v{P(7)}, v{P(8)}')
    a('v_max3_u32 v16, v16, v17, v18')
    a('v_cmp_eq_u32 vcc, -1, v16')
    a(f'v_pk_add_f32 v[18:19], {vr(P(0),2)}, {vr(P(2),2)}')
    a(f'v_pk_add_f32 v[20:21], {vr(P(4),2)}, {vr(P(6),2)}')
    a('s_cmp_eq_u64 vcc, 0')
    a('s_cbranch_scc1 L_PGOT')
    a(f's_cmp_lt_u32 s58, {SPIN_LIMIT}')
    a('s_cbranch_scc1 L_PPOLL')
    lab(a, 'L_PGOT')
    a('v_pk_add_f32 v[18:19], v[18:19], v[20:21]')
    a(f'v_add_f32 v18, v18, v{P(8)}')
    a('v_add_f32 v18, v18, v19')
    a('ds_write_b32 v10, v18')
    a('s_waitcnt lgkmcnt(0)')
    stamp(a, 13)
    a('s_barrier')
    a('s_cmp_lg_u32 s40, 7')
    a('s_cbranch_scc1 L_EXIT')
    for w in range(4):
        a(f'ds_read2st64_b32 {vr(16+2*w,2)}, v9 offset0:{2*w} offset1:{2*w+1}')
    bfround(a, 62, 62)
    a('v_mul_f32 v30, 0xbfb8aa3b, v62')
    a('v_exp_f32 v30, v30')
    a('v_mul_u32_u24 v63, 1152, v63')
    a('v_add_f32 v30, 1.0, v30')
    a('v_rcp_f32 v30, v30')
    a('v_add_u32 v63, v63, v12')
    bfround(a, 30, 30)
    a('s_waitcnt lgkmcnt(0)')
    a('v_pk_add_f32 v[16:17], v[16:17], v[18:19]')
    a('v_pk_add_f32 v[20:21], v[20:21], v[22:23]')
    a('v_pk_add_f32 v[16:17], v[16:17], v[20:21]')
    a('v_add_f32 v16, v16, v17')
    bfround(a, 16, 16)
    a('v_mul_f32 v16, v16, v30')
    bfround(a, 16, 16)
    a('v_add_f32 v16, v16, v60')
    bfround(a, 16, 16)
    a('v_add_f32 v16, v16, v61')
    a('v_cvt_pk_bf16_f32 v16, v16, v16')
    a('buffer_store_short v16, v63, s[32:35], 0 offen')
    stamp(a, 14)
    lab(a, 'L_EXIT')
    if STAMP:
        a('s_waitcnt vmcnt(0)')
        stamp(a, 15)
        stamp_flush(a)
    lab(a, 'L_END')
    a('s_endpgm')
    a.label('CODE_END')


def main(path):
    a = Asm()
    if OPT['aslist']:
        a.raw(f'; @launch kernel={NAME} grid=(256,1,1) block=(512,1,1) lds={LDS_TOTAL}')
    else:
        a.raw(f'; @launch grid=(256,1,1) block=(512,1,1) lds={LDS_TOTAL}')
    a.raw('.amdgcn_target "amdgcn-amd-amdhsa--gfx950"')
    a.raw('.text')
    gen(a)
    a.raw('.section .rodata,"a"')
    a.raw(f'''.p2align 6
.amdhsa_kernel {NAME}
  .amdhsa_next_free_vgpr 256
  .amdhsa_next_free_sgpr {100 if STAMP else 88}
  .amdhsa_accum_offset 256
  .amdhsa_group_segment_fixed_size 0
  .amdhsa_kernarg_size 104
  .amdhsa_user_sgpr_count 2
  .amdhsa_user_sgpr_kernarg_segment_ptr 1
  .amdhsa_system_sgpr_workgroup_id_x 1
.end_amdhsa_kernel
''')
    open(path, 'w').write(a.text())


if __name__ == '__main__':
    for arg in sys.argv[2:]:
        if arg == 'stamp':
            STAMP = True
        else:
            k, v = arg.split('=')
            OPT[k] = int(v)
    main(sys.argv[1])
```

```python
import sys
import struct
from asmdsl import Asm, Cnt, vr, sr

NAME = 'sequential_preLN__spectral_fnet__moe_arch_mod__prompt_kernel'
S, D, F = 2048, 576, 4608
X_BYTES = S * D * 2
SEQ_BYTES = S * S * 2
HID_BYTES = D * D * 2
WG_BYTES = D * F * 2
WS_U = 0
WS_KEYS = 0x240000
WS_UF = WS_KEYS + 16384
WS_PART = WS_UF + 192 * 64
WS_HN = WS_PART + 72 * 2304
WS_FILL_END = WS_HN + 128 * 1152
WS_H = 0x2a0000
WS_RANGE = 0x900000
WS_STAMP = 0x800000
assert WS_FILL_END <= WS_H and WS_FILL_END - WS_KEYS <= 64 * 8192

STAMP = False
OPT = dict(ahead=2, warm=1, hwait=1, hfirst=0, wpf=0, wpf_at=3, usent=0, outsc=1, depth=3, slow=6, gap=3, codepf=1, sleep=1, aslist=0)
SC = ' sc1'
SPIN_LIMIT = 400000
NCLR = 16
INVB = struct.unpack('<I', struct.pack('<f', 1.0 / 576.0))[0]
EPSB = struct.unpack('<I', struct.pack('<f', 1e-5))[0]

P1_B = 73728
P1_F = 135168
P1_ST = 151552
LDS_T = 152064
LDS_C = LDS_T + 4096
LDS_XS = 152064
LDS_RED = LDS_XS + 1280
LDS_ACT = LDS_RED + 1024
LDS_CNT = LDS_C + 32
LDS_TOTAL = LDS_C + 64
R_Y = 73728
R_YS = 2312
R_STG = R_Y + 16 * R_YS
R_X = R_STG + 16 * 1152 + 1024
R_W = R_X + 16 * 1152
assert R_W + 1152 + 1024 <= P1_ST
GROUPS = [(0, 0, 0), (1, 0, 5), (None, 0, 1), (2, 0, 6), (None, 0, 2), (3, 0, 7), (None, 0, 3), (4, 1, 8), (None, 0, 4)]
STAGES = [[0], [1], [2, 3], [4, 5], [6, 7], [8]]


def srd(a, d, b, nbytes):
    a(f's_mov_b32 s{d}, s{b}')
    a(f's_mov_b32 s{d+1}, s{b+1}')
    a(f's_mov_b32 s{d+2}, {nbytes}')
    a(f's_mov_b32 s{d+3}, 0x00020000')


def stamp(a, k):
    if STAMP:
        if k == 0:
            a('v_mov_b32 v1, 0')
        a('s_memrealtime s[92:93]')
        a('s_waitcnt lgkmcnt(0)')
        a(f'v_writelane_b32 v1, s92, {k}')


def stamp_flush(a):
    if not STAMP:
        return
    a('s_mov_b32 exec_lo, -1')
    a('s_mov_b32 exec_hi, 0')
    srd(a, 96, 14, WS_RANGE)
    a('s_lshl_b32 s95, s2, 3')
    a('s_add_u32 s95, s95, s40')
    a('s_lshl_b32 s95, s95, 7')
    a(f's_add_u32 s95, s95, {WS_STAMP}')
    a('v_lshlrev_b32 v0, 2, v0')
    a('buffer_store_dword v1, v0, s[96:99], s95 offen')


def bfround(a, dst, src):
    a(f'v_cvt_pk_bf16_f32 v{dst}, v{src}, v{src}')
    a(f'v_and_b32 v{dst}, 0xffff0000, v{dst}')


def dpp_reduce(a, op, regs, upto=6):
    ms = [('row_shr:1', '0xf'), ('row_shr:2', '0xf'), ('row_shr:4', '0xf'), ('row_shr:8', '0xf'), ('row_bcast:15', '0xa'), ('row_bcast:31', '0xc')]
    for m, rm in ms[:upto]:
        for r in regs:
            a(f'{op}_dpp v{r}, v{r}, v{r} {m} row_mask:{rm} bank_mask:0xf')


def lab(a, name):
    a.label(name)
    a.flush_hist()


def wait_cleared(a, name):
    srd(a, 76, 74, 256)
    a('v_mov_b32 v250, 0')
    a('s_mov_b32 s58, 0')
    lab(a, name)
    a(f'buffer_load_dword v251, v250, s[76:79], 0 offen{SC}')
    a('s_add_u32 s58, s58, 1')
    a('s_waitcnt vmcnt(0)')
    a('v_readfirstlane_b32 s59, v251')
    a(f's_cmp_ge_u32 s59, {NCLR}')
    a(f's_cbranch_scc1 {name}_OK')
    a('s_sleep 8')
    a(f's_cmp_lt_u32 s58, {SPIN_LIMIT}')
    a(f's_cbranch_scc1 {name}')
    lab(a, name + '_OK')


def gen(a):
    a.raw(f'.globl {NAME}')
    a.raw('.p2align 8')
    a.raw(f'.type {NAME},@function')
    lab(a, NAME)
    a('s_cmp_ge_u32 s2, 256')
    a('s_cbranch_scc1 L_END')
    a('s_load_dwordx8 s[4:11], s[0:1], 0')
    a('s_load_dwordx2 s[12:13], s[0:1], 32')
    a('s_load_dwordx2 s[14:15], s[0:1], 96')
    a('s_load_dwordx8 s[64:71], s[0:1], 48')
    a('s_load_dwordx4 s[72:75], s[0:1], 80')
    a('v_lshrrev_b32 v1, 6, v0')
    a('v_readfirstlane_b32 s40, v1')
    def helper_code():
        lab(a, 'L_HELP')
        a(f's_cmp_ge_u32 s2, {NCLR}')
        a('s_cbranch_scc1 L_HELP2')
        NF = (WS_FILL_END - WS_KEYS + NCLR * 8192 - 1) // (NCLR * 8192)
        a('v_lshlrev_b32 v13, 4, v0')
        for r in range(28, 32):
            a(f'v_mov_b32 v{r}, -1')
        a(f's_mul_i32 s54, s2, {NF*8192}')
        a(f's_add_u32 s54, s54, {WS_KEYS}')
        a(f's_mov_b32 s62, {WS_FILL_END}')
        a('s_mov_b32 s63, 0x00020000')
        a('v_mov_b32 v6, 0')
        a('v_mov_b32 v7, 1')
        a('s_waitcnt lgkmcnt(0)')
        a('s_mov_b32 s60, s14')
        a('s_mov_b32 s61, s15')
        for q in range(NF):
            a(f'buffer_store_dwordx4 v[28:31], v13, s[60:63], s54 offen{SC}')
            if q < NF - 1:
                a('s_add_u32 s54, s54, 8192')
        srd(a, 76, 74, 256)
        a('v_and_b32 v0, 63, v0')
        a('s_and_b32 s41, s2, 7')
        a('s_lshr_b32 s42, s2, 3')
        a('s_waitcnt vmcnt(0)')
        a('s_barrier')
        a('s_cmp_lg_u32 s40, 7')
        a('s_cbranch_scc1 L_HELP4')
        a('s_mov_b64 exec, 1')
        a('buffer_atomic_add v7, v6, s[76:79], 0 offen')
        a('s_mov_b64 exec, -1')
        a('s_branch L_HELP4')
        lab(a, 'L_HELP2')
        a('v_and_b32 v0, 63, v0')
        a('s_and_b32 s41, s2, 7')
        a('s_lshr_b32 s42, s2, 3')
        a('s_cmp_ge_u32 s40, 5')
        a('s_cbranch_scc1 L_HELP3')
        if OPT['warm']:
            a('s_sub_u32 s43, s42, 2')
            a('v_mul_u32_u24 v8, 9216, v0')
            a('v_mul_u32_u24 v10, 1152, v0')
            a('s_mul_i32 s48, s43, 344')
            a('s_add_u32 s48, s48, s41')
            a('s_mul_i32 s48, s48, 1152')
            a('s_lshl_b32 s50, s40, 8')
            a('s_add_u32 s48, s48, s50')
            a('s_mul_i32 s49, s43, 55296')
            a('s_lshl_b32 s50, s40, 7')
            a('s_add_u32 s49, s49, s50')
            a('s_waitcnt lgkmcnt(0)')
            srd(a, 16, 4, X_BYTES)
            srd(a, 28, 10, HID_BYTES)
            srd(a, 32, 12, HID_BYTES)
            a('s_mov_b32 exec_hi, 0x7ff')
            a('buffer_load_dword v18, v8, s[16:19], s48 offen')
            a('s_mov_b32 exec_hi, 0xffff')
            a('buffer_load_dword v16, v10, s[28:31], s49 offen offset:1152')
            a('buffer_load_dword v17, v10, s[32:35], s49 offen offset:1152')
            a('s_mov_b32 exec_hi, 0x7ff')
            a('buffer_load_dword v19, v8, s[16:19], s48 offen offset:128')
            a('s_mov_b32 exec_hi, -1')
        a('s_branch L_HELP4')
        lab(a, 'L_HELP3')
        a('s_cmp_eq_u32 s40, 5')
        a('s_cbranch_scc1 L_HELP5')
        a('s_cmp_eq_u32 s40, 7')
        a('s_cbranch_scc1 L_HELP4')
        if OPT['codepf']:
            a('s_getpc_b64 s[76:77]')
            a.label('L_PC')
            a(f's_sub_u32 s76, s76, L_PC-{NAME}')
            a('s_subb_u32 s77, s77, 0')
            a('v_lshlrev_b32 v7, 7, v0')
            for q in range(3):
                if q:
                    a('v_add_u32 v7, 8192, v7')
                a(f'v_cmp_gt_u32 vcc, CODE_END-{NAME}, v7')
                a('v_cndmask_b32 v8, 0, v7, vcc')
                a(f'global_load_dword v{20+q}, v8, s[76:77]')
        a('s_branch L_HELP4')
        lab(a, 'L_HELP5')
        if OPT['warm']:
            a('v_lshlrev_b32 v12, 17, v0')
            a('s_sub_u32 s52, s42, 2')
            a(f's_mul_i32 s52, s52, {11*131072}')
            a('s_waitcnt lgkmcnt(0)')
            srd(a, 20, 6, SEQ_BYTES)
            srd(a, 24, 8, SEQ_BYTES)
            a('s_mov_b64 exec, 0x7ff')
            a('buffer_load_dword v19, v12, s[20:23], s52 offen')
            a('buffer_load_dword v20, v12, s[24:27], s52 offen')
            a('s_mov_b64 exec, -1')
        lab(a, 'L_HELP4')
        a('s_waitcnt lgkmcnt(0)')
        stamp(a, 0)
        stamp(a, 1)
        if OPT['hwait']:
            a('s_waitcnt vmcnt(0)')
        a('s_barrier')
        a('s_cmp_ge_u32 s40, 2')
        a('s_cbranch_scc1 L_FFN')
        srd(a, 16, 66, WG_BYTES)
        srd(a, 20, 68, WG_BYTES)
        srd(a, 24, 70, WG_BYTES)
        a('s_mul_i32 s43, s42, 72')
        a('s_mul_i32 s44, s40, 36')
        a('s_add_u32 s43, s43, s44')
        a('s_mul_i32 s44, s41, 9')
        a('s_add_u32 s44, s44, 8')
        a('s_mul_i32 s45, s43, 9216')
        a('s_lshl_b32 s46, s44, 7')
        a('s_add_u32 s45, s45, s46')
        a('s_mul_i32 s46, s44, 73728')
        a('s_lshl_b32 s47, s43, 7')
        a('s_add_u32 s46, s46, s47')
        a('v_mul_u32_u24 v6, 9216, v0')
        a('v_lshlrev_b32 v7, 7, v0')
        a('s_mov_b32 exec_hi, 0xf')
        a('buffer_load_dword v240, v6, s[16:19], s45 offen')
        a('buffer_load_dword v241, v6, s[20:23], s45 offen')
        a('buffer_load_dword v242, v7, s[24:27], s46 offen')
        a('s_mov_b32 exec_hi, -1')
        a('s_branch L_FFN')


    if OPT['hfirst']:
        a('s_cmp_ge_u32 s2, 64')
        a('s_cbranch_scc1 L_PROD')
        helper_code()
        lab(a, 'L_PROD')
    else:
        a('s_cmp_lt_u32 s2, 64')
        a('s_cbranch_scc1 L_HELP')
    a('v_and_b32 v0, 63, v0')
    a('s_and_b32 s41, s2, 31')
    a('s_lshr_b32 s42, s2, 5')
    a('s_sub_u32 s42, s42, 2')
    a('v_lshrrev_b32 v3, 4, v0')
    a('s_cmp_ge_u32 s42, 3')
    a('s_cselect_b32 s43, 1, 0')
    a('s_cmp_lt_u32 s40, 4')
    a('s_cbranch_scc1 L_P1MM')
    vm = Cnt(a, 'vmcnt', 63)
    a('v_lshrrev_b32 v8, 3, v0')
    a('v_and_b32 v9, 7, v0')
    a('v_xor_b32 v9, v9, v3')
    a('v_lshlrev_b32 v9, 4, v9')
    a('s_sub_u32 s44, s40, 4')
    a('s_lshr_b32 s45, s44, 1')
    a('s_lshl_b32 s45, s45, 5')
    a('s_and_b32 s51, s44, 1')
    a('s_lshl_b32 s46, s51, 2')
    a('s_add_u32 s45, s45, s46')
    a('v_lshrrev_b32 v6, 2, v8')
    a('v_lshlrev_b32 v6, 3, v6')
    a('v_and_b32 v10, 3, v8')
    a('v_add3_u32 v6, v6, v10, s45')
    a('v_mul_u32_u24 v6, 36864, v6')
    a('s_mul_i32 s47, s41, 1152')
    a('v_xor_b32 v10, 64, v9')
    a('v_add_u32 v7, s47, v6')
    a('v_add_u32 v6, v7, v9')
    a('v_add_u32 v7, v7, v10')
    a(f'v_add_u32 v7, {16*36864}, v7')
    a('s_lshl_b32 s48, s44, 11')
    a('s_mul_i32 s50, s42, 96')
    a('s_mul_i32 s52, s43, 287')
    a('s_sub_u32 s50, s50, s52')
    a('s_lshl_b32 s52, s51, 4')
    a('s_add_u32 s50, s50, s52')
    a('v_lshl_add_u32 v40, v8, 1, s50')
    a('s_lshl_b32 s52, s51, 6')
    a('v_xor_b32 v43, s52, v9')
    a('v_mul_u32_u24 v41, 1152, v40')
    a('v_cmp_eq_u32 vcc, 0, v40')
    a(f'v_mov_b32 v42, {288*1152}')
    a('v_cndmask_b32 v40, v41, v42, vcc')
    a('v_add_u32 v40, v40, v43')
    a('v_add_u32 v41, v41, v43')
    a('v_add_u32 v42, 73728, v41')
    a('v_add_u32 v41, 36864, v41')
    a('s_lshl_b32 s53, s44, 10')
    a(f's_add_u32 s53, s53, {P1_B}')
    a('s_cmp_ge_u32 s44, 2')
    a(f's_mov_b32 s30, {HID_BYTES}')
    a('s_mov_b32 s31, 0x00020000')
    a('s_waitcnt lgkmcnt(0)')
    a('s_cselect_b32 s28, s12, s10')
    a('s_cselect_b32 s29, s13, s11')
    srd(a, 16, 4, X_BYTES)
    stamp(a, 0)

    def issue(st):
        for gi in STAGES[st]:
            cb, withF, c = GROUPS[gi]
            for hh in range(2):
                a(f's_add_u32 m0, s48, {c*8192 + hh*1024 - c*128}')
                a(f'buffer_load_dwordx4 v{6+hh}, s[16:19], 0 offen offset:{c*128} lds')
                vm.issue(st)
            if cb is not None:
                for w in range(3):
                    a(f's_add_u32 m0, s53, {w*20480 + cb*4096 - cb*128}')
                    a(f'buffer_load_dwordx4 v{40+w}, s[28:31], 0 offen offset:{cb*128} lds')
                    vm.issue(st)
            if withF:
                for part in range(2):
                    for hh in range(2):
                        a(f's_add_u32 m0, s49, {P1_F + (part*2+hh)*1024}')
                        a(f'buffer_load_dwordx4 v{14+hh}, s[{20+4*part}:{23+4*part}], 0 offen lds')
                        vm.issue(st)
    NS = len(STAGES)
    AH = OPT['ahead']
    for st in range(AH):
        issue(st)
    a('s_lshl_b32 s46, s44, 3')
    a('v_add_u32 v14, s46, v8')
    a('v_sub_u32 v15, 64, v14')
    a('v_cmp_eq_u32 vcc, 64, v15')
    a('v_cndmask_b32 v15, v15, 32, vcc')
    a('v_lshl_add_u32 v14, v14, 17, v9')
    a('v_lshl_add_u32 v15, v15, 17, v10')
    a('s_lshl_b32 s49, s44, 12')
    srd(a, 20, 6, SEQ_BYTES)
    srd(a, 24, 8, SEQ_BYTES)
    for st in range(NS):
        vm.wait(st)
        if st in (0, NS - 1):
            stamp(a, 1 if st == 0 else 2)
        a('s_barrier')
        if st + AH < NS:
            issue(st + AH)
        if st == OPT['wpf_at'] and OPT['wpf']:
            srd(a, 32, 66, WG_BYTES)
            srd(a, 36, 68, WG_BYTES)
            srd(a, 60, 70, WG_BYTES)
            a('s_sub_u32 s54, s2, 64')
            a('s_lshr_b32 s54, s54, 3')
            a('s_lshl_b32 s54, s54, 2')
            a('s_add_u32 s54, s54, s44')
            a('s_and_b32 s55, s2, 7')
            a('s_mul_i32 s56, s54, 55296')
            a('s_mul_i32 s57, s55, 1152')
            a('s_add_u32 s56, s56, s57')
            a('s_mul_i32 s57, s55, 663552')
            a('s_mul_i32 s58, s54, 6912')
            a('s_add_u32 s57, s57, s58')
            a('s_mov_b32 s58, 0x1c72')
            a('v_mul_u32_u24 v44, s58, v0')
            a('v_lshrrev_b32 v44, 16, v44')
            a('v_mul_u32_u24 v45, 9, v44')
            a('v_sub_u32 v45, v0, v45')
            a('v_mul_u32_u24 v44, 9216, v44')
            a('v_lshl_add_u32 v44, v45, 7, v44')
            a('v_lshlrev_b32 v45, 7, v0')
            a('s_mov_b32 exec_hi, 0x3fffff')
            a('buffer_load_dword v240, v44, s[32:35], s56 offen')
            vm.issue('pf')
            a('buffer_load_dword v241, v44, s[36:39], s56 offen')
            vm.issue('pf')
            a('buffer_load_dword v242, v45, s[60:63], s57 offen')
            vm.issue('pf')
            a('s_mov_b32 exec_hi, -1')
    a('s_cmp_lg_u32 s40, 4')
    a('s_cbranch_scc1 L_LDONE')
    a('s_barrier')
    wait_cleared(a, 'L_WC1')
    a('s_branch L_ARRIVE')
    lab(a, 'L_LDONE')
    a('s_cmp_ge_u32 s2, 128')
    a('s_cbranch_scc1 L_ROWPRE')
    a('s_barrier')
    a('s_branch L_P2')

    lab(a, 'L_P1MM')
    a('s_setprio 2')
    a('v_and_b32 v2, 15, v0')
    a('v_lshrrev_b32 v4, 1, v2')
    a('v_xor_b32 v4, v4, v3')
    a('v_lshlrev_b32 v4, 4, v4')
    a('v_lshl_add_u32 v4, v2, 7, v4')
    a('v_xor_b32 v5, 64, v4')
    for r in range(12, 16):
        a(f'v_mov_b32 v{r}, 0x3f803f80')
    XA, XB, BB, FB = 4, 242, 244, 246
    for b in range(2):
        a(f'v_add_u32 v{XB+b}, 0x10000, v{4+b}')
    a('s_waitcnt lgkmcnt(0)')
    stamp(a, 0)
    a('s_cmp_eq_u32 s40, 3')
    a('s_cbranch_scc1 L_STATS')
    lg = Cnt(a, 'lgkmcnt', 15)
    a('s_mul_i32 s44, s42, 3')
    a('s_add_u32 s44, s44, s40')
    a('s_mul_i32 s48, s40, 20480')
    a(f's_add_u32 s48, s48, {P1_B}')
    srd(a, 36, 14, WS_RANGE)
    for b in range(2):
        a(f'v_add_u32 v{BB+b}, s48, v{4+b}')
        a(f'v_add_u32 v{FB+b}, {P1_F}, v{4+b}')
    a('s_lshr_b32 s46, s41, 1')
    a('s_and_b32 s46, s46, 1')
    a('s_xor_b32 s46, s46, s44')
    a('s_lshl_b32 s46, s46, 7')
    a('s_mul_i32 s47, s41, 2304')
    a('s_add_u32 s46, s46, s47')
    a('s_and_b32 s47, s41, 1')
    a('s_lshl_b32 s47, s47, 2')
    a('v_lshrrev_b32 v7, 3, v0')
    a('v_and_b32 v9, 7, v0')
    a('v_xor_b32 v9, v9, v7')
    a('v_xor_b32 v9, s47, v9')
    a('v_mul_u32_u24 v7, 73728, v7')
    a('v_lshl_add_u32 v7, v9, 4, v7')
    a('v_add_u32 v7, s46, v7')
    a('v_and_b32 v9, 7, v2')
    a('v_lshrrev_b32 v240, 3, v2')
    a('v_lshl_add_u32 v240, v240, 2, v3')
    a('v_xor_b32 v240, v240, v9')
    a('v_lshlrev_b32 v240, 4, v240')
    a('v_lshl_add_u32 v240, v9, 7, v240')
    a('s_lshl_b32 s47, s40, 12')
    a('v_add_u32 v240, s47, v240')
    a('v_lshl_add_u32 v241, v0, 4, s47')
    a('v_lshlrev_b32 v8, 4, v3')
    a(f'v_add_u32 v8, {P1_ST}, v8')
    a('s_cmp_eq_u32 s43, 0')
    a('s_cselect_b32 s47, 1.0, -1.0')
    a('v_mov_b32 v10, s47')
    a('v_mov_b32 v11, s47')
    for it in range(1, 4):
        a(f's_mov_b32 s{59+it}, {it*8*73728}')
    Bre = lambda k: 16 + 8 * k
    Bim = lambda k: 20 + 8 * k
    acc = lambda hf, i, ab: 88 + ((hf * 4 + i) * 2 + ab) * 4
    cacc = lambda ab: 152 + 4 * ab
    Abuf = lambda b, i: 160 + b * 16 + i * 4
    st8 = dict(started=set(), bufno=0, passed=-1, lg=lg, Abuf=Abuf)
    Fregs = [Bre(k) for k in range(1, 8)] + [Bim(k) for k in range(1, 8)] + [248, 252]
    Freg = lambda f: Fregs[f]

    def rd_x(kk):
        b = st8['bufno'] % 3
        st8['bufno'] += 1
        c, par = kk >> 1, kk & 1
        for i in range(4):
            off = c * 8192 + i * 2048
            base = XA + par
            if off >= 65536:
                off -= 65536
                base = XB + par
            a(f'ds_read_b128 {vr(st8["Abuf"](b,i),4)}, v{base} offset:{off}')
            st8['lg'].issue(('x', kk))
        return b

    def rd_B(k):
        c, par = k >> 1, k & 1
        for part, reg in ((0, Bre(k)), (1, Bim(k))):
            a(f'ds_read_b128 {vr(reg,4)}, v{BB+par} offset:{(c*4 + part*2)*1024}')
            lg.issue(('B', k))

    def rd_F(f):
        it, kap, part = f >> 2, (f >> 1) & 1, f & 1
        a(f'ds_read_b128 {vr(Freg(f),4)}, v{FB+kap} offset:{(it*2+part)*2048}')
        lg.issue('F')

    def mf(dst, A, B):
        c = vr(dst, 4) if dst in st8['started'] else '0'
        st8['started'].add(dst)
        a(f'v_mfma_f32_16x16x32_bf16 {vr(dst,4)}, {vr(A,4)}, {vr(B,4)}, {c}')

    steps = [(st, kk) for st, gs in enumerate(STAGES) for gi in gs for kk in (2 * GROUPS[gi][2], 2 * GROUPS[gi][2] + 1)]
    NSTEP = len(steps)
    haveB = set()
    bufs = {}

    def fetch(n, withB=True):
        st, kk = steps[n]
        while st8['passed'] < st:
            st8['passed'] += 1
            a('s_barrier')
        k = kk % 9
        if withB and k not in haveB:
            haveB.add(k)
            rd_B(k)
        bufs[n] = rd_x(kk)
    fetch(0)
    fetch(1)
    fq = list(range(16))
    a('v_mov_b32 v9, 0')
    for n, (st, kk) in enumerate(steps):
        k, hf = kk % 9, kk // 9
        lg.wait(('x', kk))
        b = bufs[n]
        for i in range(4):
            mf(acc(hf, i, 0), Abuf(b, i), Bre(k))
            mf(acc(hf, i, 1), Abuf(b, i), Bim(k))
            if i == 0 and n + 2 < NSTEP:
                fetch(n + 2)
            if n >= NSTEP - 2 and fq and len(lg.q) < 13:
                rd_F(fq.pop(0)); rd_F(fq.pop(0))
        if hf == 0:
            mf(cacc(0), 12, Bre(k))
            mf(cacc(1), 12, Bim(k))
    while fq:
        if len(lg.q) >= 13:
            lg.wait_all()
        rd_F(fq.pop(0)); rd_F(fq.pop(0))
    for i in range(4):
        for ab in range(2):
            for h in range(2):
                d = acc(0, i, ab) + 2 * h
                s1 = acc(1, i, ab) + 2 * h
                a(f'v_pk_fma_f32 {vr(d,2)}, {vr(s1,2)}, v[10:11], {vr(d,2)}')
    lg.wait_all()
    stamp(a, 1)
    a('s_barrier')
    for i in range(4):
        a(f'ds_read_b128 {vr(208+4*i,4)}, v8 offset:{i*64}')
        lg.issue(('st', i))
        a(f'ds_read_b128 {vr(224+4*i,4)}, v8 offset:{256+i*64}')
        lg.issue(('st', i))
    za = lambda kap: 160 + 4 * kap
    zb = lambda kap: 168 + 4 * kap
    znb = lambda kap: 176 + 4 * kap
    out = lambda it, c: 120 + (it * 2 + c) * 4
    TMP = 184
    st8['started'] = set()
    Fidx = lambda it, kap, part: (it * 2 + kap) * 2 + part

    def zops(kap):
        L = []
        for hh in range(2):
            i = 2 * kap + hh
            for ab in range(2):
                for h in range(2):
                    t = TMP + ((hh * 2 + ab) * 2 + h) * 2
                    L.append(f'v_pk_mul_f32 {vr(t,2)}, {vr(224+4*i+2*h,2)}, {vr(cacc(ab),2)}')
        for hh in range(2):
            i = 2 * kap + hh
            for ab in range(2):
                for h in range(2):
                    d = acc(0, i, ab) + 2 * h
                    t = TMP + ((hh * 2 + ab) * 2 + h) * 2
                    L.append(f'v_pk_fma_f32 {vr(d,2)}, {vr(208+4*i+2*h,2)}, {vr(d,2)}, {vr(t,2)} neg_lo:[0,0,1] neg_hi:[0,0,1]')
        for ab, z in ((0, za), (1, zb)):
            for hh in range(2):
                src = acc(0, 2 * kap + hh, ab)
                L.append(f'v_cvt_pk_bf16_f32 v{z(kap)+2*hh}, v{src}, v{src+1}')
                L.append(f'v_cvt_pk_bf16_f32 v{z(kap)+2*hh+1}, v{src+2}, v{src+3}')
        for r in range(4):
            L.append(f'v_xor_b32 v{znb(kap)+r}, 0x80008000, v{zb(kap)+r}')
        return L

    def mops(kap):
        L = []
        for it in range(4):
            L.append((out(it, 0), za(kap), Freg(Fidx(it, kap, 0))))
            L.append((out(it, 1), za(kap), Freg(Fidx(it, kap, 1))))
        for it in range(4):
            L.append((out(it, 0), znb(kap), Freg(Fidx(it, kap, 1))))
            L.append((out(it, 1), zb(kap), Freg(Fidx(it, kap, 0))))
        return L
    lg.wait(('st', 1))
    for ins in zops(0):
        a(ins)
    lg.wait(('st', 3))
    z1 = zops(1)
    for m in mops(0):
        mf(*m)
        for _ in range(2):
            if z1:
                a(z1.pop(0))
    while z1:
        a(z1.pop(0))
    m1 = mops(1)

    def upack(it):
        d = 184 + 4 * it
        a(f'v_cvt_pk_bf16_f32 v{d}, v{out(it,0)}, v{out(it,0)+1}')
        a(f'v_cvt_pk_bf16_f32 v{d+1}, v{out(it,0)+2}, v{out(it,0)+3}')
        a(f'v_cvt_pk_bf16_f32 v{d+2}, v{out(it,1)}, v{out(it,1)+1}')
        a(f'v_cvt_pk_bf16_f32 v{d+3}, v{out(it,1)+2}, v{out(it,1)+3}')
        a(f'ds_write_b128 v240, {vr(d,4)} offset:{it*1024}')
        lg.issue(('w', it))
        a(f'ds_read_b128 {vr(208+4*it,4)}, v241 offset:{it*1024}')
        lg.issue(('r', it))

    def ustore(it):
        lg.wait(('r', it))
        so = '0' if it == 0 else f's{59+it}'
        a(f'buffer_store_dwordx4 {vr(208+4*it,4)}, v7, s[36:39], {so} offen{SC}')
    for it in range(4):
        for m in (m1[2 * it], m1[2 * it + 1], m1[8 + 2 * it], m1[9 + 2 * it]):
            mf(*m)
        if it >= 2:
            upack(it - 2)
    upack(2)
    ustore(0)
    upack(3)
    ustore(1)
    ustore(2)
    ustore(3)
    stamp(a, 2)
    lab(a, 'L_ARRIVE')
    a(f'v_mov_b32 v10, {LDS_CNT}')
    a('v_mov_b32 v11, 1')
    a('v_mov_b32 v9, 0')
    a('s_sub_u32 s49, s2, 64')
    a('s_lshl_b32 s49, s49, 6')
    a(f's_add_u32 s49, s49, {WS_UF}')
    srd(a, 36, 14, WS_RANGE)
    a('s_waitcnt vmcnt(0)')
    a('s_mov_b64 exec, 1')
    a('ds_add_rtn_u32 v6, v10, v11')
    a('s_waitcnt lgkmcnt(0)')
    a('v_readfirstlane_b32 s59, v6')
    a('s_cmp_lg_u32 s59, 3')
    a('s_cbranch_scc1 L_NOFLAG')
    a(f'buffer_store_dword v9, v9, s[36:39], s49 offen{SC}')
    lab(a, 'L_NOFLAG')
    a('s_mov_b64 exec, -1')
    stamp(a, 3)
    a('s_cmp_lt_u32 s2, 128')
    a('s_cbranch_scc1 L_P2')
    a('s_barrier')
    a('s_setprio 0')
    a('s_mov_b32 s3, 2')
    a('s_branch L_ROWP')

    lab(a, 'L_STATS')
    lg = Cnt(a, 'lgkmcnt', 15)
    a('v_and_b32 v8, 3, v2')
    a('v_lshrrev_b32 v9, 2, v2')
    a('v_sub_u32 v9, v9, v3')
    a('v_and_b32 v9, 3, v9')
    for r in range(1, 4):
        a(f'v_cmp_eq_u32 s[{42+2*r}:{43+2*r}], {r}, v8')
        a(f'v_cmp_eq_u32 s[{48+2*r}:{49+2*r}], {r}, v9')
    a('v_lshlrev_b32 v10, 4, v9')
    a('v_lshl_add_u32 v10, v3, 2, v10')
    a('v_add_u32 v10, v10, v8')
    a('v_lshlrev_b32 v10, 2, v10')
    a(f'v_add_u32 v10, {P1_ST}, v10')
    a('s_cmp_eq_u32 s43, 0')
    a('s_cselect_b32 s56, 2.0, 0')
    a(f'v_mov_b32 v8, {LDS_CNT}')
    a('v_mov_b32 v9, 0')
    a('ds_write_b32 v8, v9')
    a('s_waitcnt lgkmcnt(0)')
    GR = lambda i: 16 + 4 * i
    SM = lambda i: 32 + 4 * i
    SAbuf = lambda b, i: 48 + b * 16 + i * 4
    st8.update(started=set(), bufno=0, passed=-1, lg=lg, Abuf=SAbuf)
    bufs = {}
    fetch(0, False)
    fetch(1, False)
    for n, (st, kk) in enumerate(steps):
        lg.wait(('x', kk))
        b = bufs[n]
        for i in range(4):
            mf(GR(i), SAbuf(b, i), SAbuf(b, i))
            mf(SM(i), 12, SAbuf(b, i))
        if n + 2 < NSTEP:
            fetch(n + 2, False)
    for i in range(4):
        for r in range(1, 4):
            a(f'v_cndmask_b32 v{GR(i)}, v{GR(i)}, v{GR(i)+r}, s[{42+2*r}:{43+2*r}]')
    for i in range(1, 4):
        a(f'v_mov_b32_dpp v{GR(i)+1}, v{GR(i)} row_ror:{4*i} row_mask:0xf bank_mask:0xf')
        a(f'v_mov_b32_dpp v{SM(i)+1}, v{SM(i)} row_ror:{4*i} row_mask:0xf bank_mask:0xf')
    for i in range(1, 4):
        a(f'v_cndmask_b32 v{GR(0)}, v{GR(0)}, v{GR(i)+1}, s[{48+2*i}:{49+2*i}]')
        a(f'v_cndmask_b32 v{SM(0)}, v{SM(0)}, v{SM(i)+1}, s[{48+2*i}:{49+2*i}]')
    q, m = GR(0), SM(0)
    a(f'v_mul_f32 v{m}, 0x{INVB:08x}, v{m}')
    a(f'v_mul_f32 v{q}, 0x{INVB:08x}, v{q}')
    a(f'v_fma_f32 v{q}, -v{m}, v{m}, v{q}')
    a(f'v_max_f32 v{q}, 0, v{q}')
    bfround(a, q, q)
    a(f'v_add_f32 v{q}, 0x{EPSB:08x}, v{q}')
    bfround(a, q, q)
    a(f'v_sqrt_f32 v{q}, v{q}')
    a(f'v_mul_f32 v{m}, s56, v{m}')
    bfround(a, q, q)
    a(f'v_rcp_f32 v{q}, v{q}')
    a(f'v_mul_f32 v{m}, v{m}, v{q}')
    a(f'ds_write_b32 v10, v{q}')
    a(f'ds_write_b32 v10, v{m} offset:256')
    a('s_waitcnt lgkmcnt(0)')
    stamp(a, 1)
    a('s_barrier')
    a('s_cmp_ge_u32 s2, 128')
    a('s_cbranch_scc1 L_ROWPRE2')
    a('s_branch L_P2')

    if not OPT['hfirst']:
        helper_code()

    lab(a, 'L_P2')
    a('s_setprio 0')
    a('s_cmp_ge_u32 s2, 81')
    a('s_cbranch_scc1 L_EXIT')
    a('s_barrier')
    a('s_cmp_lt_u32 s2, 72')
    a('s_cbranch_scc1 L_FFN')
    a('s_branch L_FIN')

    XR = lambda k: 100 + k
    WR = lambda k: 120 + k
    T = lambda cls, kap: 32 + (cls * 2 + kap) * 4
    TW = lambda kap, part: 16 + (kap * 2 + part) * 4

    lab(a, 'L_ROWPRE')
    a('s_mov_b32 s3, 1')
    a('s_branch L_ROWP')
    lab(a, 'L_ROWPRE2')
    a('s_setprio 0')
    a('s_mov_b32 s3, 0')
    lab(a, 'L_ROWP')
    a('v_and_b32 v2, 15, v0')
    a('v_lshrrev_b32 v3, 4, v0')
    a('v_lshlrev_b32 v4, 4, v0')
    a('v_add_u32 v5, 1024, v4')
    a('s_and_b32 s41, s2, 31')
    a('s_lshr_b32 s42, s2, 5')
    a('s_sub_u32 s42, s42, 4')
    a('v_cmp_lt_u32 vcc, 7, v2')
    a('s_cmp_eq_u32 s41, 0')
    a('s_cbranch_scc1 L_P0')
    a('v_and_b32 v8, 7, v2')
    a('s_lshl_b32 s46, s42, 3')
    a('v_add_u32 v8, s46, v8')
    a('v_lshl_add_u32 v6, v8, 6, s41')
    a('v_sub_u32 v8, 2048, v6')
    a('v_cndmask_b32 v6, v6, v8, vcc')
    a('v_xor_b32 v7, 8, v2')
    a('s_branch L_ROWS')
    lab(a, 'L_P0')
    a('v_bfe_u32 v8, v2, 1, 2')
    a('s_lshl_b32 s46, s42, 2')
    a('v_add_u32 v8, s46, v8')
    a('v_sub_u32 v9, 32, v8')
    a('v_sub_u32 v10, 31, v8')
    a('v_cndmask_b32 v9, v9, v10, vcc')
    a('v_mov_b32 v11, 0')
    a('v_cndmask_b32 v11, v11, 32, vcc')
    a('v_cmp_eq_u32 vcc, 32, v9')
    a('v_cndmask_b32 v9, v9, 16, vcc')
    a('v_xor_b32 v7, 1, v2')
    a('v_cndmask_b32 v7, v7, v2, vcc')
    a('v_and_b32 v10, 1, v2')
    a('v_cmp_eq_u32 vcc, 1, v10')
    a('v_cndmask_b32 v8, v8, v9, vcc')
    a('v_lshl_add_u32 v6, v8, 6, v11')
    lab(a, 'L_ROWS')
    a('s_lshl_b32 s44, s40, 1')
    a('s_add_u32 s45, s44, 1')
    a('v_and_b32 v9, 1, v3')
    a('v_readlane_b32 s46, v6, s44')
    a('v_readlane_b32 s47, v6, s45')
    a('v_and_b32 v10, 31, v0')
    a('v_mul_u32_u24 v12, 36, v10')
    srd(a, 24, 4, X_BYTES)
    srd(a, 28, 64, D * 2)
    srd(a, 36, 14, WS_RANGE)
    srd(a, 32, 72, X_BYTES)
    a('s_cmp_lg_u32 s40, 7')
    a('s_cbranch_scc1 L_NOTW')
    a('v_lshrrev_b32 v8, 1, v3')
    a('v_lshlrev_b32 v8, 4, v8')
    a('v_lshl_add_u32 v8, v9, 2, v8')
    a('v_lshl_add_u32 v8, v6, 12, v8')
    srd(a, 16, 6, SEQ_BYTES)
    srd(a, 20, 8, SEQ_BYTES)
    for kap in range(2):
        for part in range(2):
            a(f'buffer_load_dwordx3 {vr(TW(kap,part),3)}, v8, s[{16+4*part}:{19+4*part}], 0 offen offset:{kap*32}')
    lab(a, 'L_NOTW')
    XP, WP = 140, 152
    a('s_mul_i32 s45, s40, 9216')
    a('s_mul_i32 s44, s41, 73728')
    a('s_add_u32 s44, s44, s45')
    a('s_lshl_b32 s56, s42, 11')
    a(f'v_add_u32 v89, {LDS_T}, v4')
    a('v_lshrrev_b32 v13, 1, v3')
    a('v_lshlrev_b32 v13, 3, v13')
    a('v_lshl_add_u32 v13, v9, 1, v13')
    a('v_bfe_u32 v11, v0, 3, 1')
    a('v_add_u32 v13, v13, v11')
    a('v_mul_u32_u24 v13, 2304, v13')
    a('v_lshl_add_u32 v13, v11, 6, v13')
    a('v_and_b32 v11, 3, v0')
    a('v_lshl_add_u32 v13, v11, 4, v13')
    a('v_bfe_u32 v11, v0, 2, 1')
    a('v_lshl_add_u32 v13, v11, 3, v13')
    a('v_xor_b32 v11, s40, v9')
    a('v_lshl_add_u32 v13, v11, 7, v13')
    a('v_xor_b32 v81, 64, v13')
    a(f'v_mul_u32_u24 v14, {R_YS}, v2')
    a('v_lshl_add_u32 v14, v3, 5, v14')
    a(f'v_mul_u32_u24 v11, {R_YS}, v7')
    a('v_lshlrev_b32 v8, 5, v3')
    a('v_sub_u32 v11, v11, v8')
    for jj in range(3):
        a(f's_add_u32 s48, s40, {6*jj}')
        a('s_lshl_b32 s49, s48, 7')
        a(f's_sub_u32 s50, s49, {9*128-4}')
        a('s_cmp_lt_u32 s48, 9')
        a('s_cselect_b32 s49, s49, s50')
        a(f's_add_u32 s50, s49, {R_Y}')
        a(f'v_add_u32 v{90+jj}, s50, v14')
        a(f's_sub_u32 s50, {R_Y + 576*4 - 24}, s49')
        a(f'v_add_u32 v{93+jj}, s50, v11')
    a('v_lshrrev_b32 v8, 5, v0')
    a('s_lshl_b32 s48, s40, 1')
    a('v_add_u32 v8, s48, v8')
    a(f'v_mul_u32_u24 v97, {R_YS}, v8')
    a(f'v_add_u32 v97, {R_Y}, v97')
    a('v_lshl_add_u32 v96, v12, 1, v97')
    a('v_mul_u32_u24 v98, 1152, v8')
    a('v_add_u32 v98, v98, v12')
    a(f'v_add_u32 v98, {R_STG}, v98')
    a('v_cmp_eq_u32 s[60:61], 16, v10')
    a('v_cmp_eq_u32 s[62:63], 0, v10')
    a('s_cmp_lg_u32 s3, 1')
    a('s_cbranch_scc1 L_NOSB')
    a('s_barrier')
    lab(a, 'L_NOSB')
    a('s_mul_i32 s48, s40, 2304')
    a(f's_add_u32 s48, s48, {R_X}')
    a('s_mul_i32 s54, s46, 1152')
    a('s_mul_i32 s55, s47, 1152')
    a('s_mov_b32 s82, s54')
    a('s_mov_b32 s83, s55')
    for hrow in range(2):
        a(f's_add_u32 m0, s48, {hrow*1152}')
        a(f'buffer_load_dwordx4 v4, s[24:27], s{54+hrow} offen lds')
        a('s_mov_b64 exec, 0xff')
        a(f'buffer_load_dwordx4 v4, s[24:27], s{54+hrow} offen offset:1024 lds')
        a('s_mov_b64 exec, -1')
    a('s_cmp_lg_u32 s40, 5')
    a('s_cbranch_scc1 L_NOWR')
    a(f's_mov_b32 m0, {R_W}')
    a('s_nop 0')
    a('buffer_load_dwordx4 v4, s[28:31], 0 offen lds')
    a('s_mov_b64 exec, 0xff')
    a('buffer_load_dwordx4 v4, s[28:31], 0 offen offset:1024 lds')
    a('s_mov_b64 exec, -1')
    a('s_waitcnt vmcnt(0)')
    lab(a, 'L_NOWR')
    a(f'v_add_u32 v15, {R_X - R_STG}, v98')
    a(f'v_add_u32 v14, {R_W}, v12')
    a('v_add_u32 v11, s48, v4')
    a('s_cmp_lg_u32 s40, 7')
    a('s_cbranch_scc1 L_NOTW2')
    a('s_mov_b32 s50, 0x05040100')
    a('s_mov_b32 s51, 0x07060302')
    a('v_cmp_gt_u32 s[52:53], 8, v2')
    a('s_waitcnt vmcnt(4)')
    for kap in range(2):
        cr, ci = TW(kap, 0), TW(kap, 1)
        a(f'v_xor_b32 v{ci}, 0x80008000, v{ci}')
        a(f'v_xor_b32 v{ci+2}, 0x80008000, v{ci+2}')
        t = 48
        a(f'v_perm_b32 v{t}, v{ci}, v{cr}, s50')
        a(f'v_perm_b32 v{t+1}, v{ci}, v{cr}, s51')
        a(f'v_perm_b32 v{t+2}, v{ci+2}, v{cr+2}, s50')
        a(f'v_perm_b32 v{t+3}, v{ci+2}, v{cr+2}, s51')
        for r in range(4):
            a(f'v_cndmask_b32 v{T(0,kap)+r}, 0, v{t+r}, s[52:53]')
            a(f'v_cndmask_b32 v{T(1,kap)+r}, v{t+r}, 0, s[52:53]')
    for cls in range(2):
        for kap in range(2):
            a(f'ds_write_b128 v89, {vr(T(cls,kap),4)} offset:{(cls*2+kap)*1024}')
    lab(a, 'L_NOTW2')
    stamp(a, 4)
    a('s_cmp_eq_u32 s3, 2')
    a('s_cbranch_scc1 L_UGO')
    a('s_barrier')
    a('s_cmp_lg_u32 s40, 6')
    a('s_cbranch_scc1 L_UGO')
    a('v_lshlrev_b32 v8, 6, v0')
    a('s_mov_b32 s58, 0')
    a(f's_mov_b32 s48, {WS_UF}')
    a(f's_mov_b32 s49, {WS_UF + 4096}')
    a(f's_mov_b32 s50, {WS_UF + 8192}')
    for k in range(3):
        a(f's_mov_b64 s[{76+2*k}:{77+2*k}], -1')
    lab(a, 'L_UPOLL')
    for k in range(3):
        a(f's_or_b64 exec, s[{76+2*k}:{77+2*k}], 1')
        a(f'buffer_load_dword v{16+k}, v8, s[36:39], s{48+k} offen{SC}')
    a('s_mov_b64 exec, -1')
    a('s_add_u32 s58, s58, 1')
    a('s_waitcnt vmcnt(0)')
    for k in range(3):
        a(f'v_cmp_ne_u32 s[{76+2*k}:{77+2*k}], 0, v{16+k}')
    a(f's_cmp_lt_u32 s58, {SPIN_LIMIT}')
    a('s_cbranch_scc0 L_UGO')
    a('s_or_b64 s[52:53], s[76:77], s[78:79]')
    a('s_or_b64 s[52:53], s[52:53], s[80:81]')
    a('s_cbranch_scc0 L_UGO')
    a(f's_sleep {OPT["sleep"]}')
    a('s_branch L_UPOLL')
    lab(a, 'L_UGO')
    a('s_waitcnt lgkmcnt(0)')
    a('s_barrier')
    stamp(a, 5)
    a('s_mov_b32 s84, 0')
    a(f'v_mov_b32 v85, {LDS_CNT}')

    def u_dma():
        for n in range(9):
            a('s_add_u32 m0, s45, s56')
            a('s_add_u32 s57, s44, s56')
            a(f'buffer_load_dwordx4 v4, s[36:39], s57 offen{SC} lds')
            a('s_add_u32 s56, s56, 1024')
            a('s_cmp_eq_u32 s56, 9216')
            a('s_cselect_b32 s56, 0, s56')
    u_dma()
    a('s_waitcnt vmcnt(9)')
    for P_, ad in ((XP, 15), (WP, 14)):
        for j in range(0, 8, 2):
            a(f'ds_read2_b32 {vr(P_+j,2)}, v{ad} offset0:{j} offset1:{j+1}')
        a(f'ds_read_b32 v{P_+8}, v{ad} offset:32')
    a('s_waitcnt lgkmcnt(0)')
    for j in range(9):
        a(f'v_lshlrev_b32 v{XR(2*j)}, 16, v{XP+j}')
        a(f'v_and_b32 v{XR(2*j+1)}, 0xffff0000, v{XP+j}')
        a(f'v_lshlrev_b32 v{WR(2*j)}, 16, v{WP+j}')
        a(f'v_and_b32 v{WR(2*j+1)}, 0xffff0000, v{WP+j}')
    W2 = lambda j: vr(WR(2 * j), 2)
    a(f'v_pk_add_f32 v[86:87], {W2(0)}, {W2(1)}')
    for j in range(2, 9):
        a(f'v_pk_add_f32 v[86:87], v[86:87], {W2(j)}')
    a('v_add_f32 v99, v86, v87')
    dpp_reduce(a, 'v_add_f32', [99], 5)
    lg = Cnt(a, 'lgkmcnt', 15)
    for cls in range(2):
        for kap in range(2):
            a(f'ds_read_b128 {vr(T(cls,kap),4)}, v89 offset:{(cls*2+kap)*1024}')
    lab(a, 'L_UWAIT')
    a('v_mov_b32 v86, 0')
    a('ds_write_b32 v85, v86')
    a('s_waitcnt vmcnt(0) lgkmcnt(0)')
    a('s_barrier')
    stamp(a, 6)
    a('s_cmp_ge_u32 s40, 6')
    a('s_cbranch_scc1 L_SKIPMM')
    UF = lambda slot: 164 + 4 * slot
    ACC = lambda jj: 48 + 4 * jj
    order = [(jj, cls, kap) for cls in range(2) for kap in range(2) for jj in range(3)]

    def rd(n):
        jj, cls, kap = order[n]
        for h in range(2):
            off = kap * 36864 + h * 9216 + jj * 768
            a(f'ds_read_b64_tr_b16 {vr(UF(n)+2*h,2)}, v{13 if cls == 0 else 81} offset:{off}')
            lg.issue(n)
    for n in range(7):
        rd(n)
    for n, (jj, cls, kap) in enumerate(order):
        lg.wait(n)
        c = '0' if (cls == 0 and kap == 0) else vr(ACC(jj), 4)
        a(f'v_mfma_f32_16x16x32_bf16 {vr(ACC(jj),4)}, {vr(UF(n),4)}, {vr(T(cls,kap),4)}, {c}')
        if n + 7 < 12:
            rd(n + 7)
    if OPT['usent']:
        a('v_pk_add_f32 v[16:17], v[48:49], v[50:51]')
        a('v_pk_add_f32 v[18:19], v[52:53], v[54:55]')
        a('v_pk_add_f32 v[20:21], v[56:57], v[58:59]')
        a('v_pk_add_f32 v[16:17], v[16:17], v[18:19]')
        a('v_pk_add_f32 v[16:17], v[16:17], v[20:21]')
        a('v_cmp_u_f32 vcc, v16, v17')
        a('v_mov_b32 v86, 1')
        a('s_and_saveexec_b64 s[48:49], vcc')
        a('ds_write_b32 v85, v86')
        a('s_mov_b64 exec, -1')
    for jj in range(3):
        c = ACC(jj)
        a(f'ds_write2_b32 v{90+jj}, v{c}, v{c+1} offset0:0 offset1:2')
        a(f'ds_write2_b32 v{90+jj}, v{c+2}, v{c+3} offset0:4 offset1:6')
        a(f'ds_write2_b32 v{93+jj}, v{c+3}, v{c+2} offset0:0 offset1:2')
        a(f'ds_write2_b32 v{93+jj}, v{c+1}, v{c} offset0:4 offset1:6')
    a('s_waitcnt lgkmcnt(0)')
    lab(a, 'L_SKIPMM')
    a('s_barrier')
    stamp(a, 7)
    H = lambda k: 60 + k
    H2 = lambda j: vr(H(2 * j), 2)
    a('ds_read_b32 v86, v85')
    a('ds_read_b32 v88, v97')
    for j in range(9):
        a(f'ds_read_b64 {H2(j)}, v96 offset:{8*j}')
    a('s_waitcnt lgkmcnt(8)')
    if OPT['usent']:
        a('v_readfirstlane_b32 s48, v86')
        a('s_cmp_eq_u32 s48, 0')
        a('s_cbranch_scc1 L_UOK')
        a('s_add_u32 s84, s84, 1')
        a('s_cmp_ge_u32 s84, 200')
        a('s_cbranch_scc1 L_UOK')
        a('s_waitcnt lgkmcnt(0)')
        a('s_barrier')
        u_dma()
        a('s_branch L_UWAIT')
        lab(a, 'L_UOK')
    a(f'v_cndmask_b32 v{H(0)}, v{H(0)}, v88, s[60:61]')
    a(f'v_cndmask_b32 v{H(0)}, v{H(0)}, 0, s[62:63]')
    HP = lambda j: 16 + j
    for j in range(9):
        if j:
            a(f's_waitcnt lgkmcnt({8-j})')
        a(f'v_pk_add_f32 {H2(j)}, {H2(j)}, {vr(XR(2*j),2)}')
    for j in range(9):
        a(f'v_cvt_pk_bf16_f32 v{HP(j)}, v{H(2*j)}, v{H(2*j+1)}')
    for j in range(9):
        a(f'v_lshlrev_b32 v{H(2*j)}, 16, v{HP(j)}')
        a(f'v_and_b32 v{H(2*j+1)}, 0xffff0000, v{HP(j)}')
    a(f'v_pk_add_f32 v[26:27], {H2(0)}, {H2(1)}')
    a(f'v_pk_mul_f32 v[28:29], {H2(0)}, {H2(0)}')
    a(f'v_pk_mul_f32 v[30:31], {H2(0)}, {W2(0)}')
    for j in range(1, 9):
        if j >= 2:
            a(f'v_pk_add_f32 v[26:27], v[26:27], {H2(j)}')
        a(f'v_pk_fma_f32 v[28:29], {H2(j)}, {H2(j)}, v[28:29]')
        a(f'v_pk_fma_f32 v[30:31], {H2(j)}, {W2(j)}, v[30:31]')
    a('v_add_f32 v82, v26, v27')
    a('v_add_f32 v83, v28, v29')
    a('v_add_f32 v84, v30, v31')
    dpp_reduce(a, 'v_add_f32', [82, 83, 84], 5)
    a(f'v_mul_f32 v82, 0x{INVB:08x}, v82')
    a(f'v_mul_f32 v83, 0x{INVB:08x}, v83')
    a('v_fma_f32 v83, -v82, v82, v83')
    a('v_max_f32 v83, 0, v83')
    bfround(a, 83, 83)
    bfround(a, 82, 82)
    a(f'v_add_f32 v83, 0x{EPSB:08x}, v83')
    bfround(a, 83, 83)
    a('v_sqrt_f32 v83, v83')
    a('v_fma_f32 v84, -v82, v99, v84')
    bfround(a, 83, 83)
    a('v_rcp_f32 v83, v83')
    a('v_mul_f32 v84, v84, v83')
    a('v_mul_f32 v82, v82, v83')
    a('v_ashrrev_i32 v85, 31, v84')
    a('v_or_b32 v85, 0x80000000, v85')
    a('v_xor_b32 v85, v85, v84')
    a('v_and_b32 v85, 0xfffff800, v85')
    a('v_max_u32 v85, 0x800, v85')
    a('v_readlane_b32 s48, v83, 31')
    a('v_readlane_b32 s49, v83, 63')
    a('v_readlane_b32 s50, v82, 31')
    a('v_readlane_b32 s51, v82, 63')
    a('v_readlane_b32 s52, v85, 31')
    a('v_readlane_b32 s53, v85, 63')
    a('v_readlane_b32 s54, v84, 31')
    a('v_readlane_b32 s55, v84, 63')
    a('s_sub_u32 s56, s2, 128')
    a('s_lshl_b32 s57, s56, 4')
    a('s_lshl_b32 s58, s40, 1')
    a('s_add_u32 s57, s57, s58')
    a('s_sub_u32 s57, 2047, s57')
    a('s_or_b32 s52, s52, s57')
    a('s_sub_u32 s57, s57, 1')
    a('s_or_b32 s53, s53, s57')
    a('s_cmp_gt_u32 s52, s53')
    a('s_cselect_b32 s52, s52, s53')
    a('s_cselect_b32 s54, s54, s55')
    a('s_cselect_b32 s46, s46, s47')
    a('s_cselect_b32 s55, 0, 1')
    a('s_lshl_b32 s58, s40, 2')
    a(f's_add_u32 s58, s58, {LDS_C}')
    a('v_mov_b32 v86, s58')
    a('v_mov_b32 v87, s52')
    a('ds_write_b32 v86, v87')
    a('v_mov_b32 v80, s48')
    a('v_mov_b32 v78, s50')
    a('s_mov_b32 exec_lo, 0')
    a('v_mov_b32 v80, s49')
    a('v_mov_b32 v78, s51')
    a('s_mov_b32 exec_lo, -1')
    HN = lambda k: 100 + k
    NP = lambda j: 140 + j
    for j in range(9):
        a(f'v_pk_fma_f32 {vr(HN(2*j),2)}, {H2(j)}, v[80:81], v[78:79] op_sel_hi:[1,0,0] neg_lo:[0,0,1] neg_hi:[0,0,1]')
    for j in range(9):
        a(f'v_cvt_pk_bf16_f32 v{NP(j)}, v{HN(2*j)}, v{HN(2*j+1)}')

    def stage(addr, P, off):
        o = off // 4
        for j in range(0, 8, 2):
            a(f'ds_write2_b32 v{addr}, v{P(j)}, v{P(j+1)} offset0:{o+j} offset1:{o+j+1}')
        a(f'ds_write_b32 v{addr}, v{P(8)} offset:{off+32}')
    stage(98, NP, 0)
    a('v_and_b32 v86, 7, v0')
    a('v_lshlrev_b32 v86, 2, v86')
    a(f'v_add_u32 v86, {LDS_C}, v86')
    a('v_not_b32 v87, v87')
    a('s_lshl_b32 s58, s40, 1')
    a('s_add_u32 s58, s58, s55')
    a('s_mul_i32 s58, s58, 1152')
    a(f's_add_u32 s58, s58, {R_STG}')
    a('v_add_u32 v88, s58, v4')
    a('s_waitcnt lgkmcnt(0)')
    stamp(a, 8)
    a('s_setprio 3')
    a('s_barrier')
    stamp(a, 9)
    a('ds_read_b32 v85, v86')
    a('ds_read_b128 v[32:35], v88')
    a('ds_read_b128 v[36:39], v88 offset:1024')
    a('s_mul_i32 s57, s56, 1152')
    a(f's_add_u32 s57, s57, {WS_HN}')
    a('s_lshl_b32 s59, s56, 7')
    a(f's_add_u32 s59, s59, {WS_KEYS}')
    a('v_mov_b32 v86, 0')
    a('s_waitcnt lgkmcnt(2)')
    dpp_reduce(a, 'v_max_u32', [85], 3)
    a('v_readlane_b32 s58, v85, 7')
    a('s_cmp_lg_u32 s58, s52')
    a('s_cbranch_scc1 L_NOTWIN')
    a('s_waitcnt lgkmcnt(0)')
    a(f'buffer_store_dwordx4 v[32:35], v4, s[36:39], s57 offen{SC}')
    a('s_mov_b64 exec, 0xff')
    a(f'buffer_store_dwordx4 v[36:39], v5, s[36:39], s57 offen{SC}')
    a('s_mov_b64 exec, 1')
    a(f'buffer_store_dword v87, v86, s[36:39], s59 offen{SC}')
    a('s_mov_b64 exec, -1')
    stamp(a, 10)
    lab(a, 'L_NOTWIN')
    a('s_setprio 0')
    OP = lambda j: 152 + j
    for j in range(9):
        a(f'v_lshlrev_b32 v{HN(2*j)}, 16, v{NP(j)}')
        a(f'v_and_b32 v{HN(2*j+1)}, 0xffff0000, v{NP(j)}')
    for j in range(9):
        a(f'v_pk_add_f32 {vr(HN(2*j),2)}, {vr(HN(2*j),2)}, {H2(j)}')
    for j in range(9):
        a(f'v_cvt_pk_bf16_f32 v{OP(j)}, v{HN(2*j)}, v{HN(2*j+1)}')

    stage(15, OP, 0)
    a('s_waitcnt lgkmcnt(0)')
    a('ds_read_b128 v[40:43], v11')
    a('ds_read_b128 v[44:47], v11 offset:1024')
    a('ds_read_b128 v[48:51], v11 offset:1152')
    a('ds_read_b128 v[52:55], v11 offset:2176')

    def out_store(mods):
        a('s_waitcnt lgkmcnt(0)')
        a(f'buffer_store_dwordx4 v[40:43], v4, s[32:35], s82 offen{mods}')
        a(f'buffer_store_dwordx4 v[48:51], v4, s[32:35], s83 offen{mods}')
        a('s_mov_b64 exec, 0xff')
        a(f'buffer_store_dwordx4 v[44:47], v5, s[32:35], s82 offen{mods}')
        a(f'buffer_store_dwordx4 v[52:55], v5, s[32:35], s83 offen{mods}')
        a('s_mov_b64 exec, -1')
    a('s_cmp_lg_u32 s58, s52')
    a('s_cbranch_scc1 L_PLAIN')
    out_store(SC)
    a('s_mul_i32 s57, s56, 1280')
    a(f's_add_u32 s57, s57, {WS_H}')
    a('v_mov_b32 v88, s54')
    a('v_mov_b32 v89, s46')
    a('s_cmp_eq_u32 s55, 0')
    a('s_cselect_b32 exec_lo, -1, 0')
    a('s_cselect_b32 exec_hi, 0, -1')
    a(f'buffer_store_dwordx4 {vr(HP(0),4)}, v12, s[36:39], s57 offen{SC}')
    a(f'buffer_store_dwordx4 {vr(HP(4),4)}, v12, s[36:39], s57 offen offset:16{SC}')
    a(f'buffer_store_dword v{HP(8)}, v12, s[36:39], s57 offen offset:32{SC}')
    a('s_mov_b64 exec, 1')
    a(f'buffer_store_dwordx2 v[88:89], v86, s[36:39], s57 offen offset:1152{SC}')
    a('s_waitcnt vmcnt(0)')
    a(f'buffer_store_dword v86, v86, s[36:39], s59 offen offset:64{SC}')
    a('s_mov_b64 exec, -1')
    a('s_branch L_EXIT')
    lab(a, 'L_PLAIN')
    out_store({0: '', 1: SC, 2: ' nt'}[OPT['outsc']])
    a('s_branch L_EXIT')

    def key_poll(pre):
        ND = OPT['depth']
        KS = lambda j: 32 + 2 * j
        a(f's_mov_b32 s56, {WS_KEYS}')
        a(f's_mov_b32 s55, {WS_KEYS + 8192}')
        a('s_mov_b32 s58, 0')
        a('s_mov_b32 s45, -1')
        a('v_lshlrev_b32 v8, 7, v0')
        for r in range(28, 32):
            a(f'v_mov_b32 v{r}, 0')
        for j in range(ND):
            a(f'v_mov_b32 v{KS(j)}, -1')
            a(f'v_mov_b32 v{KS(j)+1}, -1')
        lab(a, pre + 'SLOW')
        a(f'buffer_load_dword v16, v8, s[36:39], s56 offen{SC}')
        a(f'buffer_load_dword v17, v8, s[36:39], s55 offen{SC}')
        a('s_add_u32 s58, s58, 1')
        a('s_waitcnt vmcnt(0)')
        a('v_min_u32 v20, v16, v17')
        a('v_cmp_ne_u32 vcc, -1, v20')
        a(f's_cmp_lt_u32 s58, {SPIN_LIMIT}')
        a(f's_cbranch_scc0 {pre}FAST')
        a('s_cmp_lg_u64 vcc, 0')
        a(f's_cbranch_scc1 {pre}FAST')
        a(f's_sleep {OPT["slow"]}')
        a(f's_branch {pre}SLOW')
        lab(a, pre + 'FAST')

        def scan():
            a('v_min_u32 v20, v16, v17')
            a('v_cmp_eq_u32 s[50:51], -1, v16')
            a('v_cmp_eq_u32 s[42:43], -1, v17')
            dpp_reduce(a, 'v_min_u32', [20])
            a('v_readlane_b32 s57, v20, 63')
            a('s_and_b32 s46, s57, 0x7ff')
            a('s_lshr_b32 s46, s46, 4')
            a('s_mul_i32 s47, s46, 1152')
            a(f's_add_u32 s47, s47, {WS_HN}')

        def issue(j):
            a('s_or_b64 exec, s[50:51], 1')
            a(f'buffer_load_dword v{KS(j)}, v8, s[36:39], s56 offen{SC}')
            a('s_or_b64 exec, s[42:43], 1')
            a(f'buffer_load_dword v{KS(j)+1}, v8, s[36:39], s55 offen{SC}')
            a('s_cmp_lg_u32 s45, s57')
            a('s_cselect_b64 exec, -1, 1')
            a(f'buffer_load_dwordx4 v[24:27], v4, s[36:39], s47 offen{SC}')
            a('s_cselect_b64 exec, 0xff, 1')
            a(f'buffer_load_dwordx4 v[28:31], v5, s[36:39], s47 offen{SC}')
            a('s_mov_b64 exec, -1')
            a('s_cselect_b32 s44, 0, s44')
            a('s_add_u32 s44, s44, 1')
            a('s_mov_b32 s45, s57')
        a('s_mov_b32 s44, 0')
        scan()
        for j in range(ND):
            issue(j)
            if j < ND - 1:
                a(f's_sleep {OPT["gap"]}')
        lab(a, pre + 'LOOP')
        for j in range(ND):
            a(f's_waitcnt vmcnt({4*(ND-1)})')
            a(f'v_min_u32 v16, v16, v{KS(j)}')
            a(f'v_min_u32 v17, v17, v{KS(j)+1}')
            scan()
            a('s_or_b64 vcc, s[50:51], s[42:43]')
            a(f's_cbranch_scc0 {pre}ALLK')
            issue(j)
        a('s_add_u32 s58, s58, 1')
        a(f's_cmp_lt_u32 s58, {SPIN_LIMIT}')
        a(f's_cbranch_scc1 {pre}LOOP')
        lab(a, pre + 'ALLK')
        a('s_cmp_lg_u32 s45, s57')
        a(f's_cbranch_scc1 {pre}ROWLD')
        a(f's_cmp_ge_u32 s44, {ND}')
        a(f's_cbranch_scc1 {pre}CHK2')
        a(f's_branch {pre}CHK')
        lab(a, pre + 'ROWLD')
        a(f'buffer_load_dwordx4 v[24:27], v4, s[36:39], s47 offen{SC}')
        a('s_mov_b64 exec, 0xff')
        a(f'buffer_load_dwordx4 v[28:31], v5, s[36:39], s47 offen{SC}')
        a('s_mov_b64 exec, -1')
        lab(a, pre + 'CHK')
        a('s_waitcnt vmcnt(0)')
        lab(a, pre + 'CHK2')
        a('s_add_u32 s58, s58, 1')
        a('v_max3_u32 v20, v24, v25, v26')
        a('v_max3_u32 v21, v27, v28, v29')
        a('v_max3_u32 v20, v20, v30, v31')
        a('v_max_u32 v20, v20, v21')
        a('v_cmp_eq_u32 vcc, -1, v20')
        a(f's_cmp_lt_u32 s58, {2*SPIN_LIMIT}')
        a(f's_cbranch_scc0 {pre}GOT')
        a('s_cmp_eq_u64 vcc, 0')
        a(f's_cbranch_scc0 {pre}ROWLD')
        lab(a, pre + 'GOT')

    lab(a, 'L_FFN')
    a('v_and_b32 v2, 15, v0')
    a('v_lshrrev_b32 v3, 4, v0')
    a('v_lshlrev_b32 v4, 4, v0')
    a('v_add_u32 v5, 1024, v4')
    a('s_and_b32 s3, s2, 7')
    a('s_mul_i32 s3, s3, 9')
    a('s_lshr_b32 s41, s2, 3')
    a('s_add_u32 s3, s3, s41')
    srd(a, 16, 66, WG_BYTES)
    srd(a, 20, 68, WG_BYTES)
    srd(a, 24, 70, WG_BYTES)
    srd(a, 36, 14, WS_RANGE)
    a('v_lshrrev_b32 v8, 3, v0')
    a('v_and_b32 v9, 7, v0')
    a('v_and_b32 v10, 2, v8')
    a('v_xor_b32 v9, v9, v10')
    a('s_and_b32 s58, s40, 1')
    a('s_lshl_b32 s58, s58, 2')
    a('v_xor_b32 v9, s58, v9')
    a('v_lshlrev_b32 v9, 4, v9')
    a('v_mul_u32_u24 v15, 9216, v8')
    a('v_add_u32 v15, v15, v9')
    a('v_xor_b32 v14, 64, v15')
    a('v_mul_u32_u24 v11, 1152, v8')
    a('v_add_u32 v11, v11, v9')
    a('s_mul_i32 s59, s40, 663552')
    a('s_lshl_b32 s58, s3, 7')
    a('s_add_u32 s59, s59, s58')
    a('s_mul_i32 s55, s40, 9216')
    for q in range(9):
        for mat in range(2):
            a(f's_add_u32 m0, s55, {mat*73728 + q*1024}')
            a(f'buffer_load_dwordx4 v{15 - (q & 1)}, s[{16+4*mat}:{19+4*mat}], s59 offen lds')
        if q < 8:
            a('s_add_u32 s59, s59, 73728')
    a('s_mul_i32 s59, s3, 73728')
    a('s_add_u32 s59, s59, s55')
    a('v_lshlrev_b32 v6, 7, v0')
    a('buffer_load_dword v243, v6, s[24:27], s59 offen')
    a('v_bfe_u32 v13, v0, 2, 2')
    a('v_lshrrev_b32 v10, 1, v13')
    a('v_and_b32 v6, 1, v3')
    a('v_lshl_add_u32 v10, v6, 1, v10')
    a('s_and_b32 s57, s40, 3')
    a('s_lshr_b32 s56, s40, 2')
    a('v_xor_b32 v10, s57, v10')
    a('v_lshlrev_b32 v10, 5, v10')
    a('v_and_b32 v6, 3, v0')
    a('v_lshl_add_u32 v10, v6, 3, v10')
    a('v_lshl_add_u32 v10, v13, 7, v10')
    a('v_mul_u32_u24 v14, 9216, v3')
    a('v_add_u32 v14, v14, v10')
    a('s_lshl_b32 s58, s56, 10')
    a('v_add_u32 v14, s58, v14')
    a('v_lshl_add_u32 v13, v3, 10, v10')
    a('s_mul_i32 s54, s56, 36864')
    a('v_add_u32 v13, s54, v13')
    a('v_add_u32 v12, 73728, v13')
    a('s_waitcnt vmcnt(0)')
    a('s_barrier')
    WF = lambda mat, k: 64 + (k * 2 + mat) * 4
    for k in range(9):
        for mat in range(2):
            for h in range(2):
                a(f'ds_read_b64_tr_b16 {vr(WF(mat,k)+2*h,2)}, v{13 if mat == 0 else 12} offset:{k*4096 + h*512}')
        if k % 3 == 2:
            a('s_waitcnt lgkmcnt(0)')
    a('s_barrier')
    for c in range(9):
        a(f's_add_u32 m0, s55, {c*1024 - c*128}')
        a(f'buffer_load_dwordx4 v11, s[24:27], s59 offen offset:{c*128} lds')
    a('v_cmp_eq_u32 s[48:49], 1, v3')
    a('v_cmp_eq_u32 s[52:53], 2, v3')
    a('v_cmp_eq_u32 s[60:61], 3, v3')
    a('s_mul_i32 s58, s56, 576')
    a(f's_add_u32 s58, s58, {LDS_XS}')
    a('v_lshl_add_u32 v6, v3, 4, s58')
    a('s_lshl_b32 s58, s56, 9')
    a('s_lshl_b32 s54, s57, 6')
    a('s_add_u32 s58, s58, s54')
    a(f's_add_u32 s58, s58, {LDS_RED}')
    a('v_lshl_add_u32 v7, v2, 2, s58')
    a('v_lshlrev_b32 v9, 2, v0')
    a(f'v_add_u32 v10, {LDS_RED}, v9')
    a('s_lshl_b32 s58, s40, 7')
    a(f's_add_u32 s58, s58, {LDS_ACT}')
    a('v_lshl_add_u32 v11, v0, 1, s58')
    a('v_lshl_add_u32 v12, v3, 4, s58')
    a('s_mul_i32 s62, s3, 2304')
    a(f's_add_u32 s62, s62, {WS_PART}')
    a('s_lshl_b32 s58, s40, 6')
    a('s_add_u32 s63, s62, s58')
    a('s_add_u32 s63, s63, 2048')
    a('s_lshl_b32 s58, s40, 8')
    a('s_add_u32 s62, s62, s58')
    a('s_waitcnt vmcnt(0)')
    a('s_barrier')
    DF = lambda kap, m: 136 + (m * 2 + kap) * 4
    for m in range(5):
        for kap in range(2):
            for h in range(2):
                a(f'ds_read_b64_tr_b16 {vr(DF(kap,m)+2*h,2)}, v14 offset:{kap*36864 + h*512 + m*2048}')
        if m % 2 == 1:
            a('s_waitcnt lgkmcnt(0)')
    a('s_waitcnt lgkmcnt(0)')
    stamp(a, 11)
    a('s_cmp_lg_u32 s40, 7')
    a('s_cbranch_scc1 L_FWAIT')
    wait_cleared(a, 'L_WC2')
    key_poll('L_K')
    a(f'v_add_u32 v8, {LDS_XS}, v4')
    a('ds_write_b128 v8, v[24:27]')
    a('s_mov_b64 exec, 0xff')
    a('ds_write_b128 v8, v[28:31] offset:1024')
    a('s_mov_b64 exec, -1')
    a('s_waitcnt lgkmcnt(0)')
    lab(a, 'L_FWAIT')
    a('s_barrier')
    stamp(a, 12)
    XF = lambda k: 176 + 4 * k
    for k in range(9):
        a(f'ds_read_b128 {vr(XF(k),4)}, v6 offset:{k*64}')
    for k in range(9):
        a(f's_waitcnt lgkmcnt({8-k})')
        for mat in range(2):
            c = '0' if k == 0 else vr(52 + 4 * mat, 4)
            a(f'v_mfma_f32_16x16x32_bf16 {vr(52+4*mat,4)}, {vr(XF(k),4)}, {vr(WF(mat,k),4)}, {c}')
    a('s_mov_b64 exec, 0xffff')
    a('ds_write2st64_b32 v7, v52, v56 offset0:0 offset1:1')
    a('s_mov_b64 exec, -1')
    a('s_waitcnt lgkmcnt(0)')
    a('s_barrier')
    stamp(a, 13)
    a('ds_read2st64_b32 v[16:17], v10 offset0:0 offset1:1')
    a('ds_read2st64_b32 v[18:19], v10 offset0:2 offset1:3')
    a('s_waitcnt vmcnt(0) lgkmcnt(0)')
    a('v_pk_add_f32 v[16:17], v[16:17], v[18:19]')
    a('v_cvt_pk_bf16_f32 v18, v16, v17')
    a('v_lshlrev_b32 v16, 16, v18')
    a('v_and_b32 v17, 0xffff0000, v18')
    a('v_mul_f32 v19, 0xbfb8aa3b, v16')
    a('v_exp_f32 v19, v19')
    a('v_add_f32 v19, 1.0, v19')
    a('v_rcp_f32 v19, v19')
    a('v_mul_f32 v19, v19, v16')
    bfround(a, 19, 19)
    a('v_mul_f32 v19, v19, v17')
    a('v_cvt_pk_bf16_f32 v19, v19, v19')
    a('ds_write_b16 v11, v19')
    a('s_waitcnt lgkmcnt(0)')
    a('ds_read_b128 v[20:23], v12')
    a('ds_read_b128 v[24:27], v12 offset:64')
    DA = lambda m: 28 + 4 * m
    for kap in range(2):
        a(f's_waitcnt lgkmcnt({1-kap})')
        for m in range(5):
            c = '0' if kap == 0 else vr(DA(m), 4)
            a(f'v_mfma_f32_16x16x32_bf16 {vr(DA(m),4)}, {vr(20+4*kap,4)}, {vr(DF(kap,m),4)}, {c}')
    a('v_mov_b32 v17, 0x7fc00000')
    a(f'v_cndmask_b32 v16, v{DA(0)}, v{DA(1)}, s[48:49]')
    a(f'v_cndmask_b32 v16, v16, v{DA(2)}, s[52:53]')
    a(f'v_cndmask_b32 v16, v16, v{DA(3)}, s[60:61]')
    a('v_cmp_eq_u32 vcc, -1, v16')
    a('v_cndmask_b32 v16, v16, v17, vcc')
    a(f'buffer_store_dword v16, v9, s[36:39], s62 offen{SC}')
    a('s_cmp_ge_u32 s40, 4')
    a('s_cbranch_scc1 L_FDONE')
    a(f'v_cmp_eq_u32 vcc, -1, v{DA(4)}')
    a(f'v_cndmask_b32 v18, v{DA(4)}, v17, vcc')
    a('s_mov_b64 exec, 0xffff')
    a(f'buffer_store_dword v18, v9, s[36:39], s63 offen{SC}')
    a('s_mov_b64 exec, -1')
    lab(a, 'L_FDONE')
    stamp(a, 14)
    a('s_branch L_EXIT')

    lab(a, 'L_FIN')
    a('v_and_b32 v2, 15, v0')
    a('v_lshrrev_b32 v3, 4, v0')
    a('v_lshlrev_b32 v4, 4, v0')
    a('v_add_u32 v5, 1024, v4')
    a('v_lshlrev_b32 v9, 2, v0')
    srd(a, 36, 14, WS_RANGE)
    a('s_sub_u32 s42, s2, 72')
    a('s_mul_i32 s41, s40, 20736')
    a('s_lshl_b32 s43, s42, 8')
    a('s_add_u32 s41, s41, s43')
    a(f's_add_u32 s41, s41, {WS_PART}')
    a('s_lshl_b32 s45, s40, 8')
    a('v_add_u32 v10, s45, v9')
    srd(a, 32, 72, X_BYTES)
    a('s_lshl_b32 s44, s42, 4')
    a('s_cmp_lt_u32 s42, 8')
    a('s_cselect_b32 s43, 7, 4')
    a('s_cselect_b32 s44, s44, 512')
    a('v_lshlrev_b32 v12, s43, v3')
    a('v_add3_u32 v12, v12, v2, s44')
    a('v_lshlrev_b32 v12, 1, v12')
    a('v_mov_b32 v63, 0')
    a('s_cmp_lg_u32 s40, 7')
    a('s_cbranch_scc1 L_NWAIT')
    key_poll('L_N')
    lab(a, 'L_NWAIT')
    a('s_barrier')
    stamp(a, 12)
    a('s_cmp_lg_u32 s40, 7')
    a('s_cbranch_scc1 L_PP')
    a('s_lshl_b32 s48, s46, 7')
    a(f's_add_u32 s48, s48, {WS_KEYS + 64}')
    a('v_mov_b32 v8, 0')
    a('s_mov_b32 s58, 0')
    lab(a, 'L_FPOLL')
    a(f'buffer_load_dword v11, v8, s[36:39], s48 offen{SC}')
    a('s_add_u32 s58, s58, 1')
    a('s_waitcnt vmcnt(0)')
    a('v_readfirstlane_b32 s44, v11')
    a('s_cmp_lg_u32 s44, -1')
    a('s_cbranch_scc1 L_FGOT2')
    a(f's_cmp_lt_u32 s58, {SPIN_LIMIT}')
    a('s_cbranch_scc1 L_FPOLL')
    lab(a, 'L_FGOT2')
    a('s_mul_i32 s45, s46, 1280')
    a(f's_add_u32 s45, s45, {WS_H}')
    a('v_mov_b32 v60, 0')
    a('v_mov_b32 v61, 0')
    a(f'buffer_load_short_d16_hi v60, v12, s[36:39], s47 offen{SC}')
    a(f'buffer_load_short_d16_hi v61, v12, s[36:39], s45 offen{SC}')
    a(f'buffer_load_dwordx2 v[62:63], v8, s[36:39], s45 offen offset:1152{SC}')
    lab(a, 'L_PP')
    a('s_mov_b32 s58, 0')
    lab(a, 'L_PPOLL')
    a('s_mov_b32 s43, s41')
    P = lambda p: 32 + p
    for p in range(9):
        a(f'buffer_load_dword v{P(p)}, v9, s[36:39], s43 offen{SC}')
        if p < 8:
            a('s_add_u32 s43, s43, 2304')
    a('s_add_u32 s58, s58, 1')
    a('s_waitcnt vmcnt(0)')
    a(f'v_max3_u32 v16, v{P(0)}, v{P(1)}, v{P(2)}')
    a(f'v_max3_u32 v17, v{P(3)}, v{P(4)}, v{P(5)}')
    a(f'v_max3_u32 v18, v{P(6)}, v{P(7)}, v{P(8)}')
    a('v_max3_u32 v16, v16, v17, v18')
    a('v_cmp_eq_u32 vcc, -1, v16')
    a(f'v_pk_add_f32 v[18:19], {vr(P(0),2)}, {vr(P(2),2)}')
    a(f'v_pk_add_f32 v[20:21], {vr(P(4),2)}, {vr(P(6),2)}')
    a('s_cmp_eq_u64 vcc, 0')
    a('s_cbranch_scc1 L_PGOT')
    a(f's_cmp_lt_u32 s58, {SPIN_LIMIT}')
    a('s_cbranch_scc1 L_PPOLL')
    lab(a, 'L_PGOT')
    a('v_pk_add_f32 v[18:19], v[18:19], v[20:21]')
    a(f'v_add_f32 v18, v18, v{P(8)}')
    a('v_add_f32 v18, v18, v19')
    a('ds_write_b32 v10, v18')
    a('s_waitcnt lgkmcnt(0)')
    stamp(a, 13)
    a('s_barrier')
    a('s_cmp_lg_u32 s40, 7')
    a('s_cbranch_scc1 L_EXIT')
    for w in range(4):
        a(f'ds_read2st64_b32 {vr(16+2*w,2)}, v9 offset0:{2*w} offset1:{2*w+1}')
    bfround(a, 62, 62)
    a('v_mul_f32 v30, 0xbfb8aa3b, v62')
    a('v_exp_f32 v30, v30')
    a('v_mul_u32_u24 v63, 1152, v63')
    a('v_add_f32 v30, 1.0, v30')
    a('v_rcp_f32 v30, v30')
    a('v_add_u32 v63, v63, v12')
    bfround(a, 30, 30)
    a('s_waitcnt lgkmcnt(0)')
    a('v_pk_add_f32 v[16:17], v[16:17], v[18:19]')
    a('v_pk_add_f32 v[20:21], v[20:21], v[22:23]')
    a('v_pk_add_f32 v[16:17], v[16:17], v[20:21]')
    a('v_add_f32 v16, v16, v17')
    bfround(a, 16, 16)
    a('v_mul_f32 v16, v16, v30')
    bfround(a, 16, 16)
    a('v_add_f32 v16, v16, v60')
    bfround(a, 16, 16)
    a('v_add_f32 v16, v16, v61')
    a('v_cvt_pk_bf16_f32 v16, v16, v16')
    a('buffer_store_short v16, v63, s[32:35], 0 offen')
    stamp(a, 14)
    lab(a, 'L_EXIT')
    if STAMP:
        a('s_waitcnt vmcnt(0)')
        stamp(a, 15)
        stamp_flush(a)
    lab(a, 'L_END')
    a('s_endpgm')
    a.label('CODE_END')


def main(path):
    a = Asm()
    if OPT['aslist']:
        a.raw(f'; @launch kernel={NAME} grid=(256,1,1) block=(512,1,1) lds={LDS_TOTAL}')
    else:
        a.raw(f'; @launch grid=(256,1,1) block=(512,1,1) lds={LDS_TOTAL}')
    a.raw('.amdgcn_target "amdgcn-amd-amdhsa--gfx950"')
    a.raw('.text')
    gen(a)
    a.raw('.section .rodata,"a"')
    a.raw(f'''.p2align 6
.amdhsa_kernel {NAME}
  .amdhsa_next_free_vgpr 256
  .amdhsa_next_free_sgpr {100 if STAMP else 88}
  .amdhsa_accum_offset 256
  .amdhsa_group_segment_fixed_size 0
  .amdhsa_kernarg_size 104
  .amdhsa_user_sgpr_count 2
  .amdhsa_user_sgpr_kernarg_segment_ptr 1
  .amdhsa_system_sgpr_workgroup_id_x 1
.end_amdhsa_kernel
''')
    open(path, 'w').write(a.text())


if __name__ == '__main__':
    for arg in sys.argv[2:]:
        if arg == 'stamp':
            STAMP = True
        else:
            k, v = arg.split('=')
            OPT[k] = int(v)
    main(sys.argv[1])
```

```python
import sys, subprocess
out, gen, opts = sys.argv[1], sys.argv[2], sys.argv[3:]
subprocess.check_call(['python', gen, 'amp_tmp.s', 'aslist=1', 'ls=1'] + opts)
base = open('amp_tmp.s').read()
lines = base.split('\n')
idx = [i for i, l in enumerate(lines) if '@launch' in l]
lines.insert(idx[-1] + 1, '; @launch kernel=dl_kernel grid=(1,1,1) block=(64,1,1) lds=0')
txt = '\n'.join(lines)
code = """.globl dl_kernel
.p2align 8
.type dl_kernel,@function
dl_kernel:
    s_cmp_lg_u32 s2, 0
    s_cbranch_scc1 DL_END
    s_load_dwordx2 s[4:5], s[0:1], 96
    s_waitcnt lgkmcnt(0)
    s_mov_b32 s8, s4
    s_mov_b32 s9, s5
    s_mov_b32 s10, 0x1000000
    s_mov_b32 s11, 0x00020000
    v_mov_b32 v1, %d
    buffer_load_dwordx4 v[4:7], v1, s[8:11], 0 offen
    buffer_load_dwordx4 v[8:11], v1, s[8:11], 0 offen offset:16
    buffer_load_dword v12, v1, s[8:11], 0 offen offset:32
    s_waitcnt vmcnt(0)
    v_max3_u32 v3, v4, v5, v6
    v_max3_u32 v3, v3, v7, v8
    v_max3_u32 v3, v3, v9, v10
    v_max3_u32 v3, v3, v11, v12
    s_nop 1
    v_readfirstlane_b32 s12, v3
    s_nop 3
    s_min_u32 s12, s12, 10000
    s_mul_i32 s12, s12, 8
    s_memrealtime s[14:15]
    s_waitcnt lgkmcnt(0)
DL_LOOP:
    s_memrealtime s[16:17]
    s_waitcnt lgkmcnt(0)
    s_sub_u32 s18, s16, s14
    s_cmp_lt_u32 s18, s12
    s_cbranch_scc1 DL_LOOP
DL_END:
    s_endpgm
.section .rodata,"a"
.p2align 6
.amdhsa_kernel dl_kernel
  .amdhsa_next_free_vgpr 16
  .amdhsa_next_free_sgpr 24
  .amdhsa_accum_offset 16
  .amdhsa_group_segment_fixed_size 0
  .amdhsa_kernarg_size 104
  .amdhsa_user_sgpr_count 2
  .amdhsa_user_sgpr_kernarg_segment_ptr 1
  .amdhsa_system_sgpr_workgroup_id_x 1
.end_amdhsa_kernel
""" % (0x800000 + 72 * 4)
txt = txt.replace('.section .rodata,"a"', code, 1)
open('cdna_kernels/' + out, 'w').write(txt)
```

```python
import sys, subprocess
out, gen, opts = sys.argv[1], sys.argv[2], sys.argv[3:]
rng = [o for o in opts if o.startswith('rng=')]
opts = [o for o in opts if not o.startswith('rng=')]
subprocess.check_call(['python', gen, 'amp_tmp.s', 'aslist=1', 'ls=1'] + opts)
base = open('amp_tmp.s').read()
lines = base.split('\n')
idx = [i for i, l in enumerate(lines) if '@launch' in l]
lines.insert(idx[-1] + 1, '; @launch kernel=dl_kernel grid=(1,1,1) block=(64,1,1) lds=0')
txt = '\n'.join(lines)
if rng:
    lo, hi, op = rng[0][4:].split(',')
    lo, hi = int(lo), int(hi)
    body = f"""    v_min_u32 v1, {hi-lo-1}, v0
    v_lshlrev_b32 v1, 2, v1
    v_add_u32 v1, {0x800000 + 4096 + 4*lo}, v1
    buffer_load_dword v3, v1, s[8:11], 0 offen
    s_waitcnt vmcnt(0)
"""
    for m, rm in [('row_shr:1', '0xf'), ('row_shr:2', '0xf'), ('row_shr:4', '0xf'), ('row_shr:8', '0xf'), ('row_bcast:15', '0xa'), ('row_bcast:31', '0xc')]:
        body += f"    s_nop 1\n    v_{op}_u32_dpp v3, v3, v3 {m} row_mask:{rm} bank_mask:0xf\n"
    body += "    s_nop 1\n    v_readlane_b32 s12, v3, 63\n    s_nop 3\n    v_mov_b32 v3, s12\n"
else:
    body = """    v_mov_b32 v1, %d
    buffer_load_dwordx4 v[4:7], v1, s[8:11], 0 offen
    buffer_load_dwordx4 v[8:11], v1, s[8:11], 0 offen offset:16
    buffer_load_dword v12, v1, s[8:11], 0 offen offset:32
    s_waitcnt vmcnt(0)
    v_max3_u32 v3, v4, v5, v6
    v_max3_u32 v3, v3, v7, v8
    v_max3_u32 v3, v3, v9, v10
    v_max3_u32 v3, v3, v11, v12
""" % (0x800000 + 72 * 4)
code = """.globl dl_kernel
.p2align 8
.type dl_kernel,@function
dl_kernel:
    s_cmp_lg_u32 s2, 0
    s_cbranch_scc1 DL_END
    s_load_dwordx2 s[4:5], s[0:1], 96
    s_waitcnt lgkmcnt(0)
    s_mov_b32 s8, s4
    s_mov_b32 s9, s5
    s_mov_b32 s10, 0x1000000
    s_mov_b32 s11, 0x00020000
%s    s_nop 1
    v_readfirstlane_b32 s12, v3
    s_nop 3
    s_min_u32 s12, s12, 10000
    s_mul_i32 s12, s12, 8
    s_memrealtime s[14:15]
    s_waitcnt lgkmcnt(0)
DL_LOOP:
    s_memrealtime s[16:17]
    s_waitcnt lgkmcnt(0)
    s_sub_u32 s18, s16, s14
    s_cmp_lt_u32 s18, s12
    s_cbranch_scc1 DL_LOOP
DL_END:
    s_endpgm
.section .rodata,"a"
.p2align 6
.amdhsa_kernel dl_kernel
  .amdhsa_next_free_vgpr 16
  .amdhsa_next_free_sgpr 24
  .amdhsa_accum_offset 16
  .amdhsa_group_segment_fixed_size 0
  .amdhsa_kernarg_size 104
  .amdhsa_user_sgpr_count 2
  .amdhsa_user_sgpr_kernarg_segment_ptr 1
  .amdhsa_system_sgpr_workgroup_id_x 1
.end_amdhsa_kernel
""" % body
txt = txt.replace('.section .rodata,"a"', code, 1)
open('cdna_kernels/' + out, 'w').write(txt)
```

```python
import sys
import struct
from asmdsl import Asm, Cnt, vr, sr

NAME = 'sequential_preLN__spectral_fnet__moe_arch_mod__prompt_kernel'
S, D, F = 2048, 576, 4608
X_BYTES = S * D * 2
SEQ_BYTES = S * S * 2
HID_BYTES = D * D * 2
WG_BYTES = D * F * 2
WS_U = 0
WS_KEYS = 0x240000
WS_UF = WS_KEYS + 16384
WS_PART = WS_UF + 192 * 64
WS_HN = WS_PART + 72 * 2304
WS_FILL_END = WS_HN + 128 * 1152
WS_H = 0x2a0000
WS_RANGE = 0x900000
WS_STAMP = 0x800000
assert WS_FILL_END <= WS_H and WS_FILL_END - WS_KEYS <= 64 * 8192

STAMP = False
OPT = dict(ahead=2, warm=0, hwait=1, ls=0, hfirst=0, wpf=0, wpf_at=3, usent=0, outsc=1, depth=3, slow=6, gap=3, codepf=1, ntw=0, ipf=0, fearly=1, coop=1, sleep=1, aslist=0)
SC = ' sc1'
SPIN_LIMIT = 400000
NCLR = 16
INVB = struct.unpack('<I', struct.pack('<f', 1.0 / 576.0))[0]
EPSB = struct.unpack('<I', struct.pack('<f', 1e-5))[0]

P1_B = 73728
P1_F = 135168
P1_ST = 151552
LDS_T = 152064
LDS_C = LDS_T + 4096
LDS_XS = 152064
LDS_RED = LDS_XS + 1280
LDS_ACT = LDS_RED + 1024
LDS_CNT = LDS_C + 32
LDS_TOTAL = LDS_C + 64
R_Y = 73728
R_YS = 2312
R_STG = R_Y + 16 * R_YS
R_X = R_STG + 16 * 1152 + 1024
R_W = R_X + 16 * 1152
assert R_W + 1152 + 1024 <= P1_ST
GROUPS = [(0, 0, 0), (1, 0, 5), (None, 0, 1), (2, 0, 6), (None, 0, 2), (3, 0, 7), (None, 0, 3), (4, 1, 8), (None, 0, 4)]
STAGES = [[0], [1], [2, 3], [4, 5], [6, 7], [8]]


def srd(a, d, b, nbytes):
    a(f's_mov_b32 s{d}, s{b}')
    a(f's_mov_b32 s{d+1}, s{b+1}')
    a(f's_mov_b32 s{d+2}, {nbytes}')
    a(f's_mov_b32 s{d+3}, 0x00020000')


def stamp(a, k):
    if STAMP:
        if k == 0:
            a('v_mov_b32 v1, 0')
        a('s_memrealtime s[92:93]')
        a('s_waitcnt lgkmcnt(0)')
        a(f'v_writelane_b32 v1, s92, {k}')


def lpoint(a, k):
    if OPT['ls'] == k:
        a('s_memrealtime s[94:95]')
        a('s_waitcnt lgkmcnt(0)')


def fpoint(a, k):
    if OPT['ls'] == k:
        a('s_memrealtime s[94:95]')
        a('s_waitcnt lgkmcnt(0)')
        a('s_sub_u32 s94, s94, s90')
        a('v_mov_b32 v236, s94')
        a('s_lshl_b32 s95, s2, 2')
        a(f's_add_u32 s95, s95, {WS_STAMP + 4096}')
        a('v_mov_b32 v237, 0')
        a('buffer_store_dword v236, v237, s[36:39], s95 offen')


def stamp_flush(a):
    if not STAMP:
        return
    a('s_mov_b32 exec_lo, -1')
    a('s_mov_b32 exec_hi, 0')
    srd(a, 96, 14, WS_RANGE)
    a('s_lshl_b32 s95, s2, 3')
    a('s_add_u32 s95, s95, s40')
    a('s_lshl_b32 s95, s95, 7')
    a(f's_add_u32 s95, s95, {WS_STAMP}')
    a('v_lshlrev_b32 v0, 2, v0')
    a('buffer_store_dword v1, v0, s[96:99], s95 offen')


def bfround(a, dst, src):
    a(f'v_cvt_pk_bf16_f32 v{dst}, v{src}, v{src}')
    a(f'v_and_b32 v{dst}, 0xffff0000, v{dst}')


def dpp_reduce(a, op, regs, upto=6):
    ms = [('row_shr:1', '0xf'), ('row_shr:2', '0xf'), ('row_shr:4', '0xf'), ('row_shr:8', '0xf'), ('row_bcast:15', '0xa'), ('row_bcast:31', '0xc')]
    for m, rm in ms[:upto]:
        for r in regs:
            a(f'{op}_dpp v{r}, v{r}, v{r} {m} row_mask:{rm} bank_mask:0xf')


def lab(a, name):
    a.label(name)
    a.flush_hist()


def wait_cleared(a, name):
    srd(a, 76, 74, 256)
    a('v_mov_b32 v250, 0')
    a('s_mov_b32 s58, 0')
    lab(a, name)
    a(f'buffer_load_dword v251, v250, s[76:79], 0 offen{SC}')
    a('s_add_u32 s58, s58, 1')
    a('s_waitcnt vmcnt(0)')
    a('v_readfirstlane_b32 s59, v251')
    a(f's_cmp_ge_u32 s59, {NCLR}')
    a(f's_cbranch_scc1 {name}_OK')
    a('s_sleep 8')
    a(f's_cmp_lt_u32 s58, {SPIN_LIMIT}')
    a(f's_cbranch_scc1 {name}')
    lab(a, name + '_OK')


def gen(a):
    a.raw(f'.globl {NAME}')
    a.raw('.p2align 8')
    a.raw(f'.type {NAME},@function')
    lab(a, NAME)
    if OPT['ls']:
        a('s_memrealtime s[90:91]')
    a('s_cmp_ge_u32 s2, 256')
    a('s_cbranch_scc1 L_END')
    a('s_load_dwordx8 s[4:11], s[0:1], 0')
    a('s_load_dwordx2 s[12:13], s[0:1], 32')
    a('s_load_dwordx2 s[14:15], s[0:1], 96')
    a('s_load_dwordx8 s[64:71], s[0:1], 48')
    a('s_load_dwordx4 s[72:75], s[0:1], 80')
    a('v_lshrrev_b32 v1, 6, v0')
    a('v_readfirstlane_b32 s40, v1')
    def helper_code():
        lab(a, 'L_HELP')
        a(f's_cmp_ge_u32 s2, {NCLR}')
        a('s_cbranch_scc1 L_HELP2')
        NF = (WS_FILL_END - WS_KEYS + NCLR * 8192 - 1) // (NCLR * 8192)
        a('v_lshlrev_b32 v13, 4, v0')
        for r in range(28, 32):
            a(f'v_mov_b32 v{r}, -1')
        a(f's_mul_i32 s54, s2, {NF*8192}')
        a(f's_add_u32 s54, s54, {WS_KEYS}')
        a(f's_mov_b32 s62, {WS_FILL_END}')
        a('s_mov_b32 s63, 0x00020000')
        a('v_mov_b32 v6, 0')
        a('v_mov_b32 v7, 1')
        a('s_waitcnt lgkmcnt(0)')
        a('s_mov_b32 s60, s14')
        a('s_mov_b32 s61, s15')
        for q in range(NF):
            a(f'buffer_store_dwordx4 v[28:31], v13, s[60:63], s54 offen{SC}')
            if q < NF - 1:
                a('s_add_u32 s54, s54, 8192')
        srd(a, 76, 74, 256)
        a('v_and_b32 v0, 63, v0')
        a('s_and_b32 s41, s2, 7')
        a('s_lshr_b32 s42, s2, 3')
        a('s_waitcnt vmcnt(0)')
        a('s_barrier')
        a('s_cmp_lg_u32 s40, 7')
        a('s_cbranch_scc1 L_HELP4')
        a('s_mov_b64 exec, 1')
        a('buffer_atomic_add v7, v6, s[76:79], 0 offen')
        a('s_mov_b64 exec, -1')
        a('s_branch L_HELP4')
        lab(a, 'L_HELP2')
        a('v_and_b32 v0, 63, v0')
        a('s_and_b32 s41, s2, 7')
        a('s_lshr_b32 s42, s2, 3')
        a('s_cmp_ge_u32 s40, 5')
        a('s_cbranch_scc1 L_HELP3')
        if OPT['warm']:
            a('s_sub_u32 s43, s42, 2')
            a('v_mul_u32_u24 v8, 9216, v0')
            a('v_mul_u32_u24 v10, 1152, v0')
            a('s_mul_i32 s48, s43, 344')
            a('s_add_u32 s48, s48, s41')
            a('s_mul_i32 s48, s48, 1152')
            a('s_lshl_b32 s50, s40, 8')
            a('s_add_u32 s48, s48, s50')
            a('s_mul_i32 s49, s43, 55296')
            a('s_lshl_b32 s50, s40, 7')
            a('s_add_u32 s49, s49, s50')
            a('s_waitcnt lgkmcnt(0)')
            srd(a, 16, 4, X_BYTES)
            srd(a, 28, 10, HID_BYTES)
            srd(a, 32, 12, HID_BYTES)
            a('s_mov_b32 exec_hi, 0x7ff')
            a('buffer_load_dword v18, v8, s[16:19], s48 offen')
            a('s_mov_b32 exec_hi, 0xffff')
            a('buffer_load_dword v16, v10, s[28:31], s49 offen offset:1152')
            a('buffer_load_dword v17, v10, s[32:35], s49 offen offset:1152')
            a('s_mov_b32 exec_hi, 0x7ff')
            a('buffer_load_dword v19, v8, s[16:19], s48 offen offset:128')
            a('s_mov_b32 exec_hi, -1')
        a('s_branch L_HELP4')
        lab(a, 'L_HELP3')
        a('s_cmp_eq_u32 s40, 5')
        a('s_cbranch_scc1 L_HELP5')
        a('s_cmp_eq_u32 s40, 7')
        a('s_cbranch_scc1 L_HELP4')
        if OPT['codepf']:
            a('s_getpc_b64 s[76:77]')
            a.label('L_PC')
            a(f's_sub_u32 s76, s76, L_PC-{NAME}')
            a('s_subb_u32 s77, s77, 0')
            a('v_lshlrev_b32 v7, 7, v0')
            for q in range(3):
                if q:
                    a('v_add_u32 v7, 8192, v7')
                a(f'v_cmp_gt_u32 vcc, CODE_END-{NAME}, v7')
                a('v_cndmask_b32 v8, 0, v7, vcc')
                a(f'global_load_dword v{20+q}, v8, s[76:77]')
        a('s_branch L_HELP4')
        lab(a, 'L_HELP5')
        if OPT['warm']:
            a('v_lshlrev_b32 v12, 17, v0')
            a('s_sub_u32 s52, s42, 2')
            a(f's_mul_i32 s52, s52, {11*131072}')
            a('s_waitcnt lgkmcnt(0)')
            srd(a, 20, 6, SEQ_BYTES)
            srd(a, 24, 8, SEQ_BYTES)
            a('s_mov_b64 exec, 0x7ff')
            a('buffer_load_dword v19, v12, s[20:23], s52 offen')
            a('buffer_load_dword v20, v12, s[24:27], s52 offen')
            a('s_mov_b64 exec, -1')
        lab(a, 'L_HELP4')
        a('s_waitcnt lgkmcnt(0)')
        stamp(a, 0)
        stamp(a, 1)
        if OPT['hwait']:
            a('s_waitcnt vmcnt(0)')
        for _ in range(OPT.get('hdelay', 0)):
            a('s_sleep 32')
        a('s_barrier')
        a('s_cmp_ge_u32 s40, 2')
        a('s_cbranch_scc1 L_FFN')
        srd(a, 16, 66, WG_BYTES)
        srd(a, 20, 68, WG_BYTES)
        srd(a, 24, 70, WG_BYTES)
        a('s_mul_i32 s43, s42, 72')
        a('s_mul_i32 s44, s40, 36')
        a('s_add_u32 s43, s43, s44')
        a('s_mul_i32 s44, s41, 9')
        a('s_add_u32 s44, s44, 8')
        a('s_mul_i32 s45, s43, 9216')
        a('s_lshl_b32 s46, s44, 7')
        a('s_add_u32 s45, s45, s46')
        a('s_mul_i32 s46, s44, 73728')
        a('s_lshl_b32 s47, s43, 7')
        a('s_add_u32 s46, s46, s47')
        a('v_mul_u32_u24 v6, 9216, v0')
        a('v_lshlrev_b32 v7, 7, v0')
        a('s_mov_b32 exec_hi, 0xf')
        a('buffer_load_dword v240, v6, s[16:19], s45 offen')
        a('buffer_load_dword v241, v6, s[20:23], s45 offen')
        a('buffer_load_dword v242, v7, s[24:27], s46 offen')
        a('s_mov_b32 exec_hi, -1')
        a('s_branch L_FFN')


    if OPT['hfirst']:
        a('s_cmp_ge_u32 s2, 64')
        a('s_cbranch_scc1 L_PROD')
        helper_code()
        lab(a, 'L_PROD')
    else:
        a('s_cmp_lt_u32 s2, 64')
        a('s_cbranch_scc1 L_HELP')
    a('v_and_b32 v0, 63, v0')
    a('s_and_b32 s41, s2, 31')
    a('s_lshr_b32 s42, s2, 5')
    a('s_sub_u32 s42, s42, 2')
    a('v_lshrrev_b32 v3, 4, v0')
    a('s_cmp_ge_u32 s42, 3')
    a('s_cselect_b32 s43, 1, 0')
    a('s_cmp_lt_u32 s40, 4')
    a('s_cbranch_scc1 L_P1MM')
    vm = Cnt(a, 'vmcnt', 63)
    a('v_lshrrev_b32 v8, 3, v0')
    a('v_and_b32 v9, 7, v0')
    a('v_xor_b32 v9, v9, v3')
    a('v_lshlrev_b32 v9, 4, v9')
    a('s_sub_u32 s44, s40, 4')
    a('s_lshr_b32 s45, s44, 1')
    a('s_lshl_b32 s45, s45, 5')
    a('s_and_b32 s51, s44, 1')
    a('s_lshl_b32 s46, s51, 2')
    a('s_add_u32 s45, s45, s46')
    a('v_lshrrev_b32 v6, 2, v8')
    a('v_lshlrev_b32 v6, 3, v6')
    a('v_and_b32 v10, 3, v8')
    a('v_add3_u32 v6, v6, v10, s45')
    a('v_mul_u32_u24 v6, 36864, v6')
    a('s_mul_i32 s47, s41, 1152')
    a('v_xor_b32 v10, 64, v9')
    a('v_add_u32 v7, s47, v6')
    a('v_add_u32 v6, v7, v9')
    a('v_add_u32 v7, v7, v10')
    a(f'v_add_u32 v7, {16*36864}, v7')
    a('s_lshl_b32 s48, s44, 11')
    a('s_mul_i32 s50, s42, 96')
    a('s_mul_i32 s52, s43, 287')
    a('s_sub_u32 s50, s50, s52')
    a('s_lshl_b32 s52, s51, 4')
    a('s_add_u32 s50, s50, s52')
    a('v_lshl_add_u32 v40, v8, 1, s50')
    a('s_lshl_b32 s52, s51, 6')
    a('v_xor_b32 v43, s52, v9')
    a('v_mul_u32_u24 v41, 1152, v40')
    a('v_cmp_eq_u32 vcc, 0, v40')
    a(f'v_mov_b32 v42, {288*1152}')
    a('v_cndmask_b32 v40, v41, v42, vcc')
    a('v_add_u32 v40, v40, v43')
    a('v_add_u32 v41, v41, v43')
    a('v_add_u32 v42, 73728, v41')
    a('v_add_u32 v41, 36864, v41')
    a('s_lshl_b32 s53, s44, 10')
    a(f's_add_u32 s53, s53, {P1_B}')
    a('s_cmp_ge_u32 s44, 2')
    a(f's_mov_b32 s30, {HID_BYTES}')
    a('s_mov_b32 s31, 0x00020000')
    a('s_waitcnt lgkmcnt(0)')
    a('s_cselect_b32 s28, s12, s10')
    a('s_cselect_b32 s29, s13, s11')
    srd(a, 16, 4, X_BYTES)
    stamp(a, 0)
    lpoint(a, 2)

    def issue(st):
        for gi in STAGES[st]:
            cb, withF, c = GROUPS[gi]
            for hh in range(2):
                a(f's_add_u32 m0, s48, {c*8192 + hh*1024 - c*128}')
                a(f'buffer_load_dwordx4 v{6+hh}, s[16:19], 0 offen offset:{c*128} lds')
                vm.issue(st)
            if cb is not None:
                for w in range(3):
                    a(f's_add_u32 m0, s53, {w*20480 + cb*4096 - cb*128}')
                    a(f'buffer_load_dwordx4 v{40+w}, s[28:31], 0 offen offset:{cb*128} lds')
                    vm.issue(st)
            if withF and not OPT['fearly']:
                for part in range(2):
                    for hh in range(2):
                        a(f's_add_u32 m0, s49, {P1_F + (part*2+hh)*1024}')
                        a(f'buffer_load_dwordx4 v{14+hh}, s[{20+4*part}:{23+4*part}], 0 offen lds')
                        vm.issue(st)
    NS = len(STAGES)
    AH = OPT['ahead']
    for st in range(AH):
        issue(st)
    a('s_lshl_b32 s46, s44, 3')
    a('v_add_u32 v14, s46, v8')
    a('v_sub_u32 v15, 64, v14')
    a('v_cmp_eq_u32 vcc, 64, v15')
    a('v_cndmask_b32 v15, v15, 32, vcc')
    a('v_lshl_add_u32 v14, v14, 17, v9')
    a('v_lshl_add_u32 v15, v15, 17, v10')
    a('s_lshl_b32 s49, s44, 12')
    srd(a, 20, 6, SEQ_BYTES)
    srd(a, 24, 8, SEQ_BYTES)
    for st in range(NS):
        vm.wait(st)
        if st in (0, NS - 1):
            stamp(a, 1 if st == 0 else 2)
            lpoint(a, 3 if st == 0 else 4)
        a('s_barrier')
        if st + AH < NS:
            issue(st + AH)
        if st == OPT['wpf_at'] and OPT['wpf']:
            srd(a, 32, 66, WG_BYTES)
            srd(a, 36, 68, WG_BYTES)
            srd(a, 60, 70, WG_BYTES)
            a('s_sub_u32 s54, s2, 64')
            a('s_lshr_b32 s54, s54, 3')
            a('s_lshl_b32 s54, s54, 2')
            a('s_add_u32 s54, s54, s44')
            a('s_and_b32 s55, s2, 7')
            a('s_mul_i32 s56, s54, 55296')
            a('s_mul_i32 s57, s55, 1152')
            a('s_add_u32 s56, s56, s57')
            a('s_mul_i32 s57, s55, 663552')
            a('s_mul_i32 s58, s54, 6912')
            a('s_add_u32 s57, s57, s58')
            a('s_mov_b32 s58, 0x1c72')
            a('v_mul_u32_u24 v44, s58, v0')
            a('v_lshrrev_b32 v44, 16, v44')
            a('v_mul_u32_u24 v45, 9, v44')
            a('v_sub_u32 v45, v0, v45')
            a('v_mul_u32_u24 v44, 9216, v44')
            a('v_lshl_add_u32 v44, v45, 7, v44')
            a('v_lshlrev_b32 v45, 7, v0')
            a('s_mov_b32 exec_hi, 0x3fffff')
            a('buffer_load_dword v240, v44, s[32:35], s56 offen')
            vm.issue('pf')
            a('buffer_load_dword v241, v44, s[36:39], s56 offen')
            vm.issue('pf')
            a('buffer_load_dword v242, v45, s[60:63], s57 offen')
            vm.issue('pf')
            a('s_mov_b32 exec_hi, -1')
    a('s_cmp_lg_u32 s40, 4')
    a('s_cbranch_scc1 L_LDONE')
    a('s_barrier')
    wait_cleared(a, 'L_WC1')
    a('s_branch L_ARRIVE')
    lab(a, 'L_LDONE')
    a('s_cmp_ge_u32 s2, 128')
    a('s_cbranch_scc1 L_ROWPRE')
    a('s_barrier')
    a('s_branch L_P2')

    lab(a, 'L_P1MM')
    a('s_setprio 2')
    a('v_and_b32 v2, 15, v0')
    a('v_lshrrev_b32 v4, 1, v2')
    a('v_xor_b32 v4, v4, v3')
    a('v_lshlrev_b32 v4, 4, v4')
    a('v_lshl_add_u32 v4, v2, 7, v4')
    a('v_xor_b32 v5, 64, v4')
    for r in range(12, 16):
        a(f'v_mov_b32 v{r}, 0x3f803f80')
    XA, XB, BB, FB = 4, 242, 244, 246
    for b in range(2):
        a(f'v_add_u32 v{XB+b}, 0x10000, v{4+b}')
    if OPT['fearly']:
        a('v_lshrrev_b32 v8, 3, v0')
        a('v_and_b32 v9, 7, v0')
        a('v_xor_b32 v9, v9, v3')
        a('v_lshlrev_b32 v9, 4, v9')
        a('v_xor_b32 v10, 64, v9')
        a('s_lshl_b32 s46, s40, 3')
        a('v_add_u32 v6, s46, v8')
        a('v_sub_u32 v7, 64, v6')
        a('v_cmp_eq_u32 vcc, 64, v7')
        a('v_cndmask_b32 v7, v7, 32, vcc')
        a('v_lshl_add_u32 v6, v6, 17, v9')
        a('v_lshl_add_u32 v7, v7, 17, v10')
        a('s_lshl_b32 s49, s40, 12')
    if OPT['coop']:
        a('s_lshl_b32 s50, s42, 2')
        a('s_lshr_b32 s50, 0x483726, s50')
        a('s_and_b32 s50, s50, 15')
        a('s_lshl_b32 s50, s50, 7')
        a('s_mul_i32 s51, s41, 1152')
        a('s_add_u32 s50, s50, s51')
        a('s_mul_i32 s51, s42, 96')
        a('s_mul_i32 s52, s43, 287')
        a('s_sub_u32 s51, s51, s52')
        a('s_mul_i32 s51, s51, 1152')
        a('s_lshr_b32 s52, s41, 3')
        a('s_lshl_b32 s52, s52, 7')
        a('s_add_u32 s51, s51, s52')
        a('s_add_u32 s51, s51, 128')
        a('s_movk_i32 s52, 2304')
        a('s_cmp_eq_u32 s40, 0')
        a('s_cselect_b32 s52, 36864, s52')
        a('v_mul_u32_u24 v11, s52, v0')
    a('s_waitcnt lgkmcnt(0)')
    if OPT['coop']:
        a('s_cmp_eq_u32 s40, 1')
        a('s_cselect_b32 s16, s10, s12')
        a('s_cselect_b32 s17, s11, s13')
        a(f's_mov_b32 s18, {HID_BYTES}')
        a('s_cmp_eq_u32 s40, 0')
        a('s_cselect_b32 s16, s4, s16')
        a('s_cselect_b32 s17, s5, s17')
        a(f's_cselect_b32 s18, {X_BYTES}, s18')
        a('s_cselect_b32 s50, s50, s51')
        a('s_cselect_b32 exec_hi, -1, 0xffff')
        a('s_cmp_eq_u32 s40, 3')
        a('s_cselect_b32 s18, 0, s18')
        a('s_mov_b32 s19, 0x00020000')
        a('buffer_load_dword v239, v11, s[16:19], s50 offen')
        a('s_mov_b32 exec_hi, -1')
    if OPT['fearly']:
        srd(a, 20, 6, SEQ_BYTES)
        srd(a, 24, 8, SEQ_BYTES)
        for part in range(2):
            for hh in range(2):
                a(f's_add_u32 m0, s49, {P1_F + (part*2+hh)*1024}')
                a(f'buffer_load_dwordx4 v{6+hh}, s[{20+4*part}:{23+4*part}], 0 offen lds')
    stamp(a, 0)
    a('s_cmp_eq_u32 s40, 3')
    a('s_cbranch_scc1 L_STATS')
    lg = Cnt(a, 'lgkmcnt', 15)
    a('s_mul_i32 s44, s42, 3')
    a('s_add_u32 s44, s44, s40')
    a('s_mul_i32 s48, s40, 20480')
    a(f's_add_u32 s48, s48, {P1_B}')
    srd(a, 36, 14, WS_RANGE)
    for b in range(2):
        a(f'v_add_u32 v{BB+b}, s48, v{4+b}')
        a(f'v_add_u32 v{FB+b}, {P1_F}, v{4+b}')
    a('s_lshr_b32 s46, s41, 1')
    a('s_and_b32 s46, s46, 1')
    a('s_xor_b32 s46, s46, s44')
    a('s_lshl_b32 s46, s46, 7')
    a('s_mul_i32 s47, s41, 2304')
    a('s_add_u32 s46, s46, s47')
    a('s_and_b32 s47, s41, 1')
    a('s_lshl_b32 s47, s47, 2')
    a('v_lshrrev_b32 v7, 3, v0')
    a('v_and_b32 v9, 7, v0')
    a('v_xor_b32 v9, v9, v7')
    a('v_xor_b32 v9, s47, v9')
    a('v_mul_u32_u24 v7, 73728, v7')
    a('v_lshl_add_u32 v7, v9, 4, v7')
    a('v_add_u32 v7, s46, v7')
    a('v_and_b32 v9, 7, v2')
    a('v_lshrrev_b32 v240, 3, v2')
    a('v_lshl_add_u32 v240, v240, 2, v3')
    a('v_xor_b32 v240, v240, v9')
    a('v_lshlrev_b32 v240, 4, v240')
    a('v_lshl_add_u32 v240, v9, 7, v240')
    a('s_lshl_b32 s47, s40, 12')
    a('v_add_u32 v240, s47, v240')
    a('v_lshl_add_u32 v241, v0, 4, s47')
    a('v_lshlrev_b32 v8, 4, v3')
    a(f'v_add_u32 v8, {P1_ST}, v8')
    a('s_cmp_eq_u32 s43, 0')
    a('s_cselect_b32 s47, 1.0, -1.0')
    a('v_mov_b32 v10, s47')
    a('v_mov_b32 v11, s47')
    for it in range(1, 4):
        a(f's_mov_b32 s{59+it}, {it*8*73728}')
    Bre = lambda k: 16 + 8 * k
    Bim = lambda k: 20 + 8 * k
    acc = lambda hf, i, ab: 88 + ((hf * 4 + i) * 2 + ab) * 4
    cacc = lambda ab: 152 + 4 * ab
    Abuf = lambda b, i: 160 + b * 16 + i * 4
    st8 = dict(started=set(), bufno=0, passed=-1, lg=lg, Abuf=Abuf)
    Fregs = [Bre(k) for k in range(1, 8)] + [Bim(k) for k in range(1, 8)] + [248, 252]
    Freg = lambda f: Fregs[f]

    def rd_x(kk):
        b = st8['bufno'] % 3
        st8['bufno'] += 1
        c, par = kk >> 1, kk & 1
        for i in range(4):
            off = c * 8192 + i * 2048
            base = XA + par
            if off >= 65536:
                off -= 65536
                base = XB + par
            a(f'ds_read_b128 {vr(st8["Abuf"](b,i),4)}, v{base} offset:{off}')
            st8['lg'].issue(('x', kk))
        return b

    def rd_B(k):
        c, par = k >> 1, k & 1
        for part, reg in ((0, Bre(k)), (1, Bim(k))):
            a(f'ds_read_b128 {vr(reg,4)}, v{BB+par} offset:{(c*4 + part*2)*1024}')
            lg.issue(('B', k))

    def rd_F(f):
        it, kap, part = f >> 2, (f >> 1) & 1, f & 1
        a(f'ds_read_b128 {vr(Freg(f),4)}, v{FB+kap} offset:{(it*2+part)*2048}')
        lg.issue('F')

    def mf(dst, A, B):
        c = vr(dst, 4) if dst in st8['started'] else '0'
        st8['started'].add(dst)
        a(f'v_mfma_f32_16x16x32_bf16 {vr(dst,4)}, {vr(A,4)}, {vr(B,4)}, {c}')

    steps = [(st, kk) for st, gs in enumerate(STAGES) for gi in gs for kk in (2 * GROUPS[gi][2], 2 * GROUPS[gi][2] + 1)]
    NSTEP = len(steps)
    haveB = set()
    bufs = {}

    def fetch(n, withB=True):
        st, kk = steps[n]
        while st8['passed'] < st:
            st8['passed'] += 1
            if st8['passed'] == len(STAGES) - 1:
                a('s_waitcnt vmcnt(0)')
            a('s_barrier')
        k = kk % 9
        if withB and k not in haveB:
            haveB.add(k)
            rd_B(k)
        bufs[n] = rd_x(kk)
    fetch(0)
    fetch(1)
    fq = list(range(16))
    a('v_mov_b32 v9, 0')
    for n, (st, kk) in enumerate(steps):
        k, hf = kk % 9, kk // 9
        lg.wait(('x', kk))
        b = bufs[n]
        for i in range(4):
            mf(acc(hf, i, 0), Abuf(b, i), Bre(k))
            mf(acc(hf, i, 1), Abuf(b, i), Bim(k))
            if i == 0 and n + 2 < NSTEP:
                fetch(n + 2)
            if n >= NSTEP - 2 and fq and len(lg.q) < 13:
                rd_F(fq.pop(0)); rd_F(fq.pop(0))
        if hf == 0:
            mf(cacc(0), 12, Bre(k))
            mf(cacc(1), 12, Bim(k))
    while fq:
        if len(lg.q) >= 13:
            lg.wait_all()
        rd_F(fq.pop(0)); rd_F(fq.pop(0))
    for i in range(4):
        for ab in range(2):
            for h in range(2):
                d = acc(0, i, ab) + 2 * h
                s1 = acc(1, i, ab) + 2 * h
                a(f'v_pk_fma_f32 {vr(d,2)}, {vr(s1,2)}, v[10:11], {vr(d,2)}')
    lg.wait_all()
    stamp(a, 1)
    a('s_barrier')
    for i in range(4):
        a(f'ds_read_b128 {vr(208+4*i,4)}, v8 offset:{i*64}')
        lg.issue(('st', i))
        a(f'ds_read_b128 {vr(224+4*i,4)}, v8 offset:{256+i*64}')
        lg.issue(('st', i))
    za = lambda kap: 160 + 4 * kap
    zb = lambda kap: 168 + 4 * kap
    znb = lambda kap: 176 + 4 * kap
    out = lambda it, c: 120 + (it * 2 + c) * 4
    TMP = 184
    st8['started'] = set()
    Fidx = lambda it, kap, part: (it * 2 + kap) * 2 + part

    def zops(kap):
        L = []
        for hh in range(2):
            i = 2 * kap + hh
            for ab in range(2):
                for h in range(2):
                    t = TMP + ((hh * 2 + ab) * 2 + h) * 2
                    L.append(f'v_pk_mul_f32 {vr(t,2)}, {vr(224+4*i+2*h,2)}, {vr(cacc(ab),2)}')
        for hh in range(2):
            i = 2 * kap + hh
            for ab in range(2):
                for h in range(2):
                    d = acc(0, i, ab) + 2 * h
                    t = TMP + ((hh * 2 + ab) * 2 + h) * 2
                    L.append(f'v_pk_fma_f32 {vr(d,2)}, {vr(208+4*i+2*h,2)}, {vr(d,2)}, {vr(t,2)} neg_lo:[0,0,1] neg_hi:[0,0,1]')
        for ab, z in ((0, za), (1, zb)):
            for hh in range(2):
                src = acc(0, 2 * kap + hh, ab)
                L.append(f'v_cvt_pk_bf16_f32 v{z(kap)+2*hh}, v{src}, v{src+1}')
                L.append(f'v_cvt_pk_bf16_f32 v{z(kap)+2*hh+1}, v{src+2}, v{src+3}')
        for r in range(4):
            L.append(f'v_xor_b32 v{znb(kap)+r}, 0x80008000, v{zb(kap)+r}')
        return L

    def mops(kap):
        L = []
        for it in range(4):
            L.append((out(it, 0), za(kap), Freg(Fidx(it, kap, 0))))
            L.append((out(it, 1), za(kap), Freg(Fidx(it, kap, 1))))
        for it in range(4):
            L.append((out(it, 0), znb(kap), Freg(Fidx(it, kap, 1))))
            L.append((out(it, 1), zb(kap), Freg(Fidx(it, kap, 0))))
        return L
    lg.wait(('st', 1))
    for ins in zops(0):
        a(ins)
    lg.wait(('st', 3))
    z1 = zops(1)
    for m in mops(0):
        mf(*m)
        for _ in range(2):
            if z1:
                a(z1.pop(0))
    while z1:
        a(z1.pop(0))
    m1 = mops(1)

    def upack(it):
        d = 184 + 4 * it
        a(f'v_cvt_pk_bf16_f32 v{d}, v{out(it,0)}, v{out(it,0)+1}')
        a(f'v_cvt_pk_bf16_f32 v{d+1}, v{out(it,0)+2}, v{out(it,0)+3}')
        a(f'v_cvt_pk_bf16_f32 v{d+2}, v{out(it,1)}, v{out(it,1)+1}')
        a(f'v_cvt_pk_bf16_f32 v{d+3}, v{out(it,1)+2}, v{out(it,1)+3}')
        a(f'ds_write_b128 v240, {vr(d,4)} offset:{it*1024}')
        lg.issue(('w', it))
        a(f'ds_read_b128 {vr(208+4*it,4)}, v241 offset:{it*1024}')
        lg.issue(('r', it))

    def ustore(it):
        lg.wait(('r', it))
        so = '0' if it == 0 else f's{59+it}'
        a(f'buffer_store_dwordx4 {vr(208+4*it,4)}, v7, s[36:39], {so} offen{SC}')
    for it in range(4):
        for m in (m1[2 * it], m1[2 * it + 1], m1[8 + 2 * it], m1[9 + 2 * it]):
            mf(*m)
        if it >= 2:
            upack(it - 2)
    upack(2)
    ustore(0)
    upack(3)
    ustore(1)
    ustore(2)
    ustore(3)
    stamp(a, 2)
    lab(a, 'L_ARRIVE')
    a(f'v_mov_b32 v10, {LDS_CNT}')
    a('v_mov_b32 v11, 1')
    a('v_mov_b32 v9, 0')
    a('s_sub_u32 s49, s2, 64')
    a('s_lshl_b32 s49, s49, 6')
    a(f's_add_u32 s49, s49, {WS_UF}')
    srd(a, 36, 14, WS_RANGE)
    a('s_waitcnt vmcnt(0)')
    a('s_mov_b64 exec, 1')
    a('ds_add_rtn_u32 v6, v10, v11')
    a('s_waitcnt lgkmcnt(0)')
    a('v_readfirstlane_b32 s59, v6')
    a('s_cmp_lg_u32 s59, 3')
    a('s_cbranch_scc1 L_NOFLAG')
    a(f'buffer_store_dword v9, v9, s[36:39], s49 offen{SC}')
    lab(a, 'L_NOFLAG')
    a('s_mov_b64 exec, -1')
    stamp(a, 3)
    a('s_cmp_lt_u32 s2, 128')
    a('s_cbranch_scc1 L_P2')
    a('s_barrier')
    a('s_setprio 0')
    a('s_mov_b32 s3, 2')
    a('s_branch L_ROWP')

    lab(a, 'L_STATS')
    lg = Cnt(a, 'lgkmcnt', 15)
    a('v_and_b32 v8, 3, v2')
    a('v_lshrrev_b32 v9, 2, v2')
    a('v_sub_u32 v9, v9, v3')
    a('v_and_b32 v9, 3, v9')
    for r in range(1, 4):
        a(f'v_cmp_eq_u32 s[{42+2*r}:{43+2*r}], {r}, v8')
        a(f'v_cmp_eq_u32 s[{48+2*r}:{49+2*r}], {r}, v9')
    a('v_lshlrev_b32 v10, 4, v9')
    a('v_lshl_add_u32 v10, v3, 2, v10')
    a('v_add_u32 v10, v10, v8')
    a('v_lshlrev_b32 v10, 2, v10')
    a(f'v_add_u32 v10, {P1_ST}, v10')
    a('s_cmp_eq_u32 s43, 0')
    a('s_cselect_b32 s56, 2.0, 0')
    a(f'v_mov_b32 v8, {LDS_CNT}')
    a('v_mov_b32 v9, 0')
    a('ds_write_b32 v8, v9')
    a('s_waitcnt lgkmcnt(0)')
    GR = lambda i: 16 + 4 * i
    SM = lambda i: 32 + 4 * i
    SAbuf = lambda b, i: 48 + b * 16 + i * 4
    st8.update(started=set(), bufno=0, passed=-1, lg=lg, Abuf=SAbuf)
    bufs = {}
    fetch(0, False)
    fetch(1, False)
    for n, (st, kk) in enumerate(steps):
        lg.wait(('x', kk))
        b = bufs[n]
        for i in range(4):
            mf(GR(i), SAbuf(b, i), SAbuf(b, i))
            mf(SM(i), 12, SAbuf(b, i))
        if n + 2 < NSTEP:
            fetch(n + 2, False)
    for i in range(4):
        for r in range(1, 4):
            a(f'v_cndmask_b32 v{GR(i)}, v{GR(i)}, v{GR(i)+r}, s[{42+2*r}:{43+2*r}]')
    for i in range(1, 4):
        a(f'v_mov_b32_dpp v{GR(i)+1}, v{GR(i)} row_ror:{4*i} row_mask:0xf bank_mask:0xf')
        a(f'v_mov_b32_dpp v{SM(i)+1}, v{SM(i)} row_ror:{4*i} row_mask:0xf bank_mask:0xf')
    for i in range(1, 4):
        a(f'v_cndmask_b32 v{GR(0)}, v{GR(0)}, v{GR(i)+1}, s[{48+2*i}:{49+2*i}]')
        a(f'v_cndmask_b32 v{SM(0)}, v{SM(0)}, v{SM(i)+1}, s[{48+2*i}:{49+2*i}]')
    q, m = GR(0), SM(0)
    a(f'v_mul_f32 v{m}, 0x{INVB:08x}, v{m}')
    a(f'v_mul_f32 v{q}, 0x{INVB:08x}, v{q}')
    a(f'v_fma_f32 v{q}, -v{m}, v{m}, v{q}')
    a(f'v_max_f32 v{q}, 0, v{q}')
    bfround(a, q, q)
    a(f'v_add_f32 v{q}, 0x{EPSB:08x}, v{q}')
    bfround(a, q, q)
    a(f'v_sqrt_f32 v{q}, v{q}')
    a(f'v_mul_f32 v{m}, s56, v{m}')
    bfround(a, q, q)
    a(f'v_rcp_f32 v{q}, v{q}')
    a(f'v_mul_f32 v{m}, v{m}, v{q}')
    a(f'ds_write_b32 v10, v{q}')
    a(f'ds_write_b32 v10, v{m} offset:256')
    a('s_waitcnt lgkmcnt(0)')
    stamp(a, 1)
    a('s_barrier')
    a('s_cmp_ge_u32 s2, 128')
    a('s_cbranch_scc1 L_ROWPRE2')
    a('s_branch L_P2')

    if not OPT['hfirst']:
        helper_code()

    lab(a, 'L_P2')
    a('s_setprio 0')
    if OPT['ipf']:
        a('s_cmp_ge_u32 s2, 88')
        a('s_cbranch_scc1 L_IPF')
    a('s_cmp_ge_u32 s2, 81')
    a('s_cbranch_scc1 L_EXIT')
    lpoint(a, 5)
    a('s_barrier')
    lpoint(a, 6)
    a('s_cmp_lt_u32 s2, 72')
    a('s_cbranch_scc1 L_FFN')
    a('s_branch L_FIN')

    if OPT['ipf']:
        lab(a, 'L_IPF')
        a('s_barrier')
        NTP = ' nt' if OPT['ntw'] else ''
        srd(a, 16, 66, WG_BYTES)
        srd(a, 20, 68, WG_BYTES)
        srd(a, 24, 70, WG_BYTES)
        a('s_and_b32 s41, s2, 7')
        a('s_sub_u32 s42, s2, 88')
        a('s_lshr_b32 s42, s42, 3')
        a('s_mov_b32 s43, 0x1c72')
        a('v_mul_u32_u24 v6, s43, v0')
        a('v_lshrrev_b32 v6, 16, v6')
        a('v_mul_u32_u24 v7, 9, v6')
        a('v_sub_u32 v7, v0, v7')
        a('v_mul_u32_u24 v6, 9216, v6')
        a('v_lshl_add_u32 v6, v7, 7, v6')
        a('s_mul_i32 s44, s40, 72')
        a('s_mul_i32 s45, s42, 7')
        a('s_add_u32 s44, s44, s45')
        a('s_add_u32 s44, s44, 37')
        a('s_mul_i32 s44, s44, 9216')
        a('s_mul_i32 s45, s41, 1152')
        a('s_add_u32 s44, s44, s45')
        a(f'buffer_load_dword v8, v6, s[16:19], s44 offen{NTP}')
        a(f'buffer_load_dword v9, v6, s[20:23], s44 offen{NTP}')
        a('v_lshlrev_b32 v7, 7, v0')
        a('s_lshl_b32 s45, s42, 3')
        a('s_add_u32 s45, s45, s40')
        a('s_mul_i32 s45, s45, 16640')
        a('s_mul_i32 s46, s41, 663552')
        a('s_add_u32 s45, s45, s46')
        a(f'buffer_load_dword v10, v7, s[24:27], s45 offen{NTP}')
        a('s_add_u32 s45, s45, 8448')
        a(f'buffer_load_dword v11, v7, s[24:27], s45 offen{NTP}')
        a('s_branch L_EXIT')

    XR = lambda k: 100 + k
    WR = lambda k: 120 + k
    T = lambda cls, kap: 32 + (cls * 2 + kap) * 4
    TW = lambda kap, part: 16 + (kap * 2 + part) * 4

    lab(a, 'L_ROWPRE')
    a('s_mov_b32 s3, 1')
    a('s_branch L_ROWP')
    lab(a, 'L_ROWPRE2')
    a('s_setprio 0')
    a('s_mov_b32 s3, 0')
    lab(a, 'L_ROWP')
    a('v_and_b32 v2, 15, v0')
    a('v_lshrrev_b32 v3, 4, v0')
    a('v_lshlrev_b32 v4, 4, v0')
    a('v_add_u32 v5, 1024, v4')
    a('s_and_b32 s41, s2, 31')
    a('s_lshr_b32 s42, s2, 5')
    a('s_sub_u32 s42, s42, 4')
    a('v_cmp_lt_u32 vcc, 7, v2')
    a('s_cmp_eq_u32 s41, 0')
    a('s_cbranch_scc1 L_P0')
    a('v_and_b32 v8, 7, v2')
    a('s_lshl_b32 s46, s42, 3')
    a('v_add_u32 v8, s46, v8')
    a('v_lshl_add_u32 v6, v8, 6, s41')
    a('v_sub_u32 v8, 2048, v6')
    a('v_cndmask_b32 v6, v6, v8, vcc')
    a('v_xor_b32 v7, 8, v2')
    a('s_branch L_ROWS')
    lab(a, 'L_P0')
    a('v_bfe_u32 v8, v2, 1, 2')
    a('s_lshl_b32 s46, s42, 2')
    a('v_add_u32 v8, s46, v8')
    a('v_sub_u32 v9, 32, v8')
    a('v_sub_u32 v10, 31, v8')
    a('v_cndmask_b32 v9, v9, v10, vcc')
    a('v_mov_b32 v11, 0')
    a('v_cndmask_b32 v11, v11, 32, vcc')
    a('v_cmp_eq_u32 vcc, 32, v9')
    a('v_cndmask_b32 v9, v9, 16, vcc')
    a('v_xor_b32 v7, 1, v2')
    a('v_cndmask_b32 v7, v7, v2, vcc')
    a('v_and_b32 v10, 1, v2')
    a('v_cmp_eq_u32 vcc, 1, v10')
    a('v_cndmask_b32 v8, v8, v9, vcc')
    a('v_lshl_add_u32 v6, v8, 6, v11')
    lab(a, 'L_ROWS')
    a('s_lshl_b32 s44, s40, 1')
    a('s_add_u32 s45, s44, 1')
    a('v_and_b32 v9, 1, v3')
    a('v_readlane_b32 s46, v6, s44')
    a('v_readlane_b32 s47, v6, s45')
    a('v_and_b32 v10, 31, v0')
    a('v_mul_u32_u24 v12, 36, v10')
    srd(a, 24, 4, X_BYTES)
    srd(a, 28, 64, D * 2)
    srd(a, 36, 14, WS_RANGE)
    srd(a, 32, 72, X_BYTES)
    a('s_cmp_lg_u32 s40, 7')
    a('s_cbranch_scc1 L_NOTW')
    a('v_lshrrev_b32 v8, 1, v3')
    a('v_lshlrev_b32 v8, 4, v8')
    a('v_lshl_add_u32 v8, v9, 2, v8')
    a('v_lshl_add_u32 v8, v6, 12, v8')
    srd(a, 16, 6, SEQ_BYTES)
    srd(a, 20, 8, SEQ_BYTES)
    for kap in range(2):
        for part in range(2):
            a(f'buffer_load_dwordx3 {vr(TW(kap,part),3)}, v8, s[{16+4*part}:{19+4*part}], 0 offen offset:{kap*32}')
    lab(a, 'L_NOTW')
    XP, WP = 140, 152
    a('s_mul_i32 s45, s40, 9216')
    a('s_mul_i32 s44, s41, 73728')
    a('s_add_u32 s44, s44, s45')
    a('s_lshl_b32 s56, s42, 11')
    a(f'v_add_u32 v89, {LDS_T}, v4')
    a('v_lshrrev_b32 v13, 1, v3')
    a('v_lshlrev_b32 v13, 3, v13')
    a('v_lshl_add_u32 v13, v9, 1, v13')
    a('v_bfe_u32 v11, v0, 3, 1')
    a('v_add_u32 v13, v13, v11')
    a('v_mul_u32_u24 v13, 2304, v13')
    a('v_lshl_add_u32 v13, v11, 6, v13')
    a('v_and_b32 v11, 3, v0')
    a('v_lshl_add_u32 v13, v11, 4, v13')
    a('v_bfe_u32 v11, v0, 2, 1')
    a('v_lshl_add_u32 v13, v11, 3, v13')
    a('v_xor_b32 v11, s40, v9')
    a('v_lshl_add_u32 v13, v11, 7, v13')
    a('v_xor_b32 v81, 64, v13')
    a(f'v_mul_u32_u24 v14, {R_YS}, v2')
    a('v_lshl_add_u32 v14, v3, 5, v14')
    a(f'v_mul_u32_u24 v11, {R_YS}, v7')
    a('v_lshlrev_b32 v8, 5, v3')
    a('v_sub_u32 v11, v11, v8')
    for jj in range(3):
        a(f's_add_u32 s48, s40, {6*jj}')
        a('s_lshl_b32 s49, s48, 7')
        a(f's_sub_u32 s50, s49, {9*128-4}')
        a('s_cmp_lt_u32 s48, 9')
        a('s_cselect_b32 s49, s49, s50')
        a(f's_add_u32 s50, s49, {R_Y}')
        a(f'v_add_u32 v{90+jj}, s50, v14')
        a(f's_sub_u32 s50, {R_Y + 576*4 - 24}, s49')
        a(f'v_add_u32 v{93+jj}, s50, v11')
    a('v_lshrrev_b32 v8, 5, v0')
    a('s_lshl_b32 s48, s40, 1')
    a('v_add_u32 v8, s48, v8')
    a(f'v_mul_u32_u24 v97, {R_YS}, v8')
    a(f'v_add_u32 v97, {R_Y}, v97')
    a('v_lshl_add_u32 v96, v12, 1, v97')
    a('v_mul_u32_u24 v98, 1152, v8')
    a('v_add_u32 v98, v98, v12')
    a(f'v_add_u32 v98, {R_STG}, v98')
    a('v_cmp_eq_u32 s[60:61], 16, v10')
    a('v_cmp_eq_u32 s[62:63], 0, v10')
    a('s_cmp_lg_u32 s3, 1')
    a('s_cbranch_scc1 L_NOSB')
    a('s_barrier')
    lab(a, 'L_NOSB')
    a('s_mul_i32 s48, s40, 2304')
    a(f's_add_u32 s48, s48, {R_X}')
    a('s_mul_i32 s54, s46, 1152')
    a('s_mul_i32 s55, s47, 1152')
    a('s_mov_b32 s82, s54')
    a('s_mov_b32 s83, s55')
    for hrow in range(2):
        a(f's_add_u32 m0, s48, {hrow*1152}')
        a(f'buffer_load_dwordx4 v4, s[24:27], s{54+hrow} offen lds')
        a('s_mov_b64 exec, 0xff')
        a(f'buffer_load_dwordx4 v4, s[24:27], s{54+hrow} offen offset:1024 lds')
        a('s_mov_b64 exec, -1')
    a('s_cmp_lg_u32 s40, 5')
    a('s_cbranch_scc1 L_NOWR')
    a(f's_mov_b32 m0, {R_W}')
    a('s_nop 0')
    a('buffer_load_dwordx4 v4, s[28:31], 0 offen lds')
    a('s_mov_b64 exec, 0xff')
    a('buffer_load_dwordx4 v4, s[28:31], 0 offen offset:1024 lds')
    a('s_mov_b64 exec, -1')
    a('s_waitcnt vmcnt(0)')
    lab(a, 'L_NOWR')
    a(f'v_add_u32 v15, {R_X - R_STG}, v98')
    a(f'v_add_u32 v14, {R_W}, v12')
    a('v_add_u32 v11, s48, v4')
    a('s_cmp_lg_u32 s40, 7')
    a('s_cbranch_scc1 L_NOTW2')
    a('s_mov_b32 s50, 0x05040100')
    a('s_mov_b32 s51, 0x07060302')
    a('v_cmp_gt_u32 s[52:53], 8, v2')
    a('s_waitcnt vmcnt(4)')
    for kap in range(2):
        cr, ci = TW(kap, 0), TW(kap, 1)
        a(f'v_xor_b32 v{ci}, 0x80008000, v{ci}')
        a(f'v_xor_b32 v{ci+2}, 0x80008000, v{ci+2}')
        t = 48
        a(f'v_perm_b32 v{t}, v{ci}, v{cr}, s50')
        a(f'v_perm_b32 v{t+1}, v{ci}, v{cr}, s51')
        a(f'v_perm_b32 v{t+2}, v{ci+2}, v{cr+2}, s50')
        a(f'v_perm_b32 v{t+3}, v{ci+2}, v{cr+2}, s51')
        for r in range(4):
            a(f'v_cndmask_b32 v{T(0,kap)+r}, 0, v{t+r}, s[52:53]')
            a(f'v_cndmask_b32 v{T(1,kap)+r}, v{t+r}, 0, s[52:53]')
    for cls in range(2):
        for kap in range(2):
            a(f'ds_write_b128 v89, {vr(T(cls,kap),4)} offset:{(cls*2+kap)*1024}')
    lab(a, 'L_NOTW2')
    stamp(a, 4)
    a('s_cmp_eq_u32 s3, 2')
    a('s_cbranch_scc1 L_UGO')
    a('s_barrier')
    a('s_cmp_lg_u32 s40, 6')
    a('s_cbranch_scc1 L_UGO')
    a('v_lshlrev_b32 v8, 6, v0')
    a('s_mov_b32 s58, 0')
    a(f's_mov_b32 s48, {WS_UF}')
    a(f's_mov_b32 s49, {WS_UF + 4096}')
    a(f's_mov_b32 s50, {WS_UF + 8192}')
    for k in range(3):
        a(f's_mov_b64 s[{76+2*k}:{77+2*k}], -1')
    lab(a, 'L_UPOLL')
    for k in range(3):
        a(f's_or_b64 exec, s[{76+2*k}:{77+2*k}], 1')
        a(f'buffer_load_dword v{16+k}, v8, s[36:39], s{48+k} offen{SC}')
    a('s_mov_b64 exec, -1')
    a('s_add_u32 s58, s58, 1')
    a('s_waitcnt vmcnt(0)')
    for k in range(3):
        a(f'v_cmp_ne_u32 s[{76+2*k}:{77+2*k}], 0, v{16+k}')
    a(f's_cmp_lt_u32 s58, {SPIN_LIMIT}')
    a('s_cbranch_scc0 L_UGO')
    a('s_or_b64 s[52:53], s[76:77], s[78:79]')
    a('s_or_b64 s[52:53], s[52:53], s[80:81]')
    a('s_cbranch_scc0 L_UGO')
    a(f's_sleep {OPT["sleep"]}')
    a('s_branch L_UPOLL')
    lab(a, 'L_UGO')
    a('s_waitcnt lgkmcnt(0)')
    a('s_barrier')
    stamp(a, 5)
    a('s_mov_b32 s84, 0')
    a(f'v_mov_b32 v85, {LDS_CNT}')

    def u_dma():
        for n in range(9):
            a('s_add_u32 m0, s45, s56')
            a('s_add_u32 s57, s44, s56')
            a(f'buffer_load_dwordx4 v4, s[36:39], s57 offen{SC} lds')
            a('s_add_u32 s56, s56, 1024')
            a('s_cmp_eq_u32 s56, 9216')
            a('s_cselect_b32 s56, 0, s56')
    u_dma()
    a('s_waitcnt vmcnt(9)')
    for P_, ad in ((XP, 15), (WP, 14)):
        for j in range(0, 8, 2):
            a(f'ds_read2_b32 {vr(P_+j,2)}, v{ad} offset0:{j} offset1:{j+1}')
        a(f'ds_read_b32 v{P_+8}, v{ad} offset:32')
    a('s_waitcnt lgkmcnt(0)')
    for j in range(9):
        a(f'v_lshlrev_b32 v{XR(2*j)}, 16, v{XP+j}')
        a(f'v_and_b32 v{XR(2*j+1)}, 0xffff0000, v{XP+j}')
        a(f'v_lshlrev_b32 v{WR(2*j)}, 16, v{WP+j}')
        a(f'v_and_b32 v{WR(2*j+1)}, 0xffff0000, v{WP+j}')
    W2 = lambda j: vr(WR(2 * j), 2)
    a(f'v_pk_add_f32 v[86:87], {W2(0)}, {W2(1)}')
    for j in range(2, 9):
        a(f'v_pk_add_f32 v[86:87], v[86:87], {W2(j)}')
    a('v_add_f32 v99, v86, v87')
    dpp_reduce(a, 'v_add_f32', [99], 5)
    lg = Cnt(a, 'lgkmcnt', 15)
    for cls in range(2):
        for kap in range(2):
            a(f'ds_read_b128 {vr(T(cls,kap),4)}, v89 offset:{(cls*2+kap)*1024}')
    lab(a, 'L_UWAIT')
    a('v_mov_b32 v86, 0')
    a('ds_write_b32 v85, v86')
    a('s_waitcnt vmcnt(0) lgkmcnt(0)')
    a('s_barrier')
    stamp(a, 6)
    a('s_cmp_ge_u32 s40, 6')
    a('s_cbranch_scc1 L_SKIPMM')
    UF = lambda slot: 164 + 4 * slot
    ACC = lambda jj: 48 + 4 * jj
    order = [(jj, cls, kap) for cls in range(2) for kap in range(2) for jj in range(3)]

    def rd(n):
        jj, cls, kap = order[n]
        for h in range(2):
            off = kap * 36864 + h * 9216 + jj * 768
            a(f'ds_read_b64_tr_b16 {vr(UF(n)+2*h,2)}, v{13 if cls == 0 else 81} offset:{off}')
            lg.issue(n)
    for n in range(7):
        rd(n)
    for n, (jj, cls, kap) in enumerate(order):
        lg.wait(n)
        c = '0' if (cls == 0 and kap == 0) else vr(ACC(jj), 4)
        a(f'v_mfma_f32_16x16x32_bf16 {vr(ACC(jj),4)}, {vr(UF(n),4)}, {vr(T(cls,kap),4)}, {c}')
        if n + 7 < 12:
            rd(n + 7)
    if OPT['usent']:
        a('v_pk_add_f32 v[16:17], v[48:49], v[50:51]')
        a('v_pk_add_f32 v[18:19], v[52:53], v[54:55]')
        a('v_pk_add_f32 v[20:21], v[56:57], v[58:59]')
        a('v_pk_add_f32 v[16:17], v[16:17], v[18:19]')
        a('v_pk_add_f32 v[16:17], v[16:17], v[20:21]')
        a('v_cmp_u_f32 vcc, v16, v17')
        a('v_mov_b32 v86, 1')
        a('s_and_saveexec_b64 s[48:49], vcc')
        a('ds_write_b32 v85, v86')
        a('s_mov_b64 exec, -1')
    for jj in range(3):
        c = ACC(jj)
        a(f'ds_write2_b32 v{90+jj}, v{c}, v{c+1} offset0:0 offset1:2')
        a(f'ds_write2_b32 v{90+jj}, v{c+2}, v{c+3} offset0:4 offset1:6')
        a(f'ds_write2_b32 v{93+jj}, v{c+3}, v{c+2} offset0:0 offset1:2')
        a(f'ds_write2_b32 v{93+jj}, v{c+1}, v{c} offset0:4 offset1:6')
    a('s_waitcnt lgkmcnt(0)')
    lab(a, 'L_SKIPMM')
    a('s_barrier')
    stamp(a, 7)
    H = lambda k: 60 + k
    H2 = lambda j: vr(H(2 * j), 2)
    a('ds_read_b32 v86, v85')
    a('ds_read_b32 v88, v97')
    for j in range(9):
        a(f'ds_read_b64 {H2(j)}, v96 offset:{8*j}')
    a('s_waitcnt lgkmcnt(8)')
    if OPT['usent']:
        a('v_readfirstlane_b32 s48, v86')
        a('s_cmp_eq_u32 s48, 0')
        a('s_cbranch_scc1 L_UOK')
        a('s_add_u32 s84, s84, 1')
        a('s_cmp_ge_u32 s84, 200')
        a('s_cbranch_scc1 L_UOK')
        a('s_waitcnt lgkmcnt(0)')
        a('s_barrier')
        u_dma()
        a('s_branch L_UWAIT')
        lab(a, 'L_UOK')
    a(f'v_cndmask_b32 v{H(0)}, v{H(0)}, v88, s[60:61]')
    a(f'v_cndmask_b32 v{H(0)}, v{H(0)}, 0, s[62:63]')
    HP = lambda j: 16 + j
    for j in range(9):
        if j:
            a(f's_waitcnt lgkmcnt({8-j})')
        a(f'v_pk_add_f32 {H2(j)}, {H2(j)}, {vr(XR(2*j),2)}')
    for j in range(9):
        a(f'v_cvt_pk_bf16_f32 v{HP(j)}, v{H(2*j)}, v{H(2*j+1)}')
    for j in range(9):
        a(f'v_lshlrev_b32 v{H(2*j)}, 16, v{HP(j)}')
        a(f'v_and_b32 v{H(2*j+1)}, 0xffff0000, v{HP(j)}')
    a(f'v_pk_add_f32 v[26:27], {H2(0)}, {H2(1)}')
    a(f'v_pk_mul_f32 v[28:29], {H2(0)}, {H2(0)}')
    a(f'v_pk_mul_f32 v[30:31], {H2(0)}, {W2(0)}')
    for j in range(1, 9):
        if j >= 2:
            a(f'v_pk_add_f32 v[26:27], v[26:27], {H2(j)}')
        a(f'v_pk_fma_f32 v[28:29], {H2(j)}, {H2(j)}, v[28:29]')
        a(f'v_pk_fma_f32 v[30:31], {H2(j)}, {W2(j)}, v[30:31]')
    a('v_add_f32 v82, v26, v27')
    a('v_add_f32 v83, v28, v29')
    a('v_add_f32 v84, v30, v31')
    dpp_reduce(a, 'v_add_f32', [82, 83, 84], 5)
    a(f'v_mul_f32 v82, 0x{INVB:08x}, v82')
    a(f'v_mul_f32 v83, 0x{INVB:08x}, v83')
    a('v_fma_f32 v83, -v82, v82, v83')
    a('v_max_f32 v83, 0, v83')
    bfround(a, 83, 83)
    bfround(a, 82, 82)
    a(f'v_add_f32 v83, 0x{EPSB:08x}, v83')
    bfround(a, 83, 83)
    a('v_sqrt_f32 v83, v83')
    a('v_fma_f32 v84, -v82, v99, v84')
    bfround(a, 83, 83)
    a('v_rcp_f32 v83, v83')
    a('v_mul_f32 v84, v84, v83')
    a('v_mul_f32 v82, v82, v83')
    a('v_ashrrev_i32 v85, 31, v84')
    a('v_or_b32 v85, 0x80000000, v85')
    a('v_xor_b32 v85, v85, v84')
    a('v_and_b32 v85, 0xfffff800, v85')
    a('v_max_u32 v85, 0x800, v85')
    a('v_readlane_b32 s48, v83, 31')
    a('v_readlane_b32 s49, v83, 63')
    a('v_readlane_b32 s50, v82, 31')
    a('v_readlane_b32 s51, v82, 63')
    a('v_readlane_b32 s52, v85, 31')
    a('v_readlane_b32 s53, v85, 63')
    a('v_readlane_b32 s54, v84, 31')
    a('v_readlane_b32 s55, v84, 63')
    a('s_sub_u32 s56, s2, 128')
    a('s_lshl_b32 s57, s56, 4')
    a('s_lshl_b32 s58, s40, 1')
    a('s_add_u32 s57, s57, s58')
    a('s_sub_u32 s57, 2047, s57')
    a('s_or_b32 s52, s52, s57')
    a('s_sub_u32 s57, s57, 1')
    a('s_or_b32 s53, s53, s57')
    a('s_cmp_gt_u32 s52, s53')
    a('s_cselect_b32 s52, s52, s53')
    a('s_cselect_b32 s54, s54, s55')
    a('s_cselect_b32 s46, s46, s47')
    a('s_cselect_b32 s55, 0, 1')
    a('s_lshl_b32 s58, s40, 2')
    a(f's_add_u32 s58, s58, {LDS_C}')
    a('v_mov_b32 v86, s58')
    a('v_mov_b32 v87, s52')
    a('ds_write_b32 v86, v87')
    a('v_mov_b32 v80, s48')
    a('v_mov_b32 v78, s50')
    a('s_mov_b32 exec_lo, 0')
    a('v_mov_b32 v80, s49')
    a('v_mov_b32 v78, s51')
    a('s_mov_b32 exec_lo, -1')
    HN = lambda k: 100 + k
    NP = lambda j: 140 + j
    for j in range(9):
        a(f'v_pk_fma_f32 {vr(HN(2*j),2)}, {H2(j)}, v[80:81], v[78:79] op_sel_hi:[1,0,0] neg_lo:[0,0,1] neg_hi:[0,0,1]')
    for j in range(9):
        a(f'v_cvt_pk_bf16_f32 v{NP(j)}, v{HN(2*j)}, v{HN(2*j+1)}')

    def stage(addr, P, off):
        o = off // 4
        for j in range(0, 8, 2):
            a(f'ds_write2_b32 v{addr}, v{P(j)}, v{P(j+1)} offset0:{o+j} offset1:{o+j+1}')
        a(f'ds_write_b32 v{addr}, v{P(8)} offset:{off+32}')
    stage(98, NP, 0)
    a('v_and_b32 v86, 7, v0')
    a('v_lshlrev_b32 v86, 2, v86')
    a(f'v_add_u32 v86, {LDS_C}, v86')
    a('v_not_b32 v87, v87')
    a('s_lshl_b32 s58, s40, 1')
    a('s_add_u32 s58, s58, s55')
    a('s_mul_i32 s58, s58, 1152')
    a(f's_add_u32 s58, s58, {R_STG}')
    a('v_add_u32 v88, s58, v4')
    a('s_waitcnt lgkmcnt(0)')
    stamp(a, 8)
    a('s_setprio 3')
    a('s_barrier')
    stamp(a, 9)
    a('ds_read_b32 v85, v86')
    a('ds_read_b128 v[32:35], v88')
    a('ds_read_b128 v[36:39], v88 offset:1024')
    a('s_mul_i32 s57, s56, 1152')
    a(f's_add_u32 s57, s57, {WS_HN}')
    a('s_lshl_b32 s59, s56, 7')
    a(f's_add_u32 s59, s59, {WS_KEYS}')
    a('v_mov_b32 v86, 0')
    a('s_waitcnt lgkmcnt(2)')
    dpp_reduce(a, 'v_max_u32', [85], 3)
    a('v_readlane_b32 s58, v85, 7')
    a('s_cmp_lg_u32 s58, s52')
    a('s_cbranch_scc1 L_NOTWIN')
    a('s_waitcnt lgkmcnt(0)')
    a(f'buffer_store_dwordx4 v[32:35], v4, s[36:39], s57 offen{SC}')
    a('s_mov_b64 exec, 0xff')
    a(f'buffer_store_dwordx4 v[36:39], v5, s[36:39], s57 offen{SC}')
    a('s_mov_b64 exec, 1')
    a(f'buffer_store_dword v87, v86, s[36:39], s59 offen{SC}')
    a('s_mov_b64 exec, -1')
    stamp(a, 10)
    lab(a, 'L_NOTWIN')
    a('s_setprio 0')
    OP = lambda j: 152 + j
    for j in range(9):
        a(f'v_lshlrev_b32 v{HN(2*j)}, 16, v{NP(j)}')
        a(f'v_and_b32 v{HN(2*j+1)}, 0xffff0000, v{NP(j)}')
    for j in range(9):
        a(f'v_pk_add_f32 {vr(HN(2*j),2)}, {vr(HN(2*j),2)}, {H2(j)}')
    for j in range(9):
        a(f'v_cvt_pk_bf16_f32 v{OP(j)}, v{HN(2*j)}, v{HN(2*j+1)}')

    stage(15, OP, 0)
    a('s_waitcnt lgkmcnt(0)')
    a('ds_read_b128 v[40:43], v11')
    a('ds_read_b128 v[44:47], v11 offset:1024')
    a('ds_read_b128 v[48:51], v11 offset:1152')
    a('ds_read_b128 v[52:55], v11 offset:2176')

    def out_store(mods):
        a('s_waitcnt lgkmcnt(0)')
        a(f'buffer_store_dwordx4 v[40:43], v4, s[32:35], s82 offen{mods}')
        a(f'buffer_store_dwordx4 v[48:51], v4, s[32:35], s83 offen{mods}')
        a('s_mov_b64 exec, 0xff')
        a(f'buffer_store_dwordx4 v[44:47], v5, s[32:35], s82 offen{mods}')
        a(f'buffer_store_dwordx4 v[52:55], v5, s[32:35], s83 offen{mods}')
        a('s_mov_b64 exec, -1')
    a('s_cmp_lg_u32 s58, s52')
    a('s_cbranch_scc1 L_PLAIN')
    out_store(SC)
    a('s_mul_i32 s57, s56, 1280')
    a(f's_add_u32 s57, s57, {WS_H}')
    a('v_mov_b32 v88, s54')
    a('v_mov_b32 v89, s46')
    a('s_cmp_eq_u32 s55, 0')
    a('s_cselect_b32 exec_lo, -1, 0')
    a('s_cselect_b32 exec_hi, 0, -1')
    a(f'buffer_store_dwordx4 {vr(HP(0),4)}, v12, s[36:39], s57 offen{SC}')
    a(f'buffer_store_dwordx4 {vr(HP(4),4)}, v12, s[36:39], s57 offen offset:16{SC}')
    a(f'buffer_store_dword v{HP(8)}, v12, s[36:39], s57 offen offset:32{SC}')
    a('s_mov_b64 exec, 1')
    a(f'buffer_store_dwordx2 v[88:89], v86, s[36:39], s57 offen offset:1152{SC}')
    a('s_waitcnt vmcnt(0)')
    a(f'buffer_store_dword v86, v86, s[36:39], s59 offen offset:64{SC}')
    a('s_mov_b64 exec, -1')
    a('s_branch L_EXIT')
    lab(a, 'L_PLAIN')
    out_store({0: '', 1: SC, 2: ' nt'}[OPT['outsc']])
    a('s_branch L_EXIT')

    def key_poll(pre):
        ND = OPT['depth']
        KS = lambda j: 32 + 2 * j
        a(f's_mov_b32 s56, {WS_KEYS}')
        a(f's_mov_b32 s55, {WS_KEYS + 8192}')
        a('s_mov_b32 s58, 0')
        a('s_mov_b32 s45, -1')
        a('v_lshlrev_b32 v8, 7, v0')
        for r in range(28, 32):
            a(f'v_mov_b32 v{r}, 0')
        for j in range(ND):
            a(f'v_mov_b32 v{KS(j)}, -1')
            a(f'v_mov_b32 v{KS(j)+1}, -1')
        lab(a, pre + 'SLOW')
        a(f'buffer_load_dword v16, v8, s[36:39], s56 offen{SC}')
        a(f'buffer_load_dword v17, v8, s[36:39], s55 offen{SC}')
        a('s_add_u32 s58, s58, 1')
        a('s_waitcnt vmcnt(0)')
        a('v_min_u32 v20, v16, v17')
        a('v_cmp_ne_u32 vcc, -1, v20')
        a(f's_cmp_lt_u32 s58, {SPIN_LIMIT}')
        a(f's_cbranch_scc0 {pre}FAST')
        a('s_cmp_lg_u64 vcc, 0')
        a(f's_cbranch_scc1 {pre}FAST')
        a(f's_sleep {OPT["slow"]}')
        a(f's_branch {pre}SLOW')
        lab(a, pre + 'FAST')

        def scan():
            a('v_min_u32 v20, v16, v17')
            a('v_cmp_eq_u32 s[50:51], -1, v16')
            a('v_cmp_eq_u32 s[42:43], -1, v17')
            dpp_reduce(a, 'v_min_u32', [20])
            a('v_readlane_b32 s57, v20, 63')
            a('s_and_b32 s46, s57, 0x7ff')
            a('s_lshr_b32 s46, s46, 4')
            a('s_mul_i32 s47, s46, 1152')
            a(f's_add_u32 s47, s47, {WS_HN}')

        def issue(j):
            a('s_or_b64 exec, s[50:51], 1')
            a(f'buffer_load_dword v{KS(j)}, v8, s[36:39], s56 offen{SC}')
            a('s_or_b64 exec, s[42:43], 1')
            a(f'buffer_load_dword v{KS(j)+1}, v8, s[36:39], s55 offen{SC}')
            a('s_cmp_lg_u32 s45, s57')
            a('s_cselect_b64 exec, -1, 1')
            a(f'buffer_load_dwordx4 v[24:27], v4, s[36:39], s47 offen{SC}')
            a('s_cselect_b64 exec, 0xff, 1')
            a(f'buffer_load_dwordx4 v[28:31], v5, s[36:39], s47 offen{SC}')
            a('s_mov_b64 exec, -1')
            a('s_cselect_b32 s44, 0, s44')
            a('s_add_u32 s44, s44, 1')
            a('s_mov_b32 s45, s57')
        a('s_mov_b32 s44, 0')
        scan()
        for j in range(ND):
            issue(j)
            if j < ND - 1:
                a(f's_sleep {OPT["gap"]}')
        lab(a, pre + 'LOOP')
        for j in range(ND):
            a(f's_waitcnt vmcnt({4*(ND-1)})')
            a(f'v_min_u32 v16, v16, v{KS(j)}')
            a(f'v_min_u32 v17, v17, v{KS(j)+1}')
            scan()
            a('s_or_b64 vcc, s[50:51], s[42:43]')
            a(f's_cbranch_scc0 {pre}ALLK')
            issue(j)
        a('s_add_u32 s58, s58, 1')
        a(f's_cmp_lt_u32 s58, {SPIN_LIMIT}')
        a(f's_cbranch_scc1 {pre}LOOP')
        lab(a, pre + 'ALLK')
        a('s_cmp_lg_u32 s45, s57')
        a(f's_cbranch_scc1 {pre}ROWLD')
        a(f's_cmp_ge_u32 s44, {ND}')
        a(f's_cbranch_scc1 {pre}CHK2')
        a(f's_branch {pre}CHK')
        lab(a, pre + 'ROWLD')
        a(f'buffer_load_dwordx4 v[24:27], v4, s[36:39], s47 offen{SC}')
        a('s_mov_b64 exec, 0xff')
        a(f'buffer_load_dwordx4 v[28:31], v5, s[36:39], s47 offen{SC}')
        a('s_mov_b64 exec, -1')
        lab(a, pre + 'CHK')
        a('s_waitcnt vmcnt(0)')
        lab(a, pre + 'CHK2')
        a('s_add_u32 s58, s58, 1')
        a('v_max3_u32 v20, v24, v25, v26')
        a('v_max3_u32 v21, v27, v28, v29')
        a('v_max3_u32 v20, v20, v30, v31')
        a('v_max_u32 v20, v20, v21')
        a('v_cmp_eq_u32 vcc, -1, v20')
        a(f's_cmp_lt_u32 s58, {2*SPIN_LIMIT}')
        a(f's_cbranch_scc0 {pre}GOT')
        a('s_cmp_eq_u64 vcc, 0')
        a(f's_cbranch_scc0 {pre}ROWLD')
        lab(a, pre + 'GOT')

    lab(a, 'L_FFN')
    NTW = ' nt' if OPT['ntw'] else ''
    a('v_and_b32 v2, 15, v0')
    a('v_lshrrev_b32 v3, 4, v0')
    a('v_lshlrev_b32 v4, 4, v0')
    a('v_add_u32 v5, 1024, v4')
    a('s_and_b32 s3, s2, 7')
    a('s_mul_i32 s3, s3, 9')
    a('s_lshr_b32 s41, s2, 3')
    a('s_add_u32 s3, s3, s41')
    srd(a, 16, 66, WG_BYTES)
    srd(a, 20, 68, WG_BYTES)
    srd(a, 24, 70, WG_BYTES)
    srd(a, 36, 14, WS_RANGE)
    a('v_lshrrev_b32 v8, 3, v0')
    a('v_and_b32 v9, 7, v0')
    a('v_and_b32 v10, 2, v8')
    a('v_xor_b32 v9, v9, v10')
    a('s_and_b32 s58, s40, 1')
    a('s_lshl_b32 s58, s58, 2')
    a('v_xor_b32 v9, s58, v9')
    a('v_lshlrev_b32 v9, 4, v9')
    a('v_mul_u32_u24 v15, 9216, v8')
    a('v_add_u32 v15, v15, v9')
    a('v_xor_b32 v14, 64, v15')
    a('v_mul_u32_u24 v11, 1152, v8')
    a('v_add_u32 v11, v11, v9')
    a('s_mul_i32 s59, s40, 663552')
    a('s_lshl_b32 s58, s3, 7')
    a('s_add_u32 s59, s59, s58')
    a('s_mul_i32 s55, s40, 9216')
    for q in range(9):
        for mat in range(2):
            a(f's_add_u32 m0, s55, {mat*73728 + q*1024}')
            a(f'buffer_load_dwordx4 v{15 - (q & 1)}, s[{16+4*mat}:{19+4*mat}], s59 offen{NTW} lds')
        if q < 8:
            a('s_add_u32 s59, s59, 73728')
    a('s_mul_i32 s59, s3, 73728')
    a('s_add_u32 s59, s59, s55')
    DS = lambda c: 200 + 4 * c
    for c in range(9):
        a(f'buffer_load_dwordx4 {vr(DS(c),4)}, v11, s[24:27], s59 offen offset:{c*128}{NTW}')
    a('v_add_u32 v11, s55, v4')
    a('v_bfe_u32 v13, v0, 2, 2')
    a('v_lshrrev_b32 v10, 1, v13')
    a('v_and_b32 v6, 1, v3')
    a('v_lshl_add_u32 v10, v6, 1, v10')
    a('s_and_b32 s57, s40, 3')
    a('s_lshr_b32 s56, s40, 2')
    a('v_xor_b32 v10, s57, v10')
    a('v_lshlrev_b32 v10, 5, v10')
    a('v_and_b32 v6, 3, v0')
    a('v_lshl_add_u32 v10, v6, 3, v10')
    a('v_lshl_add_u32 v10, v13, 7, v10')
    a('v_mul_u32_u24 v14, 9216, v3')
    a('v_add_u32 v14, v14, v10')
    a('s_lshl_b32 s58, s56, 10')
    a('v_add_u32 v14, s58, v14')
    a('v_lshl_add_u32 v13, v3, 10, v10')
    a('s_mul_i32 s54, s56, 36864')
    a('v_add_u32 v13, s54, v13')
    a('v_add_u32 v12, 73728, v13')
    a('s_waitcnt vmcnt(9)')
    srd(a, 76, 74, 256)
    a('v_mov_b32 v250, 0')
    a('s_cmp_eq_u32 s40, 7')
    a('s_cselect_b32 s78, 256, 0')
    a(f'buffer_load_dword v251, v250, s[76:79], 0 offen{SC}')
    a('s_barrier')
    fpoint(a, 10)
    WF = lambda mat, k: 64 + (k * 2 + mat) * 4
    for k in range(9):
        for mat in range(2):
            for h in range(2):
                a(f'ds_read_b64_tr_b16 {vr(WF(mat,k)+2*h,2)}, v{13 if mat == 0 else 12} offset:{k*4096 + h*512}')
        if k % 3 == 2:
            a('s_waitcnt lgkmcnt(0)')
    a('s_barrier')
    a('s_waitcnt vmcnt(0)')
    for c in range(9):
        a(f'ds_write_b128 v11, {vr(DS(c),4)} offset:{c*1024}')
    a('v_cmp_eq_u32 s[48:49], 1, v3')
    a('v_cmp_eq_u32 s[52:53], 2, v3')
    a('v_cmp_eq_u32 s[60:61], 3, v3')
    a('s_mul_i32 s58, s56, 576')
    a(f's_add_u32 s58, s58, {LDS_XS}')
    a('v_lshl_add_u32 v6, v3, 4, s58')
    a('s_lshl_b32 s58, s56, 9')
    a('s_lshl_b32 s54, s57, 6')
    a('s_add_u32 s58, s58, s54')
    a(f's_add_u32 s58, s58, {LDS_RED}')
    a('v_lshl_add_u32 v7, v2, 2, s58')
    a('v_lshlrev_b32 v9, 2, v0')
    a(f'v_add_u32 v10, {LDS_RED}, v9')
    a('s_lshl_b32 s58, s40, 7')
    a(f's_add_u32 s58, s58, {LDS_ACT}')
    a('v_lshl_add_u32 v11, v0, 1, s58')
    a('v_lshl_add_u32 v12, v3, 4, s58')
    a('s_mul_i32 s62, s3, 2304')
    a(f's_add_u32 s62, s62, {WS_PART}')
    a('s_lshl_b32 s58, s40, 6')
    a('s_add_u32 s63, s62, s58')
    a('s_add_u32 s63, s63, 2048')
    a('s_lshl_b32 s58, s40, 8')
    a('s_add_u32 s62, s62, s58')
    a('s_waitcnt lgkmcnt(0)')
    a('s_barrier')
    fpoint(a, 11)
    DF = lambda kap, m: 136 + (m * 2 + kap) * 4
    for m in range(5):
        for kap in range(2):
            for h in range(2):
                a(f'ds_read_b64_tr_b16 {vr(DF(kap,m)+2*h,2)}, v14 offset:{kap*36864 + h*512 + m*2048}')
        if m % 2 == 1:
            a('s_waitcnt lgkmcnt(0)')
    a('s_waitcnt lgkmcnt(0)')
    stamp(a, 11)
    a('s_cmp_lg_u32 s40, 7')
    a('s_cbranch_scc1 L_FWAIT')
    a('v_readfirstlane_b32 s59, v251')
    a(f's_cmp_ge_u32 s59, {NCLR}')
    a('s_cbranch_scc1 L_WC2_OK')
    wait_cleared(a, 'L_WC2')
    key_poll('L_K')
    a(f'v_add_u32 v8, {LDS_XS}, v4')
    a('ds_write_b128 v8, v[24:27]')
    a('s_mov_b64 exec, 0xff')
    a('ds_write_b128 v8, v[28:31] offset:1024')
    a('s_mov_b64 exec, -1')
    a('s_waitcnt lgkmcnt(0)')
    lab(a, 'L_FWAIT')
    a('s_barrier')
    fpoint(a, 12)
    stamp(a, 12)
    XF = lambda k: 176 + 4 * k
    for k in range(9):
        a(f'ds_read_b128 {vr(XF(k),4)}, v6 offset:{k*64}')
    for k in range(9):
        a(f's_waitcnt lgkmcnt({8-k})')
        for mat in range(2):
            c = '0' if k == 0 else vr(52 + 4 * mat, 4)
            a(f'v_mfma_f32_16x16x32_bf16 {vr(52+4*mat,4)}, {vr(XF(k),4)}, {vr(WF(mat,k),4)}, {c}')
    a('s_mov_b64 exec, 0xffff')
    a('ds_write2st64_b32 v7, v52, v56 offset0:0 offset1:1')
    a('s_mov_b64 exec, -1')
    a('s_waitcnt lgkmcnt(0)')
    a('s_barrier')
    stamp(a, 13)
    a('ds_read2st64_b32 v[16:17], v10 offset0:0 offset1:1')
    a('ds_read2st64_b32 v[18:19], v10 offset0:2 offset1:3')
    a('s_waitcnt vmcnt(0) lgkmcnt(0)')
    a('v_pk_add_f32 v[16:17], v[16:17], v[18:19]')
    a('v_cvt_pk_bf16_f32 v18, v16, v17')
    a('v_lshlrev_b32 v16, 16, v18')
    a('v_and_b32 v17, 0xffff0000, v18')
    a('v_mul_f32 v19, 0xbfb8aa3b, v16')
    a('v_exp_f32 v19, v19')
    a('v_add_f32 v19, 1.0, v19')
    a('v_rcp_f32 v19, v19')
    a('v_mul_f32 v19, v19, v16')
    bfround(a, 19, 19)
    a('v_mul_f32 v19, v19, v17')
    a('v_cvt_pk_bf16_f32 v19, v19, v19')
    a('ds_write_b16 v11, v19')
    a('s_waitcnt lgkmcnt(0)')
    a('ds_read_b128 v[20:23], v12')
    a('ds_read_b128 v[24:27], v12 offset:64')
    DA = lambda m: 28 + 4 * m
    for kap in range(2):
        a(f's_waitcnt lgkmcnt({1-kap})')
        for m in range(5):
            c = '0' if kap == 0 else vr(DA(m), 4)
            a(f'v_mfma_f32_16x16x32_bf16 {vr(DA(m),4)}, {vr(20+4*kap,4)}, {vr(DF(kap,m),4)}, {c}')
    a('v_mov_b32 v17, 0x7fc00000')
    a(f'v_cndmask_b32 v16, v{DA(0)}, v{DA(1)}, s[48:49]')
    a(f'v_cndmask_b32 v16, v16, v{DA(2)}, s[52:53]')
    a(f'v_cndmask_b32 v16, v16, v{DA(3)}, s[60:61]')
    a('v_cmp_eq_u32 vcc, -1, v16')
    a('v_cndmask_b32 v16, v16, v17, vcc')
    a(f'buffer_store_dword v16, v9, s[36:39], s62 offen{SC}')
    a('s_cmp_ge_u32 s40, 4')
    a('s_cbranch_scc1 L_FDONE')
    a(f'v_cmp_eq_u32 vcc, -1, v{DA(4)}')
    a(f'v_cndmask_b32 v18, v{DA(4)}, v17, vcc')
    a('s_mov_b64 exec, 0xffff')
    a(f'buffer_store_dword v18, v9, s[36:39], s63 offen{SC}')
    a('s_mov_b64 exec, -1')
    lab(a, 'L_FDONE')
    stamp(a, 14)
    a('s_branch L_EXIT')

    lab(a, 'L_FIN')
    a('v_and_b32 v2, 15, v0')
    a('v_lshrrev_b32 v3, 4, v0')
    a('v_lshlrev_b32 v4, 4, v0')
    a('v_add_u32 v5, 1024, v4')
    a('v_lshlrev_b32 v9, 2, v0')
    srd(a, 36, 14, WS_RANGE)
    a('s_sub_u32 s42, s2, 72')
    a('s_mul_i32 s41, s40, 20736')
    a('s_lshl_b32 s43, s42, 8')
    a('s_add_u32 s41, s41, s43')
    a(f's_add_u32 s41, s41, {WS_PART}')
    a('s_lshl_b32 s45, s40, 8')
    a('v_add_u32 v10, s45, v9')
    srd(a, 32, 72, X_BYTES)
    a('s_lshl_b32 s44, s42, 4')
    a('s_cmp_lt_u32 s42, 8')
    a('s_cselect_b32 s43, 7, 4')
    a('s_cselect_b32 s44, s44, 512')
    a('v_lshlrev_b32 v12, s43, v3')
    a('v_add3_u32 v12, v12, v2, s44')
    a('v_lshlrev_b32 v12, 1, v12')
    a('v_mov_b32 v63, 0')
    a('s_cmp_lg_u32 s40, 7')
    a('s_cbranch_scc1 L_NWAIT')
    key_poll('L_N')
    lpoint(a, 7)
    lab(a, 'L_NWAIT')
    a('s_barrier')
    stamp(a, 12)
    a('s_cmp_lg_u32 s40, 7')
    a('s_cbranch_scc1 L_PP')
    a('s_lshl_b32 s48, s46, 7')
    a(f's_add_u32 s48, s48, {WS_KEYS + 64}')
    a('v_mov_b32 v8, 0')
    a('s_mov_b32 s58, 0')
    lab(a, 'L_FPOLL')
    a(f'buffer_load_dword v11, v8, s[36:39], s48 offen{SC}')
    a('s_add_u32 s58, s58, 1')
    a('s_waitcnt vmcnt(0)')
    a('v_readfirstlane_b32 s44, v11')
    a('s_cmp_lg_u32 s44, -1')
    a('s_cbranch_scc1 L_FGOT2')
    a(f's_cmp_lt_u32 s58, {SPIN_LIMIT}')
    a('s_cbranch_scc1 L_FPOLL')
    lab(a, 'L_FGOT2')
    a('s_mul_i32 s45, s46, 1280')
    a(f's_add_u32 s45, s45, {WS_H}')
    a('v_mov_b32 v60, 0')
    a('v_mov_b32 v61, 0')
    a(f'buffer_load_short_d16_hi v60, v12, s[36:39], s47 offen{SC}')
    a(f'buffer_load_short_d16_hi v61, v12, s[36:39], s45 offen{SC}')
    a(f'buffer_load_dwordx2 v[62:63], v8, s[36:39], s45 offen offset:1152{SC}')
    lab(a, 'L_PP')
    a('s_mov_b32 s58, 0')
    lab(a, 'L_PPOLL')
    a('s_mov_b32 s43, s41')
    P = lambda p: 32 + p
    for p in range(9):
        a(f'buffer_load_dword v{P(p)}, v9, s[36:39], s43 offen{SC}')
        if p < 8:
            a('s_add_u32 s43, s43, 2304')
    a('s_add_u32 s58, s58, 1')
    a('s_waitcnt vmcnt(0)')
    a(f'v_max3_u32 v16, v{P(0)}, v{P(1)}, v{P(2)}')
    a(f'v_max3_u32 v17, v{P(3)}, v{P(4)}, v{P(5)}')
    a(f'v_max3_u32 v18, v{P(6)}, v{P(7)}, v{P(8)}')
    a('v_max3_u32 v16, v16, v17, v18')
    a('v_cmp_eq_u32 vcc, -1, v16')
    a(f'v_pk_add_f32 v[18:19], {vr(P(0),2)}, {vr(P(2),2)}')
    a(f'v_pk_add_f32 v[20:21], {vr(P(4),2)}, {vr(P(6),2)}')
    a('s_cmp_eq_u64 vcc, 0')
    a('s_cbranch_scc1 L_PGOT')
    a(f's_cmp_lt_u32 s58, {SPIN_LIMIT}')
    a('s_cbranch_scc1 L_PPOLL')
    lab(a, 'L_PGOT')
    a('v_pk_add_f32 v[18:19], v[18:19], v[20:21]')
    a(f'v_add_f32 v18, v18, v{P(8)}')
    a('v_add_f32 v18, v18, v19')
    a('ds_write_b32 v10, v18')
    a('s_waitcnt lgkmcnt(0)')
    stamp(a, 13)
    a('s_barrier')
    a('s_cmp_lg_u32 s40, 7')
    a('s_cbranch_scc1 L_EXIT')
    for w in range(4):
        a(f'ds_read2st64_b32 {vr(16+2*w,2)}, v9 offset0:{2*w} offset1:{2*w+1}')
    bfround(a, 62, 62)
    a('v_mul_f32 v30, 0xbfb8aa3b, v62')
    a('v_exp_f32 v30, v30')
    a('v_mul_u32_u24 v63, 1152, v63')
    a('v_add_f32 v30, 1.0, v30')
    a('v_rcp_f32 v30, v30')
    a('v_add_u32 v63, v63, v12')
    bfround(a, 30, 30)
    a('s_waitcnt lgkmcnt(0)')
    a('v_pk_add_f32 v[16:17], v[16:17], v[18:19]')
    a('v_pk_add_f32 v[20:21], v[20:21], v[22:23]')
    a('v_pk_add_f32 v[16:17], v[16:17], v[20:21]')
    a('v_add_f32 v16, v16, v17')
    bfround(a, 16, 16)
    a('v_mul_f32 v16, v16, v30')
    bfround(a, 16, 16)
    a('v_add_f32 v16, v16, v60')
    bfround(a, 16, 16)
    a('v_add_f32 v16, v16, v61')
    a('v_cvt_pk_bf16_f32 v16, v16, v16')
    a('buffer_store_short v16, v63, s[32:35], 0 offen')
    if OPT['ls']:
        a('s_memrealtime s[92:93]')
        a('s_waitcnt lgkmcnt(0)')
        if OPT['ls'] > 1:
            a('s_mov_b32 s92, s94')
        a('s_sub_u32 s92, s92, s90')
        a('v_mov_b32 v20, s92')
        a('s_lshl_b32 s93, s2, 2')
        a(f's_add_u32 s93, s93, {WS_STAMP}')
        a('v_mov_b32 v21, 0')
        a('buffer_store_dword v20, v21, s[36:39], s93 offen')
    stamp(a, 14)
    lab(a, 'L_EXIT')
    if STAMP:
        a('s_waitcnt vmcnt(0)')
        stamp(a, 15)
        stamp_flush(a)
    lab(a, 'L_END')
    a('s_endpgm')
    a.label('CODE_END')


def main(path):
    a = Asm()
    if OPT['aslist']:
        a.raw(f'; @launch kernel={NAME} grid=(256,1,1) block=(512,1,1) lds={LDS_TOTAL}')
    else:
        a.raw(f'; @launch grid=(256,1,1) block=(512,1,1) lds={LDS_TOTAL}')
    a.raw('.amdgcn_target "amdgcn-amd-amdhsa--gfx950"')
    a.raw('.text')
    gen(a)
    a.raw('.section .rodata,"a"')
    a.raw(f'''.p2align 6
.amdhsa_kernel {NAME}
  .amdhsa_next_free_vgpr 256
  .amdhsa_next_free_sgpr {100 if (STAMP or OPT['ls']) else 88}
  .amdhsa_accum_offset 256
  .amdhsa_group_segment_fixed_size 0
  .amdhsa_kernarg_size 104
  .amdhsa_user_sgpr_count 2
  .amdhsa_user_sgpr_kernarg_segment_ptr 1
  .amdhsa_system_sgpr_workgroup_id_x 1
.end_amdhsa_kernel
''')
    open(path, 'w').write(a.text())


if __name__ == '__main__':
    for arg in sys.argv[2:]:
        if arg == 'stamp':
            STAMP = True
        else:
            k, v = arg.split('=')
            OPT[k] = int(v)
    main(sys.argv[1])
```

```python
import sys
import struct
from asmdsl import Asm, Cnt, vr, sr

NAME = 'sequential_preLN__spectral_fnet__moe_arch_mod__prompt_kernel'
S, D, F = 2048, 576, 4608
X_BYTES = S * D * 2
SEQ_BYTES = S * S * 2
HID_BYTES = D * D * 2
WG_BYTES = D * F * 2
WS_U = 0
WS_KEYS = 0x240000
WS_UF = WS_KEYS + 16384
WS_PART = WS_UF + 192 * 64
WS_HN = WS_PART + 72 * 2304
WS_FILL_END = WS_HN + 128 * 1152
WS_H = 0x2a0000
WS_RANGE = 0x900000
WS_STAMP = 0x800000
assert WS_FILL_END <= WS_H and WS_FILL_END - WS_KEYS <= 64 * 8192

STAMP = False
OPT = dict(ahead=9, warm=0, hwait=1, ls=0, hfirst=7, wpf=1, wpf_at=0, usent=0, outsc=1, depth=3, slow=6, gap=3, codepf=1, ntw=0, ipf=0, fearly=1, coop=0, st=7, gent=1, split=0, g1=3, cmul=1, npre=9, ilv=2, wpoll=1, sleep=1, aslist=0)
SC = ' sc1'
SPIN_LIMIT = 400000
NCLR = 16
INVB = struct.unpack('<I', struct.pack('<f', 1.0 / 576.0))[0]
EPSB = struct.unpack('<I', struct.pack('<f', 1e-5))[0]

P1_B = 73728
P1_F = 135168
P1_ST = 151552
LDS_T = 152064
LDS_C = LDS_T + 4096
LDS_XS = 152064
LDS_RED = LDS_XS + 1280
LDS_ACT = LDS_RED + 1024
LDS_CNT = LDS_C + 64
LDS_TOTAL = LDS_C + 128
R_Y = 73728
R_YS = 2312
R_STG = R_Y + 16 * R_YS
R_X = R_STG + 16 * 1152 + 1024
R_W = R_X + 16 * 1152
assert R_W + 1152 + 1024 <= P1_ST
GROUPS = [(0, 0, 0), (1, 0, 5), (None, 0, 1), (2, 0, 6), (None, 0, 2), (3, 0, 7), (None, 0, 3), (4, 1, 8), (None, 0, 4)]
STAGES = [[0], [1], [2, 3], [4, 5], [6, 7], [8]]


def srd(a, d, b, nbytes):
    a(f's_mov_b32 s{d}, s{b}')
    a(f's_mov_b32 s{d+1}, s{b+1}')
    a(f's_mov_b32 s{d+2}, {nbytes}')
    a(f's_mov_b32 s{d+3}, 0x00020000')


def stamp(a, k):
    if STAMP:
        if k == 0:
            a('v_mov_b32 v1, 0')
        a('s_memrealtime s[92:93]')
        a('s_waitcnt lgkmcnt(0)')
        a(f'v_writelane_b32 v1, s92, {k}')


def lpoint(a, k):
    if OPT['ls'] == k:
        a('s_memtime s[94:95]' if OPT.get('cyc') else 's_memrealtime s[94:95]')
        a('s_waitcnt lgkmcnt(0)')


def fpoint(a, k):
    if OPT['ls'] == k:
        a('s_memrealtime s[94:95]')
        a('s_waitcnt lgkmcnt(0)')
        a('s_sub_u32 s94, s94, s90')
        a('v_mov_b32 v236, s94')
        a('s_lshl_b32 s95, s2, 2')
        a(f's_add_u32 s95, s95, {WS_STAMP + 4096}')
        a('v_mov_b32 v237, 0')
        a('buffer_store_dword v236, v237, s[36:39], s95 offen')


def stamp_flush(a):
    if not STAMP:
        return
    a('s_mov_b32 exec_lo, -1')
    a('s_mov_b32 exec_hi, 0')
    srd(a, 96, 14, WS_RANGE)
    a('s_lshl_b32 s95, s2, 3')
    a('s_add_u32 s95, s95, s40')
    a('s_lshl_b32 s95, s95, 7')
    a(f's_add_u32 s95, s95, {WS_STAMP}')
    a('v_lshlrev_b32 v0, 2, v0')
    a('buffer_store_dword v1, v0, s[96:99], s95 offen')


def bfround(a, dst, src):
    a(f'v_cvt_pk_bf16_f32 v{dst}, v{src}, v{src}')
    a(f'v_and_b32 v{dst}, 0xffff0000, v{dst}')


def dpp_reduce(a, op, regs, upto=6):
    ms = [('row_shr:1', '0xf'), ('row_shr:2', '0xf'), ('row_shr:4', '0xf'), ('row_shr:8', '0xf'), ('row_bcast:15', '0xa'), ('row_bcast:31', '0xc')]
    for m, rm in ms[:upto]:
        for r in regs:
            a(f'{op}_dpp v{r}, v{r}, v{r} {m} row_mask:{rm} bank_mask:0xf')


def lab(a, name):
    a.label(name)
    a.flush_hist()


def wait_cleared(a, name):
    srd(a, 76, 74, 256)
    a('v_mov_b32 v250, 0')
    a('s_mov_b32 s58, 0')
    lab(a, name)
    a(f'buffer_load_dword v251, v250, s[76:79], 0 offen{SC}')
    a('s_add_u32 s58, s58, 1')
    a('s_waitcnt vmcnt(0)')
    a('v_readfirstlane_b32 s59, v251')
    a(f's_cmp_ge_u32 s59, {NCLR}')
    a(f's_cbranch_scc1 {name}_OK')
    a('s_sleep 8')
    a(f's_cmp_lt_u32 s58, {SPIN_LIMIT}')
    a(f's_cbranch_scc1 {name}')
    lab(a, name + '_OK')


def gen(a):
    global STAGES
    STAGES = [[[0], [1], [2, 3], [4, 5], [6, 7], [8]], [[0, 1], [2, 3], [4, 5], [6, 7], [8]], [[i] for i in range(9)],
              [[0], [1, 2], [3, 4], [5, 6], [7], [8]], [[0], [1, 2, 3], [4, 5, 6], [7, 8]], [[0, 1, 2], [3, 4, 5], [6, 7, 8]], [[0, 1, 2, 3], [4, 5, 6, 7, 8]], [[0, 1], [2, 3, 4], [5, 6, 7, 8]]][OPT['st']]
    global GROUPS
    if OPT['gent']:
        GROUPS = [(None, 0, c) for c in range(9)]
        OPT['fearly'] = 0
        if OPT['split']:
            GROUPS = [(None, 0, c) for c in (0, 1, 4, 5, 2, 3, 6, 7, 8)]
            STAGES = [[0, 1, 2, 3], [4, 5, 6], [7, 8]]
    fb = lambda x: '0x%08x' % struct.unpack('<I', struct.pack('<f', float(x)))[0]

    def gensetup(theta, R):
        C, Sn = R, R + 8
        for j in range(8):
            a(f'v_mul_f32 v{Sn+j}, {fb(j)}, v{theta}')
        for j in range(8):
            a(f'v_cos_f32 v{C+j}, v{Sn+j}')
            a(f'v_sin_f32 v{Sn+j}, v{Sn+j}')
        a(f'v_mul_f32 v{theta}, {fb(32)}, v{theta}')

    def genloop(name, theta, base, addr, count, R):
        C, Sn, T0, BR, BI, O = R, R + 8, R + 16, R + 32, R + 34, R + 36
        a(f's_mov_b32 s53, {count}')
        lab(a, name)
        a(f'v_cos_f32 v{BR}, v{base}')
        a(f'v_sin_f32 v{BI}, v{base}')
        a(f'v_add_f32 v{base}, v{base}, v{theta}')
        a('s_sub_u32 s53, s53, 1')
        for h in range(4):
            a(f'v_pk_mul_f32 {vr(T0+2*h,2)}, {vr(C+2*h,2)}, {vr(BR,2)} op_sel_hi:[1,0]')
            a(f'v_pk_mul_f32 {vr(T0+8+2*h,2)}, {vr(Sn+2*h,2)}, {vr(BR,2)} op_sel_hi:[1,0]')
        for h in range(4):
            a(f'v_pk_fma_f32 {vr(T0+2*h,2)}, {vr(Sn+2*h,2)}, {vr(BI,2)}, {vr(T0+2*h,2)} op_sel_hi:[1,0,1] neg_lo:[0,1,0] neg_hi:[0,1,0]')
            a(f'v_pk_fma_f32 {vr(T0+8+2*h,2)}, {vr(C+2*h,2)}, {vr(BI,2)}, {vr(T0+8+2*h,2)} op_sel_hi:[1,0,1]')
        a('s_waitcnt lgkmcnt(0)')
        for h in range(4):
            a(f'v_cvt_pk_bf16_f32 v{O+h}, v{T0+2*h}, v{T0+2*h+1}')
            a(f'v_cvt_pk_bf16_f32 v{O+4+h}, v{T0+8+2*h}, v{T0+8+2*h+1}')
        a(f'ds_write_b128 v{addr}, {vr(O,4)}')
        a(f'ds_write_b128 v{addr}, {vr(O+4,4)} offset:1024')
        a(f'v_add_u32 v{addr}, 2048, v{addr}')
        a('s_cmp_lg_u32 s53, 0')
        a(f's_cbranch_scc1 {name}')
        a.flush_hist()
        a('s_waitcnt lgkmcnt(0)')

    def trig(theta, r0, consts, dre, dim, tmp):
        for j in range(8):
            a(f'v_fmamk_f32 v{tmp+j}, v{theta}, {fb(consts[j])}, v{r0}')
        for j in range(8):
            a(f'v_cos_f32 v{tmp+8+j}, v{tmp+j}')
            a(f'v_sin_f32 v{tmp+j}, v{tmp+j}')
        for j in range(4):
            a(f'v_cvt_pk_bf16_f32 v{dre+j}, v{tmp+8+2*j}, v{tmp+8+2*j+1}')
            a(f'v_cvt_pk_bf16_f32 v{dim+j}, v{tmp+2*j}, v{tmp+2*j+1}')
    a.raw(f'.globl {NAME}')
    a.raw('.p2align 8')
    a.raw(f'.type {NAME},@function')
    lab(a, NAME)
    if OPT['ls']:
        a('s_memtime s[90:91]' if OPT.get('cyc') else 's_memrealtime s[90:91]')
    a('s_cmp_ge_u32 s2, 256')
    a('s_cbranch_scc1 L_END')
    a('s_load_dwordx8 s[4:11], s[0:1], 0')
    a('s_load_dwordx2 s[12:13], s[0:1], 32')
    a('s_load_dwordx2 s[14:15], s[0:1], 96')
    a('s_load_dwordx8 s[64:71], s[0:1], 48')
    a('s_load_dwordx4 s[72:75], s[0:1], 80')
    a('v_lshrrev_b32 v1, 6, v0')
    a('v_readfirstlane_b32 s40, v1')
    def helper_code():
        lab(a, 'L_HELP')
        a(f's_cmp_ge_u32 s2, {NCLR}')
        a('s_cbranch_scc1 L_HELP2')
        NF = (WS_FILL_END - WS_KEYS + NCLR * 8192 - 1) // (NCLR * 8192)
        a('v_lshlrev_b32 v13, 4, v0')
        for r in range(28, 32):
            a(f'v_mov_b32 v{r}, -1')
        a(f's_mul_i32 s54, s2, {NF*8192}')
        a(f's_add_u32 s54, s54, {WS_KEYS}')
        a(f's_mov_b32 s62, {WS_FILL_END}')
        a('s_mov_b32 s63, 0x00020000')
        a('v_mov_b32 v6, 0')
        a('v_mov_b32 v7, 1')
        a('s_waitcnt lgkmcnt(0)')
        a('s_mov_b32 s60, s14')
        a('s_mov_b32 s61, s15')
        for q in range(NF):
            a(f'buffer_store_dwordx4 v[28:31], v13, s[60:63], s54 offen{SC}')
            if q < NF - 1:
                a('s_add_u32 s54, s54, 8192')
        srd(a, 76, 74, 256)
        a('v_and_b32 v0, 63, v0')
        a('s_and_b32 s41, s2, 7')
        a('s_lshr_b32 s42, s2, 3')
        a('s_waitcnt vmcnt(0)')
        a('s_barrier')
        a('s_cmp_lg_u32 s40, 7')
        a('s_cbranch_scc1 L_HELP4')
        a('s_mov_b64 exec, 1')
        a('buffer_atomic_add v7, v6, s[76:79], 0 offen')
        a('s_mov_b64 exec, -1')
        a('s_branch L_HELP4')
        lab(a, 'L_HELP2')
        a('v_and_b32 v0, 63, v0')
        a('s_and_b32 s41, s2, 7')
        a('s_lshr_b32 s42, s2, 3')
        a('s_cmp_ge_u32 s40, 5')
        a('s_cbranch_scc1 L_HELP3')
        if OPT['warm']:
            a('s_sub_u32 s43, s42, 2')
            a('v_mul_u32_u24 v8, 9216, v0')
            a('v_mul_u32_u24 v10, 1152, v0')
            a('s_mul_i32 s48, s43, 344')
            a('s_add_u32 s48, s48, s41')
            a('s_mul_i32 s48, s48, 1152')
            a('s_lshl_b32 s50, s40, 8')
            a('s_add_u32 s48, s48, s50')
            a('s_mul_i32 s49, s43, 55296')
            a('s_lshl_b32 s50, s40, 7')
            a('s_add_u32 s49, s49, s50')
            a('s_waitcnt lgkmcnt(0)')
            srd(a, 16, 4, X_BYTES)
            srd(a, 28, 10, HID_BYTES)
            srd(a, 32, 12, HID_BYTES)
            a('s_mov_b32 exec_hi, 0x7ff')
            a('buffer_load_dword v18, v8, s[16:19], s48 offen')
            a('s_mov_b32 exec_hi, 0xffff')
            a('buffer_load_dword v16, v10, s[28:31], s49 offen offset:1152')
            a('buffer_load_dword v17, v10, s[32:35], s49 offen offset:1152')
            a('s_mov_b32 exec_hi, 0x7ff')
            a('buffer_load_dword v19, v8, s[16:19], s48 offen offset:128')
            a('s_mov_b32 exec_hi, -1')
        a('s_branch L_HELP4')
        lab(a, 'L_HELP3')
        a('s_cmp_eq_u32 s40, 5')
        a('s_cbranch_scc1 L_HELP5')
        a('s_cmp_eq_u32 s40, 7')
        a('s_cbranch_scc1 L_HELP4')
        if OPT['codepf']:
            a('s_getpc_b64 s[76:77]')
            a.label('L_PC')
            a(f's_sub_u32 s76, s76, L_PC-{NAME}')
            a('s_subb_u32 s77, s77, 0')
            a('v_lshlrev_b32 v7, 7, v0')
            for q in range(3):
                if q:
                    a('v_add_u32 v7, 8192, v7')
                a(f'v_cmp_gt_u32 vcc, CODE_END-{NAME}, v7')
                a('v_cndmask_b32 v8, 0, v7, vcc')
                a(f'global_load_dword v{20+q}, v8, s[76:77]')
        a('s_branch L_HELP4')
        lab(a, 'L_HELP5')
        if OPT['warm']:
            a('v_lshlrev_b32 v12, 17, v0')
            a('s_sub_u32 s52, s42, 2')
            a(f's_mul_i32 s52, s52, {11*131072}')
            a('s_waitcnt lgkmcnt(0)')
            srd(a, 20, 6, SEQ_BYTES)
            srd(a, 24, 8, SEQ_BYTES)
            a('s_mov_b64 exec, 0x7ff')
            a('buffer_load_dword v19, v12, s[20:23], s52 offen')
            a('buffer_load_dword v20, v12, s[24:27], s52 offen')
            a('s_mov_b64 exec, -1')
        lab(a, 'L_HELP4')
        a('s_waitcnt lgkmcnt(0)')
        stamp(a, 0)
        stamp(a, 1)
        if OPT['hwait']:
            a('s_waitcnt vmcnt(0)')
        for _ in range(OPT.get('hdelay', 0)):
            a('s_sleep 32')
        a('s_barrier')
        a('s_cmp_ge_u32 s40, 2')
        a('s_cbranch_scc1 L_FFN')
        srd(a, 16, 66, WG_BYTES)
        srd(a, 20, 68, WG_BYTES)
        srd(a, 24, 70, WG_BYTES)
        a('s_mul_i32 s43, s42, 72')
        a('s_mul_i32 s44, s40, 36')
        a('s_add_u32 s43, s43, s44')
        a('s_mul_i32 s44, s41, 9')
        a('s_add_u32 s44, s44, 8')
        a('s_mul_i32 s45, s43, 9216')
        a('s_lshl_b32 s46, s44, 7')
        a('s_add_u32 s45, s45, s46')
        a('s_mul_i32 s46, s44, 73728')
        a('s_lshl_b32 s47, s43, 7')
        a('s_add_u32 s46, s46, s47')
        a('v_mul_u32_u24 v6, 9216, v0')
        a('v_lshlrev_b32 v7, 7, v0')
        a('s_mov_b32 exec_hi, 0xf')
        a('buffer_load_dword v240, v6, s[16:19], s45 offen')
        a('buffer_load_dword v241, v6, s[20:23], s45 offen')
        a('buffer_load_dword v242, v7, s[24:27], s46 offen')
        a('s_mov_b32 exec_hi, -1')
        a('s_branch L_FFN')


    if OPT['hfirst']:
        a('s_cmp_ge_u32 s2, 64')
        a('s_cbranch_scc1 L_PROD')
        helper_code()
        lab(a, 'L_PROD')
    else:
        a('s_cmp_lt_u32 s2, 64')
        a('s_cbranch_scc1 L_HELP')
    a('v_and_b32 v0, 63, v0')
    a('s_and_b32 s41, s2, 31')
    a('s_lshr_b32 s42, s2, 5')
    a('s_sub_u32 s42, s42, 2')
    a('v_lshrrev_b32 v3, 4, v0')
    a('s_cmp_ge_u32 s42, 3')
    a('s_cselect_b32 s43, 1, 0')
    a('s_cmp_lt_u32 s40, 4')
    a('s_cbranch_scc1 L_P1MM')
    vm = Cnt(a, 'vmcnt', 63)
    a('v_lshrrev_b32 v8, 3, v0')
    a('v_and_b32 v9, 7, v0')
    a('v_xor_b32 v9, v9, v3')
    a('v_lshlrev_b32 v9, 4, v9')
    a('s_sub_u32 s44, s40, 4')
    a('s_lshr_b32 s45, s44, 1')
    a('s_lshl_b32 s45, s45, 5')
    a('s_and_b32 s51, s44, 1')
    a('s_lshl_b32 s46, s51, 2')
    a('s_add_u32 s45, s45, s46')
    a('v_lshrrev_b32 v6, 2, v8')
    a('v_lshlrev_b32 v6, 3, v6')
    a('v_and_b32 v10, 3, v8')
    a('v_add3_u32 v6, v6, v10, s45')
    a('v_mul_u32_u24 v6, 36864, v6')
    a('s_mul_i32 s47, s41, 1152')
    a('v_xor_b32 v10, 64, v9')
    a('v_add_u32 v7, s47, v6')
    a('v_add_u32 v6, v7, v9')
    a('v_add_u32 v7, v7, v10')
    a(f'v_add_u32 v7, {16*36864}, v7')
    a('s_lshl_b32 s48, s44, 11')
    if not OPT['gent']:
        a('s_mul_i32 s50, s42, 96')
        a('s_mul_i32 s52, s43, 287')
        a('s_sub_u32 s50, s50, s52')
        a('s_lshl_b32 s52, s51, 4')
        a('s_add_u32 s50, s50, s52')
        a('v_lshl_add_u32 v40, v8, 1, s50')
        a('s_lshl_b32 s52, s51, 6')
        a('v_xor_b32 v43, s52, v9')
        a('v_mul_u32_u24 v41, 1152, v40')
        a('v_cmp_eq_u32 vcc, 0, v40')
        a(f'v_mov_b32 v42, {288*1152}')
        a('v_cndmask_b32 v40, v41, v42, vcc')
        a('v_add_u32 v40, v40, v43')
        a('v_add_u32 v41, v41, v43')
        a('v_add_u32 v42, 73728, v41')
        a('v_add_u32 v41, 36864, v41')
        a('s_lshl_b32 s53, s44, 10')
        a(f's_add_u32 s53, s53, {P1_B}')
        a('s_cmp_ge_u32 s44, 2')
        a(f's_mov_b32 s30, {HID_BYTES}')
        a('s_mov_b32 s31, 0x00020000')
    a('s_waitcnt lgkmcnt(0)')
    if not OPT['gent']:
        a('s_cselect_b32 s28, s12, s10')
        a('s_cselect_b32 s29, s13, s11')
    srd(a, 16, 4, X_BYTES)
    stamp(a, 0)
    lpoint(a, 2)

    def issue(st):
        for gi in STAGES[st]:
            cb, withF, c = GROUPS[gi]
            for hh in range(2):
                a(f's_add_u32 m0, s48, {c*8192 + hh*1024 - c*128}')
                a(f'buffer_load_dwordx4 v{6+hh}, s[16:19], 0 offen offset:{c*128} lds')
                vm.issue(st)
            if cb is not None:
                for w in range(3):
                    a(f's_add_u32 m0, s53, {w*20480 + cb*4096 - cb*128}')
                    a(f'buffer_load_dwordx4 v{40+w}, s[28:31], 0 offen offset:{cb*128} lds')
                    vm.issue(st)
            if withF and not OPT['fearly']:
                for part in range(2):
                    for hh in range(2):
                        a(f's_add_u32 m0, s49, {P1_F + (part*2+hh)*1024}')
                        a(f'buffer_load_dwordx4 v{14+hh}, s[{20+4*part}:{23+4*part}], 0 offen lds')
                        vm.issue(st)
    NS = len(STAGES)
    AH = min(OPT['ahead'], NS)
    for st in range(AH):
        issue(st)
    if OPT['gent']:
        a('v_and_b32 v14, 7, v0')
        a('s_lshl_b32 s46, s44, 3')
        a('v_add_u32 v14, s46, v14')
        a('v_sub_u32 v15, 64, v14')
        a('v_cmp_eq_u32 vcc, 64, v15')
        a('v_cndmask_b32 v15, v15, 32, vcc')
        a('v_and_b32 v16, 8, v0')
        a('v_cmp_eq_u32 vcc, 0, v16')
        a('v_cndmask_b32 v14, v15, v14, vcc')
        a('v_cvt_f32_u32 v14, v14')
        a(f'v_mul_f32 v14, {fb(-1.0/64)}, v14')
        a('v_lshlrev_b32 v15, 3, v3')
        a('v_cvt_f32_u32 v15, v15')
        a('v_mul_f32 v15, v15, v14')
        a('s_lshl_b32 s49, s44, 12')
        a(f's_add_u32 s49, s49, {P1_F}')
        a('v_lshl_add_u32 v16, v0, 4, s49')
    else:
        a('s_lshl_b32 s46, s44, 3')
        a('v_add_u32 v14, s46, v8')
        a('v_sub_u32 v15, 64, v14')
        a('v_cmp_eq_u32 vcc, 64, v15')
        a('v_cndmask_b32 v15, v15, 32, vcc')
        a('v_lshl_add_u32 v14, v14, 17, v9')
        a('v_lshl_add_u32 v15, v15, 17, v10')
        a('s_lshl_b32 s49, s44, 12')
        srd(a, 20, 6, SEQ_BYTES)
        srd(a, 24, 8, SEQ_BYTES)
    if OPT['gent'] and OPT['split']:
        a('s_min_u32 s50, s44, 2')
        a('s_lshl_b32 s51, s50, 5')
        a('s_mul_i32 s50, s42, 96')
        a('s_add_u32 s50, s50, s51')
        a('s_mul_i32 s51, s43, 287')
        a('s_sub_u32 s50, s50, s51')
        a('v_and_b32 v17, 15, v0')
        a('v_lshl_add_u32 v17, v17, 1, s50')
        a('v_cmp_eq_u32 vcc, 0, v17')
        a('v_mov_b32 v18, 288')
        a('v_cndmask_b32 v17, v17, v18, vcc')
        a('v_cvt_f32_u32 v17, v17')
        a(f'v_mul_f32 v17, {fb(-1.0/576)}, v17')
        a('v_lshlrev_b32 v18, 3, v3')
        a('v_add_u32 v18, 96, v18')
        a('v_cvt_f32_u32 v18, v18')
        a('v_mul_f32 v18, v18, v17')
        a('s_mul_i32 s50, s44, 20480')
        a(f's_add_u32 s50, s50, {P1_B + 3*2048}')
        a('v_lshl_add_u32 v19, v0, 4, s50')
        a('s_cmp_eq_u32 s44, 3')
        a('s_cbranch_scc1 L_NOGB1')
        gensetup(17, 96)
        genloop('L_GB1', 17, 18, 19, OPT['g1'], 96)
        lab(a, 'L_NOGB1')
    for st in range(NS):
        vm.wait(st)
        if st in (0, NS - 1):
            stamp(a, 1 if st == 0 else 2)
            lpoint(a, 3 if st == 0 else 4)
        a('s_barrier')
        if OPT['gent'] and OPT['split'] and st == 0:
            a('s_cmp_eq_u32 s44, 3')
            a('s_cbranch_scc1 L_NOGB2')
            genloop('L_GB2', 17, 18, 19, 6 - OPT['g1'], 96)
            lab(a, 'L_NOGB2')
        if OPT['gent'] and st == (1 if OPT['split'] else 0):
            gensetup(14, 48)
            genloop('L_GF', 14, 15, 16, 2, 48)
        if st + AH < NS:
            issue(st + AH)
        if st == OPT['wpf_at'] and OPT['wpf']:
            srd(a, 32, 66, WG_BYTES)
            srd(a, 36, 68, WG_BYTES)
            srd(a, 60, 70, WG_BYTES)
            a('s_sub_u32 s54, s2, 64')
            a('s_lshr_b32 s54, s54, 3')
            a('s_lshl_b32 s54, s54, 2')
            a('s_add_u32 s54, s54, s44')
            a('s_and_b32 s55, s2, 7')
            a('s_mul_i32 s56, s54, 55296')
            a('s_mul_i32 s57, s55, 1152')
            a('s_add_u32 s56, s56, s57')
            a('s_mul_i32 s57, s55, 663552')
            a('s_mul_i32 s58, s54, 6912')
            a('s_add_u32 s57, s57, s58')
            a('s_mov_b32 s58, 0x1c72')
            a('v_mul_u32_u24 v44, s58, v0')
            a('v_lshrrev_b32 v44, 16, v44')
            a('v_mul_u32_u24 v45, 9, v44')
            a('v_sub_u32 v45, v0, v45')
            a('v_mul_u32_u24 v44, 9216, v44')
            a('v_lshl_add_u32 v44, v45, 7, v44')
            a('v_lshlrev_b32 v45, 7, v0')
            a('s_mov_b32 exec_hi, 0x3fffff')
            a('buffer_load_dword v240, v44, s[32:35], s56 offen')
            vm.issue('pf')
            a('buffer_load_dword v241, v44, s[36:39], s56 offen')
            vm.issue('pf')
            a('buffer_load_dword v242, v45, s[60:63], s57 offen')
            vm.issue('pf')
            a('s_mov_b32 exec_hi, -1')
    a('s_cmp_ge_u32 s2, 128')
    a('s_cbranch_scc1 L_ROWPRE')
    a('s_barrier')
    a('s_branch L_P2')

    lab(a, 'L_P1MM')
    a('s_setprio 2')
    a('v_and_b32 v2, 15, v0')
    a('v_lshrrev_b32 v4, 1, v2')
    a('v_xor_b32 v4, v4, v3')
    a('v_lshlrev_b32 v4, 4, v4')
    a('v_lshl_add_u32 v4, v2, 7, v4')
    a('v_xor_b32 v5, 64, v4')
    for r in range(12, 16):
        a(f'v_mov_b32 v{r}, 0x3f803f80')
    XA, XB, BB, FB = 4, 242, 244, 246
    for b in range(2):
        a(f'v_add_u32 v{XB+b}, 0x10000, v{4+b}')
    if OPT['fearly']:
        a('v_lshrrev_b32 v8, 3, v0')
        a('v_and_b32 v9, 7, v0')
        a('v_xor_b32 v9, v9, v3')
        a('v_lshlrev_b32 v9, 4, v9')
        a('v_xor_b32 v10, 64, v9')
        a('s_lshl_b32 s46, s40, 3')
        a('v_add_u32 v6, s46, v8')
        a('v_sub_u32 v7, 64, v6')
        a('v_cmp_eq_u32 vcc, 64, v7')
        a('v_cndmask_b32 v7, v7, 32, vcc')
        a('v_lshl_add_u32 v6, v6, 17, v9')
        a('v_lshl_add_u32 v7, v7, 17, v10')
        a('s_lshl_b32 s49, s40, 12')
    if OPT['coop']:
        a('s_lshl_b32 s50, s42, 2')
        a('s_lshr_b32 s50, 0x876543, s50' if OPT['gent'] else 's_lshr_b32 s50, 0x483726, s50')
        a('s_and_b32 s50, s50, 15')
        a('s_lshl_b32 s50, s50, 7')
        a('s_mul_i32 s51, s41, 1152')
        a('s_add_u32 s50, s50, s51')
        a('s_mul_i32 s51, s42, 96')
        a('s_mul_i32 s52, s43, 287')
        a('s_sub_u32 s51, s51, s52')
        a('s_mul_i32 s51, s51, 1152')
        a('s_lshr_b32 s52, s41, 3')
        a('s_lshl_b32 s52, s52, 7')
        a('s_add_u32 s51, s51, s52')
        a('s_add_u32 s51, s51, 128')
        a('s_movk_i32 s52, 2304')
        a('s_cmp_eq_u32 s40, 0')
        a('s_cselect_b32 s52, 36864, s52')
        a('v_mul_u32_u24 v11, s52, v0')
    a('s_waitcnt lgkmcnt(0)')
    if OPT['fearly']:
        srd(a, 20, 6, SEQ_BYTES)
        srd(a, 24, 8, SEQ_BYTES)
        for part in range(2):
            for hh in range(2):
                a(f's_add_u32 m0, s49, {P1_F + (part*2+hh)*1024}')
                a(f'buffer_load_dwordx4 v{6+hh}, s[{20+4*part}:{23+4*part}], 0 offen lds')
    if OPT['coop']:
        a('s_cmp_eq_u32 s40, 1')
        a('s_cselect_b32 s16, s10, s12')
        a('s_cselect_b32 s17, s11, s13')
        a(f's_mov_b32 s18, {HID_BYTES}')
        a('s_cmp_eq_u32 s40, 0')
        a('s_cselect_b32 s16, s4, s16')
        a('s_cselect_b32 s17, s5, s17')
        a(f's_cselect_b32 s18, {X_BYTES}, s18')
        a('s_cselect_b32 s50, s50, s51')
        a('s_cselect_b32 exec_hi, -1, 0xffff')
        a('s_cmp_ge_u32 s40, 1' if OPT['gent'] else 's_cmp_eq_u32 s40, 3')
        a('s_cselect_b32 s18, 0, s18')
        a('s_mov_b32 s19, 0x00020000')
        a('buffer_load_dword v6, v11, s[16:19], s50 offen')
        a('s_mov_b32 exec_hi, -1')
    stamp(a, 0)
    a('s_cmp_eq_u32 s40, 3')
    a('s_cbranch_scc1 L_STATS')
    lg = Cnt(a, 'lgkmcnt', 15)
    a('s_mul_i32 s44, s42, 3')
    a('s_add_u32 s44, s44, s40')
    a('s_mul_i32 s48, s40, 20480')
    a(f's_add_u32 s48, s48, {P1_B}')
    srd(a, 36, 14, WS_RANGE)
    for b in range(2):
        a(f'v_add_u32 v{BB+b}, s48, v{4+b}')
        a(f'v_add_u32 v{FB+b}, {P1_F}, v{4+b}')
    a('s_lshr_b32 s46, s41, 1')
    a('s_and_b32 s46, s46, 1')
    a('s_xor_b32 s46, s46, s44')
    a('s_lshl_b32 s46, s46, 7')
    a('s_mul_i32 s47, s41, 2304')
    a('s_add_u32 s46, s46, s47')
    a('s_and_b32 s47, s41, 1')
    a('s_lshl_b32 s47, s47, 2')
    a('v_lshrrev_b32 v7, 3, v0')
    a('v_and_b32 v9, 7, v0')
    a('v_xor_b32 v9, v9, v7')
    a('v_xor_b32 v9, s47, v9')
    a('v_mul_u32_u24 v7, 73728, v7')
    a('v_lshl_add_u32 v7, v9, 4, v7')
    a('v_add_u32 v7, s46, v7')
    a('v_and_b32 v9, 7, v2')
    a('v_lshrrev_b32 v240, 3, v2')
    a('v_lshl_add_u32 v240, v240, 2, v3')
    a('v_xor_b32 v240, v240, v9')
    a('v_lshlrev_b32 v240, 4, v240')
    a('v_lshl_add_u32 v240, v9, 7, v240')
    a('s_lshl_b32 s47, s40, 12')
    a('v_add_u32 v240, s47, v240')
    a('v_lshl_add_u32 v241, v0, 4, s47')
    a('v_lshlrev_b32 v8, 4, v3')
    a(f'v_add_u32 v8, {P1_ST}, v8')
    a('s_cmp_eq_u32 s43, 0')
    a('s_cselect_b32 s47, 1.0, -1.0')
    a('v_mov_b32 v10, s47')
    a('v_mov_b32 v11, s47')
    for it in range(1, 4):
        a(f's_mov_b32 s{59+it}, {it*8*73728}')
    Bre = lambda k: 16 + 8 * k
    Bim = lambda k: 20 + 8 * k
    acc = lambda hf, i, ab: 88 + ((hf * 4 + i) * 2 + ab) * 4
    cacc = lambda ab: 152 + 4 * ab
    Abuf = lambda b, i: 160 + b * 16 + i * 4
    st8 = dict(started=set(), bufno=0, passed=-1, lg=lg, Abuf=Abuf)
    Fregs = [Bre(k) for k in range(1, 8)] + [Bim(k) for k in range(1, 8)] + [248, 252]
    Freg = lambda f: Fregs[f]

    def rd_x(kk):
        b = st8['bufno'] % 3
        st8['bufno'] += 1
        c, par = kk >> 1, kk & 1
        for i in range(4):
            off = c * 8192 + i * 2048
            base = XA + par
            if off >= 65536:
                off -= 65536
                base = XB + par
            a(f'ds_read_b128 {vr(st8["Abuf"](b,i),4)}, v{base} offset:{off}')
            st8['lg'].issue(('x', kk))
        return b

    def rd_B(k):
        c, par = k >> 1, k & 1
        for part, reg in ((0, Bre(k)), (1, Bim(k))):
            if OPT['gent']:
                a(f'ds_read_b128 {vr(reg,4)}, v247 offset:{k*2048 + part*1024}')
            else:
                a(f'ds_read_b128 {vr(reg,4)}, v{BB+par} offset:{(c*4 + part*2)*1024}')
            lg.issue(('B', k))

    def rd_F(f):
        it, kap, part = f >> 2, (f >> 1) & 1, f & 1
        if OPT['gent']:
            a(f'ds_read_b128 {vr(Freg(f),4)}, v{FB} offset:{f*1024}')
        else:
            a(f'ds_read_b128 {vr(Freg(f),4)}, v{FB+kap} offset:{(it*2+part)*2048}')
        lg.issue('F')

    def mf(dst, A, B):
        c = vr(dst, 4) if dst in st8['started'] else '0'
        st8['started'].add(dst)
        a(f'v_mfma_f32_16x16x32_bf16 {vr(dst,4)}, {vr(A,4)}, {vr(B,4)}, {c}')

    steps = [(st, kk) for st, gs in enumerate(STAGES) for gi in gs for kk in (2 * GROUPS[gi][2], 2 * GROUPS[gi][2] + 1)]
    if OPT['gent'] and OPT['split']:
        steps = [(0, kk) for kk in (0, 1, 2, 9, 10, 11)] + [(1, kk) for kk in (3, 4, 5, 6, 7, 8, 12, 13)] + [(2, kk) for kk in (14, 15, 16, 17)]
    NSTEP = len(steps)
    haveB = set()
    bufs = {}

    def fetch(n, withB=True):
        st, kk = steps[n]
        while st8['passed'] < st:
            st8['passed'] += 1
            if st8['passed'] == len(STAGES) - 1:
                a('s_waitcnt vmcnt(0)')
            a('s_barrier')
        k = kk % 9
        if withB and k not in haveB:
            haveB.add(k)
            rd_B(k)
        bufs[n] = rd_x(kk)
    if OPT['gent']:
        a('v_lshlrev_b32 v246, 4, v0')
        a(f'v_add_u32 v246, {P1_F}, v246')
        a('s_mul_i32 s50, s42, 96')
        a('s_mul_i32 s51, s43, 287')
        a('s_sub_u32 s50, s50, s51')
        a('s_lshl_b32 s51, s40, 5')
        a('s_add_u32 s50, s50, s51')
        a('v_lshl_add_u32 v244, v2, 1, s50')
        a('v_cmp_eq_u32 vcc, 0, v244')
        a('v_mov_b32 v245, 288')
        a('v_cndmask_b32 v244, v244, v245, vcc')
        a('v_cvt_f32_u32 v244, v244')
        a(f'v_mul_f32 v244, {fb(-1.0/576)}, v244')
        a('v_lshlrev_b32 v245, 3, v3')
        a('v_cvt_f32_u32 v245, v245')
        a('v_mul_f32 v245, v245, v244')
        for j in range(8):
            a(f'v_mul_f32 v{216+j}, {fb(j)}, v244')
        NG = 3 if OPT['split'] else 9
        a('v_lshl_add_u32 v247, v0, 4, s48')
        for k in range(NG):
            a(f'v_fmamk_f32 v{160+4*k+2}, v244, {fb(32*k)}, v245')
        for j in range(8):
            a(f'v_cos_f32 v{208+j}, v{216+j}')
            a(f'v_sin_f32 v{216+j}, v{216+j}')
        for k in range(NG):
            a(f'v_cos_f32 v{160+4*k}, v{160+4*k+2}')
            a(f'v_sin_f32 v{160+4*k+2}, v{160+4*k+2}')
        for k in range(NG):
            br, bi = 160 + 4 * k, 160 + 4 * k + 2
            T0 = 224
            for h in range(4):
                a(f'v_pk_mul_f32 {vr(T0+2*h,2)}, {vr(208+2*h,2)}, {vr(br,2)} op_sel_hi:[1,0]')
                a(f'v_pk_mul_f32 {vr(T0+8+2*h,2)}, {vr(216+2*h,2)}, {vr(br,2)} op_sel_hi:[1,0]')
            for h in range(4):
                a(f'v_pk_fma_f32 {vr(T0+2*h,2)}, {vr(216+2*h,2)}, {vr(bi,2)}, {vr(T0+2*h,2)} op_sel_hi:[1,0,1] neg_lo:[0,1,0] neg_hi:[0,1,0]')
                a(f'v_pk_fma_f32 {vr(T0+8+2*h,2)}, {vr(208+2*h,2)}, {vr(bi,2)}, {vr(T0+8+2*h,2)} op_sel_hi:[1,0,1]')
            for h in range(4):
                a(f'v_cvt_pk_bf16_f32 v{Bre(k)+h}, v{T0+2*h}, v{T0+2*h+1}')
                a(f'v_cvt_pk_bf16_f32 v{Bim(k)+h}, v{T0+8+2*h}, v{T0+8+2*h+1}')
            haveB.add(k)
        pend = []
        Fregs[:] = [Bre(k) for k in range(0, 7)] + [Bim(k) for k in range(0, 7)] + [248, 252]
    fetch(0)
    fetch(1)
    fq = list(range(16))
    a('v_mov_b32 v9, 0')
    for n, (st, kk) in enumerate(steps):
        k, hf = kk % 9, kk // 9
        lg.wait(('x', kk))
        b = bufs[n]
        while OPT['gent'] and pend and pend[0][0] <= k and hf == 0:
            a(pend.pop(0)[1])
        for i in range(4):
            mf(acc(hf, i, 0), Abuf(b, i), Bre(k))
            for _ in range(OPT['ilv']):
                if OPT['gent'] and pend:
                    a(pend.pop(0)[1])
            mf(acc(hf, i, 1), Abuf(b, i), Bim(k))
            for _ in range(OPT['ilv']):
                if OPT['gent'] and pend:
                    a(pend.pop(0)[1])
            if i == 0 and n + 2 < NSTEP:
                fetch(n + 2)
            if n >= NSTEP - 2 and fq and len(lg.q) < 13:
                rd_F(fq.pop(0)); rd_F(fq.pop(0))
        if hf == 0:
            mf(cacc(0), 12, Bre(k))
            mf(cacc(1), 12, Bim(k))
    while fq:
        if len(lg.q) >= 13:
            lg.wait_all()
        rd_F(fq.pop(0)); rd_F(fq.pop(0))
    for i in range(4):
        for ab in range(2):
            for h in range(2):
                d = acc(0, i, ab) + 2 * h
                s1 = acc(1, i, ab) + 2 * h
                a(f'v_pk_fma_f32 {vr(d,2)}, {vr(s1,2)}, v[10:11], {vr(d,2)}')
    lg.wait_all()
    stamp(a, 1)
    a('s_barrier')
    for i in range(4):
        a(f'ds_read_b128 {vr(208+4*i,4)}, v8 offset:{i*64}')
        lg.issue(('st', i))
        a(f'ds_read_b128 {vr(224+4*i,4)}, v8 offset:{256+i*64}')
        lg.issue(('st', i))
    za = lambda kap: 160 + 4 * kap
    zb = lambda kap: 168 + 4 * kap
    znb = lambda kap: 176 + 4 * kap
    out = lambda it, c: 120 + (it * 2 + c) * 4
    TMP = 184
    st8['started'] = set()
    Fidx = lambda it, kap, part: (it * 2 + kap) * 2 + part

    def zops(kap):
        L = []
        for hh in range(2):
            i = 2 * kap + hh
            for ab in range(2):
                for h in range(2):
                    t = TMP + ((hh * 2 + ab) * 2 + h) * 2
                    L.append(f'v_pk_mul_f32 {vr(t,2)}, {vr(224+4*i+2*h,2)}, {vr(cacc(ab),2)}')
        for hh in range(2):
            i = 2 * kap + hh
            for ab in range(2):
                for h in range(2):
                    d = acc(0, i, ab) + 2 * h
                    t = TMP + ((hh * 2 + ab) * 2 + h) * 2
                    L.append(f'v_pk_fma_f32 {vr(d,2)}, {vr(208+4*i+2*h,2)}, {vr(d,2)}, {vr(t,2)} neg_lo:[0,0,1] neg_hi:[0,0,1]')
        for ab, z in ((0, za), (1, zb)):
            for hh in range(2):
                src = acc(0, 2 * kap + hh, ab)
                L.append(f'v_cvt_pk_bf16_f32 v{z(kap)+2*hh}, v{src}, v{src+1}')
                L.append(f'v_cvt_pk_bf16_f32 v{z(kap)+2*hh+1}, v{src+2}, v{src+3}')
        for r in range(4):
            L.append(f'v_xor_b32 v{znb(kap)+r}, 0x80008000, v{zb(kap)+r}')
        return L

    def mops(kap):
        L = []
        for it in range(4):
            L.append((out(it, 0), za(kap), Freg(Fidx(it, kap, 0))))
            L.append((out(it, 1), za(kap), Freg(Fidx(it, kap, 1))))
        for it in range(4):
            L.append((out(it, 0), znb(kap), Freg(Fidx(it, kap, 1))))
            L.append((out(it, 1), zb(kap), Freg(Fidx(it, kap, 0))))
        return L
    lg.wait(('st', 1))
    for ins in zops(0):
        a(ins)
    lg.wait(('st', 3))
    z1 = zops(1)
    for m in mops(0):
        mf(*m)
        for _ in range(2):
            if z1:
                a(z1.pop(0))
    while z1:
        a(z1.pop(0))
    m1 = mops(1)

    def upack(it):
        d = 184 + 4 * it
        a(f'v_cvt_pk_bf16_f32 v{d}, v{out(it,0)}, v{out(it,0)+1}')
        a(f'v_cvt_pk_bf16_f32 v{d+1}, v{out(it,0)+2}, v{out(it,0)+3}')
        a(f'v_cvt_pk_bf16_f32 v{d+2}, v{out(it,1)}, v{out(it,1)+1}')
        a(f'v_cvt_pk_bf16_f32 v{d+3}, v{out(it,1)+2}, v{out(it,1)+3}')
        a(f'ds_write_b128 v240, {vr(d,4)} offset:{it*1024}')
        lg.issue(('w', it))
        a(f'ds_read_b128 {vr(208+4*it,4)}, v241 offset:{it*1024}')
        lg.issue(('r', it))

    def ustore(it):
        lg.wait(('r', it))
        so = '0' if it == 0 else f's{59+it}'
        a(f'buffer_store_dwordx4 {vr(208+4*it,4)}, v7, s[36:39], {so} offen{SC}')
    for it in range(4):
        for m in (m1[2 * it], m1[2 * it + 1], m1[8 + 2 * it], m1[9 + 2 * it]):
            mf(*m)
        if it >= 2:
            upack(it - 2)
    upack(2)
    ustore(0)
    upack(3)
    ustore(1)
    ustore(2)
    ustore(3)
    stamp(a, 2)
    lab(a, 'L_ARRIVE')
    a(f'v_mov_b32 v10, {LDS_CNT}')
    a('v_mov_b32 v11, 1')
    a('v_mov_b32 v9, 0')
    a('s_sub_u32 s49, s2, 64')
    a('s_lshl_b32 s49, s49, 6')
    a(f's_add_u32 s49, s49, {WS_UF}')
    srd(a, 36, 14, WS_RANGE)
    a('s_waitcnt vmcnt(0)')
    a('s_mov_b64 exec, 1')
    a('ds_add_rtn_u32 v6, v10, v11')
    a('s_waitcnt lgkmcnt(0)')
    a('v_readfirstlane_b32 s59, v6')
    a('s_cmp_lg_u32 s59, 3')
    a('s_cbranch_scc1 L_NOFLAG')
    a(f'buffer_store_dword v9, v9, s[36:39], s49 offen{SC}')
    lab(a, 'L_NOFLAG')
    a('s_mov_b64 exec, -1')
    stamp(a, 3)
    a('s_cmp_lt_u32 s2, 128')
    a('s_cbranch_scc1 L_P2')
    a('s_barrier')
    a('s_setprio 0')
    a('s_mov_b32 s3, 2')
    a('s_branch L_ROWP')

    lab(a, 'L_STATS')
    lg = Cnt(a, 'lgkmcnt', 15)
    a('v_and_b32 v8, 3, v2')
    a('v_lshrrev_b32 v9, 2, v2')
    a('v_sub_u32 v9, v9, v3')
    a('v_and_b32 v9, 3, v9')
    for r in range(1, 4):
        a(f'v_cmp_eq_u32 s[{42+2*r}:{43+2*r}], {r}, v8')
        a(f'v_cmp_eq_u32 s[{48+2*r}:{49+2*r}], {r}, v9')
    a('v_lshlrev_b32 v10, 4, v9')
    a('v_lshl_add_u32 v10, v3, 2, v10')
    a('v_add_u32 v10, v10, v8')
    a('v_lshlrev_b32 v10, 2, v10')
    a(f'v_add_u32 v10, {P1_ST}, v10')
    a('s_cmp_eq_u32 s43, 0')
    a('s_cselect_b32 s56, 2.0, 0')
    a(f'v_mov_b32 v8, {LDS_CNT}')
    a('v_mov_b32 v9, 0')
    a('ds_write_b32 v8, v9')
    a('s_waitcnt lgkmcnt(0)')
    GR = lambda i: 16 + 4 * i
    SM = lambda i: 32 + 4 * i
    SAbuf = lambda b, i: 48 + b * 16 + i * 4
    st8.update(started=set(), bufno=0, passed=-1, lg=lg, Abuf=SAbuf)
    bufs = {}
    fetch(0, False)
    fetch(1, False)
    for n, (st, kk) in enumerate(steps):
        lg.wait(('x', kk))
        b = bufs[n]
        for i in range(4):
            mf(GR(i), SAbuf(b, i), SAbuf(b, i))
            mf(SM(i), 12, SAbuf(b, i))
            if i == 0 and n + 2 < NSTEP:
                fetch(n + 2, False)
    for i in range(4):
        for r in range(1, 4):
            a(f'v_cndmask_b32 v{GR(i)}, v{GR(i)}, v{GR(i)+r}, s[{42+2*r}:{43+2*r}]')
    for i in range(1, 4):
        a(f'v_mov_b32_dpp v{GR(i)+1}, v{GR(i)} row_ror:{4*i} row_mask:0xf bank_mask:0xf')
        a(f'v_mov_b32_dpp v{SM(i)+1}, v{SM(i)} row_ror:{4*i} row_mask:0xf bank_mask:0xf')
    for i in range(1, 4):
        a(f'v_cndmask_b32 v{GR(0)}, v{GR(0)}, v{GR(i)+1}, s[{48+2*i}:{49+2*i}]')
        a(f'v_cndmask_b32 v{SM(0)}, v{SM(0)}, v{SM(i)+1}, s[{48+2*i}:{49+2*i}]')
    q, m = GR(0), SM(0)
    a(f'v_mul_f32 v{m}, 0x{INVB:08x}, v{m}')
    a(f'v_mul_f32 v{q}, 0x{INVB:08x}, v{q}')
    a(f'v_fma_f32 v{q}, -v{m}, v{m}, v{q}')
    a(f'v_max_f32 v{q}, 0, v{q}')
    bfround(a, q, q)
    a(f'v_add_f32 v{q}, 0x{EPSB:08x}, v{q}')
    bfround(a, q, q)
    a(f'v_sqrt_f32 v{q}, v{q}')
    a(f'v_mul_f32 v{m}, s56, v{m}')
    bfround(a, q, q)
    a(f'v_rcp_f32 v{q}, v{q}')
    a(f'v_mul_f32 v{m}, v{m}, v{q}')
    a(f'ds_write_b32 v10, v{q}')
    a(f'ds_write_b32 v10, v{m} offset:256')
    a('s_waitcnt lgkmcnt(0)')
    stamp(a, 1)
    a('s_barrier')
    wait_cleared(a, 'L_WC1')
    a('s_branch L_ARRIVE')

    if not OPT['hfirst']:
        helper_code()

    lab(a, 'L_P2')
    a('s_setprio 0')
    if OPT['ipf']:
        a('s_cmp_ge_u32 s2, 88')
        a('s_cbranch_scc1 L_IPF')
    a('s_cmp_ge_u32 s2, 81')
    a('s_cbranch_scc1 L_EXIT')
    lpoint(a, 5)
    a('s_barrier')
    lpoint(a, 6)
    a('s_cmp_lt_u32 s2, 72')
    a('s_cbranch_scc1 L_FFN')
    a('s_branch L_FIN')

    if OPT['ipf']:
        lab(a, 'L_IPF')
        a('s_barrier')
        NTP = ' nt' if OPT['ntw'] else ''
        srd(a, 16, 66, WG_BYTES)
        srd(a, 20, 68, WG_BYTES)
        srd(a, 24, 70, WG_BYTES)
        a('s_and_b32 s41, s2, 7')
        a('s_sub_u32 s42, s2, 88')
        a('s_lshr_b32 s42, s42, 3')
        a('s_mov_b32 s43, 0x1c72')
        a('v_mul_u32_u24 v6, s43, v0')
        a('v_lshrrev_b32 v6, 16, v6')
        a('v_mul_u32_u24 v7, 9, v6')
        a('v_sub_u32 v7, v0, v7')
        a('v_mul_u32_u24 v6, 9216, v6')
        a('v_lshl_add_u32 v6, v7, 7, v6')
        a('s_mul_i32 s44, s40, 72')
        a('s_mul_i32 s45, s42, 7')
        a('s_add_u32 s44, s44, s45')
        a('s_add_u32 s44, s44, 37')
        a('s_mul_i32 s44, s44, 9216')
        a('s_mul_i32 s45, s41, 1152')
        a('s_add_u32 s44, s44, s45')
        a(f'buffer_load_dword v8, v6, s[16:19], s44 offen{NTP}')
        a(f'buffer_load_dword v9, v6, s[20:23], s44 offen{NTP}')
        a('v_lshlrev_b32 v7, 7, v0')
        a('s_lshl_b32 s45, s42, 3')
        a('s_add_u32 s45, s45, s40')
        a('s_mul_i32 s45, s45, 16640')
        a('s_mul_i32 s46, s41, 663552')
        a('s_add_u32 s45, s45, s46')
        a(f'buffer_load_dword v10, v7, s[24:27], s45 offen{NTP}')
        a('s_add_u32 s45, s45, 8448')
        a(f'buffer_load_dword v11, v7, s[24:27], s45 offen{NTP}')
        a('s_branch L_EXIT')

    XR = lambda k: 100 + k
    WR = lambda k: 120 + k
    T = lambda cls, kap: 32 + (cls * 2 + kap) * 4
    TW = lambda kap, part: 16 + (kap * 2 + part) * 4

    lab(a, 'L_ROWPRE')
    a('s_mov_b32 s3, 1')
    a('s_branch L_ROWP')
    lab(a, 'L_ROWPRE2')
    a('s_setprio 0')
    a('s_mov_b32 s3, 0')
    lab(a, 'L_ROWP')
    a('v_and_b32 v2, 15, v0')
    a('v_lshrrev_b32 v3, 4, v0')
    a('v_lshlrev_b32 v4, 4, v0')
    a('v_add_u32 v5, 1024, v4')
    a('s_and_b32 s41, s2, 31')
    a('s_lshr_b32 s42, s2, 5')
    a('s_sub_u32 s42, s42, 4')
    a('v_cmp_lt_u32 vcc, 7, v2')
    a('s_cmp_eq_u32 s41, 0')
    a('s_cbranch_scc1 L_P0')
    a('v_and_b32 v8, 7, v2')
    a('s_lshl_b32 s46, s42, 3')
    a('v_add_u32 v8, s46, v8')
    a('v_lshl_add_u32 v6, v8, 6, s41')
    a('v_sub_u32 v8, 2048, v6')
    a('v_cndmask_b32 v6, v6, v8, vcc')
    a('v_xor_b32 v7, 8, v2')
    a('s_branch L_ROWS')
    lab(a, 'L_P0')
    a('v_bfe_u32 v8, v2, 1, 2')
    a('s_lshl_b32 s46, s42, 2')
    a('v_add_u32 v8, s46, v8')
    a('v_sub_u32 v9, 32, v8')
    a('v_sub_u32 v10, 31, v8')
    a('v_cndmask_b32 v9, v9, v10, vcc')
    a('v_mov_b32 v11, 0')
    a('v_cndmask_b32 v11, v11, 32, vcc')
    a('v_cmp_eq_u32 vcc, 32, v9')
    a('v_cndmask_b32 v9, v9, 16, vcc')
    a('v_xor_b32 v7, 1, v2')
    a('v_cndmask_b32 v7, v7, v2, vcc')
    a('v_and_b32 v10, 1, v2')
    a('v_cmp_eq_u32 vcc, 1, v10')
    a('v_cndmask_b32 v8, v8, v9, vcc')
    a('v_lshl_add_u32 v6, v8, 6, v11')
    lab(a, 'L_ROWS')
    a('s_lshl_b32 s44, s40, 1')
    a('s_add_u32 s45, s44, 1')
    a('v_and_b32 v9, 1, v3')
    a('v_readlane_b32 s46, v6, s44')
    a('v_readlane_b32 s47, v6, s45')
    a('v_and_b32 v10, 31, v0')
    a('v_mul_u32_u24 v12, 36, v10')
    srd(a, 24, 4, X_BYTES)
    srd(a, 28, 64, D * 2)
    srd(a, 36, 14, WS_RANGE)
    srd(a, 32, 72, X_BYTES)
    a('s_cmp_lg_u32 s40, 7')
    a('s_cbranch_scc1 L_NOTW')
    a('v_lshrrev_b32 v8, 1, v3')
    a('v_lshlrev_b32 v8, 4, v8')
    a('v_lshl_add_u32 v8, v9, 2, v8')
    a('v_lshl_add_u32 v8, v6, 12, v8')
    srd(a, 16, 6, SEQ_BYTES)
    srd(a, 20, 8, SEQ_BYTES)
    for kap in range(2):
        for part in range(2):
            a(f'buffer_load_dwordx3 {vr(TW(kap,part),3)}, v8, s[{16+4*part}:{19+4*part}], 0 offen offset:{kap*32}')
    lab(a, 'L_NOTW')
    XP, WP = 140, 152
    a('s_mul_i32 s45, s40, 9216')
    a('s_mul_i32 s44, s41, 73728')
    a('s_add_u32 s44, s44, s45')
    a('s_lshl_b32 s56, s42, 11')
    a(f'v_add_u32 v89, {LDS_T}, v4')
    a('v_lshrrev_b32 v13, 1, v3')
    a('v_lshlrev_b32 v13, 3, v13')
    a('v_lshl_add_u32 v13, v9, 1, v13')
    a('v_bfe_u32 v11, v0, 3, 1')
    a('v_add_u32 v13, v13, v11')
    a('v_mul_u32_u24 v13, 2304, v13')
    a('v_lshl_add_u32 v13, v11, 6, v13')
    a('v_and_b32 v11, 3, v0')
    a('v_lshl_add_u32 v13, v11, 4, v13')
    a('v_bfe_u32 v11, v0, 2, 1')
    a('v_lshl_add_u32 v13, v11, 3, v13')
    a('v_xor_b32 v11, s40, v9')
    a('v_lshl_add_u32 v13, v11, 7, v13')
    a('v_xor_b32 v81, 64, v13')
    a(f'v_mul_u32_u24 v14, {R_YS}, v2')
    a('v_lshl_add_u32 v14, v3, 5, v14')
    a(f'v_mul_u32_u24 v11, {R_YS}, v7')
    a('v_lshlrev_b32 v8, 5, v3')
    a('v_sub_u32 v11, v11, v8')
    for jj in range(3):
        a(f's_add_u32 s48, s40, {6*jj}')
        a('s_lshl_b32 s49, s48, 7')
        a(f's_sub_u32 s50, s49, {9*128-4}')
        a('s_cmp_lt_u32 s48, 9')
        a('s_cselect_b32 s49, s49, s50')
        a(f's_add_u32 s50, s49, {R_Y}')
        a(f'v_add_u32 v{90+jj}, s50, v14')
        a(f's_sub_u32 s50, {R_Y + 576*4 - 24}, s49')
        a(f'v_add_u32 v{93+jj}, s50, v11')
    a('v_lshrrev_b32 v8, 5, v0')
    a('s_lshl_b32 s48, s40, 1')
    a('v_add_u32 v8, s48, v8')
    a(f'v_mul_u32_u24 v97, {R_YS}, v8')
    a(f'v_add_u32 v97, {R_Y}, v97')
    a('v_lshl_add_u32 v96, v12, 1, v97')
    a('v_mul_u32_u24 v98, 1152, v8')
    a('v_add_u32 v98, v98, v12')
    a(f'v_add_u32 v98, {R_STG}, v98')
    a('v_cmp_eq_u32 s[60:61], 16, v10')
    a('v_cmp_eq_u32 s[62:63], 0, v10')
    a('s_cmp_lg_u32 s3, 1')
    a('s_cbranch_scc1 L_NOSB')
    a('s_barrier')
    lab(a, 'L_NOSB')
    a('s_mul_i32 s48, s40, 2304')
    a(f's_add_u32 s48, s48, {R_X}')
    a('s_mul_i32 s54, s46, 1152')
    a('s_mul_i32 s55, s47, 1152')
    a('s_mov_b32 s82, s54')
    a('s_mov_b32 s83, s55')
    for hrow in range(2):
        a(f's_add_u32 m0, s48, {hrow*1152}')
        a(f'buffer_load_dwordx4 v4, s[24:27], s{54+hrow} offen lds')
        a('s_mov_b64 exec, 0xff')
        a(f'buffer_load_dwordx4 v4, s[24:27], s{54+hrow} offen offset:1024 lds')
        a('s_mov_b64 exec, -1')
    a('s_cmp_lg_u32 s40, 5')
    a('s_cbranch_scc1 L_NOWR')
    a(f's_mov_b32 m0, {R_W}')
    a('s_nop 0')
    a('buffer_load_dwordx4 v4, s[28:31], 0 offen lds')
    a('s_mov_b64 exec, 0xff')
    a('buffer_load_dwordx4 v4, s[28:31], 0 offen offset:1024 lds')
    a('s_mov_b64 exec, -1')
    a('s_waitcnt vmcnt(0)')
    lab(a, 'L_NOWR')
    a(f'v_add_u32 v15, {R_X - R_STG}, v98')
    a(f'v_add_u32 v14, {R_W}, v12')
    a('v_add_u32 v11, s48, v4')
    a('s_cmp_lg_u32 s40, 7')
    a('s_cbranch_scc1 L_NOTW2')
    a('s_mov_b32 s50, 0x05040100')
    a('s_mov_b32 s51, 0x07060302')
    a('v_cmp_gt_u32 s[52:53], 8, v2')
    a('s_waitcnt vmcnt(4)')
    for kap in range(2):
        cr, ci = TW(kap, 0), TW(kap, 1)
        a(f'v_xor_b32 v{ci}, 0x80008000, v{ci}')
        a(f'v_xor_b32 v{ci+2}, 0x80008000, v{ci+2}')
        t = 48
        a(f'v_perm_b32 v{t}, v{ci}, v{cr}, s50')
        a(f'v_perm_b32 v{t+1}, v{ci}, v{cr}, s51')
        a(f'v_perm_b32 v{t+2}, v{ci+2}, v{cr+2}, s50')
        a(f'v_perm_b32 v{t+3}, v{ci+2}, v{cr+2}, s51')
        for r in range(4):
            a(f'v_cndmask_b32 v{T(0,kap)+r}, 0, v{t+r}, s[52:53]')
            a(f'v_cndmask_b32 v{T(1,kap)+r}, v{t+r}, 0, s[52:53]')
    for cls in range(2):
        for kap in range(2):
            a(f'ds_write_b128 v89, {vr(T(cls,kap),4)} offset:{(cls*2+kap)*1024}')
    lab(a, 'L_NOTW2')
    stamp(a, 4)
    a('s_cmp_eq_u32 s3, 2')
    a('s_cbranch_scc1 L_UGO')
    a('s_waitcnt lgkmcnt(0)')
    a('s_barrier')
    lab(a, 'L_UGO')
    if OPT['wpoll']:
        a('v_lshrrev_b32 v8, 2, v0')
        a('v_lshlrev_b32 v8, 11, v8')
        a('v_and_b32 v16, 3, v0')
        a('v_lshl_add_u32 v8, v16, 6, v8')
        a('s_lshl_b32 s48, s40, 8')
        a(f's_add_u32 s48, s48, {WS_UF}')
        a('s_mov_b32 s58, 0')
        a('s_mov_b64 s[76:77], 0xffffff')
        lab(a, 'L_UPOLL')
        a('s_mov_b64 exec, s[76:77]')
        a(f'buffer_load_dword v16, v8, s[36:39], s48 offen{SC}')
        a('s_add_u32 s58, s58, 1')
        a('s_waitcnt vmcnt(0)')
        a('v_cmp_ne_u32 s[76:77], 0, v16')
        a('s_mov_b64 exec, -1')
        a(f's_cmp_lt_u32 s58, {SPIN_LIMIT}')
        a('s_cbranch_scc0 L_UGO2')
        a('s_cmp_eq_u64 s[76:77], 0')
        a('s_cbranch_scc1 L_UGO2')
        a(f's_sleep {OPT["sleep"]}')
        a('s_branch L_UPOLL')
        lab(a, 'L_UGO2')
    else:
        a('s_cmp_lg_u32 s40, 6')
        a('s_cbranch_scc1 L_UGO2')
        a('v_lshlrev_b32 v8, 6, v0')
        a('s_mov_b32 s58, 0')
        a(f's_mov_b32 s48, {WS_UF}')
        a(f's_mov_b32 s49, {WS_UF + 4096}')
        a(f's_mov_b32 s50, {WS_UF + 8192}')
        for k in range(3):
            a(f's_mov_b64 s[{76+2*k}:{77+2*k}], -1')
        lab(a, 'L_UPOLL')
        for k in range(3):
            a(f's_or_b64 exec, s[{76+2*k}:{77+2*k}], 1')
            a(f'buffer_load_dword v{16+k}, v8, s[36:39], s{48+k} offen{SC}')
        a('s_mov_b64 exec, -1')
        a('s_add_u32 s58, s58, 1')
        a('s_waitcnt vmcnt(0)')
        for k in range(3):
            a(f'v_cmp_ne_u32 s[{76+2*k}:{77+2*k}], 0, v{16+k}')
        a(f's_cmp_lt_u32 s58, {SPIN_LIMIT}')
        a('s_cbranch_scc0 L_UGO2')
        a('s_or_b64 s[52:53], s[76:77], s[78:79]')
        a('s_or_b64 s[52:53], s[52:53], s[80:81]')
        a('s_cbranch_scc0 L_UGO2')
        a(f's_sleep {OPT["sleep"]}')
        a('s_branch L_UPOLL')
        lab(a, 'L_UGO2')
        a('s_barrier')
    stamp(a, 5)
    a('s_mov_b32 s84, 0')
    a(f'v_mov_b32 v85, {LDS_CNT}')

    def u_dma():
        for n in range(9):
            a('s_add_u32 m0, s45, s56')
            a('s_add_u32 s57, s44, s56')
            a(f'buffer_load_dwordx4 v4, s[36:39], s57 offen{SC} lds')
            a('s_add_u32 s56, s56, 1024')
            a('s_cmp_eq_u32 s56, 9216')
            a('s_cselect_b32 s56, 0, s56')
    u_dma()
    a('s_waitcnt vmcnt(9)')
    for P_, ad in ((XP, 15), (WP, 14)):
        for j in range(0, 8, 2):
            a(f'ds_read2_b32 {vr(P_+j,2)}, v{ad} offset0:{j} offset1:{j+1}')
        a(f'ds_read_b32 v{P_+8}, v{ad} offset:32')
    a('s_waitcnt lgkmcnt(0)')
    for j in range(9):
        a(f'v_lshlrev_b32 v{XR(2*j)}, 16, v{XP+j}')
        a(f'v_and_b32 v{XR(2*j+1)}, 0xffff0000, v{XP+j}')
        a(f'v_lshlrev_b32 v{WR(2*j)}, 16, v{WP+j}')
        a(f'v_and_b32 v{WR(2*j+1)}, 0xffff0000, v{WP+j}')
    W2 = lambda j: vr(WR(2 * j), 2)
    a(f'v_pk_add_f32 v[86:87], {W2(0)}, {W2(1)}')
    for j in range(2, 9):
        a(f'v_pk_add_f32 v[86:87], v[86:87], {W2(j)}')
    a('v_add_f32 v99, v86, v87')
    dpp_reduce(a, 'v_add_f32', [99], 5)
    a('v_lshrrev_b32 v213, 5, v0')
    a('s_lshl_b32 s58, s40, 1')
    a('v_add_u32 v213, s58, v213')
    a('s_sub_u32 s85, s2, 128')
    a('s_lshl_b32 s58, s85, 4')
    a('s_sub_u32 s58, 2047, s58')
    a('v_sub_u32 v212, s58, v213')
    a('v_lshlrev_b32 v213, 2, v213')
    a(f'v_add_u32 v213, {LDS_C}, v213')
    a('v_lshlrev_b32 v214, 2, v2')
    a(f'v_add_u32 v214, {LDS_C}, v214')
    lg = Cnt(a, 'lgkmcnt', 15)
    for cls in range(2):
        for kap in range(2):
            a(f'ds_read_b128 {vr(T(cls,kap),4)}, v89 offset:{(cls*2+kap)*1024}')
    lab(a, 'L_UWAIT')
    a('v_mov_b32 v86, 0')
    a('ds_write_b32 v85, v86')
    a('s_waitcnt vmcnt(0) lgkmcnt(0)')
    a('s_barrier')
    stamp(a, 6)
    a('s_cmp_ge_u32 s40, 6')
    a('s_cbranch_scc1 L_SKIPMM')
    UF = lambda slot: 164 + 4 * slot
    ACC = lambda jj: 48 + 4 * jj
    order = [(jj, cls, kap) for cls in range(2) for kap in range(2) for jj in range(3)]

    def rd(n):
        jj, cls, kap = order[n]
        for h in range(2):
            off = kap * 36864 + h * 9216 + jj * 768
            a(f'ds_read_b64_tr_b16 {vr(UF(n)+2*h,2)}, v{13 if cls == 0 else 81} offset:{off}')
            lg.issue(n)
    for n in range(7):
        rd(n)
    for n, (jj, cls, kap) in enumerate(order):
        lg.wait(n)
        c = '0' if (cls == 0 and kap == 0) else vr(ACC(jj), 4)
        a(f'v_mfma_f32_16x16x32_bf16 {vr(ACC(jj),4)}, {vr(UF(n),4)}, {vr(T(cls,kap),4)}, {c}')
        if n + 7 < 12:
            rd(n + 7)
    if OPT['usent']:
        a('v_pk_add_f32 v[16:17], v[48:49], v[50:51]')
        a('v_pk_add_f32 v[18:19], v[52:53], v[54:55]')
        a('v_pk_add_f32 v[20:21], v[56:57], v[58:59]')
        a('v_pk_add_f32 v[16:17], v[16:17], v[18:19]')
        a('v_pk_add_f32 v[16:17], v[16:17], v[20:21]')
        a('v_cmp_u_f32 vcc, v16, v17')
        a('v_mov_b32 v86, 1')
        a('s_and_saveexec_b64 s[48:49], vcc')
        a('ds_write_b32 v85, v86')
        a('s_mov_b64 exec, -1')
    for jj in range(3):
        c = ACC(jj)
        a(f'ds_write2_b32 v{90+jj}, v{c}, v{c+1} offset0:0 offset1:2')
        a(f'ds_write2_b32 v{90+jj}, v{c+2}, v{c+3} offset0:4 offset1:6')
        a(f'ds_write2_b32 v{93+jj}, v{c+3}, v{c+2} offset0:0 offset1:2')
        a(f'ds_write2_b32 v{93+jj}, v{c+1}, v{c} offset0:4 offset1:6')
    a('s_waitcnt lgkmcnt(0)')
    lab(a, 'L_SKIPMM')
    a('s_barrier')
    stamp(a, 7)
    H = lambda k: 60 + k
    H2 = lambda j: vr(H(2 * j), 2)
    a('ds_read_b32 v86, v85')
    a('ds_read_b32 v88, v97')
    for j in range(9):
        a(f'ds_read_b64 {H2(j)}, v96 offset:{8*j}')
    a('s_waitcnt lgkmcnt(8)')
    if OPT['usent']:
        a('v_readfirstlane_b32 s48, v86')
        a('s_cmp_eq_u32 s48, 0')
        a('s_cbranch_scc1 L_UOK')
        a('s_add_u32 s84, s84, 1')
        a('s_cmp_ge_u32 s84, 200')
        a('s_cbranch_scc1 L_UOK')
        a('s_waitcnt lgkmcnt(0)')
        a('s_barrier')
        u_dma()
        a('s_branch L_UWAIT')
        lab(a, 'L_UOK')
    a(f'v_cndmask_b32 v{H(0)}, v{H(0)}, v88, s[60:61]')
    a(f'v_cndmask_b32 v{H(0)}, v{H(0)}, 0, s[62:63]')
    HP = lambda j: 16 + j
    a('s_mov_b32 s56, s85')
    a('s_mul_i32 s57, s56, 1152')
    a(f's_add_u32 s57, s57, {WS_HN}')
    a('s_lshl_b32 s59, s56, 7')
    a(f's_add_u32 s59, s59, {WS_KEYS}')
    for j in range(9):
        if j:
            a(f's_waitcnt lgkmcnt({8-j})')
        a(f'v_pk_add_f32 {H2(j)}, {H2(j)}, {vr(XR(2*j),2)}')
    a(f'v_pk_add_f32 v[26:27], {H2(0)}, {H2(1)}')
    a(f'v_pk_mul_f32 v[28:29], {H2(0)}, {H2(0)}')
    a(f'v_pk_mul_f32 v[30:31], {H2(0)}, {W2(0)}')
    for j in range(1, 9):
        if j >= 2:
            a(f'v_pk_add_f32 v[26:27], v[26:27], {H2(j)}')
        a(f'v_pk_fma_f32 v[28:29], {H2(j)}, {H2(j)}, v[28:29]')
        a(f'v_pk_fma_f32 v[30:31], {H2(j)}, {W2(j)}, v[30:31]')
    a('v_add_f32 v82, v26, v27')
    a('v_add_f32 v83, v28, v29')
    a('v_add_f32 v84, v30, v31')
    dpp_reduce(a, 'v_add_f32', [82, 83, 84], 5)
    a(f'v_mul_f32 v82, 0x{INVB:08x}, v82')
    a(f'v_mul_f32 v83, 0x{INVB:08x}, v83')
    a('v_fma_f32 v83, -v82, v82, v83')
    a('v_max_f32 v83, 0, v83')
    bfround(a, 83, 83)
    bfround(a, 82, 82)
    a(f'v_add_f32 v83, 0x{EPSB:08x}, v83')
    bfround(a, 83, 83)
    a('v_sqrt_f32 v83, v83')
    a('v_fma_f32 v84, -v82, v99, v84')
    bfround(a, 83, 83)
    a('v_rcp_f32 v83, v83')
    a('v_mul_f32 v84, v84, v83')
    a('v_ashrrev_i32 v85, 31, v84')
    a('v_or_b32 v85, 0x80000000, v85')
    a('v_xor_b32 v85, v85, v84')
    a('v_and_b32 v85, 0xfffff800, v85')
    a('v_max_u32 v85, 0x800, v85')
    a('v_or_b32 v85, v85, v212')
    a('s_mov_b32 exec_lo, 0x80000000')
    a('s_mov_b32 exec_hi, 0x80000000')
    a('ds_write_b32 v213, v85')
    a('s_mov_b64 exec, -1')
    a('v_mul_f32 v82, v82, v83')
    a('v_readlane_b32 s52, v85, 31')
    a('v_readlane_b32 s53, v85, 63')
    a('s_waitcnt lgkmcnt(0)')
    stamp(a, 8)
    a('s_setprio 3')
    a('s_barrier')
    stamp(a, 9)
    a('ds_read_b32 v85, v214')
    a('v_readlane_b32 s48, v83, 31')
    a('v_readlane_b32 s49, v83, 63')
    a('v_readlane_b32 s50, v82, 31')
    a('v_readlane_b32 s51, v82, 63')
    a('v_readlane_b32 s54, v84, 31')
    a('v_readlane_b32 s55, v84, 63')
    a('s_cmp_gt_u32 s52, s53')
    a('s_cselect_b32 s52, s52, s53')
    a('s_cselect_b32 s54, s54, s55')
    a('s_cselect_b32 s46, s46, s47')
    a('s_cselect_b32 s55, 0, 1')
    a('s_not_b32 s53, s52')
    a('v_mov_b32 v87, s53')
    a('v_mov_b32 v86, 0')
    a('s_waitcnt lgkmcnt(0)')
    dpp_reduce(a, 'v_max_u32', [85], 4)
    a('v_readlane_b32 s58, v85, 15')
    a('s_cmp_eq_u32 s58, s52')
    a('s_cbranch_scc1 L_WIN1')
    a('s_setprio 0')
    a('s_branch L_NW1')
    lab(a, 'L_WIN1')
    a('s_mov_b64 exec, 1')
    a(f'buffer_store_dword v87, v86, s[36:39], s59 offen{SC}')
    a('s_mov_b64 exec, -1')
    lab(a, 'L_NW1')
    a('v_mov_b32 v80, s48')
    a('v_mov_b32 v78, s50')
    a('s_mov_b32 exec_lo, 0')
    a('v_mov_b32 v80, s49')
    a('v_mov_b32 v78, s51')
    a('s_mov_b32 exec_lo, -1')
    for j in range(9):
        a(f'v_cvt_pk_bf16_f32 v{HP(j)}, v{H(2*j)}, v{H(2*j+1)}')
    for j in range(9):
        a(f'v_lshlrev_b32 v{H(2*j)}, 16, v{HP(j)}')
        a(f'v_and_b32 v{H(2*j+1)}, 0xffff0000, v{HP(j)}')
    HN = lambda k: 100 + k
    NP = lambda j: 140 + j
    for j in range(9):
        a(f'v_pk_fma_f32 {vr(HN(2*j),2)}, {H2(j)}, v[80:81], v[78:79] op_sel_hi:[1,0,0] neg_lo:[0,0,1] neg_hi:[0,0,1]')
    for j in range(9):
        a(f'v_cvt_pk_bf16_f32 v{NP(j)}, v{HN(2*j)}, v{HN(2*j+1)}')

    def stage(addr, P, off):
        o = off // 4
        for j in range(0, 8, 2):
            a(f'ds_write2_b32 v{addr}, v{P(j)}, v{P(j+1)} offset0:{o+j} offset1:{o+j+1}')
        a(f'ds_write_b32 v{addr}, v{P(8)} offset:{off+32}')
    a('s_cmp_lg_u32 s58, s52')
    a('s_cbranch_scc1 L_NOTWIN')
    stage(98, NP, 0)
    a('s_lshl_b32 s60, s40, 1')
    a('s_add_u32 s60, s60, s55')
    a('s_mul_i32 s60, s60, 1152')
    a(f's_add_u32 s60, s60, {R_STG}')
    a('v_add_u32 v88, s60, v4')
    a('ds_read_b128 v[32:35], v88')
    a('ds_read_b128 v[36:39], v88 offset:1024')
    a('s_waitcnt lgkmcnt(0)')
    a(f'buffer_store_dwordx4 v[32:35], v4, s[36:39], s57 offen{SC}')
    a('s_mov_b64 exec, 0xff')
    a(f'buffer_store_dwordx4 v[36:39], v5, s[36:39], s57 offen{SC}')
    a('s_mov_b64 exec, -1')
    stamp(a, 10)
    a('s_setprio 0')
    lab(a, 'L_NOTWIN')
    OP = lambda j: 152 + j
    for j in range(9):
        a(f'v_lshlrev_b32 v{HN(2*j)}, 16, v{NP(j)}')
        a(f'v_and_b32 v{HN(2*j+1)}, 0xffff0000, v{NP(j)}')
    for j in range(9):
        a(f'v_pk_add_f32 {vr(HN(2*j),2)}, {vr(HN(2*j),2)}, {H2(j)}')
    for j in range(9):
        a(f'v_cvt_pk_bf16_f32 v{OP(j)}, v{HN(2*j)}, v{HN(2*j+1)}')

    stage(15, OP, 0)
    a('s_waitcnt lgkmcnt(0)')
    a('ds_read_b128 v[40:43], v11')
    a('ds_read_b128 v[44:47], v11 offset:1024')
    a('ds_read_b128 v[48:51], v11 offset:1152')
    a('ds_read_b128 v[52:55], v11 offset:2176')

    def out_store(mods):
        a('s_waitcnt lgkmcnt(0)')
        a(f'buffer_store_dwordx4 v[40:43], v4, s[32:35], s82 offen{mods}')
        a(f'buffer_store_dwordx4 v[48:51], v4, s[32:35], s83 offen{mods}')
        a('s_mov_b64 exec, 0xff')
        a(f'buffer_store_dwordx4 v[44:47], v5, s[32:35], s82 offen{mods}')
        a(f'buffer_store_dwordx4 v[52:55], v5, s[32:35], s83 offen{mods}')
        a('s_mov_b64 exec, -1')
    a('s_cmp_lg_u32 s58, s52')
    a('s_cbranch_scc1 L_PLAIN')
    out_store(SC)
    a('s_mul_i32 s57, s56, 1280')
    a(f's_add_u32 s57, s57, {WS_H}')
    a('v_mov_b32 v88, s54')
    a('v_mov_b32 v89, s46')
    a('s_cmp_eq_u32 s55, 0')
    a('s_cselect_b32 exec_lo, -1, 0')
    a('s_cselect_b32 exec_hi, 0, -1')
    a(f'buffer_store_dwordx4 {vr(HP(0),4)}, v12, s[36:39], s57 offen{SC}')
    a(f'buffer_store_dwordx4 {vr(HP(4),4)}, v12, s[36:39], s57 offen offset:16{SC}')
    a(f'buffer_store_dword v{HP(8)}, v12, s[36:39], s57 offen offset:32{SC}')
    a('s_mov_b64 exec, 1')
    a(f'buffer_store_dwordx2 v[88:89], v86, s[36:39], s57 offen offset:1152{SC}')
    a('s_waitcnt vmcnt(0)')
    a(f'buffer_store_dword v86, v86, s[36:39], s59 offen offset:64{SC}')
    a('s_mov_b64 exec, -1')
    a('s_branch L_EXIT')
    lab(a, 'L_PLAIN')
    out_store({0: '', 1: SC, 2: ' nt'}[OPT['outsc']])
    a('s_branch L_EXIT')

    def key_poll(pre):
        ND = OPT['depth']
        KS = lambda j: 32 + 2 * j
        a(f's_mov_b32 s56, {WS_KEYS}')
        a(f's_mov_b32 s55, {WS_KEYS + 8192}')
        a('s_mov_b32 s58, 0')
        a('s_mov_b32 s45, -1')
        a('v_lshlrev_b32 v8, 7, v0')
        for r in range(28, 32):
            a(f'v_mov_b32 v{r}, 0')
        for j in range(ND):
            a(f'v_mov_b32 v{KS(j)}, -1')
            a(f'v_mov_b32 v{KS(j)+1}, -1')
        lab(a, pre + 'SLOW')
        a(f'buffer_load_dword v16, v8, s[36:39], s56 offen{SC}')
        a(f'buffer_load_dword v17, v8, s[36:39], s55 offen{SC}')
        a('s_add_u32 s58, s58, 1')
        a('s_waitcnt vmcnt(0)')
        a('v_min_u32 v20, v16, v17')
        a('v_cmp_ne_u32 vcc, -1, v20')
        a(f's_cmp_lt_u32 s58, {SPIN_LIMIT}')
        a(f's_cbranch_scc0 {pre}FAST')
        a('s_cmp_lg_u64 vcc, 0')
        a(f's_cbranch_scc1 {pre}FAST')
        a(f's_sleep {OPT["slow"]}')
        a(f's_branch {pre}SLOW')
        lab(a, pre + 'FAST')

        def scan():
            a('v_min_u32 v20, v16, v17')
            a('v_cmp_eq_u32 s[50:51], -1, v16')
            a('v_cmp_eq_u32 s[42:43], -1, v17')
            dpp_reduce(a, 'v_min_u32', [20])
            a('v_readlane_b32 s57, v20, 63')
            a('s_and_b32 s46, s57, 0x7ff')
            a('s_lshr_b32 s46, s46, 4')
            a('s_mul_i32 s47, s46, 1152')
            a(f's_add_u32 s47, s47, {WS_HN}')

        def issue(j):
            a('s_or_b64 exec, s[50:51], 1')
            a(f'buffer_load_dword v{KS(j)}, v8, s[36:39], s56 offen{SC}')
            a('s_or_b64 exec, s[42:43], 1')
            a(f'buffer_load_dword v{KS(j)+1}, v8, s[36:39], s55 offen{SC}')
            a('s_cmp_lg_u32 s45, s57')
            a('s_cselect_b64 exec, -1, 1')
            a(f'buffer_load_dwordx4 v[24:27], v4, s[36:39], s47 offen{SC}')
            a('s_cselect_b64 exec, 0xff, 1')
            a(f'buffer_load_dwordx4 v[28:31], v5, s[36:39], s47 offen{SC}')
            a('s_mov_b64 exec, -1')
            a('s_cselect_b32 s44, 0, s44')
            a('s_add_u32 s44, s44, 1')
            a('s_mov_b32 s45, s57')
        a('s_mov_b32 s44, 0')
        scan()
        for j in range(ND):
            issue(j)
            if j < ND - 1:
                a(f's_sleep {OPT["gap"]}')
        lab(a, pre + 'LOOP')
        for j in range(ND):
            a(f's_waitcnt vmcnt({4*(ND-1)})')
            a(f'v_min_u32 v16, v16, v{KS(j)}')
            a(f'v_min_u32 v17, v17, v{KS(j)+1}')
            scan()
            a('s_or_b64 vcc, s[50:51], s[42:43]')
            a(f's_cbranch_scc0 {pre}ALLK')
            issue(j)
        a('s_add_u32 s58, s58, 1')
        a(f's_cmp_lt_u32 s58, {SPIN_LIMIT}')
        a(f's_cbranch_scc1 {pre}LOOP')
        lab(a, pre + 'ALLK')
        a('s_cmp_lg_u32 s45, s57')
        a(f's_cbranch_scc1 {pre}ROWLD')
        a(f's_cmp_ge_u32 s44, {ND}')
        a(f's_cbranch_scc1 {pre}CHK2')
        a(f's_branch {pre}CHK')
        lab(a, pre + 'ROWLD')
        a(f'buffer_load_dwordx4 v[24:27], v4, s[36:39], s47 offen{SC}')
        a('s_mov_b64 exec, 0xff')
        a(f'buffer_load_dwordx4 v[28:31], v5, s[36:39], s47 offen{SC}')
        a('s_mov_b64 exec, -1')
        lab(a, pre + 'CHK')
        a('s_waitcnt vmcnt(0)')
        lab(a, pre + 'CHK2')
        a('s_add_u32 s58, s58, 1')
        a('v_max3_u32 v20, v24, v25, v26')
        a('v_max3_u32 v21, v27, v28, v29')
        a('v_max3_u32 v20, v20, v30, v31')
        a('v_max_u32 v20, v20, v21')
        a('v_cmp_eq_u32 vcc, -1, v20')
        a(f's_cmp_lt_u32 s58, {2*SPIN_LIMIT}')
        a(f's_cbranch_scc0 {pre}GOT')
        a('s_cmp_eq_u64 vcc, 0')
        a(f's_cbranch_scc0 {pre}ROWLD')
        lab(a, pre + 'GOT')

    lab(a, 'L_FFN')
    NTW = ' nt' if OPT['ntw'] else ''
    a('v_and_b32 v2, 15, v0')
    a('v_lshrrev_b32 v3, 4, v0')
    a('v_lshlrev_b32 v4, 4, v0')
    a('v_add_u32 v5, 1024, v4')
    a('s_and_b32 s3, s2, 7')
    a('s_mul_i32 s3, s3, 9')
    a('s_lshr_b32 s41, s2, 3')
    a('s_add_u32 s3, s3, s41')
    srd(a, 16, 66, WG_BYTES)
    srd(a, 20, 68, WG_BYTES)
    srd(a, 24, 70, WG_BYTES)
    srd(a, 36, 14, WS_RANGE)
    a('v_lshrrev_b32 v8, 3, v0')
    a('v_and_b32 v9, 7, v0')
    a('v_and_b32 v10, 2, v8')
    a('v_xor_b32 v9, v9, v10')
    a('s_and_b32 s58, s40, 1')
    a('s_lshl_b32 s58, s58, 2')
    a('v_xor_b32 v9, s58, v9')
    a('v_lshlrev_b32 v9, 4, v9')
    a('v_mul_u32_u24 v15, 9216, v8')
    a('v_add_u32 v15, v15, v9')
    a('v_xor_b32 v14, 64, v15')
    a('v_mul_u32_u24 v11, 1152, v8')
    a('v_add_u32 v11, v11, v9')
    a('s_mul_i32 s59, s40, 663552')
    a('s_lshl_b32 s58, s3, 7')
    a('s_add_u32 s59, s59, s58')
    a('s_mul_i32 s55, s40, 9216')
    for q in range(9):
        for mat in range(2):
            a(f's_add_u32 m0, s55, {mat*73728 + q*1024}')
            a(f'buffer_load_dwordx4 v{15 - (q & 1)}, s[{16+4*mat}:{19+4*mat}], s59 offen{NTW} lds')
        if q < 8:
            a('s_add_u32 s59, s59, 73728')
    a('s_mul_i32 s59, s3, 73728')
    a('s_add_u32 s59, s59, s55')
    DS = lambda c: 200 + 4 * c
    for c in range(9):
        a(f'buffer_load_dwordx4 {vr(DS(c),4)}, v11, s[24:27], s59 offen offset:{c*128}{NTW}')
    a('v_add_u32 v11, s55, v4')
    a('v_bfe_u32 v13, v0, 2, 2')
    a('v_lshrrev_b32 v10, 1, v13')
    a('v_and_b32 v6, 1, v3')
    a('v_lshl_add_u32 v10, v6, 1, v10')
    a('s_and_b32 s57, s40, 3')
    a('s_lshr_b32 s56, s40, 2')
    a('v_xor_b32 v10, s57, v10')
    a('v_lshlrev_b32 v10, 5, v10')
    a('v_and_b32 v6, 3, v0')
    a('v_lshl_add_u32 v10, v6, 3, v10')
    a('v_lshl_add_u32 v10, v13, 7, v10')
    a('v_mul_u32_u24 v14, 9216, v3')
    a('v_add_u32 v14, v14, v10')
    a('s_lshl_b32 s58, s56, 10')
    a('v_add_u32 v14, s58, v14')
    a('v_lshl_add_u32 v13, v3, 10, v10')
    a('s_mul_i32 s54, s56, 36864')
    a('v_add_u32 v13, s54, v13')
    a('v_add_u32 v12, 73728, v13')
    a('s_waitcnt vmcnt(9)')
    srd(a, 76, 74, 256)
    a('v_mov_b32 v250, 0')
    a('s_cmp_eq_u32 s40, 7')
    a('s_cselect_b32 s78, 256, 0')
    a(f'buffer_load_dword v251, v250, s[76:79], 0 offen{SC}')
    a('s_barrier')
    fpoint(a, 10)
    WF = lambda mat, k: 64 + (k * 2 + mat) * 4
    for k in range(9):
        for mat in range(2):
            for h in range(2):
                a(f'ds_read_b64_tr_b16 {vr(WF(mat,k)+2*h,2)}, v{13 if mat == 0 else 12} offset:{k*4096 + h*512}')
        if k % 3 == 2:
            a('s_waitcnt lgkmcnt(0)')
    a('s_barrier')
    a('s_waitcnt vmcnt(0)')
    for c in range(9):
        a(f'ds_write_b128 v11, {vr(DS(c),4)} offset:{c*1024}')
    a('v_cmp_eq_u32 s[48:49], 1, v3')
    a('v_cmp_eq_u32 s[52:53], 2, v3')
    a('v_cmp_eq_u32 s[60:61], 3, v3')
    a('s_mul_i32 s58, s56, 576')
    a(f's_add_u32 s58, s58, {LDS_XS}')
    a('v_lshl_add_u32 v6, v3, 4, s58')
    a('s_lshl_b32 s58, s56, 9')
    a('s_lshl_b32 s54, s57, 6')
    a('s_add_u32 s58, s58, s54')
    a(f's_add_u32 s58, s58, {LDS_RED}')
    a('v_lshl_add_u32 v7, v2, 2, s58')
    a('v_lshlrev_b32 v9, 2, v0')
    a(f'v_add_u32 v10, {LDS_RED}, v9')
    a('s_lshl_b32 s58, s40, 7')
    a(f's_add_u32 s58, s58, {LDS_ACT}')
    a('v_lshl_add_u32 v11, v0, 1, s58')
    a('v_lshl_add_u32 v12, v3, 4, s58')
    a('s_mul_i32 s62, s3, 2304')
    a(f's_add_u32 s62, s62, {WS_PART}')
    a('s_lshl_b32 s58, s40, 6')
    a('s_add_u32 s63, s62, s58')
    a('s_add_u32 s63, s63, 2048')
    a('s_lshl_b32 s58, s40, 8')
    a('s_add_u32 s62, s62, s58')
    a('s_waitcnt lgkmcnt(0)')
    a('s_barrier')
    fpoint(a, 11)
    DF = lambda kap, m: 136 + (m * 2 + kap) * 4
    for m in range(5):
        for kap in range(2):
            for h in range(2):
                a(f'ds_read_b64_tr_b16 {vr(DF(kap,m)+2*h,2)}, v14 offset:{kap*36864 + h*512 + m*2048}')
        if m % 2 == 1:
            a('s_waitcnt lgkmcnt(0)')
    a('s_waitcnt lgkmcnt(0)')
    stamp(a, 11)
    a('s_cmp_lg_u32 s40, 7')
    a('s_cbranch_scc1 L_FWAIT')
    a('v_readfirstlane_b32 s59, v251')
    a(f's_cmp_ge_u32 s59, {NCLR}')
    a('s_cbranch_scc1 L_WC2_OK')
    wait_cleared(a, 'L_WC2')
    key_poll('L_K')
    a(f'v_add_u32 v8, {LDS_XS}, v4')
    a('ds_write_b128 v8, v[24:27]')
    a('s_mov_b64 exec, 0xff')
    a('ds_write_b128 v8, v[28:31] offset:1024')
    a('s_mov_b64 exec, -1')
    a('s_waitcnt lgkmcnt(0)')
    lab(a, 'L_FWAIT')
    a('s_barrier')
    fpoint(a, 12)
    stamp(a, 12)
    XF = lambda k: 176 + 4 * k
    for k in range(9):
        a(f'ds_read_b128 {vr(XF(k),4)}, v6 offset:{k*64}')
    for k in range(9):
        a(f's_waitcnt lgkmcnt({8-k})')
        for mat in range(2):
            c = '0' if k == 0 else vr(52 + 4 * mat, 4)
            a(f'v_mfma_f32_16x16x32_bf16 {vr(52+4*mat,4)}, {vr(XF(k),4)}, {vr(WF(mat,k),4)}, {c}')
    a('s_mov_b64 exec, 0xffff')
    a('ds_write2st64_b32 v7, v52, v56 offset0:0 offset1:1')
    a('s_mov_b64 exec, -1')
    a('s_waitcnt lgkmcnt(0)')
    a('s_barrier')
    stamp(a, 13)
    a('ds_read2st64_b32 v[16:17], v10 offset0:0 offset1:1')
    a('ds_read2st64_b32 v[18:19], v10 offset0:2 offset1:3')
    a('s_waitcnt vmcnt(0) lgkmcnt(0)')
    a('v_pk_add_f32 v[16:17], v[16:17], v[18:19]')
    a('v_cvt_pk_bf16_f32 v18, v16, v17')
    a('v_lshlrev_b32 v16, 16, v18')
    a('v_and_b32 v17, 0xffff0000, v18')
    a('v_mul_f32 v19, 0xbfb8aa3b, v16')
    a('v_exp_f32 v19, v19')
    a('v_add_f32 v19, 1.0, v19')
    a('v_rcp_f32 v19, v19')
    a('v_mul_f32 v19, v19, v16')
    bfround(a, 19, 19)
    a('v_mul_f32 v19, v19, v17')
    a('v_cvt_pk_bf16_f32 v19, v19, v19')
    a('ds_write_b16 v11, v19')
    a('s_waitcnt lgkmcnt(0)')
    a('ds_read_b128 v[20:23], v12')
    a('ds_read_b128 v[24:27], v12 offset:64')
    DA = lambda m: 28 + 4 * m
    for kap in range(2):
        a(f's_waitcnt lgkmcnt({1-kap})')
        for m in range(5):
            c = '0' if kap == 0 else vr(DA(m), 4)
            a(f'v_mfma_f32_16x16x32_bf16 {vr(DA(m),4)}, {vr(20+4*kap,4)}, {vr(DF(kap,m),4)}, {c}')
    a('v_mov_b32 v17, 0x7fc00000')
    a(f'v_cndmask_b32 v16, v{DA(0)}, v{DA(1)}, s[48:49]')
    a(f'v_cndmask_b32 v16, v16, v{DA(2)}, s[52:53]')
    a(f'v_cndmask_b32 v16, v16, v{DA(3)}, s[60:61]')
    a('v_cmp_eq_u32 vcc, -1, v16')
    a('v_cndmask_b32 v16, v16, v17, vcc')
    a(f'buffer_store_dword v16, v9, s[36:39], s62 offen{SC}')
    a('s_cmp_ge_u32 s40, 4')
    a('s_cbranch_scc1 L_FDONE')
    a(f'v_cmp_eq_u32 vcc, -1, v{DA(4)}')
    a(f'v_cndmask_b32 v18, v{DA(4)}, v17, vcc')
    a('s_mov_b64 exec, 0xffff')
    a(f'buffer_store_dword v18, v9, s[36:39], s63 offen{SC}')
    a('s_mov_b64 exec, -1')
    lab(a, 'L_FDONE')
    stamp(a, 14)
    a('s_branch L_EXIT')

    lab(a, 'L_FIN')
    a('v_and_b32 v2, 15, v0')
    a('v_lshrrev_b32 v3, 4, v0')
    a('v_lshlrev_b32 v4, 4, v0')
    a('v_add_u32 v5, 1024, v4')
    a('v_lshlrev_b32 v9, 2, v0')
    srd(a, 36, 14, WS_RANGE)
    a('s_sub_u32 s42, s2, 72')
    a('s_mul_i32 s41, s40, 20736')
    a('s_lshl_b32 s43, s42, 8')
    a('s_add_u32 s41, s41, s43')
    a(f's_add_u32 s41, s41, {WS_PART}')
    a('s_lshl_b32 s45, s40, 8')
    a('v_add_u32 v10, s45, v9')
    srd(a, 32, 72, X_BYTES)
    a('s_lshl_b32 s44, s42, 4')
    a('s_cmp_lt_u32 s42, 8')
    a('s_cselect_b32 s43, 7, 4')
    a('s_cselect_b32 s44, s44, 512')
    a('v_lshlrev_b32 v12, s43, v3')
    a('v_add3_u32 v12, v12, v2, s44')
    a('v_lshlrev_b32 v12, 1, v12')
    a('v_mov_b32 v63, 0')
    a('s_cmp_lg_u32 s40, 7')
    a('s_cbranch_scc1 L_NWAIT')
    key_poll('L_N')
    lpoint(a, 7)
    lab(a, 'L_NWAIT')
    a('s_barrier')
    stamp(a, 12)
    a('s_cmp_lg_u32 s40, 7')
    a('s_cbranch_scc1 L_PP')
    a('s_lshl_b32 s48, s46, 7')
    a(f's_add_u32 s48, s48, {WS_KEYS + 64}')
    a('v_mov_b32 v8, 0')
    a('s_mov_b32 s58, 0')
    lab(a, 'L_FPOLL')
    a(f'buffer_load_dword v11, v8, s[36:39], s48 offen{SC}')
    a('s_add_u32 s58, s58, 1')
    a('s_waitcnt vmcnt(0)')
    a('v_readfirstlane_b32 s44, v11')
    a('s_cmp_lg_u32 s44, -1')
    a('s_cbranch_scc1 L_FGOT2')
    a(f's_cmp_lt_u32 s58, {SPIN_LIMIT}')
    a('s_cbranch_scc1 L_FPOLL')
    lab(a, 'L_FGOT2')
    a('s_mul_i32 s45, s46, 1280')
    a(f's_add_u32 s45, s45, {WS_H}')
    a('v_mov_b32 v60, 0')
    a('v_mov_b32 v61, 0')
    a(f'buffer_load_short_d16_hi v60, v12, s[36:39], s47 offen{SC}')
    a(f'buffer_load_short_d16_hi v61, v12, s[36:39], s45 offen{SC}')
    a(f'buffer_load_dwordx2 v[62:63], v8, s[36:39], s45 offen offset:1152{SC}')
    lab(a, 'L_PP')
    a('s_mov_b32 s58, 0')
    lab(a, 'L_PPOLL')
    a('s_mov_b32 s43, s41')
    P = lambda p: 32 + p
    for p in range(9):
        a(f'buffer_load_dword v{P(p)}, v9, s[36:39], s43 offen{SC}')
        if p < 8:
            a('s_add_u32 s43, s43, 2304')
    a('s_add_u32 s58, s58, 1')
    a('s_waitcnt vmcnt(0)')
    a(f'v_max3_u32 v16, v{P(0)}, v{P(1)}, v{P(2)}')
    a(f'v_max3_u32 v17, v{P(3)}, v{P(4)}, v{P(5)}')
    a(f'v_max3_u32 v18, v{P(6)}, v{P(7)}, v{P(8)}')
    a('v_max3_u32 v16, v16, v17, v18')
    a('v_cmp_eq_u32 vcc, -1, v16')
    a(f'v_pk_add_f32 v[18:19], {vr(P(0),2)}, {vr(P(2),2)}')
    a(f'v_pk_add_f32 v[20:21], {vr(P(4),2)}, {vr(P(6),2)}')
    a('s_cmp_eq_u64 vcc, 0')
    a('s_cbranch_scc1 L_PGOT')
    a(f's_cmp_lt_u32 s58, {SPIN_LIMIT}')
    a('s_cbranch_scc1 L_PPOLL')
    lab(a, 'L_PGOT')
    a('v_pk_add_f32 v[18:19], v[18:19], v[20:21]')
    a(f'v_add_f32 v18, v18, v{P(8)}')
    a('v_add_f32 v18, v18, v19')
    a('ds_write_b32 v10, v18')
    a('s_waitcnt lgkmcnt(0)')
    stamp(a, 13)
    a('s_barrier')
    a('s_cmp_lg_u32 s40, 7')
    a('s_cbranch_scc1 L_EXIT')
    for w in range(4):
        a(f'ds_read2st64_b32 {vr(16+2*w,2)}, v9 offset0:{2*w} offset1:{2*w+1}')
    bfround(a, 62, 62)
    a('v_mul_f32 v30, 0xbfb8aa3b, v62')
    a('v_exp_f32 v30, v30')
    a('v_mul_u32_u24 v63, 1152, v63')
    a('v_add_f32 v30, 1.0, v30')
    a('v_rcp_f32 v30, v30')
    a('v_add_u32 v63, v63, v12')
    bfround(a, 30, 30)
    a('s_waitcnt lgkmcnt(0)')
    a('v_pk_add_f32 v[16:17], v[16:17], v[18:19]')
    a('v_pk_add_f32 v[20:21], v[20:21], v[22:23]')
    a('v_pk_add_f32 v[16:17], v[16:17], v[20:21]')
    a('v_add_f32 v16, v16, v17')
    bfround(a, 16, 16)
    a('v_mul_f32 v16, v16, v30')
    bfround(a, 16, 16)
    a('v_add_f32 v16, v16, v60')
    bfround(a, 16, 16)
    a('v_add_f32 v16, v16, v61')
    a('v_cvt_pk_bf16_f32 v16, v16, v16')
    a('buffer_store_short v16, v63, s[32:35], 0 offen')
    if OPT['ls']:
        a('s_memrealtime s[92:93]')
        a('s_waitcnt lgkmcnt(0)')
        if OPT['ls'] > 1:
            a('s_mov_b32 s92, s94')
        a('s_sub_u32 s92, s92, s90')
        if OPT.get('cyc'):
            a('s_lshr_b32 s92, s92, 4')
        a('v_mov_b32 v20, s92')
        a('s_lshl_b32 s93, s2, 2')
        a(f's_add_u32 s93, s93, {WS_STAMP}')
        a('v_mov_b32 v21, 0')
        a('buffer_store_dword v20, v21, s[36:39], s93 offen')
    stamp(a, 14)
    lab(a, 'L_EXIT')
    if STAMP:
        a('s_waitcnt vmcnt(0)')
        stamp(a, 15)
        stamp_flush(a)
    lab(a, 'L_END')
    a('s_endpgm')
    a.label('CODE_END')


def main(path):
    a = Asm()
    if OPT['aslist']:
        a.raw(f'; @launch kernel={NAME} grid=(256,1,1) block=(512,1,1) lds={LDS_TOTAL}')
    else:
        a.raw(f'; @launch grid=(256,1,1) block=(512,1,1) lds={LDS_TOTAL}')
    a.raw('.amdgcn_target "amdgcn-amd-amdhsa--gfx950"')
    a.raw('.text')
    gen(a)
    a.raw('.section .rodata,"a"')
    a.raw(f'''.p2align 6
.amdhsa_kernel {NAME}
  .amdhsa_next_free_vgpr 256
  .amdhsa_next_free_sgpr {100 if (STAMP or OPT['ls']) else 88}
  .amdhsa_accum_offset 256
  .amdhsa_group_segment_fixed_size 0
  .amdhsa_kernarg_size 104
  .amdhsa_user_sgpr_count 2
  .amdhsa_user_sgpr_kernarg_segment_ptr 1
  .amdhsa_system_sgpr_workgroup_id_x 1
.end_amdhsa_kernel
''')
    open(path, 'w').write(a.text())


if __name__ == '__main__':
    for arg in sys.argv[2:]:
        if arg == 'stamp':
            STAMP = True
        else:
            k, v = arg.split('=')
            OPT[k] = int(v)
    main(sys.argv[1])
```

```python
import sys
import struct
from asmdsl import Asm, Cnt, vr, sr

NAME = 'sequential_preLN__spectral_fnet__moe_arch_mod__prompt_kernel'
S, D, F = 2048, 576, 4608
X_BYTES = S * D * 2
SEQ_BYTES = S * S * 2
HID_BYTES = D * D * 2
WG_BYTES = D * F * 2
WS_U = 0
WS_KEYS = 0x240000
WS_UF = WS_KEYS + 16384
WS_PART = WS_UF + 192 * 64
WS_HN = WS_PART + 72 * 2304
WS_FILL_END = WS_HN + 128 * 1152
WS_H = 0x2a0000
WS_RANGE = 0x900000
WS_STAMP = 0x800000
assert WS_FILL_END <= WS_H and WS_FILL_END - WS_KEYS <= 64 * 8192

STAMP = False
OPT = dict(ahead=9, warm=0, hwait=1, ls=0, hfirst=7, wpf=1, wpf_at=0, usent=0, outsc=1, depth=3, slow=6, gap=3, codepf=1, ntw=0, ipf=0, fearly=1, coop=0, st=7, gent=1, split=0, g1=3, cmul=1, npre=9, ilv=2, wpoll=1, sleep=1, aslist=0)
SC = ' sc1'
SPIN_LIMIT = 400000
NCLR = 16
INVB = struct.unpack('<I', struct.pack('<f', 1.0 / 576.0))[0]
EPSB = struct.unpack('<I', struct.pack('<f', 1e-5))[0]

P1_B = 73728
P1_F = 135168
P1_ST = 151552
LDS_T = 152064
LDS_C = LDS_T + 4096
LDS_XS = 152064
LDS_RED = LDS_XS + 1280
LDS_ACT = LDS_RED + 1024
LDS_CNT = LDS_C + 64
LDS_TOTAL = LDS_C + 128
R_Y = 73728
R_YS = 2312
R_STG = R_Y + 16 * R_YS
R_X = R_STG + 16 * 1152 + 1024
R_W = R_X + 16 * 1152
assert R_W + 1152 + 1024 <= P1_ST
GROUPS = [(0, 0, 0), (1, 0, 5), (None, 0, 1), (2, 0, 6), (None, 0, 2), (3, 0, 7), (None, 0, 3), (4, 1, 8), (None, 0, 4)]
STAGES = [[0], [1], [2, 3], [4, 5], [6, 7], [8]]


def srd(a, d, b, nbytes):
    a(f's_mov_b32 s{d}, s{b}')
    a(f's_mov_b32 s{d+1}, s{b+1}')
    a(f's_mov_b32 s{d+2}, {nbytes}')
    a(f's_mov_b32 s{d+3}, 0x00020000')


def stamp(a, k):
    if STAMP:
        if k == 0:
            a('v_mov_b32 v1, 0')
        a('s_memrealtime s[92:93]')
        a('s_waitcnt lgkmcnt(0)')
        a(f'v_writelane_b32 v1, s92, {k}')


def lpoint(a, k):
    if OPT['ls'] == k:
        a('s_memtime s[94:95]' if OPT.get('cyc') else 's_memrealtime s[94:95]')
        a('s_waitcnt lgkmcnt(0)')


def fpoint(a, k):
    if OPT['ls'] == k:
        a('s_memrealtime s[94:95]')
        a('s_waitcnt lgkmcnt(0)')
        a('s_sub_u32 s94, s94, s90')
        a('v_mov_b32 v236, s94')
        a('s_lshl_b32 s95, s2, 2')
        a(f's_add_u32 s95, s95, {WS_STAMP + 4096}')
        a('v_mov_b32 v237, 0')
        a('buffer_store_dword v236, v237, s[36:39], s95 offen')


def stamp_flush(a):
    if not STAMP:
        return
    a('s_mov_b32 exec_lo, -1')
    a('s_mov_b32 exec_hi, 0')
    srd(a, 96, 14, WS_RANGE)
    a('s_lshl_b32 s95, s2, 3')
    a('s_add_u32 s95, s95, s40')
    a('s_lshl_b32 s95, s95, 7')
    a(f's_add_u32 s95, s95, {WS_STAMP}')
    a('v_lshlrev_b32 v0, 2, v0')
    a('buffer_store_dword v1, v0, s[96:99], s95 offen')


def bfround(a, dst, src):
    a(f'v_cvt_pk_bf16_f32 v{dst}, v{src}, v{src}')
    a(f'v_and_b32 v{dst}, 0xffff0000, v{dst}')


def dpp_reduce(a, op, regs, upto=6):
    ms = [('row_shr:1', '0xf'), ('row_shr:2', '0xf'), ('row_shr:4', '0xf'), ('row_shr:8', '0xf'), ('row_bcast:15', '0xa'), ('row_bcast:31', '0xc')]
    for m, rm in ms[:upto]:
        for r in regs:
            a(f'{op}_dpp v{r}, v{r}, v{r} {m} row_mask:{rm} bank_mask:0xf')


def lab(a, name):
    a.label(name)
    a.flush_hist()


def wait_cleared(a, name):
    srd(a, 76, 74, 256)
    a('v_mov_b32 v250, 0')
    a('s_mov_b32 s58, 0')
    lab(a, name)
    a(f'buffer_load_dword v251, v250, s[76:79], 0 offen{SC}')
    a('s_add_u32 s58, s58, 1')
    a('s_waitcnt vmcnt(0)')
    a('v_readfirstlane_b32 s59, v251')
    a(f's_cmp_ge_u32 s59, {NCLR}')
    a(f's_cbranch_scc1 {name}_OK')
    a('s_sleep 8')
    a(f's_cmp_lt_u32 s58, {SPIN_LIMIT}')
    a(f's_cbranch_scc1 {name}')
    lab(a, name + '_OK')


def gen(a):
    global STAGES
    STAGES = [[[0], [1], [2, 3], [4, 5], [6, 7], [8]], [[0, 1], [2, 3], [4, 5], [6, 7], [8]], [[i] for i in range(9)],
              [[0], [1, 2], [3, 4], [5, 6], [7], [8]], [[0], [1, 2, 3], [4, 5, 6], [7, 8]], [[0, 1, 2], [3, 4, 5], [6, 7, 8]], [[0, 1, 2, 3], [4, 5, 6, 7, 8]], [[0, 1], [2, 3, 4], [5, 6, 7, 8]]][OPT['st']]
    global GROUPS
    if OPT['gent']:
        GROUPS = [(None, 0, c) for c in range(9)]
        OPT['fearly'] = 0
        if OPT['split']:
            GROUPS = [(None, 0, c) for c in (0, 1, 4, 5, 2, 3, 6, 7, 8)]
            STAGES = [[0, 1, 2, 3], [4, 5, 6], [7, 8]]
    fb = lambda x: '0x%08x' % struct.unpack('<I', struct.pack('<f', float(x)))[0]

    def gensetup(theta, R):
        C, Sn = R, R + 8
        for j in range(8):
            a(f'v_mul_f32 v{Sn+j}, {fb(j)}, v{theta}')
        for j in range(8):
            a(f'v_cos_f32 v{C+j}, v{Sn+j}')
            a(f'v_sin_f32 v{Sn+j}, v{Sn+j}')
        a(f'v_mul_f32 v{theta}, {fb(32)}, v{theta}')

    def genloop(name, theta, base, addr, count, R):
        C, Sn, T0, BR, BI, O = R, R + 8, R + 16, R + 32, R + 34, R + 36
        a(f's_mov_b32 s53, {count}')
        lab(a, name)
        a(f'v_cos_f32 v{BR}, v{base}')
        a(f'v_sin_f32 v{BI}, v{base}')
        a(f'v_add_f32 v{base}, v{base}, v{theta}')
        a('s_sub_u32 s53, s53, 1')
        for h in range(4):
            a(f'v_pk_mul_f32 {vr(T0+2*h,2)}, {vr(C+2*h,2)}, {vr(BR,2)} op_sel_hi:[1,0]')
            a(f'v_pk_mul_f32 {vr(T0+8+2*h,2)}, {vr(Sn+2*h,2)}, {vr(BR,2)} op_sel_hi:[1,0]')
        for h in range(4):
            a(f'v_pk_fma_f32 {vr(T0+2*h,2)}, {vr(Sn+2*h,2)}, {vr(BI,2)}, {vr(T0+2*h,2)} op_sel_hi:[1,0,1] neg_lo:[0,1,0] neg_hi:[0,1,0]')
            a(f'v_pk_fma_f32 {vr(T0+8+2*h,2)}, {vr(C+2*h,2)}, {vr(BI,2)}, {vr(T0+8+2*h,2)} op_sel_hi:[1,0,1]')
        a('s_waitcnt lgkmcnt(0)')
        for h in range(4):
            a(f'v_cvt_pk_bf16_f32 v{O+h}, v{T0+2*h}, v{T0+2*h+1}')
            a(f'v_cvt_pk_bf16_f32 v{O+4+h}, v{T0+8+2*h}, v{T0+8+2*h+1}')
        a(f'ds_write_b128 v{addr}, {vr(O,4)}')
        a(f'ds_write_b128 v{addr}, {vr(O+4,4)} offset:1024')
        a(f'v_add_u32 v{addr}, 2048, v{addr}')
        a('s_cmp_lg_u32 s53, 0')
        a(f's_cbranch_scc1 {name}')
        a.flush_hist()
        a('s_waitcnt lgkmcnt(0)')

    def trig(theta, r0, consts, dre, dim, tmp):
        for j in range(8):
            a(f'v_fmamk_f32 v{tmp+j}, v{theta}, {fb(consts[j])}, v{r0}')
        for j in range(8):
            a(f'v_cos_f32 v{tmp+8+j}, v{tmp+j}')
            a(f'v_sin_f32 v{tmp+j}, v{tmp+j}')
        for j in range(4):
            a(f'v_cvt_pk_bf16_f32 v{dre+j}, v{tmp+8+2*j}, v{tmp+8+2*j+1}')
            a(f'v_cvt_pk_bf16_f32 v{dim+j}, v{tmp+2*j}, v{tmp+2*j+1}')
    a.raw(f'.globl {NAME}')
    a.raw('.p2align 8')
    a.raw(f'.type {NAME},@function')
    lab(a, NAME)
    if OPT['ls']:
        a('s_memtime s[90:91]' if OPT.get('cyc') else 's_memrealtime s[90:91]')
    a('s_cmp_ge_u32 s2, 256')
    a('s_cbranch_scc1 L_END')
    a('s_load_dwordx8 s[4:11], s[0:1], 0')
    a('s_load_dwordx2 s[12:13], s[0:1], 32')
    a('s_load_dwordx2 s[14:15], s[0:1], 96')
    a('s_load_dwordx8 s[64:71], s[0:1], 48')
    a('s_load_dwordx4 s[72:75], s[0:1], 80')
    a('v_lshrrev_b32 v1, 6, v0')
    a('v_readfirstlane_b32 s40, v1')
    def helper_code():
        lab(a, 'L_HELP')
        a(f's_cmp_ge_u32 s2, {NCLR}')
        a('s_cbranch_scc1 L_HELP2')
        NF = (WS_FILL_END - WS_KEYS + NCLR * 8192 - 1) // (NCLR * 8192)
        a('v_lshlrev_b32 v13, 4, v0')
        for r in range(28, 32):
            a(f'v_mov_b32 v{r}, -1')
        a(f's_mul_i32 s54, s2, {NF*8192}')
        a(f's_add_u32 s54, s54, {WS_KEYS}')
        a(f's_mov_b32 s62, {WS_FILL_END}')
        a('s_mov_b32 s63, 0x00020000')
        a('v_mov_b32 v6, 0')
        a('v_mov_b32 v7, 1')
        a('s_waitcnt lgkmcnt(0)')
        a('s_mov_b32 s60, s14')
        a('s_mov_b32 s61, s15')
        for q in range(NF):
            a(f'buffer_store_dwordx4 v[28:31], v13, s[60:63], s54 offen{SC}')
            if q < NF - 1:
                a('s_add_u32 s54, s54, 8192')
        srd(a, 76, 74, 256)
        a('v_and_b32 v0, 63, v0')
        a('s_and_b32 s41, s2, 7')
        a('s_lshr_b32 s42, s2, 3')
        a('s_waitcnt vmcnt(0)')
        a('s_barrier')
        a('s_cmp_lg_u32 s40, 7')
        a('s_cbranch_scc1 L_HELP4')
        a('s_mov_b64 exec, 1')
        a('buffer_atomic_add v7, v6, s[76:79], 0 offen')
        a('s_mov_b64 exec, -1')
        a('s_branch L_HELP4')
        lab(a, 'L_HELP2')
        a('v_and_b32 v0, 63, v0')
        a('s_and_b32 s41, s2, 7')
        a('s_lshr_b32 s42, s2, 3')
        a('s_cmp_ge_u32 s40, 5')
        a('s_cbranch_scc1 L_HELP3')
        if OPT['warm']:
            a('s_sub_u32 s43, s42, 2')
            a('v_mul_u32_u24 v8, 9216, v0')
            a('v_mul_u32_u24 v10, 1152, v0')
            a('s_mul_i32 s48, s43, 344')
            a('s_add_u32 s48, s48, s41')
            a('s_mul_i32 s48, s48, 1152')
            a('s_lshl_b32 s50, s40, 8')
            a('s_add_u32 s48, s48, s50')
            a('s_mul_i32 s49, s43, 55296')
            a('s_lshl_b32 s50, s40, 7')
            a('s_add_u32 s49, s49, s50')
            a('s_waitcnt lgkmcnt(0)')
            srd(a, 16, 4, X_BYTES)
            srd(a, 28, 10, HID_BYTES)
            srd(a, 32, 12, HID_BYTES)
            a('s_mov_b32 exec_hi, 0x7ff')
            a('buffer_load_dword v18, v8, s[16:19], s48 offen')
            a('s_mov_b32 exec_hi, 0xffff')
            a('buffer_load_dword v16, v10, s[28:31], s49 offen offset:1152')
            a('buffer_load_dword v17, v10, s[32:35], s49 offen offset:1152')
            a('s_mov_b32 exec_hi, 0x7ff')
            a('buffer_load_dword v19, v8, s[16:19], s48 offen offset:128')
            a('s_mov_b32 exec_hi, -1')
        a('s_branch L_HELP4')
        lab(a, 'L_HELP3')
        a('s_cmp_eq_u32 s40, 5')
        a('s_cbranch_scc1 L_HELP5')
        a('s_cmp_eq_u32 s40, 7')
        a('s_cbranch_scc1 L_HELP4')
        if OPT['codepf']:
            a('s_getpc_b64 s[76:77]')
            a.label('L_PC')
            a(f's_sub_u32 s76, s76, L_PC-{NAME}')
            a('s_subb_u32 s77, s77, 0')
            a('v_lshlrev_b32 v7, 7, v0')
            for q in range(3):
                if q:
                    a('v_add_u32 v7, 8192, v7')
                a(f'v_cmp_gt_u32 vcc, CODE_END-{NAME}, v7')
                a('v_cndmask_b32 v8, 0, v7, vcc')
                a(f'global_load_dword v{20+q}, v8, s[76:77]')
        a('s_branch L_HELP4')
        lab(a, 'L_HELP5')
        if OPT['warm']:
            a('v_lshlrev_b32 v12, 17, v0')
            a('s_sub_u32 s52, s42, 2')
            a(f's_mul_i32 s52, s52, {11*131072}')
            a('s_waitcnt lgkmcnt(0)')
            srd(a, 20, 6, SEQ_BYTES)
            srd(a, 24, 8, SEQ_BYTES)
            a('s_mov_b64 exec, 0x7ff')
            a('buffer_load_dword v19, v12, s[20:23], s52 offen')
            a('buffer_load_dword v20, v12, s[24:27], s52 offen')
            a('s_mov_b64 exec, -1')
        lab(a, 'L_HELP4')
        a('s_waitcnt lgkmcnt(0)')
        stamp(a, 0)
        stamp(a, 1)
        if OPT['hwait']:
            a('s_waitcnt vmcnt(0)')
        for _ in range(OPT.get('hdelay', 0)):
            a('s_sleep 32')
        a('s_barrier')
        a('s_cmp_ge_u32 s40, 2')
        a('s_cbranch_scc1 L_FFN')
        srd(a, 16, 66, WG_BYTES)
        srd(a, 20, 68, WG_BYTES)
        srd(a, 24, 70, WG_BYTES)
        a('s_mul_i32 s43, s42, 72')
        a('s_mul_i32 s44, s40, 36')
        a('s_add_u32 s43, s43, s44')
        a('s_mul_i32 s44, s41, 9')
        a('s_add_u32 s44, s44, 8')
        a('s_mul_i32 s45, s43, 9216')
        a('s_lshl_b32 s46, s44, 7')
        a('s_add_u32 s45, s45, s46')
        a('s_mul_i32 s46, s44, 73728')
        a('s_lshl_b32 s47, s43, 7')
        a('s_add_u32 s46, s46, s47')
        a('v_mul_u32_u24 v6, 9216, v0')
        a('v_lshlrev_b32 v7, 7, v0')
        a('s_mov_b32 exec_hi, 0xf')
        a('buffer_load_dword v240, v6, s[16:19], s45 offen')
        a('buffer_load_dword v241, v6, s[20:23], s45 offen')
        a('buffer_load_dword v242, v7, s[24:27], s46 offen')
        a('s_mov_b32 exec_hi, -1')
        a('s_branch L_FFN')


    if OPT['hfirst']:
        a('s_cmp_ge_u32 s2, 64')
        a('s_cbranch_scc1 L_PROD')
        helper_code()
        lab(a, 'L_PROD')
    else:
        a('s_cmp_lt_u32 s2, 64')
        a('s_cbranch_scc1 L_HELP')
    a('v_and_b32 v0, 63, v0')
    a('s_and_b32 s41, s2, 31')
    a('s_lshr_b32 s42, s2, 5')
    a('s_sub_u32 s42, s42, 2')
    a('v_lshrrev_b32 v3, 4, v0')
    a('s_cmp_ge_u32 s42, 3')
    a('s_cselect_b32 s43, 1, 0')
    a('s_cmp_lt_u32 s40, 4')
    a('s_cbranch_scc1 L_P1MM')
    vm = Cnt(a, 'vmcnt', 63)
    a('v_lshrrev_b32 v8, 3, v0')
    a('v_and_b32 v9, 7, v0')
    a('v_xor_b32 v9, v9, v3')
    a('v_lshlrev_b32 v9, 4, v9')
    a('s_sub_u32 s44, s40, 4')
    a('s_lshr_b32 s45, s44, 1')
    a('s_lshl_b32 s45, s45, 5')
    a('s_and_b32 s51, s44, 1')
    a('s_lshl_b32 s46, s51, 2')
    a('s_add_u32 s45, s45, s46')
    a('v_lshrrev_b32 v6, 2, v8')
    a('v_lshlrev_b32 v6, 3, v6')
    a('v_and_b32 v10, 3, v8')
    a('v_add3_u32 v6, v6, v10, s45')
    a('v_mul_u32_u24 v6, 36864, v6')
    a('s_mul_i32 s47, s41, 1152')
    a('v_xor_b32 v10, 64, v9')
    a('v_add_u32 v7, s47, v6')
    a('v_add_u32 v6, v7, v9')
    a('v_add_u32 v7, v7, v10')
    a(f'v_add_u32 v7, {16*36864}, v7')
    a('s_lshl_b32 s48, s44, 11')
    if not OPT['gent']:
        a('s_mul_i32 s50, s42, 96')
        a('s_mul_i32 s52, s43, 287')
        a('s_sub_u32 s50, s50, s52')
        a('s_lshl_b32 s52, s51, 4')
        a('s_add_u32 s50, s50, s52')
        a('v_lshl_add_u32 v40, v8, 1, s50')
        a('s_lshl_b32 s52, s51, 6')
        a('v_xor_b32 v43, s52, v9')
        a('v_mul_u32_u24 v41, 1152, v40')
        a('v_cmp_eq_u32 vcc, 0, v40')
        a(f'v_mov_b32 v42, {288*1152}')
        a('v_cndmask_b32 v40, v41, v42, vcc')
        a('v_add_u32 v40, v40, v43')
        a('v_add_u32 v41, v41, v43')
        a('v_add_u32 v42, 73728, v41')
        a('v_add_u32 v41, 36864, v41')
        a('s_lshl_b32 s53, s44, 10')
        a(f's_add_u32 s53, s53, {P1_B}')
        a('s_cmp_ge_u32 s44, 2')
        a(f's_mov_b32 s30, {HID_BYTES}')
        a('s_mov_b32 s31, 0x00020000')
    a('s_waitcnt lgkmcnt(0)')
    if not OPT['gent']:
        a('s_cselect_b32 s28, s12, s10')
        a('s_cselect_b32 s29, s13, s11')
    srd(a, 16, 4, X_BYTES)
    stamp(a, 0)
    lpoint(a, 2)

    def issue(st):
        for gi in STAGES[st]:
            cb, withF, c = GROUPS[gi]
            for hh in range(2):
                a(f's_add_u32 m0, s48, {c*8192 + hh*1024 - c*128}')
                a(f'buffer_load_dwordx4 v{6+hh}, s[16:19], 0 offen offset:{c*128} lds')
                vm.issue(st)
            if cb is not None:
                for w in range(3):
                    a(f's_add_u32 m0, s53, {w*20480 + cb*4096 - cb*128}')
                    a(f'buffer_load_dwordx4 v{40+w}, s[28:31], 0 offen offset:{cb*128} lds')
                    vm.issue(st)
            if withF and not OPT['fearly']:
                for part in range(2):
                    for hh in range(2):
                        a(f's_add_u32 m0, s49, {P1_F + (part*2+hh)*1024}')
                        a(f'buffer_load_dwordx4 v{14+hh}, s[{20+4*part}:{23+4*part}], 0 offen lds')
                        vm.issue(st)
    NS = len(STAGES)
    AH = min(OPT['ahead'], NS)
    for st in range(AH):
        issue(st)
    if OPT['gent']:
        a('v_and_b32 v14, 7, v0')
        a('s_lshl_b32 s46, s44, 3')
        a('v_add_u32 v14, s46, v14')
        a('v_sub_u32 v15, 64, v14')
        a('v_cmp_eq_u32 vcc, 64, v15')
        a('v_cndmask_b32 v15, v15, 32, vcc')
        a('v_and_b32 v16, 8, v0')
        a('v_cmp_eq_u32 vcc, 0, v16')
        a('v_cndmask_b32 v14, v15, v14, vcc')
        a('v_cvt_f32_u32 v14, v14')
        a(f'v_mul_f32 v14, {fb(-1.0/64)}, v14')
        a('v_lshlrev_b32 v15, 3, v3')
        a('v_cvt_f32_u32 v15, v15')
        a('v_mul_f32 v15, v15, v14')
        a('s_lshl_b32 s49, s44, 12')
        a(f's_add_u32 s49, s49, {P1_F}')
        a('v_lshl_add_u32 v16, v0, 4, s49')
    else:
        a('s_lshl_b32 s46, s44, 3')
        a('v_add_u32 v14, s46, v8')
        a('v_sub_u32 v15, 64, v14')
        a('v_cmp_eq_u32 vcc, 64, v15')
        a('v_cndmask_b32 v15, v15, 32, vcc')
        a('v_lshl_add_u32 v14, v14, 17, v9')
        a('v_lshl_add_u32 v15, v15, 17, v10')
        a('s_lshl_b32 s49, s44, 12')
        srd(a, 20, 6, SEQ_BYTES)
        srd(a, 24, 8, SEQ_BYTES)
    if OPT['gent'] and OPT['split']:
        a('s_min_u32 s50, s44, 2')
        a('s_lshl_b32 s51, s50, 5')
        a('s_mul_i32 s50, s42, 96')
        a('s_add_u32 s50, s50, s51')
        a('s_mul_i32 s51, s43, 287')
        a('s_sub_u32 s50, s50, s51')
        a('v_and_b32 v17, 15, v0')
        a('v_lshl_add_u32 v17, v17, 1, s50')
        a('v_cmp_eq_u32 vcc, 0, v17')
        a('v_mov_b32 v18, 288')
        a('v_cndmask_b32 v17, v17, v18, vcc')
        a('v_cvt_f32_u32 v17, v17')
        a(f'v_mul_f32 v17, {fb(-1.0/576)}, v17')
        a('v_lshlrev_b32 v18, 3, v3')
        a('v_add_u32 v18, 96, v18')
        a('v_cvt_f32_u32 v18, v18')
        a('v_mul_f32 v18, v18, v17')
        a('s_mul_i32 s50, s44, 20480')
        a(f's_add_u32 s50, s50, {P1_B + 3*2048}')
        a('v_lshl_add_u32 v19, v0, 4, s50')
        a('s_cmp_eq_u32 s44, 3')
        a('s_cbranch_scc1 L_NOGB1')
        gensetup(17, 96)
        genloop('L_GB1', 17, 18, 19, OPT['g1'], 96)
        lab(a, 'L_NOGB1')
    for st in range(NS):
        vm.wait(st)
        if st in (0, NS - 1):
            stamp(a, 1 if st == 0 else 2)
            lpoint(a, 3 if st == 0 else 4)
        a('s_barrier')
        if OPT['gent'] and OPT['split'] and st == 0:
            a('s_cmp_eq_u32 s44, 3')
            a('s_cbranch_scc1 L_NOGB2')
            genloop('L_GB2', 17, 18, 19, 6 - OPT['g1'], 96)
            lab(a, 'L_NOGB2')
        if OPT['gent'] and st == (1 if OPT['split'] else 0):
            gensetup(14, 48)
            genloop('L_GF', 14, 15, 16, 2, 48)
        if st + AH < NS:
            issue(st + AH)
        if st == OPT['wpf_at'] and OPT['wpf']:
            srd(a, 32, 66, WG_BYTES)
            srd(a, 36, 68, WG_BYTES)
            srd(a, 60, 70, WG_BYTES)
            a('s_sub_u32 s54, s2, 64')
            a('s_lshr_b32 s54, s54, 3')
            a('s_lshl_b32 s54, s54, 2')
            a('s_add_u32 s54, s54, s44')
            a('s_and_b32 s55, s2, 7')
            a('s_mul_i32 s56, s54, 55296')
            a('s_mul_i32 s57, s55, 1152')
            a('s_add_u32 s56, s56, s57')
            a('s_mul_i32 s57, s55, 663552')
            a('s_mul_i32 s58, s54, 6912')
            a('s_add_u32 s57, s57, s58')
            a('s_mov_b32 s58, 0x1c72')
            a('v_mul_u32_u24 v44, s58, v0')
            a('v_lshrrev_b32 v44, 16, v44')
            a('v_mul_u32_u24 v45, 9, v44')
            a('v_sub_u32 v45, v0, v45')
            a('v_mul_u32_u24 v44, 9216, v44')
            a('v_lshl_add_u32 v44, v45, 7, v44')
            a('v_lshlrev_b32 v45, 7, v0')
            a('s_mov_b32 exec_hi, 0x3fffff')
            a('buffer_load_dword v240, v44, s[32:35], s56 offen')
            vm.issue('pf')
            a('buffer_load_dword v241, v44, s[36:39], s56 offen')
            vm.issue('pf')
            a('buffer_load_dword v242, v45, s[60:63], s57 offen')
            vm.issue('pf')
            a('s_mov_b32 exec_hi, -1')
    a('s_barrier')
    a('s_cmp_lt_u32 s2, 128')
    a('s_cbranch_scc1 L_P2')
    a('s_barrier')
    a('s_branch L_ROWP')

    lab(a, 'L_P1MM')
    a('s_setprio 2')
    a('v_and_b32 v2, 15, v0')
    a('v_lshrrev_b32 v4, 1, v2')
    a('v_xor_b32 v4, v4, v3')
    a('v_lshlrev_b32 v4, 4, v4')
    a('v_lshl_add_u32 v4, v2, 7, v4')
    a('v_xor_b32 v5, 64, v4')
    for r in range(12, 16):
        a(f'v_mov_b32 v{r}, 0x3f803f80')
    XA, XB, BB, FB = 4, 242, 244, 246
    for b in range(2):
        a(f'v_add_u32 v{XB+b}, 0x10000, v{4+b}')
    if OPT['fearly']:
        a('v_lshrrev_b32 v8, 3, v0')
        a('v_and_b32 v9, 7, v0')
        a('v_xor_b32 v9, v9, v3')
        a('v_lshlrev_b32 v9, 4, v9')
        a('v_xor_b32 v10, 64, v9')
        a('s_lshl_b32 s46, s40, 3')
        a('v_add_u32 v6, s46, v8')
        a('v_sub_u32 v7, 64, v6')
        a('v_cmp_eq_u32 vcc, 64, v7')
        a('v_cndmask_b32 v7, v7, 32, vcc')
        a('v_lshl_add_u32 v6, v6, 17, v9')
        a('v_lshl_add_u32 v7, v7, 17, v10')
        a('s_lshl_b32 s49, s40, 12')
    if OPT['coop']:
        a('s_lshl_b32 s50, s42, 2')
        a('s_lshr_b32 s50, 0x876543, s50' if OPT['gent'] else 's_lshr_b32 s50, 0x483726, s50')
        a('s_and_b32 s50, s50, 15')
        a('s_lshl_b32 s50, s50, 7')
        a('s_mul_i32 s51, s41, 1152')
        a('s_add_u32 s50, s50, s51')
        a('s_mul_i32 s51, s42, 96')
        a('s_mul_i32 s52, s43, 287')
        a('s_sub_u32 s51, s51, s52')
        a('s_mul_i32 s51, s51, 1152')
        a('s_lshr_b32 s52, s41, 3')
        a('s_lshl_b32 s52, s52, 7')
        a('s_add_u32 s51, s51, s52')
        a('s_add_u32 s51, s51, 128')
        a('s_movk_i32 s52, 2304')
        a('s_cmp_eq_u32 s40, 0')
        a('s_cselect_b32 s52, 36864, s52')
        a('v_mul_u32_u24 v11, s52, v0')
    if not OPT['gent'] or OPT['coop'] or STAMP:
        a('s_waitcnt lgkmcnt(0)')
    if OPT['fearly']:
        srd(a, 20, 6, SEQ_BYTES)
        srd(a, 24, 8, SEQ_BYTES)
        for part in range(2):
            for hh in range(2):
                a(f's_add_u32 m0, s49, {P1_F + (part*2+hh)*1024}')
                a(f'buffer_load_dwordx4 v{6+hh}, s[{20+4*part}:{23+4*part}], 0 offen lds')
    if OPT['coop']:
        a('s_cmp_eq_u32 s40, 1')
        a('s_cselect_b32 s16, s10, s12')
        a('s_cselect_b32 s17, s11, s13')
        a(f's_mov_b32 s18, {HID_BYTES}')
        a('s_cmp_eq_u32 s40, 0')
        a('s_cselect_b32 s16, s4, s16')
        a('s_cselect_b32 s17, s5, s17')
        a(f's_cselect_b32 s18, {X_BYTES}, s18')
        a('s_cselect_b32 s50, s50, s51')
        a('s_cselect_b32 exec_hi, -1, 0xffff')
        a('s_cmp_ge_u32 s40, 1' if OPT['gent'] else 's_cmp_eq_u32 s40, 3')
        a('s_cselect_b32 s18, 0, s18')
        a('s_mov_b32 s19, 0x00020000')
        a('buffer_load_dword v6, v11, s[16:19], s50 offen')
        a('s_mov_b32 exec_hi, -1')
    stamp(a, 0)
    a('s_cmp_eq_u32 s40, 3')
    a('s_cbranch_scc1 L_STATS')
    lg = Cnt(a, 'lgkmcnt', 15)
    late = []
    real_a = a
    if OPT['gent']:
        a = late.append
    a('s_mul_i32 s44, s42, 3')
    a('s_add_u32 s44, s44, s40')
    a('s_mul_i32 s48, s40, 20480')
    a(f's_add_u32 s48, s48, {P1_B}')
    srd(a, 36, 14, WS_RANGE)
    for b in range(2):
        a(f'v_add_u32 v{BB+b}, s48, v{4+b}')
        a(f'v_add_u32 v{FB+b}, {P1_F}, v{4+b}')
    a('s_lshr_b32 s46, s41, 1')
    a('s_and_b32 s46, s46, 1')
    a('s_xor_b32 s46, s46, s44')
    a('s_lshl_b32 s46, s46, 7')
    a('s_mul_i32 s47, s41, 2304')
    a('s_add_u32 s46, s46, s47')
    a('s_and_b32 s47, s41, 1')
    a('s_lshl_b32 s47, s47, 2')
    a('v_lshrrev_b32 v7, 3, v0')
    a('v_and_b32 v9, 7, v0')
    a('v_xor_b32 v9, v9, v7')
    a('v_xor_b32 v9, s47, v9')
    a('v_mul_u32_u24 v7, 73728, v7')
    a('v_lshl_add_u32 v7, v9, 4, v7')
    a('v_add_u32 v7, s46, v7')
    a('v_and_b32 v9, 7, v2')
    a('v_lshrrev_b32 v240, 3, v2')
    a('v_lshl_add_u32 v240, v240, 2, v3')
    a('v_xor_b32 v240, v240, v9')
    a('v_lshlrev_b32 v240, 4, v240')
    a('v_lshl_add_u32 v240, v9, 7, v240')
    a('s_lshl_b32 s47, s40, 12')
    a('v_add_u32 v240, s47, v240')
    a('v_lshl_add_u32 v241, v0, 4, s47')
    a('v_lshlrev_b32 v8, 4, v3')
    a(f'v_add_u32 v8, {P1_ST}, v8')
    a('s_cmp_eq_u32 s43, 0')
    a('s_cselect_b32 s47, 1.0, -1.0')
    a('v_mov_b32 v10, s47')
    a('v_mov_b32 v11, s47')
    for it in range(1, 4):
        a(f's_mov_b32 s{59+it}, {it*8*73728}')
    a = real_a
    Bre = lambda k: 16 + 8 * k
    Bim = lambda k: 20 + 8 * k
    acc = lambda hf, i, ab: 88 + ((hf * 4 + i) * 2 + ab) * 4
    cacc = lambda ab: 152 + 4 * ab
    Abuf = lambda b, i: 160 + b * 16 + i * 4
    st8 = dict(started=set(), bufno=0, passed=-1, lg=lg, Abuf=Abuf)
    Fregs = [Bre(k) for k in range(1, 8)] + [Bim(k) for k in range(1, 8)] + [248, 252]
    Freg = lambda f: Fregs[f]

    def rd_x(kk):
        b = st8['bufno'] % 3
        st8['bufno'] += 1
        c, par = kk >> 1, kk & 1
        for i in range(4):
            off = c * 8192 + i * 2048
            base = XA + par
            if off >= 65536:
                off -= 65536
                base = XB + par
            a(f'ds_read_b128 {vr(st8["Abuf"](b,i),4)}, v{base} offset:{off}')
            st8['lg'].issue(('x', kk))
        return b

    def rd_B(k):
        c, par = k >> 1, k & 1
        for part, reg in ((0, Bre(k)), (1, Bim(k))):
            if OPT['gent']:
                a(f'ds_read_b128 {vr(reg,4)}, v247 offset:{k*2048 + part*1024}')
            else:
                a(f'ds_read_b128 {vr(reg,4)}, v{BB+par} offset:{(c*4 + part*2)*1024}')
            lg.issue(('B', k))

    def rd_F(f):
        it, kap, part = f >> 2, (f >> 1) & 1, f & 1
        if OPT['gent']:
            a(f'ds_read_b128 {vr(Freg(f),4)}, v{FB} offset:{f*1024}')
        else:
            a(f'ds_read_b128 {vr(Freg(f),4)}, v{FB+kap} offset:{(it*2+part)*2048}')
        lg.issue('F')

    def mf(dst, A, B):
        c = vr(dst, 4) if dst in st8['started'] else '0'
        st8['started'].add(dst)
        a(f'v_mfma_f32_16x16x32_bf16 {vr(dst,4)}, {vr(A,4)}, {vr(B,4)}, {c}')

    steps = [(st, kk) for st, gs in enumerate(STAGES) for gi in gs for kk in (2 * GROUPS[gi][2], 2 * GROUPS[gi][2] + 1)]
    if OPT['gent'] and OPT['split']:
        steps = [(0, kk) for kk in (0, 1, 2, 9, 10, 11)] + [(1, kk) for kk in (3, 4, 5, 6, 7, 8, 12, 13)] + [(2, kk) for kk in (14, 15, 16, 17)]
    NSTEP = len(steps)
    haveB = set()
    bufs = {}

    def fetch(n, withB=True):
        st, kk = steps[n]
        while st8['passed'] < st:
            st8['passed'] += 1
            if st8['passed'] == len(STAGES) - 1:
                a('s_waitcnt vmcnt(0)')
            a('s_barrier')
        k = kk % 9
        if withB and k not in haveB:
            haveB.add(k)
            rd_B(k)
        bufs[n] = rd_x(kk)
    if OPT['gent']:
        a('v_lshlrev_b32 v246, 4, v0')
        a(f'v_add_u32 v246, {P1_F}, v246')
        a('s_mul_i32 s50, s42, 96')
        a('s_mul_i32 s51, s43, 287')
        a('s_sub_u32 s50, s50, s51')
        a('s_lshl_b32 s51, s40, 5')
        a('s_add_u32 s50, s50, s51')
        a('v_lshl_add_u32 v244, v2, 1, s50')
        a('v_cmp_eq_u32 vcc, 0, v244')
        a('v_mov_b32 v245, 288')
        a('v_cndmask_b32 v244, v244, v245, vcc')
        a('v_cvt_f32_u32 v244, v244')
        a(f'v_mul_f32 v244, {fb(-1.0/576)}, v244')
        a('v_lshlrev_b32 v245, 3, v3')
        a('v_cvt_f32_u32 v245, v245')
        a('v_mul_f32 v245, v245, v244')
        for j in range(8):
            a(f'v_mul_f32 v{216+j}, {fb(j)}, v244')
        NG = 3 if OPT['split'] else 9
        for k in range(NG):
            a(f'v_fmamk_f32 v{160+4*k+2}, v244, {fb(32*k)}, v245')
        for j in range(8):
            a(f'v_cos_f32 v{208+j}, v{216+j}')
            a(f'v_sin_f32 v{216+j}, v{216+j}')
        for k in range(NG):
            a(f'v_cos_f32 v{160+4*k}, v{160+4*k+2}')
            a(f'v_sin_f32 v{160+4*k+2}, v{160+4*k+2}')
        for k in range(NG):
            br, bi = 160 + 4 * k, 160 + 4 * k + 2
            T0 = 224
            for h in range(4):
                a(f'v_pk_mul_f32 {vr(T0+2*h,2)}, {vr(208+2*h,2)}, {vr(br,2)} op_sel_hi:[1,0]')
                a(f'v_pk_mul_f32 {vr(T0+8+2*h,2)}, {vr(216+2*h,2)}, {vr(br,2)} op_sel_hi:[1,0]')
            for h in range(4):
                a(f'v_pk_fma_f32 {vr(T0+2*h,2)}, {vr(216+2*h,2)}, {vr(bi,2)}, {vr(T0+2*h,2)} op_sel_hi:[1,0,1] neg_lo:[0,1,0] neg_hi:[0,1,0]')
                a(f'v_pk_fma_f32 {vr(T0+8+2*h,2)}, {vr(208+2*h,2)}, {vr(bi,2)}, {vr(T0+8+2*h,2)} op_sel_hi:[1,0,1]')
            for h in range(4):
                a(f'v_cvt_pk_bf16_f32 v{Bre(k)+h}, v{T0+2*h}, v{T0+2*h+1}')
                a(f'v_cvt_pk_bf16_f32 v{Bim(k)+h}, v{T0+8+2*h}, v{T0+8+2*h+1}')
            haveB.add(k)
        pend = []
        Fregs[:] = [Bre(k) for k in range(0, 7)] + [Bim(k) for k in range(0, 7)] + [248, 252]
        late = [l for l in late if not (l.startswith('v_add_u32 v24') and ('s48' in l or str(P1_F) in l))]
        a('s_waitcnt lgkmcnt(0)')
    fetch(0)
    fetch(1)
    fq = list(range(16))
    for n, (st, kk) in enumerate(steps):
        k, hf = kk % 9, kk // 9
        lg.wait(('x', kk))
        b = bufs[n]
        while OPT['gent'] and pend and pend[0][0] <= k and hf == 0:
            a(pend.pop(0)[1])
        for i in range(4):
            mf(acc(hf, i, 0), Abuf(b, i), Bre(k))
            for _ in range(OPT['ilv']):
                if OPT['gent'] and pend:
                    a(pend.pop(0)[1])
            mf(acc(hf, i, 1), Abuf(b, i), Bim(k))
            for _ in range(2):
                if late and n >= 8:
                    a(late.pop(0))
            if i == 0 and n + 2 < NSTEP:
                fetch(n + 2)
            if n >= NSTEP - 2 and fq and len(lg.q) < 13:
                rd_F(fq.pop(0)); rd_F(fq.pop(0))
        if hf == 0:
            mf(cacc(0), 12, Bre(k))
            mf(cacc(1), 12, Bim(k))
    while fq:
        if len(lg.q) >= 13:
            lg.wait_all()
        rd_F(fq.pop(0)); rd_F(fq.pop(0))
    assert not late
    for i in range(4):
        for ab in range(2):
            for h in range(2):
                d = acc(0, i, ab) + 2 * h
                s1 = acc(1, i, ab) + 2 * h
                a(f'v_pk_fma_f32 {vr(d,2)}, {vr(s1,2)}, v[10:11], {vr(d,2)}')
    lg.wait_all()
    stamp(a, 1)
    a('s_barrier')
    for i in range(4):
        a(f'ds_read_b128 {vr(208+4*i,4)}, v8 offset:{i*64}')
        lg.issue(('st', i))
        a(f'ds_read_b128 {vr(224+4*i,4)}, v8 offset:{256+i*64}')
        lg.issue(('st', i))
    za = lambda kap: 160 + 4 * kap
    zb = lambda kap: 168 + 4 * kap
    znb = lambda kap: 176 + 4 * kap
    out = lambda it, c: 120 + (it * 2 + c) * 4
    TMP = 184
    st8['started'] = set()
    Fidx = lambda it, kap, part: (it * 2 + kap) * 2 + part

    def zops(kap):
        L = []
        for hh in range(2):
            i = 2 * kap + hh
            for ab in range(2):
                for h in range(2):
                    t = TMP + ((hh * 2 + ab) * 2 + h) * 2
                    L.append(f'v_pk_mul_f32 {vr(t,2)}, {vr(224+4*i+2*h,2)}, {vr(cacc(ab),2)}')
        for hh in range(2):
            i = 2 * kap + hh
            for ab in range(2):
                for h in range(2):
                    d = acc(0, i, ab) + 2 * h
                    t = TMP + ((hh * 2 + ab) * 2 + h) * 2
                    L.append(f'v_pk_fma_f32 {vr(d,2)}, {vr(208+4*i+2*h,2)}, {vr(d,2)}, {vr(t,2)} neg_lo:[0,0,1] neg_hi:[0,0,1]')
        for ab, z in ((0, za), (1, zb)):
            for hh in range(2):
                src = acc(0, 2 * kap + hh, ab)
                L.append(f'v_cvt_pk_bf16_f32 v{z(kap)+2*hh}, v{src}, v{src+1}')
                L.append(f'v_cvt_pk_bf16_f32 v{z(kap)+2*hh+1}, v{src+2}, v{src+3}')
        for r in range(4):
            L.append(f'v_xor_b32 v{znb(kap)+r}, 0x80008000, v{zb(kap)+r}')
        return L

    def mops(kap):
        L = []
        for it in range(4):
            L.append((out(it, 0), za(kap), Freg(Fidx(it, kap, 0))))
            L.append((out(it, 1), za(kap), Freg(Fidx(it, kap, 1))))
        for it in range(4):
            L.append((out(it, 0), znb(kap), Freg(Fidx(it, kap, 1))))
            L.append((out(it, 1), zb(kap), Freg(Fidx(it, kap, 0))))
        return L
    lg.wait(('st', 1))
    for ins in zops(0):
        a(ins)
    lg.wait(('st', 3))
    z1 = zops(1)
    for m in mops(0):
        mf(*m)
        for _ in range(2):
            if z1:
                a(z1.pop(0))
    while z1:
        a(z1.pop(0))
    m1 = mops(1)

    def upack(it):
        d = 184 + 4 * it
        a(f'v_cvt_pk_bf16_f32 v{d}, v{out(it,0)}, v{out(it,0)+1}')
        a(f'v_cvt_pk_bf16_f32 v{d+1}, v{out(it,0)+2}, v{out(it,0)+3}')
        a(f'v_cvt_pk_bf16_f32 v{d+2}, v{out(it,1)}, v{out(it,1)+1}')
        a(f'v_cvt_pk_bf16_f32 v{d+3}, v{out(it,1)+2}, v{out(it,1)+3}')
        a(f'ds_write_b128 v240, {vr(d,4)} offset:{it*1024}')
        lg.issue(('w', it))
        a(f'ds_read_b128 {vr(208+4*it,4)}, v241 offset:{it*1024}')
        lg.issue(('r', it))

    def ustore(it):
        lg.wait(('r', it))
        so = '0' if it == 0 else f's{59+it}'
        a(f'buffer_store_dwordx4 {vr(208+4*it,4)}, v7, s[36:39], {so} offen{SC}')
    for it in range(4):
        for m in (m1[2 * it], m1[2 * it + 1], m1[8 + 2 * it], m1[9 + 2 * it]):
            mf(*m)
        if it >= 2:
            upack(it - 2)
    upack(2)
    ustore(0)
    upack(3)
    ustore(1)
    ustore(2)
    ustore(3)
    stamp(a, 2)
    lab(a, 'L_ARRIVE')
    a(f'v_mov_b32 v10, {LDS_CNT}')
    a('v_mov_b32 v11, 1')
    a('v_mov_b32 v9, 0')
    a('s_sub_u32 s49, s2, 64')
    a('s_lshl_b32 s49, s49, 6')
    a(f's_add_u32 s49, s49, {WS_UF}')
    srd(a, 36, 14, WS_RANGE)
    a('s_waitcnt vmcnt(0)')
    a('s_mov_b64 exec, 1')
    a('ds_add_rtn_u32 v6, v10, v11')
    a('s_waitcnt lgkmcnt(0)')
    a('v_readfirstlane_b32 s59, v6')
    a('s_cmp_lg_u32 s59, 3')
    a('s_cbranch_scc1 L_NOFLAG')
    a(f'buffer_store_dword v9, v9, s[36:39], s49 offen{SC}')
    lab(a, 'L_NOFLAG')
    a('s_mov_b64 exec, -1')
    stamp(a, 3)
    a('s_cmp_lt_u32 s2, 128')
    a('s_cbranch_scc1 L_P2')
    a('s_barrier')
    a('s_setprio 0')
    a('s_branch L_ROWP')

    lab(a, 'L_STATS')
    lg = Cnt(a, 'lgkmcnt', 15)
    a('v_and_b32 v8, 3, v2')
    a('v_lshrrev_b32 v9, 2, v2')
    a('v_sub_u32 v9, v9, v3')
    a('v_and_b32 v9, 3, v9')
    for r in range(1, 4):
        a(f'v_cmp_eq_u32 s[{42+2*r}:{43+2*r}], {r}, v8')
        a(f'v_cmp_eq_u32 s[{48+2*r}:{49+2*r}], {r}, v9')
    a('v_lshlrev_b32 v10, 4, v9')
    a('v_lshl_add_u32 v10, v3, 2, v10')
    a('v_add_u32 v10, v10, v8')
    a('v_lshlrev_b32 v10, 2, v10')
    a(f'v_add_u32 v10, {P1_ST}, v10')
    a('s_cmp_eq_u32 s43, 0')
    a('s_cselect_b32 s56, 2.0, 0')
    a(f'v_mov_b32 v8, {LDS_CNT}')
    a('v_mov_b32 v9, 0')
    a('ds_write_b32 v8, v9')
    a('s_waitcnt lgkmcnt(0)')
    GR = lambda i: 16 + 4 * i
    SM = lambda i: 32 + 4 * i
    SAbuf = lambda b, i: 48 + b * 16 + i * 4
    st8.update(started=set(), bufno=0, passed=-1, lg=lg, Abuf=SAbuf)
    bufs = {}
    fetch(0, False)
    fetch(1, False)
    for n, (st, kk) in enumerate(steps):
        lg.wait(('x', kk))
        b = bufs[n]
        for i in range(4):
            mf(GR(i), SAbuf(b, i), SAbuf(b, i))
            mf(SM(i), 12, SAbuf(b, i))
            if i == 0 and n + 2 < NSTEP:
                fetch(n + 2, False)
    for i in range(4):
        for r in range(1, 4):
            a(f'v_cndmask_b32 v{GR(i)}, v{GR(i)}, v{GR(i)+r}, s[{42+2*r}:{43+2*r}]')
    for i in range(1, 4):
        a(f'v_mov_b32_dpp v{GR(i)+1}, v{GR(i)} row_ror:{4*i} row_mask:0xf bank_mask:0xf')
        a(f'v_mov_b32_dpp v{SM(i)+1}, v{SM(i)} row_ror:{4*i} row_mask:0xf bank_mask:0xf')
    for i in range(1, 4):
        a(f'v_cndmask_b32 v{GR(0)}, v{GR(0)}, v{GR(i)+1}, s[{48+2*i}:{49+2*i}]')
        a(f'v_cndmask_b32 v{SM(0)}, v{SM(0)}, v{SM(i)+1}, s[{48+2*i}:{49+2*i}]')
    q, m = GR(0), SM(0)
    a(f'v_mul_f32 v{m}, 0x{INVB:08x}, v{m}')
    a(f'v_mul_f32 v{q}, 0x{INVB:08x}, v{q}')
    a(f'v_fma_f32 v{q}, -v{m}, v{m}, v{q}')
    a(f'v_max_f32 v{q}, 0, v{q}')
    bfround(a, q, q)
    a(f'v_add_f32 v{q}, 0x{EPSB:08x}, v{q}')
    bfround(a, q, q)
    a(f'v_sqrt_f32 v{q}, v{q}')
    a(f'v_mul_f32 v{m}, s56, v{m}')
    bfround(a, q, q)
    a(f'v_rcp_f32 v{q}, v{q}')
    a(f'v_mul_f32 v{m}, v{m}, v{q}')
    a(f'ds_write_b32 v10, v{q}')
    a(f'ds_write_b32 v10, v{m} offset:256')
    a('s_waitcnt lgkmcnt(0)')
    stamp(a, 1)
    a('s_barrier')
    wait_cleared(a, 'L_WC1')
    a('s_branch L_ARRIVE')

    if not OPT['hfirst']:
        helper_code()

    lab(a, 'L_P2')
    a('s_setprio 0')
    if OPT['ipf']:
        a('s_cmp_ge_u32 s2, 88')
        a('s_cbranch_scc1 L_IPF')
    a('s_cmp_ge_u32 s2, 81')
    a('s_cbranch_scc1 L_EXIT')
    lpoint(a, 5)
    a('s_barrier')
    lpoint(a, 6)
    a('s_cmp_lt_u32 s2, 72')
    a('s_cbranch_scc1 L_FFN')
    a('s_branch L_FIN')

    if OPT['ipf']:
        lab(a, 'L_IPF')
        a('s_barrier')
        NTP = ' nt' if OPT['ntw'] else ''
        srd(a, 16, 66, WG_BYTES)
        srd(a, 20, 68, WG_BYTES)
        srd(a, 24, 70, WG_BYTES)
        a('s_and_b32 s41, s2, 7')
        a('s_sub_u32 s42, s2, 88')
        a('s_lshr_b32 s42, s42, 3')
        a('s_mov_b32 s43, 0x1c72')
        a('v_mul_u32_u24 v6, s43, v0')
        a('v_lshrrev_b32 v6, 16, v6')
        a('v_mul_u32_u24 v7, 9, v6')
        a('v_sub_u32 v7, v0, v7')
        a('v_mul_u32_u24 v6, 9216, v6')
        a('v_lshl_add_u32 v6, v7, 7, v6')
        a('s_mul_i32 s44, s40, 72')
        a('s_mul_i32 s45, s42, 7')
        a('s_add_u32 s44, s44, s45')
        a('s_add_u32 s44, s44, 37')
        a('s_mul_i32 s44, s44, 9216')
        a('s_mul_i32 s45, s41, 1152')
        a('s_add_u32 s44, s44, s45')
        a(f'buffer_load_dword v8, v6, s[16:19], s44 offen{NTP}')
        a(f'buffer_load_dword v9, v6, s[20:23], s44 offen{NTP}')
        a('v_lshlrev_b32 v7, 7, v0')
        a('s_lshl_b32 s45, s42, 3')
        a('s_add_u32 s45, s45, s40')
        a('s_mul_i32 s45, s45, 16640')
        a('s_mul_i32 s46, s41, 663552')
        a('s_add_u32 s45, s45, s46')
        a(f'buffer_load_dword v10, v7, s[24:27], s45 offen{NTP}')
        a('s_add_u32 s45, s45, 8448')
        a(f'buffer_load_dword v11, v7, s[24:27], s45 offen{NTP}')
        a('s_branch L_EXIT')

    XR = lambda k: 100 + k
    WR = lambda k: 120 + k
    T = lambda cls, kap: 32 + (cls * 2 + kap) * 4
    TW = lambda kap, part: 16 + (kap * 2 + part) * 4

    lab(a, 'L_ROWP')
    a('v_and_b32 v2, 15, v0')
    a('v_lshrrev_b32 v3, 4, v0')
    a('v_lshlrev_b32 v4, 4, v0')
    a('v_add_u32 v5, 1024, v4')
    a('s_and_b32 s41, s2, 31')
    a('s_lshr_b32 s42, s2, 5')
    a('s_sub_u32 s42, s42, 4')
    a('v_cmp_lt_u32 vcc, 7, v2')
    a('s_cmp_eq_u32 s41, 0')
    a('s_cbranch_scc1 L_P0')
    a('v_and_b32 v8, 7, v2')
    a('s_lshl_b32 s46, s42, 3')
    a('v_add_u32 v8, s46, v8')
    a('v_lshl_add_u32 v6, v8, 6, s41')
    a('v_sub_u32 v8, 2048, v6')
    a('v_cndmask_b32 v6, v6, v8, vcc')
    a('v_xor_b32 v7, 8, v2')
    a('s_branch L_ROWS')
    lab(a, 'L_P0')
    a('v_bfe_u32 v8, v2, 1, 2')
    a('s_lshl_b32 s46, s42, 2')
    a('v_add_u32 v8, s46, v8')
    a('v_sub_u32 v9, 32, v8')
    a('v_sub_u32 v10, 31, v8')
    a('v_cndmask_b32 v9, v9, v10, vcc')
    a('v_mov_b32 v11, 0')
    a('v_cndmask_b32 v11, v11, 32, vcc')
    a('v_cmp_eq_u32 vcc, 32, v9')
    a('v_cndmask_b32 v9, v9, 16, vcc')
    a('v_xor_b32 v7, 1, v2')
    a('v_cndmask_b32 v7, v7, v2, vcc')
    a('v_and_b32 v10, 1, v2')
    a('v_cmp_eq_u32 vcc, 1, v10')
    a('v_cndmask_b32 v8, v8, v9, vcc')
    a('v_lshl_add_u32 v6, v8, 6, v11')
    lab(a, 'L_ROWS')
    a('s_lshl_b32 s44, s40, 1')
    a('s_add_u32 s45, s44, 1')
    a('v_and_b32 v9, 1, v3')
    a('v_readlane_b32 s46, v6, s44')
    a('v_readlane_b32 s47, v6, s45')
    a('v_and_b32 v10, 31, v0')
    a('v_mul_u32_u24 v12, 36, v10')
    srd(a, 24, 4, X_BYTES)
    srd(a, 28, 64, D * 2)
    srd(a, 36, 14, WS_RANGE)
    srd(a, 32, 72, X_BYTES)
    XP, WP = 140, 152
    a('s_mul_i32 s48, s40, 2304')
    a(f's_add_u32 s49, s48, {R_STG}')
    a(f's_add_u32 s48, s48, {R_X}')
    a('s_mul_i32 s82, s46, 1152')
    a('s_mul_i32 s83, s47, 1152')
    for hrow in range(2):
        a(f's_add_u32 m0, s48, {hrow*1152}')
        a(f'buffer_load_dwordx4 v4, s[24:27], s{82+hrow} offen lds')
        a('s_mov_b64 exec, 0xff')
        a(f'buffer_load_dwordx4 v4, s[24:27], s{82+hrow} offen offset:1024 lds')
        a('s_mov_b64 exec, -1')
    a('s_mov_b32 m0, s49')
    a('v_add_u32 v88, s49, v12')
    a('buffer_load_dwordx4 v4, s[28:31], 0 offen lds')
    a('s_mov_b64 exec, 0xff')
    a('buffer_load_dwordx4 v4, s[28:31], 0 offen offset:1024 lds')
    a('s_mov_b64 exec, -1')
    a('v_add_u32 v89, s48, v4')
    a('s_mul_i32 s45, s40, 9216')
    a('s_mul_i32 s44, s41, 73728')
    a('s_add_u32 s44, s44, s45')
    a('s_lshl_b32 s56, s42, 11')
    stamp(a, 4)
    a('v_lshrrev_b32 v8, 2, v0')
    a('v_lshlrev_b32 v8, 11, v8')
    a('v_and_b32 v16, 3, v0')
    a('v_lshl_add_u32 v8, v16, 6, v8')
    a('s_lshl_b32 s48, s40, 8')
    a(f's_add_u32 s48, s48, {WS_UF}')
    a('s_mov_b32 s58, 0')
    a('s_mov_b64 s[76:77], 0xffffff')
    lab(a, 'L_UPOLL')
    a('s_mov_b64 exec, s[76:77]')
    a(f'buffer_load_dword v16, v8, s[36:39], s48 offen{SC}')
    a('s_add_u32 s58, s58, 1')
    a('s_waitcnt vmcnt(0)')
    a('v_cmp_ne_u32 s[76:77], 0, v16')
    a('s_mov_b64 exec, -1')
    a(f's_cmp_lt_u32 s58, {SPIN_LIMIT}')
    a('s_cbranch_scc0 L_UGO2')
    a('s_cmp_eq_u64 s[76:77], 0')
    a('s_cbranch_scc1 L_UGO2')
    a(f's_sleep {OPT["sleep"]}')
    a('s_branch L_UPOLL')
    lab(a, 'L_UGO2')
    stamp(a, 5)
    a('s_mov_b32 s84, 0')
    a(f'v_mov_b32 v85, {LDS_CNT}')

    def u_dma():
        for n in range(9):
            a('s_add_u32 m0, s45, s56')
            a('s_add_u32 s57, s44, s56')
            a(f'buffer_load_dwordx4 v4, s[36:39], s57 offen{SC} lds')
            a('s_add_u32 s56, s56, 1024')
            a('s_cmp_eq_u32 s56, 9216')
            a('s_cselect_b32 s56, 0, s56')
    u_dma()
    a('v_lshrrev_b32 v13, 1, v3')
    a('v_lshlrev_b32 v13, 3, v13')
    a('v_lshl_add_u32 v13, v9, 1, v13')
    a('v_bfe_u32 v11, v0, 3, 1')
    a('v_add_u32 v13, v13, v11')
    a('v_mul_u32_u24 v13, 2304, v13')
    a('v_lshl_add_u32 v13, v11, 6, v13')
    a('v_and_b32 v11, 3, v0')
    a('v_lshl_add_u32 v13, v11, 4, v13')
    a('v_bfe_u32 v11, v0, 2, 1')
    a('v_lshl_add_u32 v13, v11, 3, v13')
    a('v_xor_b32 v11, s40, v9')
    a('v_lshl_add_u32 v13, v11, 7, v13')
    a('v_xor_b32 v81, 64, v13')
    a(f'v_mul_u32_u24 v14, {R_YS}, v2')
    a('v_lshl_add_u32 v14, v3, 5, v14')
    a(f'v_mul_u32_u24 v11, {R_YS}, v7')
    a('v_lshlrev_b32 v8, 5, v3')
    a('v_sub_u32 v11, v11, v8')
    for jj in range(3):
        a(f's_add_u32 s48, s40, {6*jj}')
        a('s_lshl_b32 s49, s48, 7')
        a(f's_sub_u32 s50, s49, {9*128-4}')
        a('s_cmp_lt_u32 s48, 9')
        a('s_cselect_b32 s49, s49, s50')
        a(f's_add_u32 s50, s49, {R_Y}')
        a(f'v_add_u32 v{90+jj}, s50, v14')
        a(f's_sub_u32 s50, {R_Y + 576*4 - 24}, s49')
        a(f'v_add_u32 v{93+jj}, s50, v11')
    a('v_lshrrev_b32 v8, 5, v0')
    a('s_lshl_b32 s48, s40, 1')
    a('v_add_u32 v8, s48, v8')
    a(f'v_mul_u32_u24 v97, {R_YS}, v8')
    a(f'v_add_u32 v97, {R_Y}, v97')
    a('v_lshl_add_u32 v96, v12, 1, v97')
    a('v_mul_u32_u24 v98, 1152, v8')
    a('v_add_u32 v98, v98, v12')
    a(f'v_add_u32 v98, {R_STG}, v98')
    a('v_cmp_eq_u32 s[60:61], 16, v10')
    a('v_cmp_eq_u32 s[62:63], 0, v10')
    a(f'v_add_u32 v15, {R_X - R_STG}, v98')
    a('v_mov_b32 v14, v88')
    a('v_mov_b32 v11, v89')
    a('v_cvt_f32_u32 v16, v6')
    a(f'v_mul_f32 v16, {fb(1.0/2048)}, v16')
    a('v_lshrrev_b32 v17, 1, v3')
    a('v_lshlrev_b32 v17, 3, v17')
    a('v_lshl_add_u32 v17, v9, 1, v17')
    a('v_cvt_f32_u32 v17, v17')
    a('v_mul_f32 v17, v17, v16')
    a('v_cmp_gt_u32 s[52:53], 8, v2')
    cs = [16 * kap + o for kap in range(2) for o in (0, 1, 4, 5)]
    for q in range(8):
        a(f'v_fmamk_f32 v{18+q}, v16, {fb(cs[q])}, v17')
    for q in range(8):
        a(f'v_cos_f32 v{48+q}, v{18+q}')
        a(f'v_sin_f32 v{18+q}, v{18+q}')
    for q in range(8):
        a(f'v_cvt_pk_bf16_f32 v{18+q}, v{48+q}, v{18+q}')
    for q in range(8):
        a(f'v_cndmask_b32 v{T(0,q>>2)+(q&3)}, 0, v{18+q}, s[52:53]')
        a(f'v_cndmask_b32 v{T(1,q>>2)+(q&3)}, v{18+q}, 0, s[52:53]')
    a('s_waitcnt vmcnt(9)')
    for P_, ad in ((XP, 15), (WP, 14)):
        for j in range(0, 8, 2):
            a(f'ds_read2_b32 {vr(P_+j,2)}, v{ad} offset0:{j} offset1:{j+1}')
        a(f'ds_read_b32 v{P_+8}, v{ad} offset:32')
    a('s_waitcnt lgkmcnt(0)')
    for j in range(9):
        a(f'v_lshlrev_b32 v{XR(2*j)}, 16, v{XP+j}')
        a(f'v_and_b32 v{XR(2*j+1)}, 0xffff0000, v{XP+j}')
        a(f'v_lshlrev_b32 v{WR(2*j)}, 16, v{WP+j}')
        a(f'v_and_b32 v{WR(2*j+1)}, 0xffff0000, v{WP+j}')
    W2 = lambda j: vr(WR(2 * j), 2)
    a(f'v_pk_add_f32 v[86:87], {W2(0)}, {W2(1)}')
    for j in range(2, 9):
        a(f'v_pk_add_f32 v[86:87], v[86:87], {W2(j)}')
    a('v_add_f32 v99, v86, v87')
    dpp_reduce(a, 'v_add_f32', [99], 5)
    a('v_lshrrev_b32 v213, 5, v0')
    a('s_lshl_b32 s58, s40, 1')
    a('v_add_u32 v213, s58, v213')
    a('s_sub_u32 s85, s2, 128')
    a('s_lshl_b32 s58, s85, 4')
    a('s_sub_u32 s58, 2047, s58')
    a('v_sub_u32 v212, s58, v213')
    a('v_lshlrev_b32 v213, 2, v213')
    a(f'v_add_u32 v213, {LDS_C}, v213')
    a('v_lshlrev_b32 v214, 2, v2')
    a(f'v_add_u32 v214, {LDS_C}, v214')
    lg = Cnt(a, 'lgkmcnt', 15)
    lab(a, 'L_UWAIT')
    a('v_mov_b32 v86, 0')
    a('ds_write_b32 v85, v86')
    a('s_waitcnt vmcnt(0) lgkmcnt(0)')
    a('s_barrier')
    stamp(a, 6)
    a('s_cmp_ge_u32 s40, 6')
    a('s_cbranch_scc1 L_SKIPMM')
    UF = lambda slot: 164 + 4 * slot
    ACC = lambda jj: 48 + 4 * jj
    order = [(jj, cls, kap) for cls in range(2) for kap in range(2) for jj in range(3)]

    def rd(n):
        jj, cls, kap = order[n]
        for h in range(2):
            off = kap * 36864 + h * 9216 + jj * 768
            a(f'ds_read_b64_tr_b16 {vr(UF(n)+2*h,2)}, v{13 if cls == 0 else 81} offset:{off}')
            lg.issue(n)
    for n in range(7):
        rd(n)
    for n, (jj, cls, kap) in enumerate(order):
        lg.wait(n)
        c = '0' if (cls == 0 and kap == 0) else vr(ACC(jj), 4)
        a(f'v_mfma_f32_16x16x32_bf16 {vr(ACC(jj),4)}, {vr(UF(n),4)}, {vr(T(cls,kap),4)}, {c}')
        if n + 7 < 12:
            rd(n + 7)
    if OPT['usent']:
        a('v_pk_add_f32 v[16:17], v[48:49], v[50:51]')
        a('v_pk_add_f32 v[18:19], v[52:53], v[54:55]')
        a('v_pk_add_f32 v[20:21], v[56:57], v[58:59]')
        a('v_pk_add_f32 v[16:17], v[16:17], v[18:19]')
        a('v_pk_add_f32 v[16:17], v[16:17], v[20:21]')
        a('v_cmp_u_f32 vcc, v16, v17')
        a('v_mov_b32 v86, 1')
        a('s_and_saveexec_b64 s[48:49], vcc')
        a('ds_write_b32 v85, v86')
        a('s_mov_b64 exec, -1')
    for jj in range(3):
        c = ACC(jj)
        a(f'ds_write2_b32 v{90+jj}, v{c}, v{c+1} offset0:0 offset1:2')
        a(f'ds_write2_b32 v{90+jj}, v{c+2}, v{c+3} offset0:4 offset1:6')
        a(f'ds_write2_b32 v{93+jj}, v{c+3}, v{c+2} offset0:0 offset1:2')
        a(f'ds_write2_b32 v{93+jj}, v{c+1}, v{c} offset0:4 offset1:6')
    a('s_waitcnt lgkmcnt(0)')
    lab(a, 'L_SKIPMM')
    a('s_barrier')
    stamp(a, 7)
    H = lambda k: 60 + k
    H2 = lambda j: vr(H(2 * j), 2)
    a('ds_read_b32 v86, v85')
    a('ds_read_b32 v88, v97')
    for j in range(9):
        a(f'ds_read_b64 {H2(j)}, v96 offset:{8*j}')
    a('s_waitcnt lgkmcnt(8)')
    if OPT['usent']:
        a('v_readfirstlane_b32 s48, v86')
        a('s_cmp_eq_u32 s48, 0')
        a('s_cbranch_scc1 L_UOK')
        a('s_add_u32 s84, s84, 1')
        a('s_cmp_ge_u32 s84, 200')
        a('s_cbranch_scc1 L_UOK')
        a('s_waitcnt lgkmcnt(0)')
        a('s_barrier')
        u_dma()
        a('s_branch L_UWAIT')
        lab(a, 'L_UOK')
    a(f'v_cndmask_b32 v{H(0)}, v{H(0)}, v88, s[60:61]')
    a(f'v_cndmask_b32 v{H(0)}, v{H(0)}, 0, s[62:63]')
    HP = lambda j: 16 + j
    a('s_mov_b32 s56, s85')
    a('s_mul_i32 s57, s56, 1152')
    a(f's_add_u32 s57, s57, {WS_HN}')
    a('s_lshl_b32 s59, s56, 7')
    a(f's_add_u32 s59, s59, {WS_KEYS}')
    for j in range(9):
        if j:
            a(f's_waitcnt lgkmcnt({8-j})')
        a(f'v_pk_add_f32 {H2(j)}, {H2(j)}, {vr(XR(2*j),2)}')
    a(f'v_pk_add_f32 v[26:27], {H2(0)}, {H2(1)}')
    a(f'v_pk_mul_f32 v[28:29], {H2(0)}, {H2(0)}')
    a(f'v_pk_mul_f32 v[30:31], {H2(0)}, {W2(0)}')
    for j in range(1, 9):
        if j >= 2:
            a(f'v_pk_add_f32 v[26:27], v[26:27], {H2(j)}')
        a(f'v_pk_fma_f32 v[28:29], {H2(j)}, {H2(j)}, v[28:29]')
        a(f'v_pk_fma_f32 v[30:31], {H2(j)}, {W2(j)}, v[30:31]')
    a('v_add_f32 v82, v26, v27')
    a('v_add_f32 v83, v28, v29')
    a('v_add_f32 v84, v30, v31')
    dpp_reduce(a, 'v_add_f32', [82, 83, 84], 5)
    a(f'v_mul_f32 v82, 0x{INVB:08x}, v82')
    a(f'v_mul_f32 v83, 0x{INVB:08x}, v83')
    a('v_fma_f32 v83, -v82, v82, v83')
    a('v_max_f32 v83, 0, v83')
    bfround(a, 83, 83)
    bfround(a, 82, 82)
    a(f'v_add_f32 v83, 0x{EPSB:08x}, v83')
    bfround(a, 83, 83)
    a('v_sqrt_f32 v83, v83')
    a('v_fma_f32 v84, -v82, v99, v84')
    bfround(a, 83, 83)
    a('v_rcp_f32 v83, v83')
    a('v_mul_f32 v84, v84, v83')
    a('v_ashrrev_i32 v85, 31, v84')
    a('v_or_b32 v85, 0x80000000, v85')
    a('v_xor_b32 v85, v85, v84')
    a('v_and_b32 v85, 0xfffff800, v85')
    a('v_max_u32 v85, 0x800, v85')
    a('v_or_b32 v85, v85, v212')
    a('s_mov_b32 exec_lo, 0x80000000')
    a('s_mov_b32 exec_hi, 0x80000000')
    a('ds_write_b32 v213, v85')
    a('s_mov_b64 exec, -1')
    a('v_mul_f32 v82, v82, v83')
    a('v_readlane_b32 s52, v85, 31')
    a('v_readlane_b32 s53, v85, 63')
    a('s_waitcnt lgkmcnt(0)')
    stamp(a, 8)
    a('s_setprio 3')
    a('s_barrier')
    stamp(a, 9)
    a('ds_read_b32 v85, v214')
    a('v_readlane_b32 s48, v83, 31')
    a('v_readlane_b32 s49, v83, 63')
    a('v_readlane_b32 s50, v82, 31')
    a('v_readlane_b32 s51, v82, 63')
    a('v_readlane_b32 s54, v84, 31')
    a('v_readlane_b32 s55, v84, 63')
    a('s_cmp_gt_u32 s52, s53')
    a('s_cselect_b32 s52, s52, s53')
    a('s_cselect_b32 s54, s54, s55')
    a('s_cselect_b32 s46, s46, s47')
    a('s_cselect_b32 s55, 0, 1')
    a('s_not_b32 s53, s52')
    a('v_mov_b32 v87, s53')
    a('v_mov_b32 v86, 0')
    a('s_waitcnt lgkmcnt(0)')
    dpp_reduce(a, 'v_max_u32', [85], 4)
    a('v_readlane_b32 s58, v85, 15')
    a('s_cmp_eq_u32 s58, s52')
    a('s_cbranch_scc1 L_WIN1')
    a('s_setprio 0')
    a('s_branch L_NW1')
    lab(a, 'L_WIN1')
    a('s_mov_b64 exec, 1')
    a(f'buffer_store_dword v87, v86, s[36:39], s59 offen{SC}')
    a('s_mov_b64 exec, -1')
    lab(a, 'L_NW1')
    a('v_mov_b32 v80, s48')
    a('v_mov_b32 v78, s50')
    a('s_mov_b32 exec_lo, 0')
    a('v_mov_b32 v80, s49')
    a('v_mov_b32 v78, s51')
    a('s_mov_b32 exec_lo, -1')
    for j in range(9):
        a(f'v_cvt_pk_bf16_f32 v{HP(j)}, v{H(2*j)}, v{H(2*j+1)}')
    for j in range(9):
        a(f'v_lshlrev_b32 v{H(2*j)}, 16, v{HP(j)}')
        a(f'v_and_b32 v{H(2*j+1)}, 0xffff0000, v{HP(j)}')
    HN = lambda k: 100 + k
    NP = lambda j: 140 + j
    for j in range(9):
        a(f'v_pk_fma_f32 {vr(HN(2*j),2)}, {H2(j)}, v[80:81], v[78:79] op_sel_hi:[1,0,0] neg_lo:[0,0,1] neg_hi:[0,0,1]')
    for j in range(9):
        a(f'v_cvt_pk_bf16_f32 v{NP(j)}, v{HN(2*j)}, v{HN(2*j+1)}')

    def stage(addr, P, off):
        o = off // 4
        for j in range(0, 8, 2):
            a(f'ds_write2_b32 v{addr}, v{P(j)}, v{P(j+1)} offset0:{o+j} offset1:{o+j+1}')
        a(f'ds_write_b32 v{addr}, v{P(8)} offset:{off+32}')
    a('s_cmp_lg_u32 s58, s52')
    a('s_cbranch_scc1 L_NOTWIN')
    stage(98, NP, 0)
    a('s_lshl_b32 s60, s40, 1')
    a('s_add_u32 s60, s60, s55')
    a('s_mul_i32 s60, s60, 1152')
    a(f's_add_u32 s60, s60, {R_STG}')
    a('v_add_u32 v88, s60, v4')
    a('ds_read_b128 v[32:35], v88')
    a('ds_read_b128 v[36:39], v88 offset:1024')
    a('s_waitcnt lgkmcnt(0)')
    a(f'buffer_store_dwordx4 v[32:35], v4, s[36:39], s57 offen{SC}')
    a('s_mov_b64 exec, 0xff')
    a(f'buffer_store_dwordx4 v[36:39], v5, s[36:39], s57 offen{SC}')
    a('s_mov_b64 exec, -1')
    stamp(a, 10)
    a('s_setprio 0')
    lab(a, 'L_NOTWIN')
    OP = lambda j: 152 + j
    for j in range(9):
        a(f'v_lshlrev_b32 v{HN(2*j)}, 16, v{NP(j)}')
        a(f'v_and_b32 v{HN(2*j+1)}, 0xffff0000, v{NP(j)}')
    for j in range(9):
        a(f'v_pk_add_f32 {vr(HN(2*j),2)}, {vr(HN(2*j),2)}, {H2(j)}')
    for j in range(9):
        a(f'v_cvt_pk_bf16_f32 v{OP(j)}, v{HN(2*j)}, v{HN(2*j+1)}')

    stage(15, OP, 0)
    a('s_waitcnt lgkmcnt(0)')
    a('ds_read_b128 v[40:43], v11')
    a('ds_read_b128 v[44:47], v11 offset:1024')
    a('ds_read_b128 v[48:51], v11 offset:1152')
    a('ds_read_b128 v[52:55], v11 offset:2176')

    def out_store(mods):
        a('s_waitcnt lgkmcnt(0)')
        a(f'buffer_store_dwordx4 v[40:43], v4, s[32:35], s82 offen{mods}')
        a(f'buffer_store_dwordx4 v[48:51], v4, s[32:35], s83 offen{mods}')
        a('s_mov_b64 exec, 0xff')
        a(f'buffer_store_dwordx4 v[44:47], v5, s[32:35], s82 offen{mods}')
        a(f'buffer_store_dwordx4 v[52:55], v5, s[32:35], s83 offen{mods}')
        a('s_mov_b64 exec, -1')
    a('s_cmp_lg_u32 s58, s52')
    a('s_cbranch_scc1 L_PLAIN')
    out_store(SC)
    a('s_mul_i32 s57, s56, 1280')
    a(f's_add_u32 s57, s57, {WS_H}')
    a('v_mov_b32 v88, s54')
    a('v_mov_b32 v89, s46')
    a('s_cmp_eq_u32 s55, 0')
    a('s_cselect_b32 exec_lo, -1, 0')
    a('s_cselect_b32 exec_hi, 0, -1')
    a(f'buffer_store_dwordx4 {vr(HP(0),4)}, v12, s[36:39], s57 offen{SC}')
    a(f'buffer_store_dwordx4 {vr(HP(4),4)}, v12, s[36:39], s57 offen offset:16{SC}')
    a(f'buffer_store_dword v{HP(8)}, v12, s[36:39], s57 offen offset:32{SC}')
    a('s_mov_b64 exec, 1')
    a(f'buffer_store_dwordx2 v[88:89], v86, s[36:39], s57 offen offset:1152{SC}')
    a('s_waitcnt vmcnt(0)')
    a(f'buffer_store_dword v86, v86, s[36:39], s59 offen offset:64{SC}')
    a('s_mov_b64 exec, -1')
    a('s_branch L_EXIT')
    lab(a, 'L_PLAIN')
    out_store({0: '', 1: SC, 2: ' nt'}[OPT['outsc']])
    a('s_branch L_EXIT')

    def key_poll(pre):
        ND = OPT['depth']
        KS = lambda j: 32 + 2 * j
        a(f's_mov_b32 s56, {WS_KEYS}')
        a(f's_mov_b32 s55, {WS_KEYS + 8192}')
        a('s_mov_b32 s58, 0')
        a('s_mov_b32 s45, -1')
        a('v_lshlrev_b32 v8, 7, v0')
        for r in range(28, 32):
            a(f'v_mov_b32 v{r}, 0')
        for j in range(ND):
            a(f'v_mov_b32 v{KS(j)}, -1')
            a(f'v_mov_b32 v{KS(j)+1}, -1')
        lab(a, pre + 'SLOW')
        a(f'buffer_load_dword v16, v8, s[36:39], s56 offen{SC}')
        a(f'buffer_load_dword v17, v8, s[36:39], s55 offen{SC}')
        a('s_add_u32 s58, s58, 1')
        a('s_waitcnt vmcnt(0)')
        a('v_min_u32 v20, v16, v17')
        a('v_cmp_ne_u32 vcc, -1, v20')
        a(f's_cmp_lt_u32 s58, {SPIN_LIMIT}')
        a(f's_cbranch_scc0 {pre}FAST')
        a('s_cmp_lg_u64 vcc, 0')
        a(f's_cbranch_scc1 {pre}FAST')
        a(f's_sleep {OPT["slow"]}')
        a(f's_branch {pre}SLOW')
        lab(a, pre + 'FAST')

        def scan():
            a('v_min_u32 v20, v16, v17')
            a('v_cmp_eq_u32 s[50:51], -1, v16')
            a('v_cmp_eq_u32 s[42:43], -1, v17')
            dpp_reduce(a, 'v_min_u32', [20])
            a('v_readlane_b32 s57, v20, 63')
            a('s_and_b32 s46, s57, 0x7ff')
            a('s_lshr_b32 s46, s46, 4')
            a('s_mul_i32 s47, s46, 1152')
            a(f's_add_u32 s47, s47, {WS_HN}')

        def issue(j):
            a('s_or_b64 exec, s[50:51], 1')
            a(f'buffer_load_dword v{KS(j)}, v8, s[36:39], s56 offen{SC}')
            a('s_or_b64 exec, s[42:43], 1')
            a(f'buffer_load_dword v{KS(j)+1}, v8, s[36:39], s55 offen{SC}')
            a('s_cmp_lg_u32 s45, s57')
            a('s_cselect_b64 exec, -1, 1')
            a(f'buffer_load_dwordx4 v[24:27], v4, s[36:39], s47 offen{SC}')
            a('s_cselect_b64 exec, 0xff, 1')
            a(f'buffer_load_dwordx4 v[28:31], v5, s[36:39], s47 offen{SC}')
            a('s_mov_b64 exec, -1')
            a('s_cselect_b32 s44, 0, s44')
            a('s_add_u32 s44, s44, 1')
            a('s_mov_b32 s45, s57')
        a('s_mov_b32 s44, 0')
        scan()
        for j in range(ND):
            issue(j)
            if j < ND - 1:
                a(f's_sleep {OPT["gap"]}')
        lab(a, pre + 'LOOP')
        for j in range(ND):
            a(f's_waitcnt vmcnt({4*(ND-1)})')
            a(f'v_min_u32 v16, v16, v{KS(j)}')
            a(f'v_min_u32 v17, v17, v{KS(j)+1}')
            scan()
            a('s_or_b64 vcc, s[50:51], s[42:43]')
            a(f's_cbranch_scc0 {pre}ALLK')
            issue(j)
        a('s_add_u32 s58, s58, 1')
        a(f's_cmp_lt_u32 s58, {SPIN_LIMIT}')
        a(f's_cbranch_scc1 {pre}LOOP')
        lab(a, pre + 'ALLK')
        a('s_cmp_lg_u32 s45, s57')
        a(f's_cbranch_scc1 {pre}ROWLD')
        a(f's_cmp_ge_u32 s44, {ND}')
        a(f's_cbranch_scc1 {pre}CHK2')
        a(f's_branch {pre}CHK')
        lab(a, pre + 'ROWLD')
        a(f'buffer_load_dwordx4 v[24:27], v4, s[36:39], s47 offen{SC}')
        a('s_mov_b64 exec, 0xff')
        a(f'buffer_load_dwordx4 v[28:31], v5, s[36:39], s47 offen{SC}')
        a('s_mov_b64 exec, -1')
        lab(a, pre + 'CHK')
        a('s_waitcnt vmcnt(0)')
        lab(a, pre + 'CHK2')
        a('s_add_u32 s58, s58, 1')
        a('v_max3_u32 v20, v24, v25, v26')
        a('v_max3_u32 v21, v27, v28, v29')
        a('v_max3_u32 v20, v20, v30, v31')
        a('v_max_u32 v20, v20, v21')
        a('v_cmp_eq_u32 vcc, -1, v20')
        a(f's_cmp_lt_u32 s58, {2*SPIN_LIMIT}')
        a(f's_cbranch_scc0 {pre}GOT')
        a('s_cmp_eq_u64 vcc, 0')
        a(f's_cbranch_scc0 {pre}ROWLD')
        lab(a, pre + 'GOT')

    lab(a, 'L_FFN')
    NTW = ' nt' if OPT['ntw'] else ''
    a('v_and_b32 v2, 15, v0')
    a('v_lshrrev_b32 v3, 4, v0')
    a('v_lshlrev_b32 v4, 4, v0')
    a('v_add_u32 v5, 1024, v4')
    a('s_and_b32 s3, s2, 7')
    a('s_mul_i32 s3, s3, 9')
    a('s_lshr_b32 s41, s2, 3')
    a('s_add_u32 s3, s3, s41')
    srd(a, 16, 66, WG_BYTES)
    srd(a, 20, 68, WG_BYTES)
    srd(a, 24, 70, WG_BYTES)
    srd(a, 36, 14, WS_RANGE)
    a('v_lshrrev_b32 v8, 3, v0')
    a('v_and_b32 v9, 7, v0')
    a('v_and_b32 v10, 2, v8')
    a('v_xor_b32 v9, v9, v10')
    a('s_and_b32 s58, s40, 1')
    a('s_lshl_b32 s58, s58, 2')
    a('v_xor_b32 v9, s58, v9')
    a('v_lshlrev_b32 v9, 4, v9')
    a('v_mul_u32_u24 v15, 9216, v8')
    a('v_add_u32 v15, v15, v9')
    a('v_xor_b32 v14, 64, v15')
    a('v_mul_u32_u24 v11, 1152, v8')
    a('v_add_u32 v11, v11, v9')
    a('s_mul_i32 s59, s40, 663552')
    a('s_lshl_b32 s58, s3, 7')
    a('s_add_u32 s59, s59, s58')
    a('s_mul_i32 s55, s40, 9216')
    for q in range(9):
        for mat in range(2):
            a(f's_add_u32 m0, s55, {mat*73728 + q*1024}')
            a(f'buffer_load_dwordx4 v{15 - (q & 1)}, s[{16+4*mat}:{19+4*mat}], s59 offen{NTW} lds')
        if q < 8:
            a('s_add_u32 s59, s59, 73728')
    a('s_mul_i32 s59, s3, 73728')
    a('s_add_u32 s59, s59, s55')
    DS = lambda c: 200 + 4 * c
    for c in range(9):
        a(f'buffer_load_dwordx4 {vr(DS(c),4)}, v11, s[24:27], s59 offen offset:{c*128}{NTW}')
    a('v_add_u32 v11, s55, v4')
    a('v_bfe_u32 v13, v0, 2, 2')
    a('v_lshrrev_b32 v10, 1, v13')
    a('v_and_b32 v6, 1, v3')
    a('v_lshl_add_u32 v10, v6, 1, v10')
    a('s_and_b32 s57, s40, 3')
    a('s_lshr_b32 s56, s40, 2')
    a('v_xor_b32 v10, s57, v10')
    a('v_lshlrev_b32 v10, 5, v10')
    a('v_and_b32 v6, 3, v0')
    a('v_lshl_add_u32 v10, v6, 3, v10')
    a('v_lshl_add_u32 v10, v13, 7, v10')
    a('v_mul_u32_u24 v14, 9216, v3')
    a('v_add_u32 v14, v14, v10')
    a('s_lshl_b32 s58, s56, 10')
    a('v_add_u32 v14, s58, v14')
    a('v_lshl_add_u32 v13, v3, 10, v10')
    a('s_mul_i32 s54, s56, 36864')
    a('v_add_u32 v13, s54, v13')
    a('v_add_u32 v12, 73728, v13')
    a('s_waitcnt vmcnt(9)')
    srd(a, 76, 74, 256)
    a('v_mov_b32 v250, 0')
    a('s_cmp_eq_u32 s40, 7')
    a('s_cselect_b32 s78, 256, 0')
    a(f'buffer_load_dword v251, v250, s[76:79], 0 offen{SC}')
    a('s_barrier')
    fpoint(a, 10)
    WF = lambda mat, k: 64 + (k * 2 + mat) * 4
    for k in range(9):
        for mat in range(2):
            for h in range(2):
                a(f'ds_read_b64_tr_b16 {vr(WF(mat,k)+2*h,2)}, v{13 if mat == 0 else 12} offset:{k*4096 + h*512}')
        if k % 3 == 2:
            a('s_waitcnt lgkmcnt(0)')
    a('s_barrier')
    a('s_waitcnt vmcnt(0)')
    for c in range(9):
        a(f'ds_write_b128 v11, {vr(DS(c),4)} offset:{c*1024}')
    a('v_cmp_eq_u32 s[48:49], 1, v3')
    a('v_cmp_eq_u32 s[52:53], 2, v3')
    a('v_cmp_eq_u32 s[60:61], 3, v3')
    a('s_mul_i32 s58, s56, 576')
    a(f's_add_u32 s58, s58, {LDS_XS}')
    a('v_lshl_add_u32 v6, v3, 4, s58')
    a('s_lshl_b32 s58, s56, 9')
    a('s_lshl_b32 s54, s57, 6')
    a('s_add_u32 s58, s58, s54')
    a(f's_add_u32 s58, s58, {LDS_RED}')
    a('v_lshl_add_u32 v7, v2, 2, s58')
    a('v_lshlrev_b32 v9, 2, v0')
    a(f'v_add_u32 v10, {LDS_RED}, v9')
    a('s_lshl_b32 s58, s40, 7')
    a(f's_add_u32 s58, s58, {LDS_ACT}')
    a('v_lshl_add_u32 v11, v0, 1, s58')
    a('v_lshl_add_u32 v12, v3, 4, s58')
    a('s_mul_i32 s62, s3, 2304')
    a(f's_add_u32 s62, s62, {WS_PART}')
    a('s_lshl_b32 s58, s40, 6')
    a('s_add_u32 s63, s62, s58')
    a('s_add_u32 s63, s63, 2048')
    a('s_lshl_b32 s58, s40, 8')
    a('s_add_u32 s62, s62, s58')
    a('s_waitcnt lgkmcnt(0)')
    a('s_barrier')
    fpoint(a, 11)
    DF = lambda kap, m: 136 + (m * 2 + kap) * 4
    for m in range(5):
        for kap in range(2):
            for h in range(2):
                a(f'ds_read_b64_tr_b16 {vr(DF(kap,m)+2*h,2)}, v14 offset:{kap*36864 + h*512 + m*2048}')
        if m % 2 == 1:
            a('s_waitcnt lgkmcnt(0)')
    a('s_waitcnt lgkmcnt(0)')
    stamp(a, 11)
    a('s_cmp_lg_u32 s40, 7')
    a('s_cbranch_scc1 L_FWAIT')
    a('v_readfirstlane_b32 s59, v251')
    a(f's_cmp_ge_u32 s59, {NCLR}')
    a('s_cbranch_scc1 L_WC2_OK')
    wait_cleared(a, 'L_WC2')
    key_poll('L_K')
    a(f'v_add_u32 v8, {LDS_XS}, v4')
    a('ds_write_b128 v8, v[24:27]')
    a('s_mov_b64 exec, 0xff')
    a('ds_write_b128 v8, v[28:31] offset:1024')
    a('s_mov_b64 exec, -1')
    a('s_waitcnt lgkmcnt(0)')
    lab(a, 'L_FWAIT')
    a('s_barrier')
    fpoint(a, 12)
    stamp(a, 12)
    XF = lambda k: 176 + 4 * k
    for k in range(9):
        a(f'ds_read_b128 {vr(XF(k),4)}, v6 offset:{k*64}')
    for k in range(9):
        a(f's_waitcnt lgkmcnt({8-k})')
        for mat in range(2):
            c = '0' if k == 0 else vr(52 + 4 * mat, 4)
            a(f'v_mfma_f32_16x16x32_bf16 {vr(52+4*mat,4)}, {vr(XF(k),4)}, {vr(WF(mat,k),4)}, {c}')
    a('s_mov_b64 exec, 0xffff')
    a('ds_write2st64_b32 v7, v52, v56 offset0:0 offset1:1')
    a('s_mov_b64 exec, -1')
    a('s_waitcnt lgkmcnt(0)')
    a('s_barrier')
    stamp(a, 13)
    a('ds_read2st64_b32 v[16:17], v10 offset0:0 offset1:1')
    a('ds_read2st64_b32 v[18:19], v10 offset0:2 offset1:3')
    a('s_waitcnt vmcnt(0) lgkmcnt(0)')
    a('v_pk_add_f32 v[16:17], v[16:17], v[18:19]')
    a('v_cvt_pk_bf16_f32 v18, v16, v17')
    a('v_lshlrev_b32 v16, 16, v18')
    a('v_and_b32 v17, 0xffff0000, v18')
    a('v_mul_f32 v19, 0xbfb8aa3b, v16')
    a('v_exp_f32 v19, v19')
    a('v_add_f32 v19, 1.0, v19')
    a('v_rcp_f32 v19, v19')
    a('v_mul_f32 v19, v19, v16')
    bfround(a, 19, 19)
    a('v_mul_f32 v19, v19, v17')
    a('v_cvt_pk_bf16_f32 v19, v19, v19')
    a('ds_write_b16 v11, v19')
    a('s_waitcnt lgkmcnt(0)')
    a('ds_read_b128 v[20:23], v12')
    a('ds_read_b128 v[24:27], v12 offset:64')
    DA = lambda m: 28 + 4 * m
    for kap in range(2):
        a(f's_waitcnt lgkmcnt({1-kap})')
        for m in range(5):
            c = '0' if kap == 0 else vr(DA(m), 4)
            a(f'v_mfma_f32_16x16x32_bf16 {vr(DA(m),4)}, {vr(20+4*kap,4)}, {vr(DF(kap,m),4)}, {c}')
    a('v_mov_b32 v17, 0x7fc00000')
    a(f'v_cndmask_b32 v16, v{DA(0)}, v{DA(1)}, s[48:49]')
    a(f'v_cndmask_b32 v16, v16, v{DA(2)}, s[52:53]')
    a(f'v_cndmask_b32 v16, v16, v{DA(3)}, s[60:61]')
    a('v_cmp_eq_u32 vcc, -1, v16')
    a('v_cndmask_b32 v16, v16, v17, vcc')
    a(f'buffer_store_dword v16, v9, s[36:39], s62 offen{SC}')
    a('s_cmp_ge_u32 s40, 4')
    a('s_cbranch_scc1 L_FDONE')
    a(f'v_cmp_eq_u32 vcc, -1, v{DA(4)}')
    a(f'v_cndmask_b32 v18, v{DA(4)}, v17, vcc')
    a('s_mov_b64 exec, 0xffff')
    a(f'buffer_store_dword v18, v9, s[36:39], s63 offen{SC}')
    a('s_mov_b64 exec, -1')
    lab(a, 'L_FDONE')
    stamp(a, 14)
    a('s_branch L_EXIT')

    lab(a, 'L_FIN')
    a('v_and_b32 v2, 15, v0')
    a('v_lshrrev_b32 v3, 4, v0')
    a('v_lshlrev_b32 v4, 4, v0')
    a('v_add_u32 v5, 1024, v4')
    a('v_lshlrev_b32 v9, 2, v0')
    srd(a, 36, 14, WS_RANGE)
    a('s_sub_u32 s42, s2, 72')
    a('s_mul_i32 s41, s40, 20736')
    a('s_lshl_b32 s43, s42, 8')
    a('s_add_u32 s41, s41, s43')
    a(f's_add_u32 s41, s41, {WS_PART}')
    a('s_lshl_b32 s45, s40, 8')
    a('v_add_u32 v10, s45, v9')
    srd(a, 32, 72, X_BYTES)
    a('s_lshl_b32 s44, s42, 4')
    a('s_cmp_lt_u32 s42, 8')
    a('s_cselect_b32 s43, 7, 4')
    a('s_cselect_b32 s44, s44, 512')
    a('v_lshlrev_b32 v12, s43, v3')
    a('v_add3_u32 v12, v12, v2, s44')
    a('v_lshlrev_b32 v12, 1, v12')
    a('v_mov_b32 v63, 0')
    a('s_cmp_lg_u32 s40, 7')
    a('s_cbranch_scc1 L_NWAIT')
    key_poll('L_N')
    lpoint(a, 7)
    lab(a, 'L_NWAIT')
    a('s_barrier')
    stamp(a, 12)
    a('s_cmp_lg_u32 s40, 7')
    a('s_cbranch_scc1 L_PP')
    a('s_lshl_b32 s48, s46, 7')
    a(f's_add_u32 s48, s48, {WS_KEYS + 64}')
    a('v_mov_b32 v8, 0')
    a('s_mov_b32 s58, 0')
    lab(a, 'L_FPOLL')
    a(f'buffer_load_dword v11, v8, s[36:39], s48 offen{SC}')
    a('s_add_u32 s58, s58, 1')
    a('s_waitcnt vmcnt(0)')
    a('v_readfirstlane_b32 s44, v11')
    a('s_cmp_lg_u32 s44, -1')
    a('s_cbranch_scc1 L_FGOT2')
    a(f's_cmp_lt_u32 s58, {SPIN_LIMIT}')
    a('s_cbranch_scc1 L_FPOLL')
    lab(a, 'L_FGOT2')
    a('s_mul_i32 s45, s46, 1280')
    a(f's_add_u32 s45, s45, {WS_H}')
    a('v_mov_b32 v60, 0')
    a('v_mov_b32 v61, 0')
    a(f'buffer_load_short_d16_hi v60, v12, s[36:39], s47 offen{SC}')
    a(f'buffer_load_short_d16_hi v61, v12, s[36:39], s45 offen{SC}')
    a(f'buffer_load_dwordx2 v[62:63], v8, s[36:39], s45 offen offset:1152{SC}')
    lab(a, 'L_PP')
    a('s_mov_b32 s58, 0')
    lab(a, 'L_PPOLL')
    a('s_mov_b32 s43, s41')
    P = lambda p: 32 + p
    for p in range(9):
        a(f'buffer_load_dword v{P(p)}, v9, s[36:39], s43 offen{SC}')
        if p < 8:
            a('s_add_u32 s43, s43, 2304')
    a('s_add_u32 s58, s58, 1')
    a('s_waitcnt vmcnt(0)')
    a(f'v_max3_u32 v16, v{P(0)}, v{P(1)}, v{P(2)}')
    a(f'v_max3_u32 v17, v{P(3)}, v{P(4)}, v{P(5)}')
    a(f'v_max3_u32 v18, v{P(6)}, v{P(7)}, v{P(8)}')
    a('v_max3_u32 v16, v16, v17, v18')
    a('v_cmp_eq_u32 vcc, -1, v16')
    a(f'v_pk_add_f32 v[18:19], {vr(P(0),2)}, {vr(P(2),2)}')
    a(f'v_pk_add_f32 v[20:21], {vr(P(4),2)}, {vr(P(6),2)}')
    a('s_cmp_eq_u64 vcc, 0')
    a('s_cbranch_scc1 L_PGOT')
    a(f's_cmp_lt_u32 s58, {SPIN_LIMIT}')
    a('s_cbranch_scc1 L_PPOLL')
    lab(a, 'L_PGOT')
    a('v_pk_add_f32 v[18:19], v[18:19], v[20:21]')
    a(f'v_add_f32 v18, v18, v{P(8)}')
    a('v_add_f32 v18, v18, v19')
    a('ds_write_b32 v10, v18')
    a('s_waitcnt lgkmcnt(0)')
    stamp(a, 13)
    a('s_barrier')
    a('s_cmp_lg_u32 s40, 7')
    a('s_cbranch_scc1 L_EXIT')
    for w in range(4):
        a(f'ds_read2st64_b32 {vr(16+2*w,2)}, v9 offset0:{2*w} offset1:{2*w+1}')
    bfround(a, 62, 62)
    a('v_mul_f32 v30, 0xbfb8aa3b, v62')
    a('v_exp_f32 v30, v30')
    a('v_mul_u32_u24 v63, 1152, v63')
    a('v_add_f32 v30, 1.0, v30')
    a('v_rcp_f32 v30, v30')
    a('v_add_u32 v63, v63, v12')
    bfround(a, 30, 30)
    a('s_waitcnt lgkmcnt(0)')
    a('v_pk_add_f32 v[16:17], v[16:17], v[18:19]')
    a('v_pk_add_f32 v[20:21], v[20:21], v[22:23]')
    a('v_pk_add_f32 v[16:17], v[16:17], v[20:21]')
    a('v_add_f32 v16, v16, v17')
    bfround(a, 16, 16)
    a('v_mul_f32 v16, v16, v30')
    bfround(a, 16, 16)
    a('v_add_f32 v16, v16, v60')
    bfround(a, 16, 16)
    a('v_add_f32 v16, v16, v61')
    a('v_cvt_pk_bf16_f32 v16, v16, v16')
    a('buffer_store_short v16, v63, s[32:35], 0 offen')
    if OPT['ls']:
        a('s_memrealtime s[92:93]')
        a('s_waitcnt lgkmcnt(0)')
        if OPT['ls'] > 1:
            a('s_mov_b32 s92, s94')
        a('s_sub_u32 s92, s92, s90')
        if OPT.get('cyc'):
            a('s_lshr_b32 s92, s92, 4')
        a('v_mov_b32 v20, s92')
        a('s_lshl_b32 s93, s2, 2')
        a(f's_add_u32 s93, s93, {WS_STAMP}')
        a('v_mov_b32 v21, 0')
        a('buffer_store_dword v20, v21, s[36:39], s93 offen')
    stamp(a, 14)
    lab(a, 'L_EXIT')
    if STAMP:
        a('s_waitcnt vmcnt(0)')
        stamp(a, 15)
        stamp_flush(a)
    lab(a, 'L_END')
    a('s_endpgm')
    a.label('CODE_END')


def main(path):
    a = Asm()
    if OPT['aslist']:
        a.raw(f'; @launch kernel={NAME} grid=(256,1,1) block=(512,1,1) lds={LDS_TOTAL}')
    else:
        a.raw(f'; @launch grid=(256,1,1) block=(512,1,1) lds={LDS_TOTAL}')
    a.raw('.amdgcn_target "amdgcn-amd-amdhsa--gfx950"')
    a.raw('.text')
    gen(a)
    a.raw('.section .rodata,"a"')
    a.raw(f'''.p2align 6
.amdhsa_kernel {NAME}
  .amdhsa_next_free_vgpr 256
  .amdhsa_next_free_sgpr {100 if (STAMP or OPT['ls']) else 88}
  .amdhsa_accum_offset 256
  .amdhsa_group_segment_fixed_size 0
  .amdhsa_kernarg_size 104
  .amdhsa_user_sgpr_count 2
  .amdhsa_user_sgpr_kernarg_segment_ptr 1
  .amdhsa_system_sgpr_workgroup_id_x 1
.end_amdhsa_kernel
''')
    open(path, 'w').write(a.text())


if __name__ == '__main__':
    for arg in sys.argv[2:]:
        if arg == 'stamp':
            STAMP = True
        else:
            k, v = arg.split('=')
            OPT[k] = int(v)
    main(sys.argv[1])
```

```python
import sys
import struct
from asmdsl import Asm, Cnt, vr, sr

NAME = 'sequential_preLN__spectral_fnet__moe_arch_mod__prompt_kernel'
S, D, F = 2048, 576, 4608
X_BYTES = S * D * 2
SEQ_BYTES = S * S * 2
HID_BYTES = D * D * 2
WG_BYTES = D * F * 2
WS_U = 0
WS_KEYS = 0x240000
WS_UF = WS_KEYS + 16384
WS_PART = WS_UF + 192 * 64
WS_HN = WS_PART + 72 * 2304
WS_FILL_END = WS_HN + 128 * 1152
WS_H = 0x2a0000
WS_RANGE = 0x900000
WS_STAMP = 0x800000
assert WS_FILL_END <= WS_H and WS_FILL_END - WS_KEYS <= 64 * 8192

STAMP = False
OPT = dict(ahead=9, warm=0, hwait=1, ls=0, hfirst=7, wpf=1, wpf_at=0, usent=0, outsc=1, depth=3, slow=6, gap=3, codepf=1, ntw=0, ipf=0, fearly=1, coop=0, st=7, gent=1, al8=0, split=0, g1=3, cmul=1, npre=9, ilv=2, wpoll=1, sleep=1, aslist=0)
SC = ' sc1'
SPIN_LIMIT = 400000
NCLR = 16
INVB = struct.unpack('<I', struct.pack('<f', 1.0 / 576.0))[0]
EPSB = struct.unpack('<I', struct.pack('<f', 1e-5))[0]

P1_B = 73728
P1_F = 135168
P1_ST = 151552
LDS_T = 152064
LDS_C = LDS_T + 4096
LDS_XS = 152064
LDS_RED = LDS_XS + 1280
LDS_ACT = LDS_RED + 1024
LDS_CNT = LDS_C + 64
LDS_TOTAL = LDS_C + 128
R_Y = 73728
R_YS = 2312
R_STG = R_Y + 16 * R_YS
R_X = R_STG + 16 * 1152 + 1024
R_W = R_X + 16 * 1152
assert R_W + 1152 + 1024 <= P1_ST
GROUPS = [(0, 0, 0), (1, 0, 5), (None, 0, 1), (2, 0, 6), (None, 0, 2), (3, 0, 7), (None, 0, 3), (4, 1, 8), (None, 0, 4)]
STAGES = [[0], [1], [2, 3], [4, 5], [6, 7], [8]]


def srd(a, d, b, nbytes):
    a(f's_mov_b32 s{d}, s{b}')
    a(f's_mov_b32 s{d+1}, s{b+1}')
    a(f's_mov_b32 s{d+2}, {nbytes}')
    a(f's_mov_b32 s{d+3}, 0x00020000')


def stamp(a, k):
    if STAMP:
        if k == 0:
            a('v_mov_b32 v1, 0')
        a('s_memrealtime s[92:93]')
        a('s_waitcnt lgkmcnt(0)')
        a(f'v_writelane_b32 v1, s92, {k}')


def lpoint(a, k):
    if OPT['ls'] == k:
        a('s_memtime s[94:95]' if OPT.get('cyc') else 's_memrealtime s[94:95]')
        a('s_waitcnt lgkmcnt(0)')


def fpoint(a, k):
    if OPT['ls'] == k:
        a('s_memrealtime s[94:95]')
        a('s_waitcnt lgkmcnt(0)')
        a('s_sub_u32 s94, s94, s90')
        a('v_mov_b32 v236, s94')
        a('s_lshl_b32 s95, s2, 2')
        a(f's_add_u32 s95, s95, {WS_STAMP + 4096}')
        a('v_mov_b32 v237, 0')
        a('buffer_store_dword v236, v237, s[36:39], s95 offen')


def stamp_flush(a):
    if not STAMP:
        return
    a('s_mov_b32 exec_lo, -1')
    a('s_mov_b32 exec_hi, 0')
    srd(a, 96, 14, WS_RANGE)
    a('s_lshl_b32 s95, s2, 3')
    a('s_add_u32 s95, s95, s40')
    a('s_lshl_b32 s95, s95, 7')
    a(f's_add_u32 s95, s95, {WS_STAMP}')
    a('v_lshlrev_b32 v0, 2, v0')
    a('buffer_store_dword v1, v0, s[96:99], s95 offen')


def bfround(a, dst, src):
    a(f'v_cvt_pk_bf16_f32 v{dst}, v{src}, v{src}')
    a(f'v_and_b32 v{dst}, 0xffff0000, v{dst}')


def dpp_reduce(a, op, regs, upto=6):
    ms = [('row_shr:1', '0xf'), ('row_shr:2', '0xf'), ('row_shr:4', '0xf'), ('row_shr:8', '0xf'), ('row_bcast:15', '0xa'), ('row_bcast:31', '0xc')]
    for m, rm in ms[:upto]:
        for r in regs:
            a(f'{op}_dpp v{r}, v{r}, v{r} {m} row_mask:{rm} bank_mask:0xf')


def lab(a, name):
    a.label(name)
    a.flush_hist()


def wait_cleared(a, name):
    srd(a, 76, 74, 256)
    a('v_mov_b32 v250, 0')
    a('s_mov_b32 s58, 0')
    lab(a, name)
    a(f'buffer_load_dword v251, v250, s[76:79], 0 offen{SC}')
    a('s_add_u32 s58, s58, 1')
    a('s_waitcnt vmcnt(0)')
    a('v_readfirstlane_b32 s59, v251')
    a(f's_cmp_ge_u32 s59, {NCLR}')
    a(f's_cbranch_scc1 {name}_OK')
    a('s_sleep 8')
    a(f's_cmp_lt_u32 s58, {SPIN_LIMIT}')
    a(f's_cbranch_scc1 {name}')
    lab(a, name + '_OK')


def gen(a):
    global STAGES
    STAGES = [[[0], [1], [2, 3], [4, 5], [6, 7], [8]], [[0, 1], [2, 3], [4, 5], [6, 7], [8]], [[i] for i in range(9)],
              [[0], [1, 2], [3, 4], [5, 6], [7], [8]], [[0], [1, 2, 3], [4, 5, 6], [7, 8]], [[0, 1, 2], [3, 4, 5], [6, 7, 8]], [[0, 1, 2, 3], [4, 5, 6, 7, 8]], [[0, 1], [2, 3, 4], [5, 6, 7, 8]]][OPT['st']]
    global GROUPS
    if OPT['gent']:
        GROUPS = [(None, 0, c) for c in range(9)]
        OPT['fearly'] = 0
        if OPT['split']:
            GROUPS = [(None, 0, c) for c in (0, 1, 4, 5, 2, 3, 6, 7, 8)]
            STAGES = [[0, 1, 2, 3], [4, 5, 6], [7, 8]]
    fb = lambda x: '0x%08x' % struct.unpack('<I', struct.pack('<f', float(x)))[0]

    def gensetup(theta, R):
        C, Sn = R, R + 8
        for j in range(8):
            a(f'v_mul_f32 v{Sn+j}, {fb(j)}, v{theta}')
        for j in range(8):
            a(f'v_cos_f32 v{C+j}, v{Sn+j}')
            a(f'v_sin_f32 v{Sn+j}, v{Sn+j}')
        a(f'v_mul_f32 v{theta}, {fb(32)}, v{theta}')

    def genloop(name, theta, base, addr, count, R):
        C, Sn, T0, BR, BI, O = R, R + 8, R + 16, R + 32, R + 34, R + 36
        a(f's_mov_b32 s53, {count}')
        lab(a, name)
        a(f'v_cos_f32 v{BR}, v{base}')
        a(f'v_sin_f32 v{BI}, v{base}')
        a(f'v_add_f32 v{base}, v{base}, v{theta}')
        a('s_sub_u32 s53, s53, 1')
        for h in range(4):
            a(f'v_pk_mul_f32 {vr(T0+2*h,2)}, {vr(C+2*h,2)}, {vr(BR,2)} op_sel_hi:[1,0]')
            a(f'v_pk_mul_f32 {vr(T0+8+2*h,2)}, {vr(Sn+2*h,2)}, {vr(BR,2)} op_sel_hi:[1,0]')
        for h in range(4):
            a(f'v_pk_fma_f32 {vr(T0+2*h,2)}, {vr(Sn+2*h,2)}, {vr(BI,2)}, {vr(T0+2*h,2)} op_sel_hi:[1,0,1] neg_lo:[0,1,0] neg_hi:[0,1,0]')
            a(f'v_pk_fma_f32 {vr(T0+8+2*h,2)}, {vr(C+2*h,2)}, {vr(BI,2)}, {vr(T0+8+2*h,2)} op_sel_hi:[1,0,1]')
        a('s_waitcnt lgkmcnt(0)')
        for h in range(4):
            a(f'v_cvt_pk_bf16_f32 v{O+h}, v{T0+2*h}, v{T0+2*h+1}')
            a(f'v_cvt_pk_bf16_f32 v{O+4+h}, v{T0+8+2*h}, v{T0+8+2*h+1}')
        a(f'ds_write_b128 v{addr}, {vr(O,4)}')
        a(f'ds_write_b128 v{addr}, {vr(O+4,4)} offset:1024')
        a(f'v_add_u32 v{addr}, 2048, v{addr}')
        a('s_cmp_lg_u32 s53, 0')
        a(f's_cbranch_scc1 {name}')
        a.flush_hist()
        a('s_waitcnt lgkmcnt(0)')

    def trig(theta, r0, consts, dre, dim, tmp):
        for j in range(8):
            a(f'v_fmamk_f32 v{tmp+j}, v{theta}, {fb(consts[j])}, v{r0}')
        for j in range(8):
            a(f'v_cos_f32 v{tmp+8+j}, v{tmp+j}')
            a(f'v_sin_f32 v{tmp+j}, v{tmp+j}')
        for j in range(4):
            a(f'v_cvt_pk_bf16_f32 v{dre+j}, v{tmp+8+2*j}, v{tmp+8+2*j+1}')
            a(f'v_cvt_pk_bf16_f32 v{dim+j}, v{tmp+2*j}, v{tmp+2*j+1}')
    a.raw(f'.globl {NAME}')
    a.raw('.p2align 8')
    a.raw(f'.type {NAME},@function')
    lab(a, NAME)
    if OPT['ls']:
        a('s_memtime s[90:91]' if OPT.get('cyc') else 's_memrealtime s[90:91]')
    a('s_cmp_ge_u32 s2, 256')
    a('s_cbranch_scc1 L_END')
    a('s_load_dwordx8 s[4:11], s[0:1], 0')
    a('s_load_dwordx2 s[12:13], s[0:1], 32')
    a('s_load_dwordx2 s[14:15], s[0:1], 96')
    a('s_load_dwordx8 s[64:71], s[0:1], 48')
    a('s_load_dwordx4 s[72:75], s[0:1], 80')
    a('v_lshrrev_b32 v1, 6, v0')
    a('v_readfirstlane_b32 s40, v1')
    def helper_code():
        lab(a, 'L_HELP')
        a(f's_cmp_ge_u32 s2, {NCLR}')
        a('s_cbranch_scc1 L_HELP2')
        NF = (WS_FILL_END - WS_KEYS + NCLR * 8192 - 1) // (NCLR * 8192)
        a('v_lshlrev_b32 v13, 4, v0')
        for r in range(28, 32):
            a(f'v_mov_b32 v{r}, -1')
        a(f's_mul_i32 s54, s2, {NF*8192}')
        a(f's_add_u32 s54, s54, {WS_KEYS}')
        a(f's_mov_b32 s62, {WS_FILL_END}')
        a('s_mov_b32 s63, 0x00020000')
        a('v_mov_b32 v6, 0')
        a('v_mov_b32 v7, 1')
        a('s_waitcnt lgkmcnt(0)')
        a('s_mov_b32 s60, s14')
        a('s_mov_b32 s61, s15')
        for q in range(NF):
            a(f'buffer_store_dwordx4 v[28:31], v13, s[60:63], s54 offen{SC}')
            if q < NF - 1:
                a('s_add_u32 s54, s54, 8192')
        srd(a, 76, 74, 256)
        a('v_and_b32 v0, 63, v0')
        a('s_and_b32 s41, s2, 7')
        a('s_lshr_b32 s42, s2, 3')
        a('s_waitcnt vmcnt(0)')
        a('s_barrier')
        a('s_cmp_lg_u32 s40, 7')
        a('s_cbranch_scc1 L_HELP4')
        a('s_mov_b64 exec, 1')
        a('buffer_atomic_add v7, v6, s[76:79], 0 offen')
        a('s_mov_b64 exec, -1')
        a('s_branch L_HELP4')
        lab(a, 'L_HELP2')
        a('v_and_b32 v0, 63, v0')
        a('s_and_b32 s41, s2, 7')
        a('s_lshr_b32 s42, s2, 3')
        a('s_cmp_ge_u32 s40, 5')
        a('s_cbranch_scc1 L_HELP3')
        if OPT['warm']:
            a('s_sub_u32 s43, s42, 2')
            a('v_mul_u32_u24 v8, 9216, v0')
            a('v_mul_u32_u24 v10, 1152, v0')
            a('s_mul_i32 s48, s43, 344')
            a('s_add_u32 s48, s48, s41')
            a('s_mul_i32 s48, s48, 1152')
            a('s_lshl_b32 s50, s40, 8')
            a('s_add_u32 s48, s48, s50')
            a('s_mul_i32 s49, s43, 55296')
            a('s_lshl_b32 s50, s40, 7')
            a('s_add_u32 s49, s49, s50')
            a('s_waitcnt lgkmcnt(0)')
            srd(a, 16, 4, X_BYTES)
            srd(a, 28, 10, HID_BYTES)
            srd(a, 32, 12, HID_BYTES)
            a('s_mov_b32 exec_hi, 0x7ff')
            a('buffer_load_dword v18, v8, s[16:19], s48 offen')
            a('s_mov_b32 exec_hi, 0xffff')
            a('buffer_load_dword v16, v10, s[28:31], s49 offen offset:1152')
            a('buffer_load_dword v17, v10, s[32:35], s49 offen offset:1152')
            a('s_mov_b32 exec_hi, 0x7ff')
            a('buffer_load_dword v19, v8, s[16:19], s48 offen offset:128')
            a('s_mov_b32 exec_hi, -1')
        a('s_branch L_HELP4')
        lab(a, 'L_HELP3')
        a('s_cmp_eq_u32 s40, 5')
        a('s_cbranch_scc1 L_HELP5')
        a('s_cmp_eq_u32 s40, 7')
        a('s_cbranch_scc1 L_HELP4')
        if OPT['codepf']:
            a('s_getpc_b64 s[76:77]')
            a.label('L_PC')
            a(f's_sub_u32 s76, s76, L_PC-{NAME}')
            a('s_subb_u32 s77, s77, 0')
            a('v_lshlrev_b32 v7, 7, v0')
            for q in range(3):
                if q:
                    a('v_add_u32 v7, 8192, v7')
                a(f'v_cmp_gt_u32 vcc, CODE_END-{NAME}, v7')
                a('v_cndmask_b32 v8, 0, v7, vcc')
                a(f'global_load_dword v{20+q}, v8, s[76:77]')
        a('s_branch L_HELP4')
        lab(a, 'L_HELP5')
        if OPT['warm']:
            a('v_lshlrev_b32 v12, 17, v0')
            a('s_sub_u32 s52, s42, 2')
            a(f's_mul_i32 s52, s52, {11*131072}')
            a('s_waitcnt lgkmcnt(0)')
            srd(a, 20, 6, SEQ_BYTES)
            srd(a, 24, 8, SEQ_BYTES)
            a('s_mov_b64 exec, 0x7ff')
            a('buffer_load_dword v19, v12, s[20:23], s52 offen')
            a('buffer_load_dword v20, v12, s[24:27], s52 offen')
            a('s_mov_b64 exec, -1')
        lab(a, 'L_HELP4')
        a('s_waitcnt lgkmcnt(0)')
        stamp(a, 0)
        stamp(a, 1)
        if OPT['hwait']:
            a('s_waitcnt vmcnt(0)')
        for _ in range(OPT.get('hdelay', 0)):
            a('s_sleep 32')
        a('s_barrier')
        a('s_cmp_ge_u32 s40, 2')
        a('s_cbranch_scc1 L_FFN')
        srd(a, 16, 66, WG_BYTES)
        srd(a, 20, 68, WG_BYTES)
        srd(a, 24, 70, WG_BYTES)
        a('s_mul_i32 s43, s42, 72')
        a('s_mul_i32 s44, s40, 36')
        a('s_add_u32 s43, s43, s44')
        a('s_mul_i32 s44, s41, 9')
        a('s_add_u32 s44, s44, 8')
        a('s_mul_i32 s45, s43, 9216')
        a('s_lshl_b32 s46, s44, 7')
        a('s_add_u32 s45, s45, s46')
        a('s_mul_i32 s46, s44, 73728')
        a('s_lshl_b32 s47, s43, 7')
        a('s_add_u32 s46, s46, s47')
        a('v_mul_u32_u24 v6, 9216, v0')
        a('v_lshlrev_b32 v7, 7, v0')
        a('s_mov_b32 exec_hi, 0xf')
        a('buffer_load_dword v240, v6, s[16:19], s45 offen')
        a('buffer_load_dword v241, v6, s[20:23], s45 offen')
        a('buffer_load_dword v242, v7, s[24:27], s46 offen')
        a('s_mov_b32 exec_hi, -1')
        a('s_branch L_FFN')


    if OPT['hfirst']:
        a('s_cmp_ge_u32 s2, 64')
        a('s_cbranch_scc1 L_PROD')
        helper_code()
        lab(a, 'L_PROD')
    else:
        a('s_cmp_lt_u32 s2, 64')
        a('s_cbranch_scc1 L_HELP')
    a('v_and_b32 v0, 63, v0')
    a('s_and_b32 s41, s2, 31')
    a('s_lshr_b32 s42, s2, 5')
    a('s_sub_u32 s42, s42, 2')
    a('v_lshrrev_b32 v3, 4, v0')
    a('s_cmp_ge_u32 s42, 3')
    a('s_cselect_b32 s43, 1, 0')
    a('s_cmp_lt_u32 s40, 4')
    a('s_cbranch_scc1 L_P1MM')
    vm = Cnt(a, 'vmcnt', 63)
    a('v_lshrrev_b32 v8, 3, v0')
    a('v_and_b32 v9, 7, v0')
    a('v_xor_b32 v9, v9, v3')
    a('v_lshlrev_b32 v9, 4, v9')
    a('s_sub_u32 s44, s40, 4')
    a('s_lshr_b32 s45, s44, 1')
    a('s_lshl_b32 s45, s45, 5')
    a('s_and_b32 s51, s44, 1')
    a('s_lshl_b32 s46, s51, 2')
    a('s_add_u32 s45, s45, s46')
    a('v_lshrrev_b32 v6, 2, v8')
    a('v_lshlrev_b32 v6, 3, v6')
    a('v_and_b32 v10, 3, v8')
    a('v_add3_u32 v6, v6, v10, s45')
    a('v_mul_u32_u24 v6, 36864, v6')
    a('s_mul_i32 s47, s41, 1152')
    a('v_xor_b32 v10, 64, v9')
    a('v_add_u32 v7, s47, v6')
    a('v_add_u32 v6, v7, v9')
    a('v_add_u32 v7, v7, v10')
    a(f'v_add_u32 v7, {16*36864}, v7')
    a('s_lshl_b32 s48, s44, 11')
    if not OPT['gent']:
        a('s_mul_i32 s50, s42, 96')
        a('s_mul_i32 s52, s43, 287')
        a('s_sub_u32 s50, s50, s52')
        a('s_lshl_b32 s52, s51, 4')
        a('s_add_u32 s50, s50, s52')
        a('v_lshl_add_u32 v40, v8, 1, s50')
        a('s_lshl_b32 s52, s51, 6')
        a('v_xor_b32 v43, s52, v9')
        a('v_mul_u32_u24 v41, 1152, v40')
        a('v_cmp_eq_u32 vcc, 0, v40')
        a(f'v_mov_b32 v42, {288*1152}')
        a('v_cndmask_b32 v40, v41, v42, vcc')
        a('v_add_u32 v40, v40, v43')
        a('v_add_u32 v41, v41, v43')
        a('v_add_u32 v42, 73728, v41')
        a('v_add_u32 v41, 36864, v41')
        a('s_lshl_b32 s53, s44, 10')
        a(f's_add_u32 s53, s53, {P1_B}')
        a('s_cmp_ge_u32 s44, 2')
        a(f's_mov_b32 s30, {HID_BYTES}')
        a('s_mov_b32 s31, 0x00020000')
    a('s_waitcnt lgkmcnt(0)')
    if not OPT['gent']:
        a('s_cselect_b32 s28, s12, s10')
        a('s_cselect_b32 s29, s13, s11')
    srd(a, 16, 4, X_BYTES)
    stamp(a, 0)
    lpoint(a, 2)

    def issue(st):
        for gi in STAGES[st]:
            cb, withF, c = GROUPS[gi]
            for hh in range(2):
                a(f's_add_u32 m0, s48, {c*8192 + hh*1024 - c*128}')
                a(f'buffer_load_dwordx4 v{6+hh}, s[16:19], 0 offen offset:{c*128} lds')
                vm.issue(st)
            if cb is not None:
                for w in range(3):
                    a(f's_add_u32 m0, s53, {w*20480 + cb*4096 - cb*128}')
                    a(f'buffer_load_dwordx4 v{40+w}, s[28:31], 0 offen offset:{cb*128} lds')
                    vm.issue(st)
            if withF and not OPT['fearly']:
                for part in range(2):
                    for hh in range(2):
                        a(f's_add_u32 m0, s49, {P1_F + (part*2+hh)*1024}')
                        a(f'buffer_load_dwordx4 v{14+hh}, s[{20+4*part}:{23+4*part}], 0 offen lds')
                        vm.issue(st)
    NS = len(STAGES)
    AH = min(OPT['ahead'], NS)
    for st in range(AH):
        issue(st)
    if OPT['gent']:
        a('v_and_b32 v14, 7, v0')
        a('s_lshl_b32 s46, s44, 3')
        a('v_add_u32 v14, s46, v14')
        a('v_sub_u32 v15, 64, v14')
        a('v_cmp_eq_u32 vcc, 64, v15')
        a('v_cndmask_b32 v15, v15, 32, vcc')
        a('v_and_b32 v16, 8, v0')
        a('v_cmp_eq_u32 vcc, 0, v16')
        a('v_cndmask_b32 v14, v15, v14, vcc')
        a('v_cvt_f32_u32 v14, v14')
        a(f'v_mul_f32 v14, {fb(-1.0/64)}, v14')
        a('v_lshlrev_b32 v15, 3, v3')
        a('v_cvt_f32_u32 v15, v15')
        a('v_mul_f32 v15, v15, v14')
        a('s_lshl_b32 s49, s44, 12')
        a(f's_add_u32 s49, s49, {P1_F}')
        a('v_lshl_add_u32 v16, v0, 4, s49')
    else:
        a('s_lshl_b32 s46, s44, 3')
        a('v_add_u32 v14, s46, v8')
        a('v_sub_u32 v15, 64, v14')
        a('v_cmp_eq_u32 vcc, 64, v15')
        a('v_cndmask_b32 v15, v15, 32, vcc')
        a('v_lshl_add_u32 v14, v14, 17, v9')
        a('v_lshl_add_u32 v15, v15, 17, v10')
        a('s_lshl_b32 s49, s44, 12')
        srd(a, 20, 6, SEQ_BYTES)
        srd(a, 24, 8, SEQ_BYTES)
    if OPT['gent'] and OPT['split']:
        a('s_min_u32 s50, s44, 2')
        a('s_lshl_b32 s51, s50, 5')
        a('s_mul_i32 s50, s42, 96')
        a('s_add_u32 s50, s50, s51')
        a('s_mul_i32 s51, s43, 287')
        a('s_sub_u32 s50, s50, s51')
        a('v_and_b32 v17, 15, v0')
        a('v_lshl_add_u32 v17, v17, 1, s50')
        a('v_cmp_eq_u32 vcc, 0, v17')
        a('v_mov_b32 v18, 288')
        a('v_cndmask_b32 v17, v17, v18, vcc')
        a('v_cvt_f32_u32 v17, v17')
        a(f'v_mul_f32 v17, {fb(-1.0/576)}, v17')
        a('v_lshlrev_b32 v18, 3, v3')
        a('v_add_u32 v18, 96, v18')
        a('v_cvt_f32_u32 v18, v18')
        a('v_mul_f32 v18, v18, v17')
        a('s_mul_i32 s50, s44, 20480')
        a(f's_add_u32 s50, s50, {P1_B + 3*2048}')
        a('v_lshl_add_u32 v19, v0, 4, s50')
        a('s_cmp_eq_u32 s44, 3')
        a('s_cbranch_scc1 L_NOGB1')
        gensetup(17, 96)
        genloop('L_GB1', 17, 18, 19, OPT['g1'], 96)
        lab(a, 'L_NOGB1')
    for st in range(NS):
        vm.wait(st)
        if st in (0, NS - 1):
            stamp(a, 1 if st == 0 else 2)
            lpoint(a, 3 if st == 0 else 4)
        a('s_barrier')
        if OPT['gent'] and OPT['split'] and st == 0:
            a('s_cmp_eq_u32 s44, 3')
            a('s_cbranch_scc1 L_NOGB2')
            genloop('L_GB2', 17, 18, 19, 6 - OPT['g1'], 96)
            lab(a, 'L_NOGB2')
        if OPT['gent'] and st == (1 if OPT['split'] else 0):
            gensetup(14, 48)
            genloop('L_GF', 14, 15, 16, 2, 48)
        if st + AH < NS:
            issue(st + AH)
        if st == OPT['wpf_at'] and OPT['wpf']:
            srd(a, 32, 66, WG_BYTES)
            srd(a, 36, 68, WG_BYTES)
            srd(a, 60, 70, WG_BYTES)
            a('s_sub_u32 s54, s2, 64')
            a('s_lshr_b32 s54, s54, 3')
            a('s_lshl_b32 s54, s54, 2')
            a('s_add_u32 s54, s54, s44')
            a('s_and_b32 s55, s2, 7')
            a('s_mul_i32 s56, s54, 55296')
            a('s_mul_i32 s57, s55, 1152')
            a('s_add_u32 s56, s56, s57')
            a('s_mul_i32 s57, s55, 663552')
            a('s_mul_i32 s58, s54, 6912')
            a('s_add_u32 s57, s57, s58')
            a('s_mov_b32 s58, 0x1c72')
            a('v_mul_u32_u24 v44, s58, v0')
            a('v_lshrrev_b32 v44, 16, v44')
            a('v_mul_u32_u24 v45, 9, v44')
            a('v_sub_u32 v45, v0, v45')
            a('v_mul_u32_u24 v44, 9216, v44')
            a('v_lshl_add_u32 v44, v45, 7, v44')
            a('v_lshlrev_b32 v45, 7, v0')
            a('s_mov_b32 exec_hi, 0x3fffff')
            a('buffer_load_dword v240, v44, s[32:35], s56 offen')
            vm.issue('pf')
            a('buffer_load_dword v241, v44, s[36:39], s56 offen')
            vm.issue('pf')
            a('buffer_load_dword v242, v45, s[60:63], s57 offen')
            vm.issue('pf')
            a('s_mov_b32 exec_hi, -1')
    a('s_barrier')
    a('s_cmp_lt_u32 s2, 128')
    a('s_cbranch_scc1 L_P2')
    a('s_barrier')
    a('s_branch L_ROWP')

    lab(a, 'L_P1MM')
    a('s_setprio 2')
    a('v_and_b32 v2, 15, v0')
    a('v_lshrrev_b32 v4, 1, v2')
    a('v_xor_b32 v4, v4, v3')
    a('v_lshlrev_b32 v4, 4, v4')
    a('v_lshl_add_u32 v4, v2, 7, v4')
    a('v_xor_b32 v5, 64, v4')
    for r in range(12, 16):
        a(f'v_mov_b32 v{r}, 0x3f803f80')
    XA, XB, BB, FB = 4, 242, 244, 246
    for b in range(2):
        a(f'v_add_u32 v{XB+b}, 0x10000, v{4+b}')
    if OPT['fearly']:
        a('v_lshrrev_b32 v8, 3, v0')
        a('v_and_b32 v9, 7, v0')
        a('v_xor_b32 v9, v9, v3')
        a('v_lshlrev_b32 v9, 4, v9')
        a('v_xor_b32 v10, 64, v9')
        a('s_lshl_b32 s46, s40, 3')
        a('v_add_u32 v6, s46, v8')
        a('v_sub_u32 v7, 64, v6')
        a('v_cmp_eq_u32 vcc, 64, v7')
        a('v_cndmask_b32 v7, v7, 32, vcc')
        a('v_lshl_add_u32 v6, v6, 17, v9')
        a('v_lshl_add_u32 v7, v7, 17, v10')
        a('s_lshl_b32 s49, s40, 12')
    if OPT['coop']:
        a('s_lshl_b32 s50, s42, 2')
        a('s_lshr_b32 s50, 0x876543, s50' if OPT['gent'] else 's_lshr_b32 s50, 0x483726, s50')
        a('s_and_b32 s50, s50, 15')
        a('s_lshl_b32 s50, s50, 7')
        a('s_mul_i32 s51, s41, 1152')
        a('s_add_u32 s50, s50, s51')
        a('s_mul_i32 s51, s42, 96')
        a('s_mul_i32 s52, s43, 287')
        a('s_sub_u32 s51, s51, s52')
        a('s_mul_i32 s51, s51, 1152')
        a('s_lshr_b32 s52, s41, 3')
        a('s_lshl_b32 s52, s52, 7')
        a('s_add_u32 s51, s51, s52')
        a('s_add_u32 s51, s51, 128')
        a('s_movk_i32 s52, 2304')
        a('s_cmp_eq_u32 s40, 0')
        a('s_cselect_b32 s52, 36864, s52')
        a('v_mul_u32_u24 v11, s52, v0')
    a('s_waitcnt lgkmcnt(0)')
    if OPT['fearly']:
        srd(a, 20, 6, SEQ_BYTES)
        srd(a, 24, 8, SEQ_BYTES)
        for part in range(2):
            for hh in range(2):
                a(f's_add_u32 m0, s49, {P1_F + (part*2+hh)*1024}')
                a(f'buffer_load_dwordx4 v{6+hh}, s[{20+4*part}:{23+4*part}], 0 offen lds')
    if OPT['coop']:
        a('s_cmp_eq_u32 s40, 1')
        a('s_cselect_b32 s16, s10, s12')
        a('s_cselect_b32 s17, s11, s13')
        a(f's_mov_b32 s18, {HID_BYTES}')
        a('s_cmp_eq_u32 s40, 0')
        a('s_cselect_b32 s16, s4, s16')
        a('s_cselect_b32 s17, s5, s17')
        a(f's_cselect_b32 s18, {X_BYTES}, s18')
        a('s_cselect_b32 s50, s50, s51')
        a('s_cselect_b32 exec_hi, -1, 0xffff')
        a('s_cmp_ge_u32 s40, 1' if OPT['gent'] else 's_cmp_eq_u32 s40, 3')
        a('s_cselect_b32 s18, 0, s18')
        a('s_mov_b32 s19, 0x00020000')
        a('buffer_load_dword v6, v11, s[16:19], s50 offen')
        a('s_mov_b32 exec_hi, -1')
    stamp(a, 0)
    a('s_cmp_eq_u32 s40, 3')
    a('s_cbranch_scc1 L_STATS')
    lg = Cnt(a, 'lgkmcnt', 15)
    a('s_mul_i32 s44, s42, 3')
    a('s_add_u32 s44, s44, s40')
    a('s_mul_i32 s48, s40, 20480')
    a(f's_add_u32 s48, s48, {P1_B}')
    srd(a, 36, 14, WS_RANGE)
    for b in range(2):
        a(f'v_add_u32 v{BB+b}, s48, v{4+b}')
        a(f'v_add_u32 v{FB+b}, {P1_F}, v{4+b}')
    a('s_lshr_b32 s46, s41, 1')
    a('s_and_b32 s46, s46, 1')
    a('s_xor_b32 s46, s46, s44')
    a('s_lshl_b32 s46, s46, 7')
    a('s_mul_i32 s47, s41, 2304')
    a('s_add_u32 s46, s46, s47')
    a('s_and_b32 s47, s41, 1')
    a('s_lshl_b32 s47, s47, 2')
    a('v_lshrrev_b32 v7, 3, v0')
    a('v_and_b32 v9, 7, v0')
    a('v_xor_b32 v9, v9, v7')
    a('v_xor_b32 v9, s47, v9')
    a('v_mul_u32_u24 v7, 73728, v7')
    a('v_lshl_add_u32 v7, v9, 4, v7')
    a('v_add_u32 v7, s46, v7')
    a('v_and_b32 v9, 7, v2')
    a('v_lshrrev_b32 v240, 3, v2')
    a('v_lshl_add_u32 v240, v240, 2, v3')
    a('v_xor_b32 v240, v240, v9')
    a('v_lshlrev_b32 v240, 4, v240')
    a('v_lshl_add_u32 v240, v9, 7, v240')
    a('s_lshl_b32 s47, s40, 12')
    a('v_add_u32 v240, s47, v240')
    a('v_lshl_add_u32 v241, v0, 4, s47')
    a('v_lshlrev_b32 v8, 4, v3')
    a(f'v_add_u32 v8, {P1_ST}, v8')
    a('s_cmp_eq_u32 s43, 0')
    a('s_cselect_b32 s47, 1.0, -1.0')
    a('v_mov_b32 v10, s47')
    a('v_mov_b32 v11, s47')
    for it in range(1, 4):
        a(f's_mov_b32 s{59+it}, {it*8*73728}')
    Bre = lambda k: 16 + 8 * k
    Bim = lambda k: 20 + 8 * k
    acc = lambda hf, i, ab: 88 + ((hf * 4 + i) * 2 + ab) * 4
    cacc = lambda ab: 152 + 4 * ab
    Abuf = lambda b, i: 160 + b * 16 + i * 4
    st8 = dict(started=set(), bufno=0, passed=-1, lg=lg, Abuf=Abuf)
    Fregs = [Bre(k) for k in range(1, 8)] + [Bim(k) for k in range(1, 8)] + [248, 252]
    Freg = lambda f: Fregs[f]

    def rd_x(kk):
        b = st8['bufno'] % 3
        st8['bufno'] += 1
        c, par = kk >> 1, kk & 1
        for i in range(4):
            off = c * 8192 + i * 2048
            base = XA + par
            if off >= 65536:
                off -= 65536
                base = XB + par
            a(f'ds_read_b128 {vr(st8["Abuf"](b,i),4)}, v{base} offset:{off}')
            st8['lg'].issue(('x', kk))
        return b

    def rd_B(k):
        c, par = k >> 1, k & 1
        for part, reg in ((0, Bre(k)), (1, Bim(k))):
            if OPT['gent']:
                a(f'ds_read_b128 {vr(reg,4)}, v247 offset:{k*2048 + part*1024}')
            else:
                a(f'ds_read_b128 {vr(reg,4)}, v{BB+par} offset:{(c*4 + part*2)*1024}')
            lg.issue(('B', k))

    def rd_F(f):
        it, kap, part = f >> 2, (f >> 1) & 1, f & 1
        if OPT['gent']:
            a(f'ds_read_b128 {vr(Freg(f),4)}, v{FB} offset:{f*1024}')
        else:
            a(f'ds_read_b128 {vr(Freg(f),4)}, v{FB+kap} offset:{(it*2+part)*2048}')
        lg.issue('F')

    def mf(dst, A, B):
        c = vr(dst, 4) if dst in st8['started'] else '0'
        st8['started'].add(dst)
        a(f'v_mfma_f32_16x16x32_bf16 {vr(dst,4)}, {vr(A,4)}, {vr(B,4)}, {c}')

    steps = [(st, kk) for st, gs in enumerate(STAGES) for gi in gs for kk in (2 * GROUPS[gi][2], 2 * GROUPS[gi][2] + 1)]
    if OPT['gent'] and OPT['split']:
        steps = [(0, kk) for kk in (0, 1, 2, 9, 10, 11)] + [(1, kk) for kk in (3, 4, 5, 6, 7, 8, 12, 13)] + [(2, kk) for kk in (14, 15, 16, 17)]
    NSTEP = len(steps)
    haveB = set()
    bufs = {}

    def fetch(n, withB=True):
        st, kk = steps[n]
        while st8['passed'] < st:
            st8['passed'] += 1
            if st8['passed'] == len(STAGES) - 1:
                a('s_waitcnt vmcnt(0)')
            a('s_barrier')
            if OPT['al8']:
                a.raw('    .p2align 3')
        k = kk % 9
        if withB and k not in haveB:
            haveB.add(k)
            rd_B(k)
        bufs[n] = rd_x(kk)
    if OPT['gent']:
        a('v_lshlrev_b32 v246, 4, v0')
        a(f'v_add_u32 v246, {P1_F}, v246')
        a('s_mul_i32 s50, s42, 96')
        a('s_mul_i32 s51, s43, 287')
        a('s_sub_u32 s50, s50, s51')
        a('s_lshl_b32 s51, s40, 5')
        a('s_add_u32 s50, s50, s51')
        a('v_lshl_add_u32 v244, v2, 1, s50')
        a('v_cmp_eq_u32 vcc, 0, v244')
        a('v_mov_b32 v245, 288')
        a('v_cndmask_b32 v244, v244, v245, vcc')
        a('v_cvt_f32_u32 v244, v244')
        a(f'v_mul_f32 v244, {fb(-1.0/576)}, v244')
        a('v_lshlrev_b32 v245, 3, v3')
        a('v_cvt_f32_u32 v245, v245')
        a('v_mul_f32 v245, v245, v244')
        for j in range(8):
            a(f'v_mul_f32 v{216+j}, {fb(j)}, v244')
        NG = 3 if OPT['split'] else 9
        a('v_lshl_add_u32 v247, v0, 4, s48')
        for k in range(NG):
            a(f'v_fmamk_f32 v{160+4*k+2}, v244, {fb(32*k)}, v245')
        for j in range(8):
            a(f'v_cos_f32 v{208+j}, v{216+j}')
            a(f'v_sin_f32 v{216+j}, v{216+j}')
        for k in range(NG):
            a(f'v_cos_f32 v{160+4*k}, v{160+4*k+2}')
            a(f'v_sin_f32 v{160+4*k+2}, v{160+4*k+2}')
        for k in range(NG):
            br, bi = 160 + 4 * k, 160 + 4 * k + 2
            T0 = 224
            for h in range(4):
                a(f'v_pk_mul_f32 {vr(T0+2*h,2)}, {vr(208+2*h,2)}, {vr(br,2)} op_sel_hi:[1,0]')
                a(f'v_pk_mul_f32 {vr(T0+8+2*h,2)}, {vr(216+2*h,2)}, {vr(br,2)} op_sel_hi:[1,0]')
            for h in range(4):
                a(f'v_pk_fma_f32 {vr(T0+2*h,2)}, {vr(216+2*h,2)}, {vr(bi,2)}, {vr(T0+2*h,2)} op_sel_hi:[1,0,1] neg_lo:[0,1,0] neg_hi:[0,1,0]')
                a(f'v_pk_fma_f32 {vr(T0+8+2*h,2)}, {vr(208+2*h,2)}, {vr(bi,2)}, {vr(T0+8+2*h,2)} op_sel_hi:[1,0,1]')
            for h in range(4):
                a(f'v_cvt_pk_bf16_f32 v{Bre(k)+h}, v{T0+2*h}, v{T0+2*h+1}')
                a(f'v_cvt_pk_bf16_f32 v{Bim(k)+h}, v{T0+8+2*h}, v{T0+8+2*h+1}')
            haveB.add(k)
        pend = []
        Fregs[:] = [Bre(k) for k in range(0, 7)] + [Bim(k) for k in range(0, 7)] + [248, 252]
    fetch(0)
    fetch(1)
    fq = list(range(16))
    a('v_mov_b32 v9, 0')
    for n, (st, kk) in enumerate(steps):
        k, hf = kk % 9, kk // 9
        lg.wait(('x', kk))
        if OPT['al8']:
            a.raw('    .p2align 3')
        b = bufs[n]
        while OPT['gent'] and pend and pend[0][0] <= k and hf == 0:
            a(pend.pop(0)[1])
        for i in range(4):
            mf(acc(hf, i, 0), Abuf(b, i), Bre(k))
            for _ in range(OPT['ilv']):
                if OPT['gent'] and pend:
                    a(pend.pop(0)[1])
            mf(acc(hf, i, 1), Abuf(b, i), Bim(k))
            for _ in range(OPT['ilv']):
                if OPT['gent'] and pend:
                    a(pend.pop(0)[1])
            if i == 0 and n + 2 < NSTEP:
                fetch(n + 2)
            if n >= NSTEP - 2 and fq and len(lg.q) < 13:
                rd_F(fq.pop(0)); rd_F(fq.pop(0))
        if hf == 0:
            mf(cacc(0), 12, Bre(k))
            mf(cacc(1), 12, Bim(k))
    while fq:
        if len(lg.q) >= 13:
            lg.wait_all()
        rd_F(fq.pop(0)); rd_F(fq.pop(0))
    for i in range(4):
        for ab in range(2):
            for h in range(2):
                d = acc(0, i, ab) + 2 * h
                s1 = acc(1, i, ab) + 2 * h
                a(f'v_pk_fma_f32 {vr(d,2)}, {vr(s1,2)}, v[10:11], {vr(d,2)}')
    lg.wait_all()
    stamp(a, 1)
    a('s_barrier')
    for i in range(4):
        a(f'ds_read_b128 {vr(208+4*i,4)}, v8 offset:{i*64}')
        lg.issue(('st', i))
        a(f'ds_read_b128 {vr(224+4*i,4)}, v8 offset:{256+i*64}')
        lg.issue(('st', i))
    za = lambda kap: 160 + 4 * kap
    zb = lambda kap: 168 + 4 * kap
    znb = lambda kap: 176 + 4 * kap
    out = lambda it, c: 120 + (it * 2 + c) * 4
    TMP = 184
    st8['started'] = set()
    Fidx = lambda it, kap, part: (it * 2 + kap) * 2 + part

    def zops(kap):
        L = []
        for hh in range(2):
            i = 2 * kap + hh
            for ab in range(2):
                for h in range(2):
                    t = TMP + ((hh * 2 + ab) * 2 + h) * 2
                    L.append(f'v_pk_mul_f32 {vr(t,2)}, {vr(224+4*i+2*h,2)}, {vr(cacc(ab),2)}')
        for hh in range(2):
            i = 2 * kap + hh
            for ab in range(2):
                for h in range(2):
                    d = acc(0, i, ab) + 2 * h
                    t = TMP + ((hh * 2 + ab) * 2 + h) * 2
                    L.append(f'v_pk_fma_f32 {vr(d,2)}, {vr(208+4*i+2*h,2)}, {vr(d,2)}, {vr(t,2)} neg_lo:[0,0,1] neg_hi:[0,0,1]')
        for ab, z in ((0, za), (1, zb)):
            for hh in range(2):
                src = acc(0, 2 * kap + hh, ab)
                L.append(f'v_cvt_pk_bf16_f32 v{z(kap)+2*hh}, v{src}, v{src+1}')
                L.append(f'v_cvt_pk_bf16_f32 v{z(kap)+2*hh+1}, v{src+2}, v{src+3}')
        for r in range(4):
            L.append(f'v_xor_b32 v{znb(kap)+r}, 0x80008000, v{zb(kap)+r}')
        return L

    def mops(kap):
        L = []
        for it in range(4):
            L.append((out(it, 0), za(kap), Freg(Fidx(it, kap, 0))))
            L.append((out(it, 1), za(kap), Freg(Fidx(it, kap, 1))))
        for it in range(4):
            L.append((out(it, 0), znb(kap), Freg(Fidx(it, kap, 1))))
            L.append((out(it, 1), zb(kap), Freg(Fidx(it, kap, 0))))
        return L
    lg.wait(('st', 1))
    for ins in zops(0):
        a(ins)
    lg.wait(('st', 3))
    z1 = zops(1)
    for m in mops(0):
        mf(*m)
        for _ in range(2):
            if z1:
                a(z1.pop(0))
    while z1:
        a(z1.pop(0))
    m1 = mops(1)

    def upack(it):
        d = 184 + 4 * it
        a(f'v_cvt_pk_bf16_f32 v{d}, v{out(it,0)}, v{out(it,0)+1}')
        a(f'v_cvt_pk_bf16_f32 v{d+1}, v{out(it,0)+2}, v{out(it,0)+3}')
        a(f'v_cvt_pk_bf16_f32 v{d+2}, v{out(it,1)}, v{out(it,1)+1}')
        a(f'v_cvt_pk_bf16_f32 v{d+3}, v{out(it,1)+2}, v{out(it,1)+3}')
        a(f'ds_write_b128 v240, {vr(d,4)} offset:{it*1024}')
        lg.issue(('w', it))
        a(f'ds_read_b128 {vr(208+4*it,4)}, v241 offset:{it*1024}')
        lg.issue(('r', it))

    def ustore(it):
        lg.wait(('r', it))
        so = '0' if it == 0 else f's{59+it}'
        a(f'buffer_store_dwordx4 {vr(208+4*it,4)}, v7, s[36:39], {so} offen{SC}')
    for it in range(4):
        for m in (m1[2 * it], m1[2 * it + 1], m1[8 + 2 * it], m1[9 + 2 * it]):
            mf(*m)
        if it >= 2:
            upack(it - 2)
    upack(2)
    ustore(0)
    upack(3)
    ustore(1)
    ustore(2)
    ustore(3)
    stamp(a, 2)
    lab(a, 'L_ARRIVE')
    a(f'v_mov_b32 v10, {LDS_CNT}')
    a('v_mov_b32 v11, 1')
    a('v_mov_b32 v9, 0')
    a('s_sub_u32 s49, s2, 64')
    a('s_lshl_b32 s49, s49, 6')
    a(f's_add_u32 s49, s49, {WS_UF}')
    srd(a, 36, 14, WS_RANGE)
    a('s_waitcnt vmcnt(0)')
    a('s_mov_b64 exec, 1')
    a('ds_add_rtn_u32 v6, v10, v11')
    a('s_waitcnt lgkmcnt(0)')
    a('v_readfirstlane_b32 s59, v6')
    a('s_cmp_lg_u32 s59, 3')
    a('s_cbranch_scc1 L_NOFLAG')
    a(f'buffer_store_dword v9, v9, s[36:39], s49 offen{SC}')
    lab(a, 'L_NOFLAG')
    a('s_mov_b64 exec, -1')
    stamp(a, 3)
    a('s_cmp_lt_u32 s2, 128')
    a('s_cbranch_scc1 L_P2')
    a('s_barrier')
    a('s_setprio 0')
    a('s_branch L_ROWP')

    lab(a, 'L_STATS')
    lg = Cnt(a, 'lgkmcnt', 15)
    a('v_and_b32 v8, 3, v2')
    a('v_lshrrev_b32 v9, 2, v2')
    a('v_sub_u32 v9, v9, v3')
    a('v_and_b32 v9, 3, v9')
    for r in range(1, 4):
        a(f'v_cmp_eq_u32 s[{42+2*r}:{43+2*r}], {r}, v8')
        a(f'v_cmp_eq_u32 s[{48+2*r}:{49+2*r}], {r}, v9')
    a('v_lshlrev_b32 v10, 4, v9')
    a('v_lshl_add_u32 v10, v3, 2, v10')
    a('v_add_u32 v10, v10, v8')
    a('v_lshlrev_b32 v10, 2, v10')
    a(f'v_add_u32 v10, {P1_ST}, v10')
    a('s_cmp_eq_u32 s43, 0')
    a('s_cselect_b32 s56, 2.0, 0')
    a(f'v_mov_b32 v8, {LDS_CNT}')
    a('v_mov_b32 v9, 0')
    a('ds_write_b32 v8, v9')
    a('s_waitcnt lgkmcnt(0)')
    GR = lambda i: 16 + 4 * i
    SM = lambda i: 32 + 4 * i
    SAbuf = lambda b, i: 48 + b * 16 + i * 4
    st8.update(started=set(), bufno=0, passed=-1, lg=lg, Abuf=SAbuf)
    bufs = {}
    fetch(0, False)
    fetch(1, False)
    for n, (st, kk) in enumerate(steps):
        lg.wait(('x', kk))
        if OPT['al8']:
            a.raw('    .p2align 3')
        b = bufs[n]
        for i in range(4):
            mf(GR(i), SAbuf(b, i), SAbuf(b, i))
            mf(SM(i), 12, SAbuf(b, i))
            if i == 0 and n + 2 < NSTEP:
                fetch(n + 2, False)
    for i in range(4):
        for r in range(1, 4):
            a(f'v_cndmask_b32 v{GR(i)}, v{GR(i)}, v{GR(i)+r}, s[{42+2*r}:{43+2*r}]')
    for i in range(1, 4):
        a(f'v_mov_b32_dpp v{GR(i)+1}, v{GR(i)} row_ror:{4*i} row_mask:0xf bank_mask:0xf')
        a(f'v_mov_b32_dpp v{SM(i)+1}, v{SM(i)} row_ror:{4*i} row_mask:0xf bank_mask:0xf')
    for i in range(1, 4):
        a(f'v_cndmask_b32 v{GR(0)}, v{GR(0)}, v{GR(i)+1}, s[{48+2*i}:{49+2*i}]')
        a(f'v_cndmask_b32 v{SM(0)}, v{SM(0)}, v{SM(i)+1}, s[{48+2*i}:{49+2*i}]')
    q, m = GR(0), SM(0)
    a(f'v_mul_f32 v{m}, 0x{INVB:08x}, v{m}')
    a(f'v_mul_f32 v{q}, 0x{INVB:08x}, v{q}')
    a(f'v_fma_f32 v{q}, -v{m}, v{m}, v{q}')
    a(f'v_max_f32 v{q}, 0, v{q}')
    bfround(a, q, q)
    a(f'v_add_f32 v{q}, 0x{EPSB:08x}, v{q}')
    bfround(a, q, q)
    a(f'v_sqrt_f32 v{q}, v{q}')
    a(f'v_mul_f32 v{m}, s56, v{m}')
    bfround(a, q, q)
    a(f'v_rcp_f32 v{q}, v{q}')
    a(f'v_mul_f32 v{m}, v{m}, v{q}')
    a(f'ds_write_b32 v10, v{q}')
    a(f'ds_write_b32 v10, v{m} offset:256')
    a('s_waitcnt lgkmcnt(0)')
    stamp(a, 1)
    a('s_barrier')
    wait_cleared(a, 'L_WC1')
    a('s_branch L_ARRIVE')

    if not OPT['hfirst']:
        helper_code()

    lab(a, 'L_P2')
    a('s_setprio 0')
    if OPT['ipf']:
        a('s_cmp_ge_u32 s2, 88')
        a('s_cbranch_scc1 L_IPF')
    a('s_cmp_ge_u32 s2, 81')
    a('s_cbranch_scc1 L_EXIT')
    lpoint(a, 5)
    a('s_barrier')
    lpoint(a, 6)
    a('s_cmp_lt_u32 s2, 72')
    a('s_cbranch_scc1 L_FFN')
    a('s_branch L_FIN')

    if OPT['ipf']:
        lab(a, 'L_IPF')
        a('s_barrier')
        NTP = ' nt' if OPT['ntw'] else ''
        srd(a, 16, 66, WG_BYTES)
        srd(a, 20, 68, WG_BYTES)
        srd(a, 24, 70, WG_BYTES)
        a('s_and_b32 s41, s2, 7')
        a('s_sub_u32 s42, s2, 88')
        a('s_lshr_b32 s42, s42, 3')
        a('s_mov_b32 s43, 0x1c72')
        a('v_mul_u32_u24 v6, s43, v0')
        a('v_lshrrev_b32 v6, 16, v6')
        a('v_mul_u32_u24 v7, 9, v6')
        a('v_sub_u32 v7, v0, v7')
        a('v_mul_u32_u24 v6, 9216, v6')
        a('v_lshl_add_u32 v6, v7, 7, v6')
        a('s_mul_i32 s44, s40, 72')
        a('s_mul_i32 s45, s42, 7')
        a('s_add_u32 s44, s44, s45')
        a('s_add_u32 s44, s44, 37')
        a('s_mul_i32 s44, s44, 9216')
        a('s_mul_i32 s45, s41, 1152')
        a('s_add_u32 s44, s44, s45')
        a(f'buffer_load_dword v8, v6, s[16:19], s44 offen{NTP}')
        a(f'buffer_load_dword v9, v6, s[20:23], s44 offen{NTP}')
        a('v_lshlrev_b32 v7, 7, v0')
        a('s_lshl_b32 s45, s42, 3')
        a('s_add_u32 s45, s45, s40')
        a('s_mul_i32 s45, s45, 16640')
        a('s_mul_i32 s46, s41, 663552')
        a('s_add_u32 s45, s45, s46')
        a(f'buffer_load_dword v10, v7, s[24:27], s45 offen{NTP}')
        a('s_add_u32 s45, s45, 8448')
        a(f'buffer_load_dword v11, v7, s[24:27], s45 offen{NTP}')
        a('s_branch L_EXIT')

    XR = lambda k: 100 + k
    WR = lambda k: 120 + k
    T = lambda cls, kap: 32 + (cls * 2 + kap) * 4
    TW = lambda kap, part: 16 + (kap * 2 + part) * 4

    lab(a, 'L_ROWP')
    a('v_and_b32 v2, 15, v0')
    a('v_lshrrev_b32 v3, 4, v0')
    a('v_lshlrev_b32 v4, 4, v0')
    a('v_add_u32 v5, 1024, v4')
    a('s_and_b32 s41, s2, 31')
    a('s_lshr_b32 s42, s2, 5')
    a('s_sub_u32 s42, s42, 4')
    a('v_cmp_lt_u32 vcc, 7, v2')
    a('s_cmp_eq_u32 s41, 0')
    a('s_cbranch_scc1 L_P0')
    a('v_and_b32 v8, 7, v2')
    a('s_lshl_b32 s46, s42, 3')
    a('v_add_u32 v8, s46, v8')
    a('v_lshl_add_u32 v6, v8, 6, s41')
    a('v_sub_u32 v8, 2048, v6')
    a('v_cndmask_b32 v6, v6, v8, vcc')
    a('v_xor_b32 v7, 8, v2')
    a('s_branch L_ROWS')
    lab(a, 'L_P0')
    a('v_bfe_u32 v8, v2, 1, 2')
    a('s_lshl_b32 s46, s42, 2')
    a('v_add_u32 v8, s46, v8')
    a('v_sub_u32 v9, 32, v8')
    a('v_sub_u32 v10, 31, v8')
    a('v_cndmask_b32 v9, v9, v10, vcc')
    a('v_mov_b32 v11, 0')
    a('v_cndmask_b32 v11, v11, 32, vcc')
    a('v_cmp_eq_u32 vcc, 32, v9')
    a('v_cndmask_b32 v9, v9, 16, vcc')
    a('v_xor_b32 v7, 1, v2')
    a('v_cndmask_b32 v7, v7, v2, vcc')
    a('v_and_b32 v10, 1, v2')
    a('v_cmp_eq_u32 vcc, 1, v10')
    a('v_cndmask_b32 v8, v8, v9, vcc')
    a('v_lshl_add_u32 v6, v8, 6, v11')
    lab(a, 'L_ROWS')
    a('s_lshl_b32 s44, s40, 1')
    a('s_add_u32 s45, s44, 1')
    a('v_and_b32 v9, 1, v3')
    a('v_readlane_b32 s46, v6, s44')
    a('v_readlane_b32 s47, v6, s45')
    a('v_and_b32 v10, 31, v0')
    a('v_mul_u32_u24 v12, 36, v10')
    srd(a, 24, 4, X_BYTES)
    srd(a, 28, 64, D * 2)
    srd(a, 36, 14, WS_RANGE)
    srd(a, 32, 72, X_BYTES)
    XP, WP = 140, 152
    a('s_mul_i32 s48, s40, 2304')
    a(f's_add_u32 s49, s48, {R_STG}')
    a(f's_add_u32 s48, s48, {R_X}')
    a('s_mul_i32 s82, s46, 1152')
    a('s_mul_i32 s83, s47, 1152')
    for hrow in range(2):
        a(f's_add_u32 m0, s48, {hrow*1152}')
        a(f'buffer_load_dwordx4 v4, s[24:27], s{82+hrow} offen lds')
        a('s_mov_b64 exec, 0xff')
        a(f'buffer_load_dwordx4 v4, s[24:27], s{82+hrow} offen offset:1024 lds')
        a('s_mov_b64 exec, -1')
    a('s_mov_b32 m0, s49')
    a('v_add_u32 v88, s49, v12')
    a('buffer_load_dwordx4 v4, s[28:31], 0 offen lds')
    a('s_mov_b64 exec, 0xff')
    a('buffer_load_dwordx4 v4, s[28:31], 0 offen offset:1024 lds')
    a('s_mov_b64 exec, -1')
    a('v_add_u32 v89, s48, v4')
    a('s_mul_i32 s45, s40, 9216')
    a('s_mul_i32 s44, s41, 73728')
    a('s_add_u32 s44, s44, s45')
    a('s_lshl_b32 s56, s42, 11')
    stamp(a, 4)
    a('v_lshrrev_b32 v8, 2, v0')
    a('v_lshlrev_b32 v8, 11, v8')
    a('v_and_b32 v16, 3, v0')
    a('v_lshl_add_u32 v8, v16, 6, v8')
    a('s_lshl_b32 s48, s40, 8')
    a(f's_add_u32 s48, s48, {WS_UF}')
    a('s_mov_b32 s58, 0')
    a('s_mov_b64 s[76:77], 0xffffff')
    lab(a, 'L_UPOLL')
    a('s_mov_b64 exec, s[76:77]')
    a(f'buffer_load_dword v16, v8, s[36:39], s48 offen{SC}')
    a('s_add_u32 s58, s58, 1')
    a('s_waitcnt vmcnt(0)')
    a('v_cmp_ne_u32 s[76:77], 0, v16')
    a('s_mov_b64 exec, -1')
    a(f's_cmp_lt_u32 s58, {SPIN_LIMIT}')
    a('s_cbranch_scc0 L_UGO2')
    a('s_cmp_eq_u64 s[76:77], 0')
    a('s_cbranch_scc1 L_UGO2')
    a(f's_sleep {OPT["sleep"]}')
    a('s_branch L_UPOLL')
    lab(a, 'L_UGO2')
    stamp(a, 5)
    a('s_mov_b32 s84, 0')
    a(f'v_mov_b32 v85, {LDS_CNT}')

    def u_dma():
        for n in range(9):
            a('s_add_u32 m0, s45, s56')
            a('s_add_u32 s57, s44, s56')
            a(f'buffer_load_dwordx4 v4, s[36:39], s57 offen{SC} lds')
            a('s_add_u32 s56, s56, 1024')
            a('s_cmp_eq_u32 s56, 9216')
            a('s_cselect_b32 s56, 0, s56')
    u_dma()
    a('v_lshrrev_b32 v13, 1, v3')
    a('v_lshlrev_b32 v13, 3, v13')
    a('v_lshl_add_u32 v13, v9, 1, v13')
    a('v_bfe_u32 v11, v0, 3, 1')
    a('v_add_u32 v13, v13, v11')
    a('v_mul_u32_u24 v13, 2304, v13')
    a('v_lshl_add_u32 v13, v11, 6, v13')
    a('v_and_b32 v11, 3, v0')
    a('v_lshl_add_u32 v13, v11, 4, v13')
    a('v_bfe_u32 v11, v0, 2, 1')
    a('v_lshl_add_u32 v13, v11, 3, v13')
    a('v_xor_b32 v11, s40, v9')
    a('v_lshl_add_u32 v13, v11, 7, v13')
    a('v_xor_b32 v81, 64, v13')
    a(f'v_mul_u32_u24 v14, {R_YS}, v2')
    a('v_lshl_add_u32 v14, v3, 5, v14')
    a(f'v_mul_u32_u24 v11, {R_YS}, v7')
    a('v_lshlrev_b32 v8, 5, v3')
    a('v_sub_u32 v11, v11, v8')
    for jj in range(3):
        a(f's_add_u32 s48, s40, {6*jj}')
        a('s_lshl_b32 s49, s48, 7')
        a(f's_sub_u32 s50, s49, {9*128-4}')
        a('s_cmp_lt_u32 s48, 9')
        a('s_cselect_b32 s49, s49, s50')
        a(f's_add_u32 s50, s49, {R_Y}')
        a(f'v_add_u32 v{90+jj}, s50, v14')
        a(f's_sub_u32 s50, {R_Y + 576*4 - 24}, s49')
        a(f'v_add_u32 v{93+jj}, s50, v11')
    a('v_lshrrev_b32 v8, 5, v0')
    a('s_lshl_b32 s48, s40, 1')
    a('v_add_u32 v8, s48, v8')
    a(f'v_mul_u32_u24 v97, {R_YS}, v8')
    a(f'v_add_u32 v97, {R_Y}, v97')
    a('v_lshl_add_u32 v96, v12, 1, v97')
    a('v_mul_u32_u24 v98, 1152, v8')
    a('v_add_u32 v98, v98, v12')
    a(f'v_add_u32 v98, {R_STG}, v98')
    a('v_cmp_eq_u32 s[60:61], 16, v10')
    a('v_cmp_eq_u32 s[62:63], 0, v10')
    a(f'v_add_u32 v15, {R_X - R_STG}, v98')
    a('v_mov_b32 v14, v88')
    a('v_mov_b32 v11, v89')
    a('v_cvt_f32_u32 v16, v6')
    a(f'v_mul_f32 v16, {fb(1.0/2048)}, v16')
    a('v_lshrrev_b32 v17, 1, v3')
    a('v_lshlrev_b32 v17, 3, v17')
    a('v_lshl_add_u32 v17, v9, 1, v17')
    a('v_cvt_f32_u32 v17, v17')
    a('v_mul_f32 v17, v17, v16')
    a('v_cmp_gt_u32 s[52:53], 8, v2')
    cs = [16 * kap + o for kap in range(2) for o in (0, 1, 4, 5)]
    for q in range(8):
        a(f'v_fmamk_f32 v{18+q}, v16, {fb(cs[q])}, v17')
    for q in range(8):
        a(f'v_cos_f32 v{48+q}, v{18+q}')
        a(f'v_sin_f32 v{18+q}, v{18+q}')
    for q in range(8):
        a(f'v_cvt_pk_bf16_f32 v{18+q}, v{48+q}, v{18+q}')
    for q in range(8):
        a(f'v_cndmask_b32 v{T(0,q>>2)+(q&3)}, 0, v{18+q}, s[52:53]')
        a(f'v_cndmask_b32 v{T(1,q>>2)+(q&3)}, v{18+q}, 0, s[52:53]')
    a('s_waitcnt vmcnt(9)')
    for P_, ad in ((XP, 15), (WP, 14)):
        for j in range(0, 8, 2):
            a(f'ds_read2_b32 {vr(P_+j,2)}, v{ad} offset0:{j} offset1:{j+1}')
        a(f'ds_read_b32 v{P_+8}, v{ad} offset:32')
    a('s_waitcnt lgkmcnt(0)')
    for j in range(9):
        a(f'v_lshlrev_b32 v{XR(2*j)}, 16, v{XP+j}')
        a(f'v_and_b32 v{XR(2*j+1)}, 0xffff0000, v{XP+j}')
        a(f'v_lshlrev_b32 v{WR(2*j)}, 16, v{WP+j}')
        a(f'v_and_b32 v{WR(2*j+1)}, 0xffff0000, v{WP+j}')
    W2 = lambda j: vr(WR(2 * j), 2)
    a(f'v_pk_add_f32 v[86:87], {W2(0)}, {W2(1)}')
    for j in range(2, 9):
        a(f'v_pk_add_f32 v[86:87], v[86:87], {W2(j)}')
    a('v_add_f32 v99, v86, v87')
    dpp_reduce(a, 'v_add_f32', [99], 5)
    a('v_lshrrev_b32 v213, 5, v0')
    a('s_lshl_b32 s58, s40, 1')
    a('v_add_u32 v213, s58, v213')
    a('s_sub_u32 s85, s2, 128')
    a('s_lshl_b32 s58, s85, 4')
    a('s_sub_u32 s58, 2047, s58')
    a('v_sub_u32 v212, s58, v213')
    a('v_lshlrev_b32 v213, 2, v213')
    a(f'v_add_u32 v213, {LDS_C}, v213')
    a('v_lshlrev_b32 v214, 2, v2')
    a(f'v_add_u32 v214, {LDS_C}, v214')
    lg = Cnt(a, 'lgkmcnt', 15)
    lab(a, 'L_UWAIT')
    a('v_mov_b32 v86, 0')
    a('ds_write_b32 v85, v86')
    a('s_waitcnt vmcnt(0) lgkmcnt(0)')
    a('s_barrier')
    stamp(a, 6)
    a('s_cmp_ge_u32 s40, 6')
    a('s_cbranch_scc1 L_SKIPMM')
    UF = lambda slot: 164 + 4 * slot
    ACC = lambda jj: 48 + 4 * jj
    order = [(jj, cls, kap) for cls in range(2) for kap in range(2) for jj in range(3)]

    def rd(n):
        jj, cls, kap = order[n]
        for h in range(2):
            off = kap * 36864 + h * 9216 + jj * 768
            a(f'ds_read_b64_tr_b16 {vr(UF(n)+2*h,2)}, v{13 if cls == 0 else 81} offset:{off}')
            lg.issue(n)
    for n in range(7):
        rd(n)
    for n, (jj, cls, kap) in enumerate(order):
        lg.wait(n)
        c = '0' if (cls == 0 and kap == 0) else vr(ACC(jj), 4)
        a(f'v_mfma_f32_16x16x32_bf16 {vr(ACC(jj),4)}, {vr(UF(n),4)}, {vr(T(cls,kap),4)}, {c}')
        if n + 7 < 12:
            rd(n + 7)
    if OPT['usent']:
        a('v_pk_add_f32 v[16:17], v[48:49], v[50:51]')
        a('v_pk_add_f32 v[18:19], v[52:53], v[54:55]')
        a('v_pk_add_f32 v[20:21], v[56:57], v[58:59]')
        a('v_pk_add_f32 v[16:17], v[16:17], v[18:19]')
        a('v_pk_add_f32 v[16:17], v[16:17], v[20:21]')
        a('v_cmp_u_f32 vcc, v16, v17')
        a('v_mov_b32 v86, 1')
        a('s_and_saveexec_b64 s[48:49], vcc')
        a('ds_write_b32 v85, v86')
        a('s_mov_b64 exec, -1')
    for jj in range(3):
        c = ACC(jj)
        a(f'ds_write2_b32 v{90+jj}, v{c}, v{c+1} offset0:0 offset1:2')
        a(f'ds_write2_b32 v{90+jj}, v{c+2}, v{c+3} offset0:4 offset1:6')
        a(f'ds_write2_b32 v{93+jj}, v{c+3}, v{c+2} offset0:0 offset1:2')
        a(f'ds_write2_b32 v{93+jj}, v{c+1}, v{c} offset0:4 offset1:6')
    a('s_waitcnt lgkmcnt(0)')
    lab(a, 'L_SKIPMM')
    a('s_barrier')
    stamp(a, 7)
    H = lambda k: 60 + k
    H2 = lambda j: vr(H(2 * j), 2)
    a('ds_read_b32 v86, v85')
    a('ds_read_b32 v88, v97')
    for j in range(9):
        a(f'ds_read_b64 {H2(j)}, v96 offset:{8*j}')
    a('s_waitcnt lgkmcnt(8)')
    if OPT['usent']:
        a('v_readfirstlane_b32 s48, v86')
        a('s_cmp_eq_u32 s48, 0')
        a('s_cbranch_scc1 L_UOK')
        a('s_add_u32 s84, s84, 1')
        a('s_cmp_ge_u32 s84, 200')
        a('s_cbranch_scc1 L_UOK')
        a('s_waitcnt lgkmcnt(0)')
        a('s_barrier')
        u_dma()
        a('s_branch L_UWAIT')
        lab(a, 'L_UOK')
    a(f'v_cndmask_b32 v{H(0)}, v{H(0)}, v88, s[60:61]')
    a(f'v_cndmask_b32 v{H(0)}, v{H(0)}, 0, s[62:63]')
    HP = lambda j: 16 + j
    a('s_mov_b32 s56, s85')
    a('s_mul_i32 s57, s56, 1152')
    a(f's_add_u32 s57, s57, {WS_HN}')
    a('s_lshl_b32 s59, s56, 7')
    a(f's_add_u32 s59, s59, {WS_KEYS}')
    for j in range(9):
        if j:
            a(f's_waitcnt lgkmcnt({8-j})')
        a(f'v_pk_add_f32 {H2(j)}, {H2(j)}, {vr(XR(2*j),2)}')
    a(f'v_pk_add_f32 v[26:27], {H2(0)}, {H2(1)}')
    a(f'v_pk_mul_f32 v[28:29], {H2(0)}, {H2(0)}')
    a(f'v_pk_mul_f32 v[30:31], {H2(0)}, {W2(0)}')
    for j in range(1, 9):
        if j >= 2:
            a(f'v_pk_add_f32 v[26:27], v[26:27], {H2(j)}')
        a(f'v_pk_fma_f32 v[28:29], {H2(j)}, {H2(j)}, v[28:29]')
        a(f'v_pk_fma_f32 v[30:31], {H2(j)}, {W2(j)}, v[30:31]')
    a('v_add_f32 v82, v26, v27')
    a('v_add_f32 v83, v28, v29')
    a('v_add_f32 v84, v30, v31')
    dpp_reduce(a, 'v_add_f32', [82, 83, 84], 5)
    a(f'v_mul_f32 v82, 0x{INVB:08x}, v82')
    a(f'v_mul_f32 v83, 0x{INVB:08x}, v83')
    a('v_fma_f32 v83, -v82, v82, v83')
    a('v_max_f32 v83, 0, v83')
    bfround(a, 83, 83)
    bfround(a, 82, 82)
    a(f'v_add_f32 v83, 0x{EPSB:08x}, v83')
    bfround(a, 83, 83)
    a('v_sqrt_f32 v83, v83')
    a('v_fma_f32 v84, -v82, v99, v84')
    bfround(a, 83, 83)
    a('v_rcp_f32 v83, v83')
    a('v_mul_f32 v84, v84, v83')
    a('v_ashrrev_i32 v85, 31, v84')
    a('v_or_b32 v85, 0x80000000, v85')
    a('v_xor_b32 v85, v85, v84')
    a('v_and_b32 v85, 0xfffff800, v85')
    a('v_max_u32 v85, 0x800, v85')
    a('v_or_b32 v85, v85, v212')
    a('s_mov_b32 exec_lo, 0x80000000')
    a('s_mov_b32 exec_hi, 0x80000000')
    a('ds_write_b32 v213, v85')
    a('s_mov_b64 exec, -1')
    a('v_mul_f32 v82, v82, v83')
    a('v_readlane_b32 s52, v85, 31')
    a('v_readlane_b32 s53, v85, 63')
    a('s_waitcnt lgkmcnt(0)')
    stamp(a, 8)
    a('s_setprio 3')
    a('s_barrier')
    stamp(a, 9)
    a('ds_read_b32 v85, v214')
    a('v_readlane_b32 s48, v83, 31')
    a('v_readlane_b32 s49, v83, 63')
    a('v_readlane_b32 s50, v82, 31')
    a('v_readlane_b32 s51, v82, 63')
    a('v_readlane_b32 s54, v84, 31')
    a('v_readlane_b32 s55, v84, 63')
    a('s_cmp_gt_u32 s52, s53')
    a('s_cselect_b32 s52, s52, s53')
    a('s_cselect_b32 s54, s54, s55')
    a('s_cselect_b32 s46, s46, s47')
    a('s_cselect_b32 s55, 0, 1')
    a('s_not_b32 s53, s52')
    a('v_mov_b32 v87, s53')
    a('v_mov_b32 v86, 0')
    a('s_waitcnt lgkmcnt(0)')
    dpp_reduce(a, 'v_max_u32', [85], 4)
    a('v_readlane_b32 s58, v85, 15')
    a('s_cmp_eq_u32 s58, s52')
    a('s_cbranch_scc1 L_WIN1')
    a('s_setprio 0')
    a('s_branch L_NW1')
    lab(a, 'L_WIN1')
    a('s_mov_b64 exec, 1')
    a(f'buffer_store_dword v87, v86, s[36:39], s59 offen{SC}')
    a('s_mov_b64 exec, -1')
    lab(a, 'L_NW1')
    a('v_mov_b32 v80, s48')
    a('v_mov_b32 v78, s50')
    a('s_mov_b32 exec_lo, 0')
    a('v_mov_b32 v80, s49')
    a('v_mov_b32 v78, s51')
    a('s_mov_b32 exec_lo, -1')
    for j in range(9):
        a(f'v_cvt_pk_bf16_f32 v{HP(j)}, v{H(2*j)}, v{H(2*j+1)}')
    for j in range(9):
        a(f'v_lshlrev_b32 v{H(2*j)}, 16, v{HP(j)}')
        a(f'v_and_b32 v{H(2*j+1)}, 0xffff0000, v{HP(j)}')
    HN = lambda k: 100 + k
    NP = lambda j: 140 + j
    for j in range(9):
        a(f'v_pk_fma_f32 {vr(HN(2*j),2)}, {H2(j)}, v[80:81], v[78:79] op_sel_hi:[1,0,0] neg_lo:[0,0,1] neg_hi:[0,0,1]')
    for j in range(9):
        a(f'v_cvt_pk_bf16_f32 v{NP(j)}, v{HN(2*j)}, v{HN(2*j+1)}')

    def stage(addr, P, off):
        o = off // 4
        for j in range(0, 8, 2):
            a(f'ds_write2_b32 v{addr}, v{P(j)}, v{P(j+1)} offset0:{o+j} offset1:{o+j+1}')
        a(f'ds_write_b32 v{addr}, v{P(8)} offset:{off+32}')
    a('s_cmp_lg_u32 s58, s52')
    a('s_cbranch_scc1 L_NOTWIN')
    stage(98, NP, 0)
    a('s_lshl_b32 s60, s40, 1')
    a('s_add_u32 s60, s60, s55')
    a('s_mul_i32 s60, s60, 1152')
    a(f's_add_u32 s60, s60, {R_STG}')
    a('v_add_u32 v88, s60, v4')
    a('ds_read_b128 v[32:35], v88')
    a('ds_read_b128 v[36:39], v88 offset:1024')
    a('s_waitcnt lgkmcnt(0)')
    a(f'buffer_store_dwordx4 v[32:35], v4, s[36:39], s57 offen{SC}')
    a('s_mov_b64 exec, 0xff')
    a(f'buffer_store_dwordx4 v[36:39], v5, s[36:39], s57 offen{SC}')
    a('s_mov_b64 exec, -1')
    stamp(a, 10)
    a('s_setprio 0')
    lab(a, 'L_NOTWIN')
    OP = lambda j: 152 + j
    for j in range(9):
        a(f'v_lshlrev_b32 v{HN(2*j)}, 16, v{NP(j)}')
        a(f'v_and_b32 v{HN(2*j+1)}, 0xffff0000, v{NP(j)}')
    for j in range(9):
        a(f'v_pk_add_f32 {vr(HN(2*j),2)}, {vr(HN(2*j),2)}, {H2(j)}')
    for j in range(9):
        a(f'v_cvt_pk_bf16_f32 v{OP(j)}, v{HN(2*j)}, v{HN(2*j+1)}')

    stage(15, OP, 0)
    a('s_waitcnt lgkmcnt(0)')
    a('ds_read_b128 v[40:43], v11')
    a('ds_read_b128 v[44:47], v11 offset:1024')
    a('ds_read_b128 v[48:51], v11 offset:1152')
    a('ds_read_b128 v[52:55], v11 offset:2176')

    def out_store(mods):
        a('s_waitcnt lgkmcnt(0)')
        a(f'buffer_store_dwordx4 v[40:43], v4, s[32:35], s82 offen{mods}')
        a(f'buffer_store_dwordx4 v[48:51], v4, s[32:35], s83 offen{mods}')
        a('s_mov_b64 exec, 0xff')
        a(f'buffer_store_dwordx4 v[44:47], v5, s[32:35], s82 offen{mods}')
        a(f'buffer_store_dwordx4 v[52:55], v5, s[32:35], s83 offen{mods}')
        a('s_mov_b64 exec, -1')
    a('s_cmp_lg_u32 s58, s52')
    a('s_cbranch_scc1 L_PLAIN')
    out_store(SC)
    a('s_mul_i32 s57, s56, 1280')
    a(f's_add_u32 s57, s57, {WS_H}')
    a('v_mov_b32 v88, s54')
    a('v_mov_b32 v89, s46')
    a('s_cmp_eq_u32 s55, 0')
    a('s_cselect_b32 exec_lo, -1, 0')
    a('s_cselect_b32 exec_hi, 0, -1')
    a(f'buffer_store_dwordx4 {vr(HP(0),4)}, v12, s[36:39], s57 offen{SC}')
    a(f'buffer_store_dwordx4 {vr(HP(4),4)}, v12, s[36:39], s57 offen offset:16{SC}')
    a(f'buffer_store_dword v{HP(8)}, v12, s[36:39], s57 offen offset:32{SC}')
    a('s_mov_b64 exec, 1')
    a(f'buffer_store_dwordx2 v[88:89], v86, s[36:39], s57 offen offset:1152{SC}')
    a('s_waitcnt vmcnt(0)')
    a(f'buffer_store_dword v86, v86, s[36:39], s59 offen offset:64{SC}')
    a('s_mov_b64 exec, -1')
    a('s_branch L_EXIT')
    lab(a, 'L_PLAIN')
    out_store({0: '', 1: SC, 2: ' nt'}[OPT['outsc']])
    a('s_branch L_EXIT')

    def key_poll(pre):
        ND = OPT['depth']
        KS = lambda j: 32 + 2 * j
        a(f's_mov_b32 s56, {WS_KEYS}')
        a(f's_mov_b32 s55, {WS_KEYS + 8192}')
        a('s_mov_b32 s58, 0')
        a('s_mov_b32 s45, -1')
        a('v_lshlrev_b32 v8, 7, v0')
        for r in range(28, 32):
            a(f'v_mov_b32 v{r}, 0')
        for j in range(ND):
            a(f'v_mov_b32 v{KS(j)}, -1')
            a(f'v_mov_b32 v{KS(j)+1}, -1')
        lab(a, pre + 'SLOW')
        a(f'buffer_load_dword v16, v8, s[36:39], s56 offen{SC}')
        a(f'buffer_load_dword v17, v8, s[36:39], s55 offen{SC}')
        a('s_add_u32 s58, s58, 1')
        a('s_waitcnt vmcnt(0)')
        a('v_min_u32 v20, v16, v17')
        a('v_cmp_ne_u32 vcc, -1, v20')
        a(f's_cmp_lt_u32 s58, {SPIN_LIMIT}')
        a(f's_cbranch_scc0 {pre}FAST')
        a('s_cmp_lg_u64 vcc, 0')
        a(f's_cbranch_scc1 {pre}FAST')
        a(f's_sleep {OPT["slow"]}')
        a(f's_branch {pre}SLOW')
        lab(a, pre + 'FAST')

        def scan():
            a('v_min_u32 v20, v16, v17')
            a('v_cmp_eq_u32 s[50:51], -1, v16')
            a('v_cmp_eq_u32 s[42:43], -1, v17')
            dpp_reduce(a, 'v_min_u32', [20])
            a('v_readlane_b32 s57, v20, 63')
            a('s_and_b32 s46, s57, 0x7ff')
            a('s_lshr_b32 s46, s46, 4')
            a('s_mul_i32 s47, s46, 1152')
            a(f's_add_u32 s47, s47, {WS_HN}')

        def issue(j):
            a('s_or_b64 exec, s[50:51], 1')
            a(f'buffer_load_dword v{KS(j)}, v8, s[36:39], s56 offen{SC}')
            a('s_or_b64 exec, s[42:43], 1')
            a(f'buffer_load_dword v{KS(j)+1}, v8, s[36:39], s55 offen{SC}')
            a('s_cmp_lg_u32 s45, s57')
            a('s_cselect_b64 exec, -1, 1')
            a(f'buffer_load_dwordx4 v[24:27], v4, s[36:39], s47 offen{SC}')
            a('s_cselect_b64 exec, 0xff, 1')
            a(f'buffer_load_dwordx4 v[28:31], v5, s[36:39], s47 offen{SC}')
            a('s_mov_b64 exec, -1')
            a('s_cselect_b32 s44, 0, s44')
            a('s_add_u32 s44, s44, 1')
            a('s_mov_b32 s45, s57')
        a('s_mov_b32 s44, 0')
        scan()
        for j in range(ND):
            issue(j)
            if j < ND - 1:
                a(f's_sleep {OPT["gap"]}')
        lab(a, pre + 'LOOP')
        for j in range(ND):
            a(f's_waitcnt vmcnt({4*(ND-1)})')
            a(f'v_min_u32 v16, v16, v{KS(j)}')
            a(f'v_min_u32 v17, v17, v{KS(j)+1}')
            scan()
            a('s_or_b64 vcc, s[50:51], s[42:43]')
            a(f's_cbranch_scc0 {pre}ALLK')
            issue(j)
        a('s_add_u32 s58, s58, 1')
        a(f's_cmp_lt_u32 s58, {SPIN_LIMIT}')
        a(f's_cbranch_scc1 {pre}LOOP')
        lab(a, pre + 'ALLK')
        a('s_cmp_lg_u32 s45, s57')
        a(f's_cbranch_scc1 {pre}ROWLD')
        a(f's_cmp_ge_u32 s44, {ND}')
        a(f's_cbranch_scc1 {pre}CHK2')
        a(f's_branch {pre}CHK')
        lab(a, pre + 'ROWLD')
        a(f'buffer_load_dwordx4 v[24:27], v4, s[36:39], s47 offen{SC}')
        a('s_mov_b64 exec, 0xff')
        a(f'buffer_load_dwordx4 v[28:31], v5, s[36:39], s47 offen{SC}')
        a('s_mov_b64 exec, -1')
        lab(a, pre + 'CHK')
        a('s_waitcnt vmcnt(0)')
        lab(a, pre + 'CHK2')
        a('s_add_u32 s58, s58, 1')
        a('v_max3_u32 v20, v24, v25, v26')
        a('v_max3_u32 v21, v27, v28, v29')
        a('v_max3_u32 v20, v20, v30, v31')
        a('v_max_u32 v20, v20, v21')
        a('v_cmp_eq_u32 vcc, -1, v20')
        a(f's_cmp_lt_u32 s58, {2*SPIN_LIMIT}')
        a(f's_cbranch_scc0 {pre}GOT')
        a('s_cmp_eq_u64 vcc, 0')
        a(f's_cbranch_scc0 {pre}ROWLD')
        lab(a, pre + 'GOT')

    lab(a, 'L_FFN')
    NTW = ' nt' if OPT['ntw'] else ''
    a('v_and_b32 v2, 15, v0')
    a('v_lshrrev_b32 v3, 4, v0')
    a('v_lshlrev_b32 v4, 4, v0')
    a('v_add_u32 v5, 1024, v4')
    a('s_and_b32 s3, s2, 7')
    a('s_mul_i32 s3, s3, 9')
    a('s_lshr_b32 s41, s2, 3')
    a('s_add_u32 s3, s3, s41')
    srd(a, 16, 66, WG_BYTES)
    srd(a, 20, 68, WG_BYTES)
    srd(a, 24, 70, WG_BYTES)
    srd(a, 36, 14, WS_RANGE)
    a('v_lshrrev_b32 v8, 3, v0')
    a('v_and_b32 v9, 7, v0')
    a('v_and_b32 v10, 2, v8')
    a('v_xor_b32 v9, v9, v10')
    a('s_and_b32 s58, s40, 1')
    a('s_lshl_b32 s58, s58, 2')
    a('v_xor_b32 v9, s58, v9')
    a('v_lshlrev_b32 v9, 4, v9')
    a('v_mul_u32_u24 v15, 9216, v8')
    a('v_add_u32 v15, v15, v9')
    a('v_xor_b32 v14, 64, v15')
    a('v_mul_u32_u24 v11, 1152, v8')
    a('v_add_u32 v11, v11, v9')
    a('s_mul_i32 s59, s40, 663552')
    a('s_lshl_b32 s58, s3, 7')
    a('s_add_u32 s59, s59, s58')
    a('s_mul_i32 s55, s40, 9216')
    for q in range(9):
        for mat in range(2):
            a(f's_add_u32 m0, s55, {mat*73728 + q*1024}')
            a(f'buffer_load_dwordx4 v{15 - (q & 1)}, s[{16+4*mat}:{19+4*mat}], s59 offen{NTW} lds')
        if q < 8:
            a('s_add_u32 s59, s59, 73728')
    a('s_mul_i32 s59, s3, 73728')
    a('s_add_u32 s59, s59, s55')
    DS = lambda c: 200 + 4 * c
    for c in range(9):
        a(f'buffer_load_dwordx4 {vr(DS(c),4)}, v11, s[24:27], s59 offen offset:{c*128}{NTW}')
    a('v_add_u32 v11, s55, v4')
    a('v_bfe_u32 v13, v0, 2, 2')
    a('v_lshrrev_b32 v10, 1, v13')
    a('v_and_b32 v6, 1, v3')
    a('v_lshl_add_u32 v10, v6, 1, v10')
    a('s_and_b32 s57, s40, 3')
    a('s_lshr_b32 s56, s40, 2')
    a('v_xor_b32 v10, s57, v10')
    a('v_lshlrev_b32 v10, 5, v10')
    a('v_and_b32 v6, 3, v0')
    a('v_lshl_add_u32 v10, v6, 3, v10')
    a('v_lshl_add_u32 v10, v13, 7, v10')
    a('v_mul_u32_u24 v14, 9216, v3')
    a('v_add_u32 v14, v14, v10')
    a('s_lshl_b32 s58, s56, 10')
    a('v_add_u32 v14, s58, v14')
    a('v_lshl_add_u32 v13, v3, 10, v10')
    a('s_mul_i32 s54, s56, 36864')
    a('v_add_u32 v13, s54, v13')
    a('v_add_u32 v12, 73728, v13')
    a('s_waitcnt vmcnt(9)')
    srd(a, 76, 74, 256)
    a('v_mov_b32 v250, 0')
    a('s_cmp_eq_u32 s40, 7')
    a('s_cselect_b32 s78, 256, 0')
    a(f'buffer_load_dword v251, v250, s[76:79], 0 offen{SC}')
    a('s_barrier')
    fpoint(a, 10)
    WF = lambda mat, k: 64 + (k * 2 + mat) * 4
    for k in range(9):
        for mat in range(2):
            for h in range(2):
                a(f'ds_read_b64_tr_b16 {vr(WF(mat,k)+2*h,2)}, v{13 if mat == 0 else 12} offset:{k*4096 + h*512}')
        if k % 3 == 2:
            a('s_waitcnt lgkmcnt(0)')
    a('s_barrier')
    a('s_waitcnt vmcnt(0)')
    for c in range(9):
        a(f'ds_write_b128 v11, {vr(DS(c),4)} offset:{c*1024}')
    a('v_cmp_eq_u32 s[48:49], 1, v3')
    a('v_cmp_eq_u32 s[52:53], 2, v3')
    a('v_cmp_eq_u32 s[60:61], 3, v3')
    a('s_mul_i32 s58, s56, 576')
    a(f's_add_u32 s58, s58, {LDS_XS}')
    a('v_lshl_add_u32 v6, v3, 4, s58')
    a('s_lshl_b32 s58, s56, 9')
    a('s_lshl_b32 s54, s57, 6')
    a('s_add_u32 s58, s58, s54')
    a(f's_add_u32 s58, s58, {LDS_RED}')
    a('v_lshl_add_u32 v7, v2, 2, s58')
    a('v_lshlrev_b32 v9, 2, v0')
    a(f'v_add_u32 v10, {LDS_RED}, v9')
    a('s_lshl_b32 s58, s40, 7')
    a(f's_add_u32 s58, s58, {LDS_ACT}')
    a('v_lshl_add_u32 v11, v0, 1, s58')
    a('v_lshl_add_u32 v12, v3, 4, s58')
    a('s_mul_i32 s62, s3, 2304')
    a(f's_add_u32 s62, s62, {WS_PART}')
    a('s_lshl_b32 s58, s40, 6')
    a('s_add_u32 s63, s62, s58')
    a('s_add_u32 s63, s63, 2048')
    a('s_lshl_b32 s58, s40, 8')
    a('s_add_u32 s62, s62, s58')
    a('s_waitcnt lgkmcnt(0)')
    a('s_barrier')
    fpoint(a, 11)
    DF = lambda kap, m: 136 + (m * 2 + kap) * 4
    for m in range(5):
        for kap in range(2):
            for h in range(2):
                a(f'ds_read_b64_tr_b16 {vr(DF(kap,m)+2*h,2)}, v14 offset:{kap*36864 + h*512 + m*2048}')
        if m % 2 == 1:
            a('s_waitcnt lgkmcnt(0)')
    a('s_waitcnt lgkmcnt(0)')
    stamp(a, 11)
    a('s_cmp_lg_u32 s40, 7')
    a('s_cbranch_scc1 L_FWAIT')
    a('v_readfirstlane_b32 s59, v251')
    a(f's_cmp_ge_u32 s59, {NCLR}')
    a('s_cbranch_scc1 L_WC2_OK')
    wait_cleared(a, 'L_WC2')
    key_poll('L_K')
    a(f'v_add_u32 v8, {LDS_XS}, v4')
    a('ds_write_b128 v8, v[24:27]')
    a('s_mov_b64 exec, 0xff')
    a('ds_write_b128 v8, v[28:31] offset:1024')
    a('s_mov_b64 exec, -1')
    a('s_waitcnt lgkmcnt(0)')
    lab(a, 'L_FWAIT')
    a('s_barrier')
    fpoint(a, 12)
    stamp(a, 12)
    XF = lambda k: 176 + 4 * k
    for k in range(9):
        a(f'ds_read_b128 {vr(XF(k),4)}, v6 offset:{k*64}')
    for k in range(9):
        a(f's_waitcnt lgkmcnt({8-k})')
        for mat in range(2):
            c = '0' if k == 0 else vr(52 + 4 * mat, 4)
            a(f'v_mfma_f32_16x16x32_bf16 {vr(52+4*mat,4)}, {vr(XF(k),4)}, {vr(WF(mat,k),4)}, {c}')
    a('s_mov_b64 exec, 0xffff')
    a('ds_write2st64_b32 v7, v52, v56 offset0:0 offset1:1')
    a('s_mov_b64 exec, -1')
    a('s_waitcnt lgkmcnt(0)')
    a('s_barrier')
    stamp(a, 13)
    a('ds_read2st64_b32 v[16:17], v10 offset0:0 offset1:1')
    a('ds_read2st64_b32 v[18:19], v10 offset0:2 offset1:3')
    a('s_waitcnt vmcnt(0) lgkmcnt(0)')
    a('v_pk_add_f32 v[16:17], v[16:17], v[18:19]')
    a('v_cvt_pk_bf16_f32 v18, v16, v17')
    a('v_lshlrev_b32 v16, 16, v18')
    a('v_and_b32 v17, 0xffff0000, v18')
    a('v_mul_f32 v19, 0xbfb8aa3b, v16')
    a('v_exp_f32 v19, v19')
    a('v_add_f32 v19, 1.0, v19')
    a('v_rcp_f32 v19, v19')
    a('v_mul_f32 v19, v19, v16')
    bfround(a, 19, 19)
    a('v_mul_f32 v19, v19, v17')
    a('v_cvt_pk_bf16_f32 v19, v19, v19')
    a('ds_write_b16 v11, v19')
    a('s_waitcnt lgkmcnt(0)')
    a('ds_read_b128 v[20:23], v12')
    a('ds_read_b128 v[24:27], v12 offset:64')
    DA = lambda m: 28 + 4 * m
    for kap in range(2):
        a(f's_waitcnt lgkmcnt({1-kap})')
        for m in range(5):
            c = '0' if kap == 0 else vr(DA(m), 4)
            a(f'v_mfma_f32_16x16x32_bf16 {vr(DA(m),4)}, {vr(20+4*kap,4)}, {vr(DF(kap,m),4)}, {c}')
    a('v_mov_b32 v17, 0x7fc00000')
    a(f'v_cndmask_b32 v16, v{DA(0)}, v{DA(1)}, s[48:49]')
    a(f'v_cndmask_b32 v16, v16, v{DA(2)}, s[52:53]')
    a(f'v_cndmask_b32 v16, v16, v{DA(3)}, s[60:61]')
    a('v_cmp_eq_u32 vcc, -1, v16')
    a('v_cndmask_b32 v16, v16, v17, vcc')
    a(f'buffer_store_dword v16, v9, s[36:39], s62 offen{SC}')
    a('s_cmp_ge_u32 s40, 4')
    a('s_cbranch_scc1 L_FDONE')
    a(f'v_cmp_eq_u32 vcc, -1, v{DA(4)}')
    a(f'v_cndmask_b32 v18, v{DA(4)}, v17, vcc')
    a('s_mov_b64 exec, 0xffff')
    a(f'buffer_store_dword v18, v9, s[36:39], s63 offen{SC}')
    a('s_mov_b64 exec, -1')
    lab(a, 'L_FDONE')
    stamp(a, 14)
    a('s_branch L_EXIT')

    lab(a, 'L_FIN')
    a('v_and_b32 v2, 15, v0')
    a('v_lshrrev_b32 v3, 4, v0')
    a('v_lshlrev_b32 v4, 4, v0')
    a('v_add_u32 v5, 1024, v4')
    a('v_lshlrev_b32 v9, 2, v0')
    srd(a, 36, 14, WS_RANGE)
    a('s_sub_u32 s42, s2, 72')
    a('s_mul_i32 s41, s40, 20736')
    a('s_lshl_b32 s43, s42, 8')
    a('s_add_u32 s41, s41, s43')
    a(f's_add_u32 s41, s41, {WS_PART}')
    a('s_lshl_b32 s45, s40, 8')
    a('v_add_u32 v10, s45, v9')
    srd(a, 32, 72, X_BYTES)
    a('s_lshl_b32 s44, s42, 4')
    a('s_cmp_lt_u32 s42, 8')
    a('s_cselect_b32 s43, 7, 4')
    a('s_cselect_b32 s44, s44, 512')
    a('v_lshlrev_b32 v12, s43, v3')
    a('v_add3_u32 v12, v12, v2, s44')
    a('v_lshlrev_b32 v12, 1, v12')
    a('v_mov_b32 v63, 0')
    a('s_cmp_lg_u32 s40, 7')
    a('s_cbranch_scc1 L_NWAIT')
    key_poll('L_N')
    lpoint(a, 7)
    lab(a, 'L_NWAIT')
    a('s_barrier')
    stamp(a, 12)
    a('s_cmp_lg_u32 s40, 7')
    a('s_cbranch_scc1 L_PP')
    a('s_lshl_b32 s48, s46, 7')
    a(f's_add_u32 s48, s48, {WS_KEYS + 64}')
    a('v_mov_b32 v8, 0')
    a('s_mov_b32 s58, 0')
    lab(a, 'L_FPOLL')
    a(f'buffer_load_dword v11, v8, s[36:39], s48 offen{SC}')
    a('s_add_u32 s58, s58, 1')
    a('s_waitcnt vmcnt(0)')
    a('v_readfirstlane_b32 s44, v11')
    a('s_cmp_lg_u32 s44, -1')
    a('s_cbranch_scc1 L_FGOT2')
    a(f's_cmp_lt_u32 s58, {SPIN_LIMIT}')
    a('s_cbranch_scc1 L_FPOLL')
    lab(a, 'L_FGOT2')
    a('s_mul_i32 s45, s46, 1280')
    a(f's_add_u32 s45, s45, {WS_H}')
    a('v_mov_b32 v60, 0')
    a('v_mov_b32 v61, 0')
    a(f'buffer_load_short_d16_hi v60, v12, s[36:39], s47 offen{SC}')
    a(f'buffer_load_short_d16_hi v61, v12, s[36:39], s45 offen{SC}')
    a(f'buffer_load_dwordx2 v[62:63], v8, s[36:39], s45 offen offset:1152{SC}')
    lab(a, 'L_PP')
    a('s_mov_b32 s58, 0')
    lab(a, 'L_PPOLL')
    a('s_mov_b32 s43, s41')
    P = lambda p: 32 + p
    for p in range(9):
        a(f'buffer_load_dword v{P(p)}, v9, s[36:39], s43 offen{SC}')
        if p < 8:
            a('s_add_u32 s43, s43, 2304')
    a('s_add_u32 s58, s58, 1')
    a('s_waitcnt vmcnt(0)')
    a(f'v_max3_u32 v16, v{P(0)}, v{P(1)}, v{P(2)}')
    a(f'v_max3_u32 v17, v{P(3)}, v{P(4)}, v{P(5)}')
    a(f'v_max3_u32 v18, v{P(6)}, v{P(7)}, v{P(8)}')
    a('v_max3_u32 v16, v16, v17, v18')
    a('v_cmp_eq_u32 vcc, -1, v16')
    a(f'v_pk_add_f32 v[18:19], {vr(P(0),2)}, {vr(P(2),2)}')
    a(f'v_pk_add_f32 v[20:21], {vr(P(4),2)}, {vr(P(6),2)}')
    a('s_cmp_eq_u64 vcc, 0')
    a('s_cbranch_scc1 L_PGOT')
    a(f's_cmp_lt_u32 s58, {SPIN_LIMIT}')
    a('s_cbranch_scc1 L_PPOLL')
    lab(a, 'L_PGOT')
    a('v_pk_add_f32 v[18:19], v[18:19], v[20:21]')
    a(f'v_add_f32 v18, v18, v{P(8)}')
    a('v_add_f32 v18, v18, v19')
    a('ds_write_b32 v10, v18')
    a('s_waitcnt lgkmcnt(0)')
    stamp(a, 13)
    a('s_barrier')
    a('s_cmp_lg_u32 s40, 7')
    a('s_cbranch_scc1 L_EXIT')
    for w in range(4):
        a(f'ds_read2st64_b32 {vr(16+2*w,2)}, v9 offset0:{2*w} offset1:{2*w+1}')
    bfround(a, 62, 62)
    a('v_mul_f32 v30, 0xbfb8aa3b, v62')
    a('v_exp_f32 v30, v30')
    a('v_mul_u32_u24 v63, 1152, v63')
    a('v_add_f32 v30, 1.0, v30')
    a('v_rcp_f32 v30, v30')
    a('v_add_u32 v63, v63, v12')
    bfround(a, 30, 30)
    a('s_waitcnt lgkmcnt(0)')
    a('v_pk_add_f32 v[16:17], v[16:17], v[18:19]')
    a('v_pk_add_f32 v[20:21], v[20:21], v[22:23]')
    a('v_pk_add_f32 v[16:17], v[16:17], v[20:21]')
    a('v_add_f32 v16, v16, v17')
    bfround(a, 16, 16)
    a('v_mul_f32 v16, v16, v30')
    bfround(a, 16, 16)
    a('v_add_f32 v16, v16, v60')
    bfround(a, 16, 16)
    a('v_add_f32 v16, v16, v61')
    a('v_cvt_pk_bf16_f32 v16, v16, v16')
    a('buffer_store_short v16, v63, s[32:35], 0 offen')
    if OPT['ls']:
        a('s_memrealtime s[92:93]')
        a('s_waitcnt lgkmcnt(0)')
        if OPT['ls'] > 1:
            a('s_mov_b32 s92, s94')
        a('s_sub_u32 s92, s92, s90')
        if OPT.get('cyc'):
            a('s_lshr_b32 s92, s92, 4')
        a('v_mov_b32 v20, s92')
        a('s_lshl_b32 s93, s2, 2')
        a(f's_add_u32 s93, s93, {WS_STAMP}')
        a('v_mov_b32 v21, 0')
        a('buffer_store_dword v20, v21, s[36:39], s93 offen')
    stamp(a, 14)
    lab(a, 'L_EXIT')
    if STAMP:
        a('s_waitcnt vmcnt(0)')
        stamp(a, 15)
        stamp_flush(a)
    lab(a, 'L_END')
    a('s_endpgm')
    a.label('CODE_END')


HEADER = """
FNet (pre-LN) Fourier mixing + Mixture-of-Depths top-1 SwiGLU block, gfx950, one launch (written by dev/gen3.py).
Kernarg: 0 A_x, 8/16 seq DFT re/im, 24/32 hidden DFT re/im (fixed DFT constants; their values are rebuilt on chip),
         40 B_x (unused by the reference), 48 w_r, 56 w_gate, 64 w_up, 72 w_down, 80 out, 88 debug, 96 workspace.
y = Re(DFT_seq(DFT_hid(LN(x)))) is evaluated as a Cooley-Tukey factorisation 2048 = 64 x 32 on the matrix cores:
  phase 1 (workgroups 64..255): rows {32*s1 + s2}, LayerNorm folded into the hidden DFT (half spectrum), 64-point stage -> u
  phase 2 (workgroups 128..255): 32-point stage with twiddles, residual, LayerNorm, router score, output rows
  FFN     (workgroups 0..71)   : 64 hidden columns each, weights parked on chip until the routed token is known
  finish  (workgroups 72..80)  : sum of the partial outputs, routed row
Hand-offs use write-through stores and words reset at the start of every launch (counter in d_debug); all spins are bounded.
"""


def main(path):
    a = Asm()
    for l in HEADER.strip('\n').split('\n'):
        a.raw(('; ' + l).rstrip())
    if OPT['aslist']:
        a.raw(f'; @launch kernel={NAME} grid=(256,1,1) block=(512,1,1) lds={LDS_TOTAL}')
    else:
        a.raw(f'; @launch grid=(256,1,1) block=(512,1,1) lds={LDS_TOTAL}')
    a.raw('.amdgcn_target "amdgcn-amd-amdhsa--gfx950"')
    a.raw('.text')
    gen(a)
    a.raw('.section .rodata,"a"')
    a.raw(f'''.p2align 6
.amdhsa_kernel {NAME}
  .amdhsa_next_free_vgpr 256
  .amdhsa_next_free_sgpr {100 if (STAMP or OPT['ls']) else 88}
  .amdhsa_accum_offset 256
  .amdhsa_group_segment_fixed_size 0
  .amdhsa_kernarg_size 104
  .amdhsa_user_sgpr_count 2
  .amdhsa_user_sgpr_kernarg_segment_ptr 1
  .amdhsa_system_sgpr_workgroup_id_x 1
.end_amdhsa_kernel
''')
    open(path, 'w').write(a.text())


if __name__ == '__main__':
    for arg in sys.argv[2:]:
        if arg == 'stamp':
            STAMP = True
        else:
            k, v = arg.split('=')
            OPT[k] = int(v)
    main(sys.argv[1])
```

```python
import sys
import struct
from asmdsl import Asm, Cnt, vr, sr

NAME = 'sequential_preLN__spectral_fnet__moe_arch_mod__prompt_kernel'
S, D, F = 2048, 576, 4608
X_BYTES = S * D * 2
SEQ_BYTES = S * S * 2
HID_BYTES = D * D * 2
WG_BYTES = D * F * 2
WS_U = 0
WS_KEYS = 0x240000
WS_UF = WS_KEYS + 16384
WS_PART = WS_UF + 192 * 64
WS_HN = WS_PART + 72 * 2304
WS_FILL_END = WS_HN + 128 * 1152
WS_H = 0x2a0000
WS_RANGE = 0x900000
WS_STAMP = 0x800000
assert WS_FILL_END <= WS_H and WS_FILL_END - WS_KEYS <= 64 * 8192

STAMP = False
OPT = dict(ahead=9, warm=0, hwait=1, ls=0, hfirst=7, wpf=1, wpf_at=0, usent=0, outsc=1, depth=2, slow=6, gap=0, codepf=1, ntw=0, ipf=0, fearly=1, coop=0, st=7, gent=1, rot=0, r6=0, al8=0, split=0, g1=3, cmul=1, npre=9, ilv=2, wpoll=1, sleep=1, aslist=0)
SC = ' sc1'
SPIN_LIMIT = 400000
NCLR = 16
INVB = struct.unpack('<I', struct.pack('<f', 1.0 / 576.0))[0]
EPSB = struct.unpack('<I', struct.pack('<f', 1e-5))[0]

P1_B = 73728
P1_F = 135168
P1_ST = 151552
LDS_T = 152064
LDS_C = LDS_T + 4096
LDS_XS = 152064
LDS_RED = LDS_XS + 1280
LDS_ACT = LDS_RED + 1024
LDS_CNT = LDS_C + 64
LDS_TOTAL = LDS_C + 128
R_Y = 73728
R_YS = 2312
R_STG = R_Y + 16 * R_YS
R_X = R_STG + 16 * 1152 + 1024
R_W = R_X + 16 * 1152
assert R_W + 1152 + 1024 <= P1_ST
GROUPS = [(0, 0, 0), (1, 0, 5), (None, 0, 1), (2, 0, 6), (None, 0, 2), (3, 0, 7), (None, 0, 3), (4, 1, 8), (None, 0, 4)]
STAGES = [[0], [1], [2, 3], [4, 5], [6, 7], [8]]


def srd(a, d, b, nbytes):
    a(f's_mov_b32 s{d}, s{b}')
    a(f's_mov_b32 s{d+1}, s{b+1}')
    a(f's_mov_b32 s{d+2}, {nbytes}')
    a(f's_mov_b32 s{d+3}, 0x00020000')


def stamp(a, k):
    if STAMP:
        if k == 0:
            a('v_mov_b32 v1, 0')
        a('s_memrealtime s[92:93]')
        a('s_waitcnt lgkmcnt(0)')
        a(f'v_writelane_b32 v1, s92, {k}')


def lpoint(a, k):
    if OPT['ls'] == k:
        a('s_memtime s[94:95]' if OPT.get('cyc') else 's_memrealtime s[94:95]')
        a('s_waitcnt lgkmcnt(0)')


def fpoint(a, k):
    if OPT['ls'] == k:
        a('s_memrealtime s[94:95]')
        a('s_waitcnt lgkmcnt(0)')
        a('s_sub_u32 s94, s94, s90')
        a('v_mov_b32 v236, s94')
        a('s_lshl_b32 s95, s2, 2')
        a(f's_add_u32 s95, s95, {WS_STAMP + 4096}')
        a('v_mov_b32 v237, 0')
        a('buffer_store_dword v236, v237, s[36:39], s95 offen')


def stamp_flush(a):
    if not STAMP:
        return
    a('s_mov_b32 exec_lo, -1')
    a('s_mov_b32 exec_hi, 0')
    srd(a, 96, 14, WS_RANGE)
    a('s_lshl_b32 s95, s2, 3')
    a('s_add_u32 s95, s95, s40')
    a('s_lshl_b32 s95, s95, 7')
    a(f's_add_u32 s95, s95, {WS_STAMP}')
    a('v_lshlrev_b32 v0, 2, v0')
    a('buffer_store_dword v1, v0, s[96:99], s95 offen')


def bfround(a, dst, src):
    a(f'v_cvt_pk_bf16_f32 v{dst}, v{src}, v{src}')
    a(f'v_and_b32 v{dst}, 0xffff0000, v{dst}')


def dpp_reduce(a, op, regs, upto=6):
    ms = [('row_shr:1', '0xf'), ('row_shr:2', '0xf'), ('row_shr:4', '0xf'), ('row_shr:8', '0xf'), ('row_bcast:15', '0xa'), ('row_bcast:31', '0xc')]
    for m, rm in ms[:upto]:
        for r in regs:
            a(f'{op}_dpp v{r}, v{r}, v{r} {m} row_mask:{rm} bank_mask:0xf')


def lab(a, name):
    a.label(name)
    a.flush_hist()


def wait_cleared(a, name):
    srd(a, 76, 74, 256)
    a('v_mov_b32 v250, 0')
    a('s_mov_b32 s58, 0')
    lab(a, name)
    a(f'buffer_load_dword v251, v250, s[76:79], 0 offen{SC}')
    a('s_add_u32 s58, s58, 1')
    a('s_waitcnt vmcnt(0)')
    a('v_readfirstlane_b32 s59, v251')
    a(f's_cmp_ge_u32 s59, {NCLR}')
    a(f's_cbranch_scc1 {name}_OK')
    a('s_sleep 8')
    a(f's_cmp_lt_u32 s58, {SPIN_LIMIT}')
    a(f's_cbranch_scc1 {name}')
    lab(a, name + '_OK')


def gen(a):
    global STAGES
    STAGES = [[[0], [1], [2, 3], [4, 5], [6, 7], [8]], [[0, 1], [2, 3], [4, 5], [6, 7], [8]], [[i] for i in range(9)],
              [[0], [1, 2], [3, 4], [5, 6], [7], [8]], [[0], [1, 2, 3], [4, 5, 6], [7, 8]], [[0, 1, 2], [3, 4, 5], [6, 7, 8]], [[0, 1, 2, 3], [4, 5, 6, 7, 8]], [[0, 1], [2, 3, 4], [5, 6, 7, 8]]][OPT['st']]
    global GROUPS
    if OPT['gent']:
        GROUPS = [(None, 0, c) for c in range(9)]
        OPT['fearly'] = 0
        if OPT['split']:
            GROUPS = [(None, 0, c) for c in (0, 1, 4, 5, 2, 3, 6, 7, 8)]
            STAGES = [[0, 1, 2, 3], [4, 5, 6], [7, 8]]
    fb = lambda x: '0x%08x' % struct.unpack('<I', struct.pack('<f', float(x)))[0]

    def gensetup(theta, R):
        C, Sn = R, R + 8
        for j in range(8):
            a(f'v_mul_f32 v{Sn+j}, {fb(j)}, v{theta}')
        for j in range(8):
            a(f'v_cos_f32 v{C+j}, v{Sn+j}')
            a(f'v_sin_f32 v{Sn+j}, v{Sn+j}')
        a(f'v_mul_f32 v{theta}, {fb(32)}, v{theta}')

    def genloop(name, theta, base, addr, count, R):
        C, Sn, T0, BR, BI, O = R, R + 8, R + 16, R + 32, R + 34, R + 36
        a(f's_mov_b32 s53, {count}')
        lab(a, name)
        a(f'v_cos_f32 v{BR}, v{base}')
        a(f'v_sin_f32 v{BI}, v{base}')
        a(f'v_add_f32 v{base}, v{base}, v{theta}')
        a('s_sub_u32 s53, s53, 1')
        for h in range(4):
            a(f'v_pk_mul_f32 {vr(T0+2*h,2)}, {vr(C+2*h,2)}, {vr(BR,2)} op_sel_hi:[1,0]')
            a(f'v_pk_mul_f32 {vr(T0+8+2*h,2)}, {vr(Sn+2*h,2)}, {vr(BR,2)} op_sel_hi:[1,0]')
        for h in range(4):
            a(f'v_pk_fma_f32 {vr(T0+2*h,2)}, {vr(Sn+2*h,2)}, {vr(BI,2)}, {vr(T0+2*h,2)} op_sel_hi:[1,0,1] neg_lo:[0,1,0] neg_hi:[0,1,0]')
            a(f'v_pk_fma_f32 {vr(T0+8+2*h,2)}, {vr(C+2*h,2)}, {vr(BI,2)}, {vr(T0+8+2*h,2)} op_sel_hi:[1,0,1]')
        a('s_waitcnt lgkmcnt(0)')
        for h in range(4):
            a(f'v_cvt_pk_bf16_f32 v{O+h}, v{T0+2*h}, v{T0+2*h+1}')
            a(f'v_cvt_pk_bf16_f32 v{O+4+h}, v{T0+8+2*h}, v{T0+8+2*h+1}')
        a(f'ds_write_b128 v{addr}, {vr(O,4)}')
        a(f'ds_write_b128 v{addr}, {vr(O+4,4)} offset:1024')
        a(f'v_add_u32 v{addr}, 2048, v{addr}')
        a('s_cmp_lg_u32 s53, 0')
        a(f's_cbranch_scc1 {name}')
        a.flush_hist()
        a('s_waitcnt lgkmcnt(0)')

    def trig(theta, r0, consts, dre, dim, tmp):
        for j in range(8):
            a(f'v_fmamk_f32 v{tmp+j}, v{theta}, {fb(consts[j])}, v{r0}')
        for j in range(8):
            a(f'v_cos_f32 v{tmp+8+j}, v{tmp+j}')
            a(f'v_sin_f32 v{tmp+j}, v{tmp+j}')
        for j in range(4):
            a(f'v_cvt_pk_bf16_f32 v{dre+j}, v{tmp+8+2*j}, v{tmp+8+2*j+1}')
            a(f'v_cvt_pk_bf16_f32 v{dim+j}, v{tmp+2*j}, v{tmp+2*j+1}')
    a.raw(f'.globl {NAME}')
    a.raw('.p2align 8')
    a.raw(f'.type {NAME},@function')
    lab(a, NAME)
    if OPT['ls']:
        a('s_memtime s[90:91]' if OPT.get('cyc') else 's_memrealtime s[90:91]')
    a('s_cmp_ge_u32 s2, 256')
    a('s_cbranch_scc1 L_END')
    if OPT['rot']:
        a(f's_add_u32 s2, s2, {OPT["rot"]}')
        a('s_and_b32 s2, s2, 255')
    a('s_load_dwordx8 s[4:11], s[0:1], 0')
    a('s_load_dwordx2 s[12:13], s[0:1], 32')
    a('s_load_dwordx2 s[14:15], s[0:1], 96')
    a('s_load_dwordx8 s[64:71], s[0:1], 48')
    a('s_load_dwordx4 s[72:75], s[0:1], 80')
    a('v_lshrrev_b32 v1, 6, v0')
    a('v_readfirstlane_b32 s40, v1')
    def helper_code():
        lab(a, 'L_HELP')
        a(f's_cmp_ge_u32 s2, {NCLR}')
        a('s_cbranch_scc1 L_HELP2')
        NF = (WS_FILL_END - WS_KEYS + NCLR * 8192 - 1) // (NCLR * 8192)
        a('v_lshlrev_b32 v13, 4, v0')
        for r in range(28, 32):
            a(f'v_mov_b32 v{r}, -1')
        a(f's_mul_i32 s54, s2, {NF*8192}')
        a(f's_add_u32 s54, s54, {WS_KEYS}')
        a(f's_mov_b32 s62, {WS_FILL_END}')
        a('s_mov_b32 s63, 0x00020000')
        a('v_mov_b32 v6, 0')
        a('v_mov_b32 v7, 1')
        a('s_waitcnt lgkmcnt(0)')
        a('s_mov_b32 s60, s14')
        a('s_mov_b32 s61, s15')
        for q in range(NF):
            a(f'buffer_store_dwordx4 v[28:31], v13, s[60:63], s54 offen{SC}')
            if q < NF - 1:
                a('s_add_u32 s54, s54, 8192')
        srd(a, 76, 74, 256)
        a('v_and_b32 v0, 63, v0')
        a('s_and_b32 s41, s2, 7')
        a('s_lshr_b32 s42, s2, 3')
        a('s_waitcnt vmcnt(0)')
        a('s_barrier')
        a('s_cmp_lg_u32 s40, 7')
        a('s_cbranch_scc1 L_HELP4')
        a('s_mov_b64 exec, 1')
        a('buffer_atomic_add v7, v6, s[76:79], 0 offen')
        a('s_mov_b64 exec, -1')
        a('s_branch L_HELP4')
        lab(a, 'L_HELP2')
        a('v_and_b32 v0, 63, v0')
        a('s_and_b32 s41, s2, 7')
        a('s_lshr_b32 s42, s2, 3')
        a('s_cmp_ge_u32 s40, 5')
        a('s_cbranch_scc1 L_HELP3')
        if OPT['warm']:
            a('s_sub_u32 s43, s42, 2')
            a('v_mul_u32_u24 v8, 9216, v0')
            a('v_mul_u32_u24 v10, 1152, v0')
            a('s_mul_i32 s48, s43, 344')
            a('s_add_u32 s48, s48, s41')
            a('s_mul_i32 s48, s48, 1152')
            a('s_lshl_b32 s50, s40, 8')
            a('s_add_u32 s48, s48, s50')
            a('s_mul_i32 s49, s43, 55296')
            a('s_lshl_b32 s50, s40, 7')
            a('s_add_u32 s49, s49, s50')
            a('s_waitcnt lgkmcnt(0)')
            srd(a, 16, 4, X_BYTES)
            srd(a, 28, 10, HID_BYTES)
            srd(a, 32, 12, HID_BYTES)
            a('s_mov_b32 exec_hi, 0x7ff')
            a('buffer_load_dword v18, v8, s[16:19], s48 offen')
            if not OPT['gent']:
                a('s_mov_b32 exec_hi, 0xffff')
                a('buffer_load_dword v16, v10, s[28:31], s49 offen offset:1152')
                a('buffer_load_dword v17, v10, s[32:35], s49 offen offset:1152')
                a('s_mov_b32 exec_hi, 0x7ff')
            a('buffer_load_dword v19, v8, s[16:19], s48 offen offset:128')
            a('s_mov_b32 exec_hi, -1')
        a('s_branch L_HELP4')
        lab(a, 'L_HELP3')
        a('s_cmp_eq_u32 s40, 5')
        a('s_cbranch_scc1 L_HELP5')
        a('s_cmp_eq_u32 s40, 7')
        a('s_cbranch_scc1 L_HELP4')
        if OPT['codepf']:
            a('s_getpc_b64 s[76:77]')
            a.label('L_PC')
            a(f's_sub_u32 s76, s76, L_PC-{NAME}')
            a('s_subb_u32 s77, s77, 0')
            a('v_lshlrev_b32 v7, 7, v0')
            for q in range(3):
                if q:
                    a('v_add_u32 v7, 8192, v7')
                a(f'v_cmp_gt_u32 vcc, CODE_END-{NAME}, v7')
                a('v_cndmask_b32 v8, 0, v7, vcc')
                a(f'global_load_dword v{20+q}, v8, s[76:77]')
        a('s_branch L_HELP4')
        lab(a, 'L_HELP5')
        if OPT['warm'] and not OPT['gent']:
            a('v_lshlrev_b32 v12, 17, v0')
            a('s_sub_u32 s52, s42, 2')
            a(f's_mul_i32 s52, s52, {11*131072}')
            a('s_waitcnt lgkmcnt(0)')
            srd(a, 20, 6, SEQ_BYTES)
            srd(a, 24, 8, SEQ_BYTES)
            a('s_mov_b64 exec, 0x7ff')
            a('buffer_load_dword v19, v12, s[20:23], s52 offen')
            a('buffer_load_dword v20, v12, s[24:27], s52 offen')
            a('s_mov_b64 exec, -1')
        lab(a, 'L_HELP4')
        a('s_waitcnt lgkmcnt(0)')
        stamp(a, 0)
        stamp(a, 1)
        if OPT['hwait']:
            a('s_waitcnt vmcnt(0)')
        for _ in range(OPT.get('hdelay', 0)):
            a('s_sleep 32')
        a('s_barrier')
        a('s_cmp_ge_u32 s40, 2')
        a('s_cbranch_scc1 L_FFN')
        srd(a, 16, 66, WG_BYTES)
        srd(a, 20, 68, WG_BYTES)
        srd(a, 24, 70, WG_BYTES)
        a('s_mul_i32 s43, s42, 72')
        a('s_mul_i32 s44, s40, 36')
        a('s_add_u32 s43, s43, s44')
        a('s_mul_i32 s44, s41, 9')
        a('s_add_u32 s44, s44, 8')
        a('s_mul_i32 s45, s43, 9216')
        a('s_lshl_b32 s46, s44, 7')
        a('s_add_u32 s45, s45, s46')
        a('s_mul_i32 s46, s44, 73728')
        a('s_lshl_b32 s47, s43, 7')
        a('s_add_u32 s46, s46, s47')
        a('v_mul_u32_u24 v6, 9216, v0')
        a('v_lshlrev_b32 v7, 7, v0')
        a('s_mov_b32 exec_hi, 0xf')
        a('buffer_load_dword v240, v6, s[16:19], s45 offen')
        a('buffer_load_dword v241, v6, s[20:23], s45 offen')
        a('buffer_load_dword v242, v7, s[24:27], s46 offen')
        a('s_mov_b32 exec_hi, -1')
        a('s_branch L_FFN')


    if OPT['hfirst']:
        a('s_cmp_ge_u32 s2, 64')
        a('s_cbranch_scc1 L_PROD')
        helper_code()
        lab(a, 'L_PROD')
    else:
        a('s_cmp_lt_u32 s2, 64')
        a('s_cbranch_scc1 L_HELP')
    a('v_and_b32 v0, 63, v0')
    a('s_and_b32 s41, s2, 31')
    a('s_lshr_b32 s42, s2, 5')
    a('s_sub_u32 s42, s42, 2')
    a('v_lshrrev_b32 v3, 4, v0')
    a('s_cmp_ge_u32 s42, 3')
    a('s_cselect_b32 s43, 1, 0')
    a('s_cmp_lt_u32 s40, 4')
    a('s_cbranch_scc1 L_P1MM')
    vm = Cnt(a, 'vmcnt', 63)
    a('v_lshrrev_b32 v8, 3, v0')
    a('v_and_b32 v9, 7, v0')
    a('v_xor_b32 v9, v9, v3')
    a('v_lshlrev_b32 v9, 4, v9')
    a('s_sub_u32 s44, s40, 4')
    a('s_lshr_b32 s45, s44, 1')
    a('s_lshl_b32 s45, s45, 5')
    a('s_and_b32 s51, s44, 1')
    a('s_lshl_b32 s46, s51, 2')
    a('s_add_u32 s45, s45, s46')
    a('v_lshrrev_b32 v6, 2, v8')
    a('v_lshlrev_b32 v6, 3, v6')
    a('v_and_b32 v10, 3, v8')
    a('v_add3_u32 v6, v6, v10, s45')
    a('v_mul_u32_u24 v6, 36864, v6')
    a('s_mul_i32 s47, s41, 1152')
    a('v_xor_b32 v10, 64, v9')
    a('v_add_u32 v7, s47, v6')
    a('v_add_u32 v6, v7, v9')
    a('v_add_u32 v7, v7, v10')
    a(f'v_add_u32 v7, {16*36864}, v7')
    a('s_lshl_b32 s48, s44, 11')
    if not OPT['gent']:
        a('s_mul_i32 s50, s42, 96')
        a('s_mul_i32 s52, s43, 287')
        a('s_sub_u32 s50, s50, s52')
        a('s_lshl_b32 s52, s51, 4')
        a('s_add_u32 s50, s50, s52')
        a('v_lshl_add_u32 v40, v8, 1, s50')
        a('s_lshl_b32 s52, s51, 6')
        a('v_xor_b32 v43, s52, v9')
        a('v_mul_u32_u24 v41, 1152, v40')
        a('v_cmp_eq_u32 vcc, 0, v40')
        a(f'v_mov_b32 v42, {288*1152}')
        a('v_cndmask_b32 v40, v41, v42, vcc')
        a('v_add_u32 v40, v40, v43')
        a('v_add_u32 v41, v41, v43')
        a('v_add_u32 v42, 73728, v41')
        a('v_add_u32 v41, 36864, v41')
        a('s_lshl_b32 s53, s44, 10')
        a(f's_add_u32 s53, s53, {P1_B}')
        a('s_cmp_ge_u32 s44, 2')
        a(f's_mov_b32 s30, {HID_BYTES}')
        a('s_mov_b32 s31, 0x00020000')
    a('s_waitcnt lgkmcnt(0)')
    if not OPT['gent']:
        a('s_cselect_b32 s28, s12, s10')
        a('s_cselect_b32 s29, s13, s11')
    srd(a, 16, 4, X_BYTES)
    stamp(a, 0)
    lpoint(a, 2)

    def issue(st):
        for gi in STAGES[st]:
            cb, withF, c = GROUPS[gi]
            for hh in range(2):
                a(f's_add_u32 m0, s48, {c*8192 + hh*1024 - c*128}')
                a(f'buffer_load_dwordx4 v{6+hh}, s[16:19], 0 offen offset:{c*128} lds')
                vm.issue(st)
            if cb is not None:
                for w in range(3):
                    a(f's_add_u32 m0, s53, {w*20480 + cb*4096 - cb*128}')
                    a(f'buffer_load_dwordx4 v{40+w}, s[28:31], 0 offen offset:{cb*128} lds')
                    vm.issue(st)
            if withF and not OPT['fearly']:
                for part in range(2):
                    for hh in range(2):
                        a(f's_add_u32 m0, s49, {P1_F + (part*2+hh)*1024}')
                        a(f'buffer_load_dwordx4 v{14+hh}, s[{20+4*part}:{23+4*part}], 0 offen lds')
                        vm.issue(st)
    NS = len(STAGES)
    AH = min(OPT['ahead'], NS)
    for st in range(AH):
        issue(st)
    if OPT['gent']:
        a('v_and_b32 v14, 7, v0')
        a('s_lshl_b32 s46, s44, 3')
        a('v_add_u32 v14, s46, v14')
        a('v_sub_u32 v15, 64, v14')
        a('v_cmp_eq_u32 vcc, 64, v15')
        a('v_cndmask_b32 v15, v15, 32, vcc')
        a('v_and_b32 v16, 8, v0')
        a('v_cmp_eq_u32 vcc, 0, v16')
        a('v_cndmask_b32 v14, v15, v14, vcc')
        a('v_cvt_f32_u32 v14, v14')
        a(f'v_mul_f32 v14, {fb(-1.0/64)}, v14')
        a('v_lshlrev_b32 v15, 3, v3')
        a('v_cvt_f32_u32 v15, v15')
        a('v_mul_f32 v15, v15, v14')
        a('s_lshl_b32 s49, s44, 12')
        a(f's_add_u32 s49, s49, {P1_F}')
        a('v_lshl_add_u32 v16, v0, 4, s49')
    else:
        a('s_lshl_b32 s46, s44, 3')
        a('v_add_u32 v14, s46, v8')
        a('v_sub_u32 v15, 64, v14')
        a('v_cmp_eq_u32 vcc, 64, v15')
        a('v_cndmask_b32 v15, v15, 32, vcc')
        a('v_lshl_add_u32 v14, v14, 17, v9')
        a('v_lshl_add_u32 v15, v15, 17, v10')
        a('s_lshl_b32 s49, s44, 12')
        srd(a, 20, 6, SEQ_BYTES)
        srd(a, 24, 8, SEQ_BYTES)
    if OPT['gent'] and OPT['split']:
        a('s_min_u32 s50, s44, 2')
        a('s_lshl_b32 s51, s50, 5')
        a('s_mul_i32 s50, s42, 96')
        a('s_add_u32 s50, s50, s51')
        a('s_mul_i32 s51, s43, 287')
        a('s_sub_u32 s50, s50, s51')
        a('v_and_b32 v17, 15, v0')
        a('v_lshl_add_u32 v17, v17, 1, s50')
        a('v_cmp_eq_u32 vcc, 0, v17')
        a('v_mov_b32 v18, 288')
        a('v_cndmask_b32 v17, v17, v18, vcc')
        a('v_cvt_f32_u32 v17, v17')
        a(f'v_mul_f32 v17, {fb(-1.0/576)}, v17')
        a('v_lshlrev_b32 v18, 3, v3')
        a('v_add_u32 v18, 96, v18')
        a('v_cvt_f32_u32 v18, v18')
        a('v_mul_f32 v18, v18, v17')
        a('s_mul_i32 s50, s44, 20480')
        a(f's_add_u32 s50, s50, {P1_B + 3*2048}')
        a('v_lshl_add_u32 v19, v0, 4, s50')
        a('s_cmp_eq_u32 s44, 3')
        a('s_cbranch_scc1 L_NOGB1')
        gensetup(17, 96)
        genloop('L_GB1', 17, 18, 19, OPT['g1'], 96)
        lab(a, 'L_NOGB1')
    for st in range(NS):
        vm.wait(st)
        if st in (0, NS - 1):
            stamp(a, 1 if st == 0 else 2)
            lpoint(a, 3 if st == 0 else 4)
        a('s_barrier')
        if OPT['gent'] and OPT['split'] and st == 0:
            a('s_cmp_eq_u32 s44, 3')
            a('s_cbranch_scc1 L_NOGB2')
            genloop('L_GB2', 17, 18, 19, 6 - OPT['g1'], 96)
            lab(a, 'L_NOGB2')
        if OPT['gent'] and st == (1 if OPT['split'] else 0):
            gensetup(14, 48)
            genloop('L_GF', 14, 15, 16, 2, 48)
        if st + AH < NS:
            issue(st + AH)
        if st == OPT['wpf_at'] and OPT['wpf']:
            srd(a, 32, 66, WG_BYTES)
            srd(a, 36, 68, WG_BYTES)
            srd(a, 60, 70, WG_BYTES)
            a('s_sub_u32 s54, s2, 64')
            a('s_lshr_b32 s54, s54, 3')
            a('s_lshl_b32 s54, s54, 2')
            a('s_add_u32 s54, s54, s44')
            a('s_and_b32 s55, s2, 7')
            a('s_mul_i32 s56, s54, 55296')
            a('s_mul_i32 s57, s55, 1152')
            a('s_add_u32 s56, s56, s57')
            a('s_mul_i32 s57, s55, 663552')
            a('s_mul_i32 s58, s54, 6912')
            a('s_add_u32 s57, s57, s58')
            a('s_mov_b32 s58, 0x1c72')
            a('v_mul_u32_u24 v44, s58, v0')
            a('v_lshrrev_b32 v44, 16, v44')
            a('v_mul_u32_u24 v45, 9, v44')
            a('v_sub_u32 v45, v0, v45')
            a('v_mul_u32_u24 v44, 9216, v44')
            a('v_lshl_add_u32 v44, v45, 7, v44')
            a('v_lshlrev_b32 v45, 7, v0')
            a('s_mov_b32 exec_hi, 0x3fffff')
            a('buffer_load_dword v240, v44, s[32:35], s56 offen')
            vm.issue('pf')
            a('buffer_load_dword v241, v44, s[36:39], s56 offen')
            vm.issue('pf')
            a('buffer_load_dword v242, v45, s[60:63], s57 offen')
            vm.issue('pf')
            a('s_mov_b32 exec_hi, -1')
    a('s_barrier')
    a('s_cmp_lt_u32 s2, 128')
    a('s_cbranch_scc1 L_P2')
    a('s_barrier')
    a('s_branch L_ROWP')

    lab(a, 'L_P1MM')
    a('s_setprio 2')
    a('v_and_b32 v2, 15, v0')
    a('v_lshrrev_b32 v4, 1, v2')
    a('v_xor_b32 v4, v4, v3')
    a('v_lshlrev_b32 v4, 4, v4')
    a('v_lshl_add_u32 v4, v2, 7, v4')
    a('v_xor_b32 v5, 64, v4')
    for r in range(12, 16):
        a(f'v_mov_b32 v{r}, 0x3f803f80')
    XA, XB, BB, FB = 4, 242, 244, 246
    for b in range(2):
        a(f'v_add_u32 v{XB+b}, 0x10000, v{4+b}')
    if OPT['fearly']:
        a('v_lshrrev_b32 v8, 3, v0')
        a('v_and_b32 v9, 7, v0')
        a('v_xor_b32 v9, v9, v3')
        a('v_lshlrev_b32 v9, 4, v9')
        a('v_xor_b32 v10, 64, v9')
        a('s_lshl_b32 s46, s40, 3')
        a('v_add_u32 v6, s46, v8')
        a('v_sub_u32 v7, 64, v6')
        a('v_cmp_eq_u32 vcc, 64, v7')
        a('v_cndmask_b32 v7, v7, 32, vcc')
        a('v_lshl_add_u32 v6, v6, 17, v9')
        a('v_lshl_add_u32 v7, v7, 17, v10')
        a('s_lshl_b32 s49, s40, 12')
    if OPT['coop']:
        a('s_lshl_b32 s50, s42, 2')
        a('s_lshr_b32 s50, 0x876543, s50' if OPT['gent'] else 's_lshr_b32 s50, 0x483726, s50')
        a('s_and_b32 s50, s50, 15')
        a('s_lshl_b32 s50, s50, 7')
        a('s_mul_i32 s51, s41, 1152')
        a('s_add_u32 s50, s50, s51')
        a('s_mul_i32 s51, s42, 96')
        a('s_mul_i32 s52, s43, 287')
        a('s_sub_u32 s51, s51, s52')
        a('s_mul_i32 s51, s51, 1152')
        a('s_lshr_b32 s52, s41, 3')
        a('s_lshl_b32 s52, s52, 7')
        a('s_add_u32 s51, s51, s52')
        a('s_add_u32 s51, s51, 128')
        a('s_movk_i32 s52, 2304')
        a('s_cmp_eq_u32 s40, 0')
        a('s_cselect_b32 s52, 36864, s52')
        a('v_mul_u32_u24 v11, s52, v0')
    a('s_waitcnt lgkmcnt(0)')
    if OPT['fearly']:
        srd(a, 20, 6, SEQ_BYTES)
        srd(a, 24, 8, SEQ_BYTES)
        for part in range(2):
            for hh in range(2):
                a(f's_add_u32 m0, s49, {P1_F + (part*2+hh)*1024}')
                a(f'buffer_load_dwordx4 v{6+hh}, s[{20+4*part}:{23+4*part}], 0 offen lds')
    if OPT['coop']:
        a('s_cmp_eq_u32 s40, 1')
        a('s_cselect_b32 s16, s10, s12')
        a('s_cselect_b32 s17, s11, s13')
        a(f's_mov_b32 s18, {HID_BYTES}')
        a('s_cmp_eq_u32 s40, 0')
        a('s_cselect_b32 s16, s4, s16')
        a('s_cselect_b32 s17, s5, s17')
        a(f's_cselect_b32 s18, {X_BYTES}, s18')
        a('s_cselect_b32 s50, s50, s51')
        a('s_cselect_b32 exec_hi, -1, 0xffff')
        a('s_cmp_ge_u32 s40, 1' if OPT['gent'] else 's_cmp_eq_u32 s40, 3')
        a('s_cselect_b32 s18, 0, s18')
        a('s_mov_b32 s19, 0x00020000')
        a('buffer_load_dword v6, v11, s[16:19], s50 offen')
        a('s_mov_b32 exec_hi, -1')
    stamp(a, 0)
    a('s_cmp_eq_u32 s40, 3')
    a('s_cbranch_scc1 L_STATS')
    lg = Cnt(a, 'lgkmcnt', 15)
    a('s_mul_i32 s44, s42, 3')
    a('s_add_u32 s44, s44, s40')
    a('s_mul_i32 s48, s40, 20480')
    a(f's_add_u32 s48, s48, {P1_B}')
    srd(a, 36, 14, WS_RANGE)
    for b in range(2):
        a(f'v_add_u32 v{BB+b}, s48, v{4+b}')
        a(f'v_add_u32 v{FB+b}, {P1_F}, v{4+b}')
    a('s_lshr_b32 s46, s41, 1')
    a('s_and_b32 s46, s46, 1')
    a('s_xor_b32 s46, s46, s44')
    a('s_lshl_b32 s46, s46, 7')
    a('s_mul_i32 s47, s41, 2304')
    a('s_add_u32 s46, s46, s47')
    a('s_and_b32 s47, s41, 1')
    a('s_lshl_b32 s47, s47, 2')
    a('v_lshrrev_b32 v7, 3, v0')
    a('v_and_b32 v9, 7, v0')
    a('v_xor_b32 v9, v9, v7')
    a('v_xor_b32 v9, s47, v9')
    a('v_mul_u32_u24 v7, 73728, v7')
    a('v_lshl_add_u32 v7, v9, 4, v7')
    a('v_add_u32 v7, s46, v7')
    a('v_and_b32 v9, 7, v2')
    a('v_lshrrev_b32 v240, 3, v2')
    a('v_lshl_add_u32 v240, v240, 2, v3')
    a('v_xor_b32 v240, v240, v9')
    a('v_lshlrev_b32 v240, 4, v240')
    a('v_lshl_add_u32 v240, v9, 7, v240')
    a('s_lshl_b32 s47, s40, 12')
    a('v_add_u32 v240, s47, v240')
    a('v_lshl_add_u32 v241, v0, 4, s47')
    a('v_lshlrev_b32 v8, 4, v3')
    a(f'v_add_u32 v8, {P1_ST}, v8')
    a('s_cmp_eq_u32 s43, 0')
    a('s_cselect_b32 s47, 1.0, -1.0')
    a('v_mov_b32 v10, s47')
    a('v_mov_b32 v11, s47')
    for it in range(1, 4):
        a(f's_mov_b32 s{59+it}, {it*8*73728}')
    Bre = lambda k: 16 + 8 * k
    Bim = lambda k: 20 + 8 * k
    acc = lambda hf, i, ab: (88, 120, 56)[hf] + (i * 2 + ab) * 4
    cacc = lambda ab: 152 + 4 * ab
    R6 = OPT['r6'] and OPT['gent']
    STR = 56 if R6 else 208
    Abuf = lambda b, i: 160 + b * 16 + i * 4
    st8 = dict(started=set(), bufno=0, passed=-1, lg=lg, Abuf=Abuf)
    Fregs = [Bre(k) for k in range(1, 8)] + [Bim(k) for k in range(1, 8)] + [248, 252]
    Freg = lambda f: Fregs[f]

    def rd_x(kk):
        b = st8['bufno'] % 3
        st8['bufno'] += 1
        c, par = kk >> 1, kk & 1
        for i in range(4):
            off = c * 8192 + i * 2048
            base = XA + par
            if off >= 65536:
                off -= 65536
                base = XB + par
            a(f'ds_read_b128 {vr(st8["Abuf"](b,i),4)}, v{base} offset:{off}')
            st8['lg'].issue(('x', kk))
        return b

    def rd_B(k):
        c, par = k >> 1, k & 1
        for part, reg in ((0, Bre(k)), (1, Bim(k))):
            if OPT['gent']:
                a(f'ds_read_b128 {vr(reg,4)}, v247 offset:{k*2048 + part*1024}')
            else:
                a(f'ds_read_b128 {vr(reg,4)}, v{BB+par} offset:{(c*4 + part*2)*1024}')
            lg.issue(('B', k))

    def rd_F(f):
        it, kap, part = f >> 2, (f >> 1) & 1, f & 1
        if OPT['gent']:
            a(f'ds_read_b128 {vr(Freg(f),4)}, v{FB} offset:{f*1024}')
        else:
            a(f'ds_read_b128 {vr(Freg(f),4)}, v{FB+kap} offset:{(it*2+part)*2048}')
        lg.issue('F')

    def mf(dst, A, B):
        c = vr(dst, 4) if dst in st8['started'] else '0'
        st8['started'].add(dst)
        a(f'v_mfma_f32_16x16x32_bf16 {vr(dst,4)}, {vr(A,4)}, {vr(B,4)}, {c}')

    steps = [(st, kk) for st, gs in enumerate(STAGES) for gi in gs for kk in (2 * GROUPS[gi][2], 2 * GROUPS[gi][2] + 1)]
    if OPT['gent'] and OPT['split']:
        steps = [(0, kk) for kk in (0, 1, 2, 9, 10, 11)] + [(1, kk) for kk in (3, 4, 5, 6, 7, 8, 12, 13)] + [(2, kk) for kk in (14, 15, 16, 17)]
    NSTEP = len(steps)
    haveB = set()
    bufs = {}

    def fetch(n, withB=True):
        st, kk = steps[n]
        while st8['passed'] < st:
            st8['passed'] += 1
            if st8['passed'] == len(STAGES) - 1:
                a('s_waitcnt vmcnt(0)')
            a('s_barrier')
            if OPT['al8']:
                a.raw('    .p2align 3')
        k = kk % 9
        if withB and k not in haveB:
            haveB.add(k)
            rd_B(k)
        bufs[n] = rd_x(kk)
    if OPT['gent']:
        a('v_lshlrev_b32 v246, 4, v0')
        a(f'v_add_u32 v246, {P1_F}, v246')
        a('s_mul_i32 s50, s42, 96')
        a('s_mul_i32 s51, s43, 287')
        a('s_sub_u32 s50, s50, s51')
        a('s_lshl_b32 s51, s40, 5')
        a('s_add_u32 s50, s50, s51')
        a('v_lshl_add_u32 v244, v2, 1, s50')
        a('v_cmp_eq_u32 vcc, 0, v244')
        a('v_mov_b32 v245, 288')
        a('v_cndmask_b32 v244, v244, v245, vcc')
        a('v_cvt_f32_u32 v244, v244')
        a(f'v_mul_f32 v244, {fb(-1.0/576)}, v244')
        a('v_lshlrev_b32 v245, 3, v3')
        a('v_cvt_f32_u32 v245, v245')
        a('v_mul_f32 v245, v245, v244')
        for j in range(8):
            a(f'v_mul_f32 v{216+j}, {fb(j)}, v244')
        NG = 3 if (OPT['split'] or R6) else 9
        a('v_lshl_add_u32 v247, v0, 4, s48')
        for k in range(NG):
            a(f'v_fmamk_f32 v{160+4*k+2}, v244, {fb(32*k)}, v245')
        for j in range(8):
            a(f'v_cos_f32 v{208+j}, v{216+j}')
            a(f'v_sin_f32 v{216+j}, v{216+j}')
        for k in range(NG):
            a(f'v_cos_f32 v{160+4*k}, v{160+4*k+2}')
            a(f'v_sin_f32 v{160+4*k+2}, v{160+4*k+2}')
        for k in range(NG):
            br, bi = 160 + 4 * k, 160 + 4 * k + 2
            T0 = 224
            for h in range(4):
                a(f'v_pk_mul_f32 {vr(T0+2*h,2)}, {vr(208+2*h,2)}, {vr(br,2)} op_sel_hi:[1,0]')
                a(f'v_pk_mul_f32 {vr(T0+8+2*h,2)}, {vr(216+2*h,2)}, {vr(br,2)} op_sel_hi:[1,0]')
            for h in range(4):
                a(f'v_pk_fma_f32 {vr(T0+2*h,2)}, {vr(216+2*h,2)}, {vr(bi,2)}, {vr(T0+2*h,2)} op_sel_hi:[1,0,1] neg_lo:[0,1,0] neg_hi:[0,1,0]')
                a(f'v_pk_fma_f32 {vr(T0+8+2*h,2)}, {vr(208+2*h,2)}, {vr(bi,2)}, {vr(T0+8+2*h,2)} op_sel_hi:[1,0,1]')
            for h in range(4):
                a(f'v_cvt_pk_bf16_f32 v{Bre(k)+h}, v{T0+2*h}, v{T0+2*h+1}')
                a(f'v_cvt_pk_bf16_f32 v{Bim(k)+h}, v{T0+8+2*h}, v{T0+8+2*h+1}')
            haveB.add(k)
        pend = []
        Fregs[:] = [Bre(k) for k in range(0, 7)] + [Bim(k) for k in range(0, 7)] + [248, 252]
        if R6:
            haveB.update(range(9))
            Fregs[:] = [40, 44, 48, 52, 248, 252] + [208 + 4 * q for q in range(8)] + [16, 20]
            a(f'v_mul_f32 v11, {fb(96)}, v244')
            a(f'v_mul_f32 v245, {fb(192)}, v244')
            a('v_cos_f32 v10, v11')
            a('v_sin_f32 v11, v11')
            a('v_cos_f32 v244, v245')
            a('v_sin_f32 v245, v245')
            a('s_cmp_eq_u32 s43, 0')
            a('s_cselect_b32 s52, 0, 0x80008000')
    fetch(0)
    fetch(1)
    fq = list(range(16))
    a('v_mov_b32 v9, 0')
    if R6:
        for n, (st, kk) in enumerate(steps):
            k, seg = kk % 3, kk // 3
            lg.wait(('x', kk))
            b = bufs[n]
            flips = []
            if 7 <= kk <= 9:
                flips = [Bre(kk - 7) + r for r in range(8)]
            for i in range(4):
                mf(acc(seg % 3, i, 0), Abuf(b, i), Bre(k))
                if flips and not (kk == 9 and False):
                    r = flips.pop(0); a(f'v_xor_b32 v{r}, s52, v{r}')
                mf(acc(seg % 3, i, 1), Abuf(b, i), Bim(k))
                if flips:
                    r = flips.pop(0); a(f'v_xor_b32 v{r}, s52, v{r}')
                if i == 0 and n + 2 < NSTEP:
                    fetch(n + 2)
                if n >= NSTEP - 4 and fq and len(lg.q) < 13 and (len(fq) > 2 or n >= NSTEP - 2):
                    rd_F(fq.pop(0)); rd_F(fq.pop(0))
            if seg == 0:
                mf(cacc(0), 12, Bre(k))
                mf(cacc(1), 12, Bim(k))
        while fq:
            if len(lg.q) >= 13:
                lg.wait_all()
            rd_F(fq.pop(0)); rd_F(fq.pop(0))
        a('v_add_f32 v6, v10, v244')
        a('v_add_f32 v9, v11, v245')
        a('v_add_f32 v6, 1.0, v6')
        a('v_mul_f32 v154, v6, v152')
        a('v_mul_f32 v158, v6, v156')
        a('v_fma_f32 v154, -v9, v156, v154')
        a('v_fma_f32 v158, v9, v152, v158')
        a('v_mov_b32 v152, v154')
        a('v_mov_b32 v153, v154')
        a('v_mov_b32 v156, v158')
        a('v_mov_b32 v157, v158')
        LO = 'op_sel_hi:[1,0,1]'
        HI = 'op_sel:[0,1,0] op_sel_hi:[1,1,1]'
        NEG = 'neg_lo:[0,1,0] neg_hi:[0,1,0]'
        for sg, wp in ((1, 'v[10:11]'), (2, 'v[244:245]')):
            for term in range(2):
                for i in range(4):
                    for h in range(2):
                        gr, gi = vr(acc(0, i, 0) + 2 * h, 2), vr(acc(0, i, 1) + 2 * h, 2)
                        pr, pi = vr(acc(sg, i, 0) + 2 * h, 2), vr(acc(sg, i, 1) + 2 * h, 2)
                        if term == 0:
                            a(f'v_pk_fma_f32 {gr}, {pr}, {wp}, {gr} {LO}')
                            a(f'v_pk_fma_f32 {gi}, {pi}, {wp}, {gi} {LO}')
                        else:
                            a(f'v_pk_fma_f32 {gr}, {pi}, {wp}, {gr} {HI} {NEG}')
                            a(f'v_pk_fma_f32 {gi}, {pr}, {wp}, {gi} {HI}')
    else:
        for n, (st, kk) in enumerate(steps):
            k, hf = kk % 9, kk // 9
            lg.wait(('x', kk))
            if OPT['al8']:
                a.raw('    .p2align 3')
            b = bufs[n]
            while OPT['gent'] and pend and pend[0][0] <= k and hf == 0:
                a(pend.pop(0)[1])
            for i in range(4):
                mf(acc(hf, i, 0), Abuf(b, i), Bre(k))
                for _ in range(OPT['ilv']):
                    if OPT['gent'] and pend:
                        a(pend.pop(0)[1])
                mf(acc(hf, i, 1), Abuf(b, i), Bim(k))
                for _ in range(OPT['ilv']):
                    if OPT['gent'] and pend:
                        a(pend.pop(0)[1])
                if i == 0 and n + 2 < NSTEP:
                    fetch(n + 2)
                if n >= NSTEP - 2 and fq and len(lg.q) < 13:
                    rd_F(fq.pop(0)); rd_F(fq.pop(0))
            if hf == 0:
                mf(cacc(0), 12, Bre(k))
                mf(cacc(1), 12, Bim(k))
        while fq:
            if len(lg.q) >= 13:
                lg.wait_all()
            rd_F(fq.pop(0)); rd_F(fq.pop(0))
        for i in range(4):
            for ab in range(2):
                for h in range(2):
                    d = acc(0, i, ab) + 2 * h
                    s1 = acc(1, i, ab) + 2 * h
                    a(f'v_pk_fma_f32 {vr(d,2)}, {vr(s1,2)}, v[10:11], {vr(d,2)}')
    lg.wait_all()
    stamp(a, 1)
    a('s_barrier')
    for i in range(4):
        a(f'ds_read_b128 {vr(STR+4*i,4)}, v8 offset:{i*64}')
        lg.issue(('st', i))
        a(f'ds_read_b128 {vr(STR+16+4*i,4)}, v8 offset:{256+i*64}')
        lg.issue(('st', i))
    za = lambda kap: 160 + 4 * kap
    zb = lambda kap: 168 + 4 * kap
    znb = lambda kap: 176 + 4 * kap
    out = lambda it, c: 120 + (it * 2 + c) * 4
    TMP = 184
    st8['started'] = set()
    Fidx = lambda it, kap, part: (it * 2 + kap) * 2 + part

    def zops(kap):
        L = []
        for hh in range(2):
            i = 2 * kap + hh
            for ab in range(2):
                for h in range(2):
                    t = TMP + ((hh * 2 + ab) * 2 + h) * 2
                    L.append(f'v_pk_mul_f32 {vr(t,2)}, {vr(STR+16+4*i+2*h,2)}, {vr(cacc(ab),2)}')
        for hh in range(2):
            i = 2 * kap + hh
            for ab in range(2):
                for h in range(2):
                    d = acc(0, i, ab) + 2 * h
                    t = TMP + ((hh * 2 + ab) * 2 + h) * 2
                    L.append(f'v_pk_fma_f32 {vr(d,2)}, {vr(STR+4*i+2*h,2)}, {vr(d,2)}, {vr(t,2)} neg_lo:[0,0,1] neg_hi:[0,0,1]')
        for ab, z in ((0, za), (1, zb)):
            for hh in range(2):
                src = acc(0, 2 * kap + hh, ab)
                L.append(f'v_cvt_pk_bf16_f32 v{z(kap)+2*hh}, v{src}, v{src+1}')
                L.append(f'v_cvt_pk_bf16_f32 v{z(kap)+2*hh+1}, v{src+2}, v{src+3}')
        for r in range(4):
            L.append(f'v_xor_b32 v{znb(kap)+r}, 0x80008000, v{zb(kap)+r}')
        return L

    def mops(kap):
        L = []
        for it in range(4):
            L.append((out(it, 0), za(kap), Freg(Fidx(it, kap, 0))))
            L.append((out(it, 1), za(kap), Freg(Fidx(it, kap, 1))))
        for it in range(4):
            L.append((out(it, 0), znb(kap), Freg(Fidx(it, kap, 1))))
            L.append((out(it, 1), zb(kap), Freg(Fidx(it, kap, 0))))
        return L
    lg.wait(('st', 1))
    for ins in zops(0):
        a(ins)
    lg.wait(('st', 3))
    z1 = zops(1)
    for m in mops(0):
        mf(*m)
        for _ in range(2):
            if z1:
                a(z1.pop(0))
    while z1:
        a(z1.pop(0))
    m1 = mops(1)

    def upack(it):
        d = 184 + 4 * it
        a(f'v_cvt_pk_bf16_f32 v{d}, v{out(it,0)}, v{out(it,0)+1}')
        a(f'v_cvt_pk_bf16_f32 v{d+1}, v{out(it,0)+2}, v{out(it,0)+3}')
        a(f'v_cvt_pk_bf16_f32 v{d+2}, v{out(it,1)}, v{out(it,1)+1}')
        a(f'v_cvt_pk_bf16_f32 v{d+3}, v{out(it,1)+2}, v{out(it,1)+3}')
        a(f'ds_write_b128 v240, {vr(d,4)} offset:{it*1024}')
        lg.issue(('w', it))
        a(f'ds_read_b128 {vr(STR+4*it,4)}, v241 offset:{it*1024}')
        lg.issue(('r', it))

    def ustore(it):
        lg.wait(('r', it))
        so = '0' if it == 0 else f's{59+it}'
        a(f'buffer_store_dwordx4 {vr(STR+4*it,4)}, v7, s[36:39], {so} offen{SC}')
    for it in range(4):
        for m in (m1[2 * it], m1[2 * it + 1], m1[8 + 2 * it], m1[9 + 2 * it]):
            mf(*m)
        if it >= 2:
            upack(it - 2)
    upack(2)
    ustore(0)
    upack(3)
    ustore(1)
    ustore(2)
    ustore(3)
    stamp(a, 2)
    lab(a, 'L_ARRIVE')
    a(f'v_mov_b32 v10, {LDS_CNT}')
    a('v_mov_b32 v11, 1')
    a('v_mov_b32 v9, 0')
    a('s_sub_u32 s49, s2, 64')
    a('s_lshl_b32 s49, s49, 6')
    a(f's_add_u32 s49, s49, {WS_UF}')
    srd(a, 36, 14, WS_RANGE)
    a('s_waitcnt vmcnt(0)')
    a('s_mov_b64 exec, 1')
    a('ds_add_rtn_u32 v6, v10, v11')
    a('s_waitcnt lgkmcnt(0)')
    a('v_readfirstlane_b32 s59, v6')
    a('s_cmp_lg_u32 s59, 3')
    a('s_cbranch_scc1 L_NOFLAG')
    a(f'buffer_store_dword v9, v9, s[36:39], s49 offen{SC}')
    lab(a, 'L_NOFLAG')
    a('s_mov_b64 exec, -1')
    stamp(a, 3)
    a('s_cmp_lt_u32 s2, 128')
    a('s_cbranch_scc1 L_P2')
    a('s_barrier')
    a('s_setprio 0')
    a('s_branch L_ROWP')

    lab(a, 'L_STATS')
    lg = Cnt(a, 'lgkmcnt', 15)
    a('v_and_b32 v8, 3, v2')
    a('v_lshrrev_b32 v9, 2, v2')
    a('v_sub_u32 v9, v9, v3')
    a('v_and_b32 v9, 3, v9')
    for r in range(1, 4):
        a(f'v_cmp_eq_u32 s[{42+2*r}:{43+2*r}], {r}, v8')
        a(f'v_cmp_eq_u32 s[{48+2*r}:{49+2*r}], {r}, v9')
    a('v_lshlrev_b32 v10, 4, v9')
    a('v_lshl_add_u32 v10, v3, 2, v10')
    a('v_add_u32 v10, v10, v8')
    a('v_lshlrev_b32 v10, 2, v10')
    a(f'v_add_u32 v10, {P1_ST}, v10')
    a('s_cmp_eq_u32 s43, 0')
    a('s_cselect_b32 s56, 2.0, 0')
    a(f'v_mov_b32 v8, {LDS_CNT}')
    a('v_mov_b32 v9, 0')
    a('ds_write_b32 v8, v9')
    a('s_waitcnt lgkmcnt(0)')
    GR = lambda i: 16 + 4 * i
    SM = lambda i: 32 + 4 * i
    SAbuf = lambda b, i: 48 + b * 16 + i * 4
    st8.update(started=set(), bufno=0, passed=-1, lg=lg, Abuf=SAbuf)
    bufs = {}
    fetch(0, False)
    fetch(1, False)
    for n, (st, kk) in enumerate(steps):
        lg.wait(('x', kk))
        if OPT['al8']:
            a.raw('    .p2align 3')
        b = bufs[n]
        for i in range(4):
            mf(GR(i), SAbuf(b, i), SAbuf(b, i))
            mf(SM(i), 12, SAbuf(b, i))
            if i == 0 and n + 2 < NSTEP:
                fetch(n + 2, False)
    for i in range(4):
        for r in range(1, 4):
            a(f'v_cndmask_b32 v{GR(i)}, v{GR(i)}, v{GR(i)+r}, s[{42+2*r}:{43+2*r}]')
    for i in range(1, 4):
        a(f'v_mov_b32_dpp v{GR(i)+1}, v{GR(i)} row_ror:{4*i} row_mask:0xf bank_mask:0xf')
        a(f'v_mov_b32_dpp v{SM(i)+1}, v{SM(i)} row_ror:{4*i} row_mask:0xf bank_mask:0xf')
    for i in range(1, 4):
        a(f'v_cndmask_b32 v{GR(0)}, v{GR(0)}, v{GR(i)+1}, s[{48+2*i}:{49+2*i}]')
        a(f'v_cndmask_b32 v{SM(0)}, v{SM(0)}, v{SM(i)+1}, s[{48+2*i}:{49+2*i}]')
    q, m = GR(0), SM(0)
    a(f'v_mul_f32 v{m}, 0x{INVB:08x}, v{m}')
    a(f'v_mul_f32 v{q}, 0x{INVB:08x}, v{q}')
    a(f'v_fma_f32 v{q}, -v{m}, v{m}, v{q}')
    a(f'v_max_f32 v{q}, 0, v{q}')
    bfround(a, q, q)
    a(f'v_add_f32 v{q}, 0x{EPSB:08x}, v{q}')
    bfround(a, q, q)
    a(f'v_sqrt_f32 v{q}, v{q}')
    a(f'v_mul_f32 v{m}, s56, v{m}')
    bfround(a, q, q)
    a(f'v_rcp_f32 v{q}, v{q}')
    a(f'v_mul_f32 v{m}, v{m}, v{q}')
    a(f'ds_write_b32 v10, v{q}')
    a(f'ds_write_b32 v10, v{m} offset:256')
    a('s_waitcnt lgkmcnt(0)')
    stamp(a, 1)
    a('s_barrier')
    wait_cleared(a, 'L_WC1')
    a('s_branch L_ARRIVE')

    if not OPT['hfirst']:
        helper_code()

    lab(a, 'L_P2')
    a('s_setprio 0')
    if OPT['ipf']:
        a('s_cmp_ge_u32 s2, 88')
        a('s_cbranch_scc1 L_IPF')
    a('s_cmp_ge_u32 s2, 81')
    a('s_cbranch_scc1 L_EXIT')
    lpoint(a, 5)
    a('s_barrier')
    lpoint(a, 6)
    a('s_cmp_lt_u32 s2, 72')
    a('s_cbranch_scc1 L_FFN')
    a('s_branch L_FIN')

    if OPT['ipf']:
        lab(a, 'L_IPF')
        a('s_barrier')
        NTP = ' nt' if OPT['ntw'] else ''
        srd(a, 16, 66, WG_BYTES)
        srd(a, 20, 68, WG_BYTES)
        srd(a, 24, 70, WG_BYTES)
        a('s_and_b32 s41, s2, 7')
        a('s_sub_u32 s42, s2, 88')
        a('s_lshr_b32 s42, s42, 3')
        a('s_mov_b32 s43, 0x1c72')
        a('v_mul_u32_u24 v6, s43, v0')
        a('v_lshrrev_b32 v6, 16, v6')
        a('v_mul_u32_u24 v7, 9, v6')
        a('v_sub_u32 v7, v0, v7')
        a('v_mul_u32_u24 v6, 9216, v6')
        a('v_lshl_add_u32 v6, v7, 7, v6')
        a('s_mul_i32 s44, s40, 72')
        a('s_mul_i32 s45, s42, 7')
        a('s_add_u32 s44, s44, s45')
        a('s_add_u32 s44, s44, 37')
        a('s_mul_i32 s44, s44, 9216')
        a('s_mul_i32 s45, s41, 1152')
        a('s_add_u32 s44, s44, s45')
        a(f'buffer_load_dword v8, v6, s[16:19], s44 offen{NTP}')
        a(f'buffer_load_dword v9, v6, s[20:23], s44 offen{NTP}')
        a('v_lshlrev_b32 v7, 7, v0')
        a('s_lshl_b32 s45, s42, 3')
        a('s_add_u32 s45, s45, s40')
        a('s_mul_i32 s45, s45, 16640')
        a('s_mul_i32 s46, s41, 663552')
        a('s_add_u32 s45, s45, s46')
        a(f'buffer_load_dword v10, v7, s[24:27], s45 offen{NTP}')
        a('s_add_u32 s45, s45, 8448')
        a(f'buffer_load_dword v11, v7, s[24:27], s45 offen{NTP}')
        a('s_branch L_EXIT')

    XR = lambda k: 100 + k
    WR = lambda k: 120 + k
    T = lambda cls, kap: 32 + (cls * 2 + kap) * 4
    TW = lambda kap, part: 16 + (kap * 2 + part) * 4

    lab(a, 'L_ROWP')
    a('v_and_b32 v2, 15, v0')
    a('v_lshrrev_b32 v3, 4, v0')
    a('v_lshlrev_b32 v4, 4, v0')
    a('v_add_u32 v5, 1024, v4')
    a('s_and_b32 s41, s2, 31')
    a('s_lshr_b32 s42, s2, 5')
    a('s_sub_u32 s42, s42, 4')
    a('v_cmp_lt_u32 vcc, 7, v2')
    a('s_cmp_eq_u32 s41, 0')
    a('s_cbranch_scc1 L_P0')
    a('v_and_b32 v8, 7, v2')
    a('s_lshl_b32 s46, s42, 3')
    a('v_add_u32 v8, s46, v8')
    a('v_lshl_add_u32 v6, v8, 6, s41')
    a('v_sub_u32 v8, 2048, v6')
    a('v_cndmask_b32 v6, v6, v8, vcc')
    a('v_xor_b32 v7, 8, v2')
    a('s_branch L_ROWS')
    lab(a, 'L_P0')
    a('v_bfe_u32 v8, v2, 1, 2')
    a('s_lshl_b32 s46, s42, 2')
    a('v_add_u32 v8, s46, v8')
    a('v_sub_u32 v9, 32, v8')
    a('v_sub_u32 v10, 31, v8')
    a('v_cndmask_b32 v9, v9, v10, vcc')
    a('v_mov_b32 v11, 0')
    a('v_cndmask_b32 v11, v11, 32, vcc')
    a('v_cmp_eq_u32 vcc, 32, v9')
    a('v_cndmask_b32 v9, v9, 16, vcc')
    a('v_xor_b32 v7, 1, v2')
    a('v_cndmask_b32 v7, v7, v2, vcc')
    a('v_and_b32 v10, 1, v2')
    a('v_cmp_eq_u32 vcc, 1, v10')
    a('v_cndmask_b32 v8, v8, v9, vcc')
    a('v_lshl_add_u32 v6, v8, 6, v11')
    lab(a, 'L_ROWS')
    a('s_lshl_b32 s44, s40, 1')
    a('s_add_u32 s45, s44, 1')
    a('v_and_b32 v9, 1, v3')
    a('v_readlane_b32 s46, v6, s44')
    a('v_readlane_b32 s47, v6, s45')
    a('v_and_b32 v10, 31, v0')
    a('v_mul_u32_u24 v12, 36, v10')
    srd(a, 24, 4, X_BYTES)
    srd(a, 28, 64, D * 2)
    srd(a, 36, 14, WS_RANGE)
    srd(a, 32, 72, X_BYTES)
    XP, WP = 140, 152
    a('s_mul_i32 s48, s40, 2304')
    a(f's_add_u32 s49, s48, {R_STG}')
    a(f's_add_u32 s48, s48, {R_X}')
    a('s_mul_i32 s82, s46, 1152')
    a('s_mul_i32 s83, s47, 1152')
    for hrow in range(2):
        a(f's_add_u32 m0, s48, {hrow*1152}')
        a(f'buffer_load_dwordx4 v4, s[24:27], s{82+hrow} offen lds')
        a('s_mov_b64 exec, 0xff')
        a(f'buffer_load_dwordx4 v4, s[24:27], s{82+hrow} offen offset:1024 lds')
        a('s_mov_b64 exec, -1')
    a('s_mov_b32 m0, s49')
    a('v_add_u32 v88, s49, v12')
    a('buffer_load_dwordx4 v4, s[28:31], 0 offen lds')
    a('s_mov_b64 exec, 0xff')
    a('buffer_load_dwordx4 v4, s[28:31], 0 offen offset:1024 lds')
    a('s_mov_b64 exec, -1')
    a('v_add_u32 v89, s48, v4')
    a('s_mul_i32 s45, s40, 9216')
    a('s_mul_i32 s44, s41, 73728')
    a('s_add_u32 s44, s44, s45')
    a('s_lshl_b32 s56, s42, 11')
    stamp(a, 4)
    a('v_lshrrev_b32 v8, 2, v0')
    a('v_lshlrev_b32 v8, 11, v8')
    a('v_and_b32 v16, 3, v0')
    a('v_lshl_add_u32 v8, v16, 6, v8')
    a('s_lshl_b32 s48, s40, 8')
    a(f's_add_u32 s48, s48, {WS_UF}')
    a('s_mov_b32 s58, 0')
    a('s_mov_b64 s[76:77], 0xffffff')
    lab(a, 'L_UPOLL')
    a('s_mov_b64 exec, s[76:77]')
    a(f'buffer_load_dword v16, v8, s[36:39], s48 offen{SC}')
    a('s_add_u32 s58, s58, 1')
    a('s_waitcnt vmcnt(0)')
    a('v_cmp_ne_u32 s[76:77], 0, v16')
    a('s_mov_b64 exec, -1')
    a(f's_cmp_lt_u32 s58, {SPIN_LIMIT}')
    a('s_cbranch_scc0 L_UGO2')
    a('s_cmp_eq_u64 s[76:77], 0')
    a('s_cbranch_scc1 L_UGO2')
    a(f's_sleep {OPT["sleep"]}')
    a('s_branch L_UPOLL')
    lab(a, 'L_UGO2')
    stamp(a, 5)
    a('s_mov_b32 s84, 0')
    a(f'v_mov_b32 v85, {LDS_CNT}')

    def u_dma():
        for n in range(9):
            a('s_add_u32 m0, s45, s56')
            a('s_add_u32 s57, s44, s56')
            a(f'buffer_load_dwordx4 v4, s[36:39], s57 offen{SC} lds')
            a('s_add_u32 s56, s56, 1024')
            a('s_cmp_eq_u32 s56, 9216')
            a('s_cselect_b32 s56, 0, s56')
    u_dma()
    a('v_lshrrev_b32 v13, 1, v3')
    a('v_lshlrev_b32 v13, 3, v13')
    a('v_lshl_add_u32 v13, v9, 1, v13')
    a('v_bfe_u32 v11, v0, 3, 1')
    a('v_add_u32 v13, v13, v11')
    a('v_mul_u32_u24 v13, 2304, v13')
    a('v_lshl_add_u32 v13, v11, 6, v13')
    a('v_and_b32 v11, 3, v0')
    a('v_lshl_add_u32 v13, v11, 4, v13')
    a('v_bfe_u32 v11, v0, 2, 1')
    a('v_lshl_add_u32 v13, v11, 3, v13')
    a('v_xor_b32 v11, s40, v9')
    a('v_lshl_add_u32 v13, v11, 7, v13')
    a('v_xor_b32 v81, 64, v13')
    a(f'v_mul_u32_u24 v14, {R_YS}, v2')
    a('v_lshl_add_u32 v14, v3, 5, v14')
    a(f'v_mul_u32_u24 v11, {R_YS}, v7')
    a('v_lshlrev_b32 v8, 5, v3')
    a('v_sub_u32 v11, v11, v8')
    for jj in range(3):
        a(f's_add_u32 s48, s40, {6*jj}')
        a('s_lshl_b32 s49, s48, 7')
        a(f's_sub_u32 s50, s49, {9*128-4}')
        a('s_cmp_lt_u32 s48, 9')
        a('s_cselect_b32 s49, s49, s50')
        a(f's_add_u32 s50, s49, {R_Y}')
        a(f'v_add_u32 v{90+jj}, s50, v14')
        a(f's_sub_u32 s50, {R_Y + 576*4 - 24}, s49')
        a(f'v_add_u32 v{93+jj}, s50, v11')
    a('v_lshrrev_b32 v8, 5, v0')
    a('s_lshl_b32 s48, s40, 1')
    a('v_add_u32 v8, s48, v8')
    a(f'v_mul_u32_u24 v97, {R_YS}, v8')
    a(f'v_add_u32 v97, {R_Y}, v97')
    a('v_lshl_add_u32 v96, v12, 1, v97')
    a('v_mul_u32_u24 v98, 1152, v8')
    a('v_add_u32 v98, v98, v12')
    a(f'v_add_u32 v98, {R_STG}, v98')
    a('v_cmp_eq_u32 s[60:61], 16, v10')
    a('v_cmp_eq_u32 s[62:63], 0, v10')
    a(f'v_add_u32 v15, {R_X - R_STG}, v98')
    a('v_mov_b32 v14, v88')
    a('v_mov_b32 v11, v89')
    a('v_cvt_f32_u32 v16, v6')
    a(f'v_mul_f32 v16, {fb(1.0/2048)}, v16')
    a('v_lshrrev_b32 v17, 1, v3')
    a('v_lshlrev_b32 v17, 3, v17')
    a('v_lshl_add_u32 v17, v9, 1, v17')
    a('v_cvt_f32_u32 v17, v17')
    a('v_mul_f32 v17, v17, v16')
    a('v_cmp_gt_u32 s[52:53], 8, v2')
    cs = [16 * kap + o for kap in range(2) for o in (0, 1, 4, 5)]
    for q in range(8):
        a(f'v_fmamk_f32 v{18+q}, v16, {fb(cs[q])}, v17')
    for q in range(8):
        a(f'v_cos_f32 v{48+q}, v{18+q}')
        a(f'v_sin_f32 v{18+q}, v{18+q}')
    for q in range(8):
        a(f'v_cvt_pk_bf16_f32 v{18+q}, v{48+q}, v{18+q}')
    for q in range(8):
        a(f'v_cndmask_b32 v{T(0,q>>2)+(q&3)}, 0, v{18+q}, s[52:53]')
        a(f'v_cndmask_b32 v{T(1,q>>2)+(q&3)}, v{18+q}, 0, s[52:53]')
    a('s_waitcnt vmcnt(9)')
    for P_, ad in ((XP, 15), (WP, 14)):
        for j in range(0, 8, 2):
            a(f'ds_read2_b32 {vr(P_+j,2)}, v{ad} offset0:{j} offset1:{j+1}')
        a(f'ds_read_b32 v{P_+8}, v{ad} offset:32')
    a('s_waitcnt lgkmcnt(0)')
    for j in range(9):
        a(f'v_lshlrev_b32 v{XR(2*j)}, 16, v{XP+j}')
        a(f'v_and_b32 v{XR(2*j+1)}, 0xffff0000, v{XP+j}')
        a(f'v_lshlrev_b32 v{WR(2*j)}, 16, v{WP+j}')
        a(f'v_and_b32 v{WR(2*j+1)}, 0xffff0000, v{WP+j}')
    W2 = lambda j: vr(WR(2 * j), 2)
    a(f'v_pk_add_f32 v[86:87], {W2(0)}, {W2(1)}')
    for j in range(2, 9):
        a(f'v_pk_add_f32 v[86:87], v[86:87], {W2(j)}')
    a('v_add_f32 v99, v86, v87')
    dpp_reduce(a, 'v_add_f32', [99], 5)
    a('v_lshrrev_b32 v213, 5, v0')
    a('s_lshl_b32 s58, s40, 1')
    a('v_add_u32 v213, s58, v213')
    a('s_sub_u32 s85, s2, 128')
    a('s_lshl_b32 s58, s85, 4')
    a('s_sub_u32 s58, 2047, s58')
    a('v_sub_u32 v212, s58, v213')
    a('v_lshlrev_b32 v213, 2, v213')
    a(f'v_add_u32 v213, {LDS_C}, v213')
    a('v_lshlrev_b32 v214, 2, v2')
    a(f'v_add_u32 v214, {LDS_C}, v214')
    lg = Cnt(a, 'lgkmcnt', 15)
    lab(a, 'L_UWAIT')
    a('v_mov_b32 v86, 0')
    a('ds_write_b32 v85, v86')
    a('s_waitcnt vmcnt(0) lgkmcnt(0)')
    a('s_barrier')
    stamp(a, 6)
    a('s_cmp_ge_u32 s40, 6')
    a('s_cbranch_scc1 L_SKIPMM')
    UF = lambda slot: 164 + 4 * slot
    ACC = lambda jj: 48 + 4 * jj
    order = [(jj, cls, kap) for cls in range(2) for kap in range(2) for jj in range(3)]

    def rd(n):
        jj, cls, kap = order[n]
        for h in range(2):
            off = kap * 36864 + h * 9216 + jj * 768
            a(f'ds_read_b64_tr_b16 {vr(UF(n)+2*h,2)}, v{13 if cls == 0 else 81} offset:{off}')
            lg.issue(n)
    for n in range(7):
        rd(n)
    for n, (jj, cls, kap) in enumerate(order):
        lg.wait(n)
        c = '0' if (cls == 0 and kap == 0) else vr(ACC(jj), 4)
        a(f'v_mfma_f32_16x16x32_bf16 {vr(ACC(jj),4)}, {vr(UF(n),4)}, {vr(T(cls,kap),4)}, {c}')
        if n + 7 < 12:
            rd(n + 7)
    if OPT['usent']:
        a('v_pk_add_f32 v[16:17], v[48:49], v[50:51]')
        a('v_pk_add_f32 v[18:19], v[52:53], v[54:55]')
        a('v_pk_add_f32 v[20:21], v[56:57], v[58:59]')
        a('v_pk_add_f32 v[16:17], v[16:17], v[18:19]')
        a('v_pk_add_f32 v[16:17], v[16:17], v[20:21]')
        a('v_cmp_u_f32 vcc, v16, v17')
        a('v_mov_b32 v86, 1')
        a('s_and_saveexec_b64 s[48:49], vcc')
        a('ds_write_b32 v85, v86')
        a('s_mov_b64 exec, -1')
    for jj in range(3):
        c = ACC(jj)
        a(f'ds_write2_b32 v{90+jj}, v{c}, v{c+1} offset0:0 offset1:2')
        a(f'ds_write2_b32 v{90+jj}, v{c+2}, v{c+3} offset0:4 offset1:6')
        a(f'ds_write2_b32 v{93+jj}, v{c+3}, v{c+2} offset0:0 offset1:2')
        a(f'ds_write2_b32 v{93+jj}, v{c+1}, v{c} offset0:4 offset1:6')
    a('s_waitcnt lgkmcnt(0)')
    lab(a, 'L_SKIPMM')
    a('s_barrier')
    stamp(a, 7)
    H = lambda k: 60 + k
    H2 = lambda j: vr(H(2 * j), 2)
    a('ds_read_b32 v86, v85')
    a('ds_read_b32 v88, v97')
    for j in range(9):
        a(f'ds_read_b64 {H2(j)}, v96 offset:{8*j}')
    a('s_waitcnt lgkmcnt(8)')
    if OPT['usent']:
        a('v_readfirstlane_b32 s48, v86')
        a('s_cmp_eq_u32 s48, 0')
        a('s_cbranch_scc1 L_UOK')
        a('s_add_u32 s84, s84, 1')
        a('s_cmp_ge_u32 s84, 200')
        a('s_cbranch_scc1 L_UOK')
        a('s_waitcnt lgkmcnt(0)')
        a('s_barrier')
        u_dma()
        a('s_branch L_UWAIT')
        lab(a, 'L_UOK')
    a(f'v_cndmask_b32 v{H(0)}, v{H(0)}, v88, s[60:61]')
    a(f'v_cndmask_b32 v{H(0)}, v{H(0)}, 0, s[62:63]')
    HP = lambda j: 16 + j
    a('s_mov_b32 s56, s85')
    a('s_mul_i32 s57, s56, 1152')
    a(f's_add_u32 s57, s57, {WS_HN}')
    a('s_lshl_b32 s59, s56, 7')
    a(f's_add_u32 s59, s59, {WS_KEYS}')
    for j in range(9):
        if j:
            a(f's_waitcnt lgkmcnt({8-j})')
        a(f'v_pk_add_f32 {H2(j)}, {H2(j)}, {vr(XR(2*j),2)}')
    a(f'v_pk_add_f32 v[26:27], {H2(0)}, {H2(1)}')
    a(f'v_pk_mul_f32 v[28:29], {H2(0)}, {H2(0)}')
    a(f'v_pk_mul_f32 v[30:31], {H2(0)}, {W2(0)}')
    for j in range(1, 9):
        if j >= 2:
            a(f'v_pk_add_f32 v[26:27], v[26:27], {H2(j)}')
        a(f'v_pk_fma_f32 v[28:29], {H2(j)}, {H2(j)}, v[28:29]')
        a(f'v_pk_fma_f32 v[30:31], {H2(j)}, {W2(j)}, v[30:31]')
    a('v_add_f32 v82, v26, v27')
    a('v_add_f32 v83, v28, v29')
    a('v_add_f32 v84, v30, v31')
    dpp_reduce(a, 'v_add_f32', [82, 83, 84], 5)
    a(f'v_mul_f32 v82, 0x{INVB:08x}, v82')
    a(f'v_mul_f32 v83, 0x{INVB:08x}, v83')
    a('v_fma_f32 v83, -v82, v82, v83')
    a('v_max_f32 v83, 0, v83')
    bfround(a, 83, 83)
    bfround(a, 82, 82)
    a(f'v_add_f32 v83, 0x{EPSB:08x}, v83')
    bfround(a, 83, 83)
    a('v_sqrt_f32 v83, v83')
    a('v_fma_f32 v84, -v82, v99, v84')
    bfround(a, 83, 83)
    a('v_rcp_f32 v83, v83')
    a('v_mul_f32 v84, v84, v83')
    a('v_ashrrev_i32 v85, 31, v84')
    a('v_or_b32 v85, 0x80000000, v85')
    a('v_xor_b32 v85, v85, v84')
    a('v_and_b32 v85, 0xfffff800, v85')
    a('v_max_u32 v85, 0x800, v85')
    a('v_or_b32 v85, v85, v212')
    a('s_mov_b32 exec_lo, 0x80000000')
    a('s_mov_b32 exec_hi, 0x80000000')
    a('ds_write_b32 v213, v85')
    a('s_mov_b64 exec, -1')
    a('v_mul_f32 v82, v82, v83')
    a('v_readlane_b32 s52, v85, 31')
    a('v_readlane_b32 s53, v85, 63')
    a('s_waitcnt lgkmcnt(0)')
    stamp(a, 8)
    a('s_setprio 3')
    a('s_barrier')
    stamp(a, 9)
    a('ds_read_b32 v85, v214')
    a('v_readlane_b32 s48, v83, 31')
    a('v_readlane_b32 s49, v83, 63')
    a('v_readlane_b32 s50, v82, 31')
    a('v_readlane_b32 s51, v82, 63')
    a('v_readlane_b32 s54, v84, 31')
    a('v_readlane_b32 s55, v84, 63')
    a('s_cmp_gt_u32 s52, s53')
    a('s_cselect_b32 s52, s52, s53')
    a('s_cselect_b32 s54, s54, s55')
    a('s_cselect_b32 s46, s46, s47')
    a('s_cselect_b32 s55, 0, 1')
    a('s_not_b32 s53, s52')
    a('v_mov_b32 v87, s53')
    a('v_mov_b32 v86, 0')
    a('s_waitcnt lgkmcnt(0)')
    dpp_reduce(a, 'v_max_u32', [85], 4)
    a('v_readlane_b32 s58, v85, 15')
    a('s_cmp_eq_u32 s58, s52')
    a('s_cbranch_scc1 L_WIN1')
    a('s_setprio 0')
    a('s_branch L_NW1')
    lab(a, 'L_WIN1')
    a('s_mov_b64 exec, 1')
    a(f'buffer_store_dword v87, v86, s[36:39], s59 offen{SC}')
    a('s_mov_b64 exec, -1')
    lab(a, 'L_NW1')
    a('v_mov_b32 v80, s48')
    a('v_mov_b32 v78, s50')
    a('s_mov_b32 exec_lo, 0')
    a('v_mov_b32 v80, s49')
    a('v_mov_b32 v78, s51')
    a('s_mov_b32 exec_lo, -1')
    for j in range(9):
        a(f'v_cvt_pk_bf16_f32 v{HP(j)}, v{H(2*j)}, v{H(2*j+1)}')
    for j in range(9):
        a(f'v_lshlrev_b32 v{H(2*j)}, 16, v{HP(j)}')
        a(f'v_and_b32 v{H(2*j+1)}, 0xffff0000, v{HP(j)}')
    HN = lambda k: 100 + k
    NP = lambda j: 140 + j
    for j in range(9):
        a(f'v_pk_fma_f32 {vr(HN(2*j),2)}, {H2(j)}, v[80:81], v[78:79] op_sel_hi:[1,0,0] neg_lo:[0,0,1] neg_hi:[0,0,1]')
    for j in range(9):
        a(f'v_cvt_pk_bf16_f32 v{NP(j)}, v{HN(2*j)}, v{HN(2*j+1)}')

    def stage(addr, P, off):
        o = off // 4
        for j in range(0, 8, 2):
            a(f'ds_write2_b32 v{addr}, v{P(j)}, v{P(j+1)} offset0:{o+j} offset1:{o+j+1}')
        a(f'ds_write_b32 v{addr}, v{P(8)} offset:{off+32}')
    a('s_cmp_lg_u32 s58, s52')
    a('s_cbranch_scc1 L_NOTWIN')
    stage(98, NP, 0)
    a('s_lshl_b32 s60, s40, 1')
    a('s_add_u32 s60, s60, s55')
    a('s_mul_i32 s60, s60, 1152')
    a(f's_add_u32 s60, s60, {R_STG}')
    a('v_add_u32 v88, s60, v4')
    a('ds_read_b128 v[32:35], v88')
    a('ds_read_b128 v[36:39], v88 offset:1024')
    a('s_waitcnt lgkmcnt(0)')
    a(f'buffer_store_dwordx4 v[32:35], v4, s[36:39], s57 offen{SC}')
    a('s_mov_b64 exec, 0xff')
    a(f'buffer_store_dwordx4 v[36:39], v5, s[36:39], s57 offen{SC}')
    a('s_mov_b64 exec, -1')
    stamp(a, 10)
    a('s_setprio 0')
    lab(a, 'L_NOTWIN')
    OP = lambda j: 152 + j
    for j in range(9):
        a(f'v_lshlrev_b32 v{HN(2*j)}, 16, v{NP(j)}')
        a(f'v_and_b32 v{HN(2*j+1)}, 0xffff0000, v{NP(j)}')
    for j in range(9):
        a(f'v_pk_add_f32 {vr(HN(2*j),2)}, {vr(HN(2*j),2)}, {H2(j)}')
    for j in range(9):
        a(f'v_cvt_pk_bf16_f32 v{OP(j)}, v{HN(2*j)}, v{HN(2*j+1)}')

    stage(15, OP, 0)
    a('s_waitcnt lgkmcnt(0)')
    a('ds_read_b128 v[40:43], v11')
    a('ds_read_b128 v[44:47], v11 offset:1024')
    a('ds_read_b128 v[48:51], v11 offset:1152')
    a('ds_read_b128 v[52:55], v11 offset:2176')

    def out_store(mods):
        a('s_waitcnt lgkmcnt(0)')
        a(f'buffer_store_dwordx4 v[40:43], v4, s[32:35], s82 offen{mods}')
        a(f'buffer_store_dwordx4 v[48:51], v4, s[32:35], s83 offen{mods}')
        a('s_mov_b64 exec, 0xff')
        a(f'buffer_store_dwordx4 v[44:47], v5, s[32:35], s82 offen{mods}')
        a(f'buffer_store_dwordx4 v[52:55], v5, s[32:35], s83 offen{mods}')
        a('s_mov_b64 exec, -1')
    a('s_cmp_lg_u32 s58, s52')
    a('s_cbranch_scc1 L_PLAIN')
    out_store(SC)
    a('s_mul_i32 s57, s56, 1280')
    a(f's_add_u32 s57, s57, {WS_H}')
    a('v_mov_b32 v88, s54')
    a('v_mov_b32 v89, s46')
    a('s_cmp_eq_u32 s55, 0')
    a('s_cselect_b32 exec_lo, -1, 0')
    a('s_cselect_b32 exec_hi, 0, -1')
    a(f'buffer_store_dwordx4 {vr(HP(0),4)}, v12, s[36:39], s57 offen{SC}')
    a(f'buffer_store_dwordx4 {vr(HP(4),4)}, v12, s[36:39], s57 offen offset:16{SC}')
    a(f'buffer_store_dword v{HP(8)}, v12, s[36:39], s57 offen offset:32{SC}')
    a('s_mov_b64 exec, 1')
    a(f'buffer_store_dwordx2 v[88:89], v86, s[36:39], s57 offen offset:1152{SC}')
    a('s_waitcnt vmcnt(0)')
    a(f'buffer_store_dword v86, v86, s[36:39], s59 offen offset:64{SC}')
    a('s_mov_b64 exec, -1')
    a('s_branch L_EXIT')
    lab(a, 'L_PLAIN')
    out_store({0: '', 1: SC, 2: ' nt'}[OPT['outsc']])
    a('s_branch L_EXIT')

    def key_poll(pre):
        ND = OPT['depth']
        KS = lambda j: 32 + 2 * j
        a(f's_mov_b32 s56, {WS_KEYS}')
        a(f's_mov_b32 s55, {WS_KEYS + 8192}')
        a('s_mov_b32 s58, 0')
        a('s_mov_b32 s45, -1')
        a('v_lshlrev_b32 v8, 7, v0')
        for r in range(28, 32):
            a(f'v_mov_b32 v{r}, 0')
        for j in range(ND):
            a(f'v_mov_b32 v{KS(j)}, -1')
            a(f'v_mov_b32 v{KS(j)+1}, -1')
        lab(a, pre + 'SLOW')
        a(f'buffer_load_dword v16, v8, s[36:39], s56 offen{SC}')
        a(f'buffer_load_dword v17, v8, s[36:39], s55 offen{SC}')
        a('s_add_u32 s58, s58, 1')
        a('s_waitcnt vmcnt(0)')
        a('v_min_u32 v20, v16, v17')
        a('v_cmp_ne_u32 vcc, -1, v20')
        a(f's_cmp_lt_u32 s58, {SPIN_LIMIT}')
        a(f's_cbranch_scc0 {pre}FAST')
        a('s_cmp_lg_u64 vcc, 0')
        a(f's_cbranch_scc1 {pre}FAST')
        a(f's_sleep {OPT["slow"]}')
        a(f's_branch {pre}SLOW')
        lab(a, pre + 'FAST')

        def scan():
            a('v_min_u32 v20, v16, v17')
            a('v_cmp_eq_u32 s[50:51], -1, v16')
            a('v_cmp_eq_u32 s[42:43], -1, v17')
            dpp_reduce(a, 'v_min_u32', [20])
            a('v_readlane_b32 s57, v20, 63')
            a('s_and_b32 s46, s57, 0x7ff')
            a('s_lshr_b32 s46, s46, 4')
            a('s_mul_i32 s47, s46, 1152')
            a(f's_add_u32 s47, s47, {WS_HN}')

        def issue(j):
            a('s_or_b64 exec, s[50:51], 1')
            a(f'buffer_load_dword v{KS(j)}, v8, s[36:39], s56 offen{SC}')
            a('s_or_b64 exec, s[42:43], 1')
            a(f'buffer_load_dword v{KS(j)+1}, v8, s[36:39], s55 offen{SC}')
            a('s_cmp_lg_u32 s45, s57')
            a('s_cselect_b64 exec, -1, 1')
            a(f'buffer_load_dwordx4 v[24:27], v4, s[36:39], s47 offen{SC}')
            a('s_cselect_b64 exec, 0xff, 1')
            a(f'buffer_load_dwordx4 v[28:31], v5, s[36:39], s47 offen{SC}')
            a('s_mov_b64 exec, -1')
            a('s_cselect_b32 s44, 0, s44')
            a('s_add_u32 s44, s44, 1')
            a('s_mov_b32 s45, s57')
        a('s_mov_b32 s44, 0')
        scan()
        for j in range(ND):
            issue(j)
            if j < ND - 1 and OPT['gap']:
                a(f's_sleep {OPT["gap"]}')
        lab(a, pre + 'LOOP')
        for j in range(ND):
            a(f's_waitcnt vmcnt({4*(ND-1)})')
            a(f'v_min_u32 v16, v16, v{KS(j)}')
            a(f'v_min_u32 v17, v17, v{KS(j)+1}')
            scan()
            a('s_or_b64 vcc, s[50:51], s[42:43]')
            a(f's_cbranch_scc0 {pre}ALLK')
            issue(j)
        a('s_add_u32 s58, s58, 1')
        a(f's_cmp_lt_u32 s58, {SPIN_LIMIT}')
        a(f's_cbranch_scc1 {pre}LOOP')
        lab(a, pre + 'ALLK')
        a('s_cmp_lg_u32 s45, s57')
        a(f's_cbranch_scc1 {pre}ROWLD')
        a(f's_cmp_ge_u32 s44, {ND}')
        a(f's_cbranch_scc1 {pre}CHK2')
        a(f's_branch {pre}CHK')
        lab(a, pre + 'ROWLD')
        a(f'buffer_load_dwordx4 v[24:27], v4, s[36:39], s47 offen{SC}')
        a('s_mov_b64 exec, 0xff')
        a(f'buffer_load_dwordx4 v[28:31], v5, s[36:39], s47 offen{SC}')
        a('s_mov_b64 exec, -1')
        lab(a, pre + 'CHK')
        a('s_waitcnt vmcnt(0)')
        lab(a, pre + 'CHK2')
        a('s_add_u32 s58, s58, 1')
        a('v_max3_u32 v20, v24, v25, v26')
        a('v_max3_u32 v21, v27, v28, v29')
        a('v_max3_u32 v20, v20, v30, v31')
        a('v_max_u32 v20, v20, v21')
        a('v_cmp_eq_u32 vcc, -1, v20')
        a(f's_cmp_lt_u32 s58, {2*SPIN_LIMIT}')
        a(f's_cbranch_scc0 {pre}GOT')
        a('s_cmp_eq_u64 vcc, 0')
        a(f's_cbranch_scc0 {pre}ROWLD')
        lab(a, pre + 'GOT')

    lab(a, 'L_FFN')
    NTW = ' nt' if OPT['ntw'] else ''
    a('v_and_b32 v2, 15, v0')
    a('v_lshrrev_b32 v3, 4, v0')
    a('v_lshlrev_b32 v4, 4, v0')
    a('v_add_u32 v5, 1024, v4')
    a('s_and_b32 s3, s2, 7')
    a('s_mul_i32 s3, s3, 9')
    a('s_lshr_b32 s41, s2, 3')
    a('s_add_u32 s3, s3, s41')
    srd(a, 16, 66, WG_BYTES)
    srd(a, 20, 68, WG_BYTES)
    srd(a, 24, 70, WG_BYTES)
    srd(a, 36, 14, WS_RANGE)
    a('v_lshrrev_b32 v8, 3, v0')
    a('v_and_b32 v9, 7, v0')
    a('v_and_b32 v10, 2, v8')
    a('v_xor_b32 v9, v9, v10')
    a('s_and_b32 s58, s40, 1')
    a('s_lshl_b32 s58, s58, 2')
    a('v_xor_b32 v9, s58, v9')
    a('v_lshlrev_b32 v9, 4, v9')
    a('v_mul_u32_u24 v15, 9216, v8')
    a('v_add_u32 v15, v15, v9')
    a('v_xor_b32 v14, 64, v15')
    a('v_mul_u32_u24 v11, 1152, v8')
    a('v_add_u32 v11, v11, v9')
    a('s_mul_i32 s59, s40, 663552')
    a('s_lshl_b32 s58, s3, 7')
    a('s_add_u32 s59, s59, s58')
    a('s_mul_i32 s55, s40, 9216')
    for q in range(9):
        for mat in range(2):
            a(f's_add_u32 m0, s55, {mat*73728 + q*1024}')
            a(f'buffer_load_dwordx4 v{15 - (q & 1)}, s[{16+4*mat}:{19+4*mat}], s59 offen{NTW} lds')
        if q < 8:
            a('s_add_u32 s59, s59, 73728')
    a('s_mul_i32 s59, s3, 73728')
    a('s_add_u32 s59, s59, s55')
    DS = lambda c: 200 + 4 * c
    for c in range(9):
        a(f'buffer_load_dwordx4 {vr(DS(c),4)}, v11, s[24:27], s59 offen offset:{c*128}{NTW}')
    a('v_add_u32 v11, s55, v4')
    a('v_bfe_u32 v13, v0, 2, 2')
    a('v_lshrrev_b32 v10, 1, v13')
    a('v_and_b32 v6, 1, v3')
    a('v_lshl_add_u32 v10, v6, 1, v10')
    a('s_and_b32 s57, s40, 3')
    a('s_lshr_b32 s56, s40, 2')
    a('v_xor_b32 v10, s57, v10')
    a('v_lshlrev_b32 v10, 5, v10')
    a('v_and_b32 v6, 3, v0')
    a('v_lshl_add_u32 v10, v6, 3, v10')
    a('v_lshl_add_u32 v10, v13, 7, v10')
    a('v_mul_u32_u24 v14, 9216, v3')
    a('v_add_u32 v14, v14, v10')
    a('s_lshl_b32 s58, s56, 10')
    a('v_add_u32 v14, s58, v14')
    a('v_lshl_add_u32 v13, v3, 10, v10')
    a('s_mul_i32 s54, s56, 36864')
    a('v_add_u32 v13, s54, v13')
    a('v_add_u32 v12, 73728, v13')
    a('s_waitcnt vmcnt(9)')
    srd(a, 76, 74, 256)
    a('v_mov_b32 v250, 0')
    a('s_cmp_eq_u32 s40, 7')
    a('s_cselect_b32 s78, 256, 0')
    a(f'buffer_load_dword v251, v250, s[76:79], 0 offen{SC}')
    a('s_barrier')
    fpoint(a, 10)
    WF = lambda mat, k: 64 + (k * 2 + mat) * 4
    for k in range(9):
        for mat in range(2):
            for h in range(2):
                a(f'ds_read_b64_tr_b16 {vr(WF(mat,k)+2*h,2)}, v{13 if mat == 0 else 12} offset:{k*4096 + h*512}')
        if k % 3 == 2:
            a('s_waitcnt lgkmcnt(0)')
    a('s_barrier')
    a('s_waitcnt vmcnt(0)')
    for c in range(9):
        a(f'ds_write_b128 v11, {vr(DS(c),4)} offset:{c*1024}')
    a('v_cmp_eq_u32 s[48:49], 1, v3')
    a('v_cmp_eq_u32 s[52:53], 2, v3')
    a('v_cmp_eq_u32 s[60:61], 3, v3')
    a('s_mul_i32 s58, s56, 576')
    a(f's_add_u32 s58, s58, {LDS_XS}')
    a('v_lshl_add_u32 v6, v3, 4, s58')
    a('s_lshl_b32 s58, s56, 9')
    a('s_lshl_b32 s54, s57, 6')
    a('s_add_u32 s58, s58, s54')
    a(f's_add_u32 s58, s58, {LDS_RED}')
    a('v_lshl_add_u32 v7, v2, 2, s58')
    a('v_lshlrev_b32 v9, 2, v0')
    a(f'v_add_u32 v10, {LDS_RED}, v9')
    a('s_lshl_b32 s58, s40, 7')
    a(f's_add_u32 s58, s58, {LDS_ACT}')
    a('v_lshl_add_u32 v11, v0, 1, s58')
    a('v_lshl_add_u32 v12, v3, 4, s58')
    a('s_mul_i32 s62, s3, 2304')
    a(f's_add_u32 s62, s62, {WS_PART}')
    a('s_lshl_b32 s58, s40, 6')
    a('s_add_u32 s63, s62, s58')
    a('s_add_u32 s63, s63, 2048')
    a('s_lshl_b32 s58, s40, 8')
    a('s_add_u32 s62, s62, s58')
    a('s_waitcnt lgkmcnt(0)')
    a('s_barrier')
    fpoint(a, 11)
    DF = lambda kap, m: 136 + (m * 2 + kap) * 4
    for m in range(5):
        for kap in range(2):
            for h in range(2):
                a(f'ds_read_b64_tr_b16 {vr(DF(kap,m)+2*h,2)}, v14 offset:{kap*36864 + h*512 + m*2048}')
        if m % 2 == 1:
            a('s_waitcnt lgkmcnt(0)')
    a('s_waitcnt lgkmcnt(0)')
    stamp(a, 11)
    a('s_cmp_lg_u32 s40, 7')
    a('s_cbranch_scc1 L_FWAIT')
    a('v_readfirstlane_b32 s59, v251')
    a(f's_cmp_ge_u32 s59, {NCLR}')
    a('s_cbranch_scc1 L_WC2_OK')
    wait_cleared(a, 'L_WC2')
    key_poll('L_K')
    a(f'v_add_u32 v8, {LDS_XS}, v4')
    a('ds_write_b128 v8, v[24:27]')
    a('s_mov_b64 exec, 0xff')
    a('ds_write_b128 v8, v[28:31] offset:1024')
    a('s_mov_b64 exec, -1')
    a('s_waitcnt lgkmcnt(0)')
    lab(a, 'L_FWAIT')
    a('s_barrier')
    fpoint(a, 12)
    stamp(a, 12)
    XF = lambda k: 176 + 4 * k
    for k in range(9):
        a(f'ds_read_b128 {vr(XF(k),4)}, v6 offset:{k*64}')
    for k in range(9):
        a(f's_waitcnt lgkmcnt({8-k})')
        for mat in range(2):
            c = '0' if k == 0 else vr(52 + 4 * mat, 4)
            a(f'v_mfma_f32_16x16x32_bf16 {vr(52+4*mat,4)}, {vr(XF(k),4)}, {vr(WF(mat,k),4)}, {c}')
    a('s_mov_b64 exec, 0xffff')
    a('ds_write2st64_b32 v7, v52, v56 offset0:0 offset1:1')
    a('s_mov_b64 exec, -1')
    a('s_waitcnt lgkmcnt(0)')
    a('s_barrier')
    stamp(a, 13)
    a('ds_read2st64_b32 v[16:17], v10 offset0:0 offset1:1')
    a('ds_read2st64_b32 v[18:19], v10 offset0:2 offset1:3')
    a('s_waitcnt vmcnt(0) lgkmcnt(0)')
    a('v_pk_add_f32 v[16:17], v[16:17], v[18:19]')
    a('v_cvt_pk_bf16_f32 v18, v16, v17')
    a('v_lshlrev_b32 v16, 16, v18')
    a('v_and_b32 v17, 0xffff0000, v18')
    a('v_mul_f32 v19, 0xbfb8aa3b, v16')
    a('v_exp_f32 v19, v19')
    a('v_add_f32 v19, 1.0, v19')
    a('v_rcp_f32 v19, v19')
    a('v_mul_f32 v19, v19, v16')
    bfround(a, 19, 19)
    a('v_mul_f32 v19, v19, v17')
    a('v_cvt_pk_bf16_f32 v19, v19, v19')
    a('ds_write_b16 v11, v19')
    a('s_waitcnt lgkmcnt(0)')
    a('ds_read_b128 v[20:23], v12')
    a('ds_read_b128 v[24:27], v12 offset:64')
    DA = lambda m: 28 + 4 * m
    for kap in range(2):
        a(f's_waitcnt lgkmcnt({1-kap})')
        for m in range(5):
            c = '0' if kap == 0 else vr(DA(m), 4)
            a(f'v_mfma_f32_16x16x32_bf16 {vr(DA(m),4)}, {vr(20+4*kap,4)}, {vr(DF(kap,m),4)}, {c}')
    a('v_mov_b32 v17, 0x7fc00000')
    a(f'v_cndmask_b32 v16, v{DA(0)}, v{DA(1)}, s[48:49]')
    a(f'v_cndmask_b32 v16, v16, v{DA(2)}, s[52:53]')
    a(f'v_cndmask_b32 v16, v16, v{DA(3)}, s[60:61]')
    a('v_cmp_eq_u32 vcc, -1, v16')
    a('v_cndmask_b32 v16, v16, v17, vcc')
    a(f'buffer_store_dword v16, v9, s[36:39], s62 offen{SC}')
    a('s_cmp_ge_u32 s40, 4')
    a('s_cbranch_scc1 L_FDONE')
    a(f'v_cmp_eq_u32 vcc, -1, v{DA(4)}')
    a(f'v_cndmask_b32 v18, v{DA(4)}, v17, vcc')
    a('s_mov_b64 exec, 0xffff')
    a(f'buffer_store_dword v18, v9, s[36:39], s63 offen{SC}')
    a('s_mov_b64 exec, -1')
    lab(a, 'L_FDONE')
    stamp(a, 14)
    a('s_branch L_EXIT')

    lab(a, 'L_FIN')
    a('v_and_b32 v2, 15, v0')
    a('v_lshrrev_b32 v3, 4, v0')
    a('v_lshlrev_b32 v4, 4, v0')
    a('v_add_u32 v5, 1024, v4')
    a('v_lshlrev_b32 v9, 2, v0')
    srd(a, 36, 14, WS_RANGE)
    a('s_sub_u32 s42, s2, 72')
    a('s_mul_i32 s41, s40, 20736')
    a('s_lshl_b32 s43, s42, 8')
    a('s_add_u32 s41, s41, s43')
    a(f's_add_u32 s41, s41, {WS_PART}')
    a('s_lshl_b32 s45, s40, 8')
    a('v_add_u32 v10, s45, v9')
    srd(a, 32, 72, X_BYTES)
    a('s_lshl_b32 s44, s42, 4')
    a('s_cmp_lt_u32 s42, 8')
    a('s_cselect_b32 s43, 7, 4')
    a('s_cselect_b32 s44, s44, 512')
    a('v_lshlrev_b32 v12, s43, v3')
    a('v_add3_u32 v12, v12, v2, s44')
    a('v_lshlrev_b32 v12, 1, v12')
    a('v_mov_b32 v63, 0')
    a('s_cmp_lg_u32 s40, 7')
    a('s_cbranch_scc1 L_NWAIT')
    key_poll('L_N')
    lpoint(a, 7)
    lab(a, 'L_NWAIT')
    a('s_barrier')
    stamp(a, 12)
    a('s_cmp_lg_u32 s40, 7')
    a('s_cbranch_scc1 L_PP')
    a('s_lshl_b32 s48, s46, 7')
    a(f's_add_u32 s48, s48, {WS_KEYS + 64}')
    a('v_mov_b32 v8, 0')
    a('s_mov_b32 s58, 0')
    lab(a, 'L_FPOLL')
    a(f'buffer_load_dword v11, v8, s[36:39], s48 offen{SC}')
    a('s_add_u32 s58, s58, 1')
    a('s_waitcnt vmcnt(0)')
    a('v_readfirstlane_b32 s44, v11')
    a('s_cmp_lg_u32 s44, -1')
    a('s_cbranch_scc1 L_FGOT2')
    a(f's_cmp_lt_u32 s58, {SPIN_LIMIT}')
    a('s_cbranch_scc1 L_FPOLL')
    lab(a, 'L_FGOT2')
    a('s_mul_i32 s45, s46, 1280')
    a(f's_add_u32 s45, s45, {WS_H}')
    a('v_mov_b32 v60, 0')
    a('v_mov_b32 v61, 0')
    a(f'buffer_load_short_d16_hi v60, v12, s[36:39], s47 offen{SC}')
    a(f'buffer_load_short_d16_hi v61, v12, s[36:39], s45 offen{SC}')
    a(f'buffer_load_dwordx2 v[62:63], v8, s[36:39], s45 offen offset:1152{SC}')
    lab(a, 'L_PP')
    a('s_mov_b32 s58, 0')
    lab(a, 'L_PPOLL')
    a('s_mov_b32 s43, s41')
    P = lambda p: 32 + p
    for p in range(9):
        a(f'buffer_load_dword v{P(p)}, v9, s[36:39], s43 offen{SC}')
        if p < 8:
            a('s_add_u32 s43, s43, 2304')
    a('s_add_u32 s58, s58, 1')
    a('s_waitcnt vmcnt(0)')
    a(f'v_max3_u32 v16, v{P(0)}, v{P(1)}, v{P(2)}')
    a(f'v_max3_u32 v17, v{P(3)}, v{P(4)}, v{P(5)}')
    a(f'v_max3_u32 v18, v{P(6)}, v{P(7)}, v{P(8)}')
    a('v_max3_u32 v16, v16, v17, v18')
    a('v_cmp_eq_u32 vcc, -1, v16')
    a(f'v_pk_add_f32 v[18:19], {vr(P(0),2)}, {vr(P(2),2)}')
    a(f'v_pk_add_f32 v[20:21], {vr(P(4),2)}, {vr(P(6),2)}')
    a('s_cmp_eq_u64 vcc, 0')
    a('s_cbranch_scc1 L_PGOT')
    a(f's_cmp_lt_u32 s58, {SPIN_LIMIT}')
    a('s_cbranch_scc1 L_PPOLL')
    lab(a, 'L_PGOT')
    a('v_pk_add_f32 v[18:19], v[18:19], v[20:21]')
    a(f'v_add_f32 v18, v18, v{P(8)}')
    a('v_add_f32 v18, v18, v19')
    a('ds_write_b32 v10, v18')
    a('s_waitcnt lgkmcnt(0)')
    stamp(a, 13)
    a('s_barrier')
    a('s_cmp_lg_u32 s40, 7')
    a('s_cbranch_scc1 L_EXIT')
    for w in range(4):
        a(f'ds_read2st64_b32 {vr(16+2*w,2)}, v9 offset0:{2*w} offset1:{2*w+1}')
    bfround(a, 62, 62)
    a('v_mul_f32 v30, 0xbfb8aa3b, v62')
    a('v_exp_f32 v30, v30')
    a('v_mul_u32_u24 v63, 1152, v63')
    a('v_add_f32 v30, 1.0, v30')
    a('v_rcp_f32 v30, v30')
    a('v_add_u32 v63, v63, v12')
    bfround(a, 30, 30)
    a('s_waitcnt lgkmcnt(0)')
    a('v_pk_add_f32 v[16:17], v[16:17], v[18:19]')
    a('v_pk_add_f32 v[20:21], v[20:21], v[22:23]')
    a('v_pk_add_f32 v[16:17], v[16:17], v[20:21]')
    a('v_add_f32 v16, v16, v17')
    bfround(a, 16, 16)
    a('v_mul_f32 v16, v16, v30')
    bfround(a, 16, 16)
    a('v_add_f32 v16, v16, v60')
    bfround(a, 16, 16)
    a('v_add_f32 v16, v16, v61')
    a('v_cvt_pk_bf16_f32 v16, v16, v16')
    a('buffer_store_short v16, v63, s[32:35], 0 offen')
    if OPT['ls']:
        a('s_memrealtime s[92:93]')
        a('s_waitcnt lgkmcnt(0)')
        if OPT['ls'] > 1:
            a('s_mov_b32 s92, s94')
        a('s_sub_u32 s92, s92, s90')
        if OPT.get('cyc'):
            a('s_lshr_b32 s92, s92, 4')
        a('v_mov_b32 v20, s92')
        a('s_lshl_b32 s93, s2, 2')
        a(f's_add_u32 s93, s93, {WS_STAMP}')
        a('v_mov_b32 v21, 0')
        a('buffer_store_dword v20, v21, s[36:39], s93 offen')
    stamp(a, 14)
    lab(a, 'L_EXIT')
    if STAMP:
        a('s_waitcnt vmcnt(0)')
        stamp(a, 15)
        stamp_flush(a)
    lab(a, 'L_END')
    a('s_endpgm')
    a.label('CODE_END')


HEADER = """
FNet (pre-LN) Fourier mixing + Mixture-of-Depths top-1 SwiGLU block, gfx950, one launch (written by dev/gen3.py).
Kernarg: 0 A_x, 8/16 seq DFT re/im, 24/32 hidden DFT re/im (fixed DFT constants; their values are rebuilt on chip),
         40 B_x (unused by the reference), 48 w_r, 56 w_gate, 64 w_up, 72 w_down, 80 out, 88 debug, 96 workspace.
y = Re(DFT_seq(DFT_hid(LN(x)))) is evaluated as a Cooley-Tukey factorisation 2048 = 64 x 32 on the matrix cores:
  phase 1 (workgroups 64..255): rows {32*s1 + s2}, LayerNorm folded into the hidden DFT (half spectrum), 64-point stage -> u
  phase 2 (workgroups 128..255): 32-point stage with twiddles, residual, LayerNorm, router score, output rows
  FFN     (workgroups 0..71)   : 64 hidden columns each, weights parked on chip until the routed token is known
  finish  (workgroups 72..80)  : sum of the partial outputs, routed row
Hand-offs use write-through stores and words reset at the start of every launch (counter in d_debug); all spins are bounded.
"""


def main(path):
    a = Asm()
    for l in HEADER.strip('\n').split('\n'):
        a.raw(('; ' + l).rstrip())
    if OPT['aslist']:
        a.raw(f'; @launch kernel={NAME} grid=(256,1,1) block=(512,1,1) lds={LDS_TOTAL}')
    else:
        a.raw(f'; @launch grid=(256,1,1) block=(512,1,1) lds={LDS_TOTAL}')
    a.raw('.amdgcn_target "amdgcn-amd-amdhsa--gfx950"')
    a.raw('.text')
    gen(a)
    a.raw('.section .rodata,"a"')
    a.raw(f'''.p2align 6
.amdhsa_kernel {NAME}
  .amdhsa_next_free_vgpr 256
  .amdhsa_next_free_sgpr {100 if (STAMP or OPT['ls']) else 88}
  .amdhsa_accum_offset 256
  .amdhsa_group_segment_fixed_size 0
  .amdhsa_kernarg_size 104
  .amdhsa_user_sgpr_count 2
  .amdhsa_user_sgpr_kernarg_segment_ptr 1
  .amdhsa_system_sgpr_workgroup_id_x 1
.end_amdhsa_kernel
''')
    open(path, 'w').write(a.text())


if __name__ == '__main__':
    for arg in sys.argv[2:]:
        if arg == 'stamp':
            STAMP = True
        else:
            k, v = arg.split('=')
            OPT[k] = int(v)
    main(sys.argv[1])
```
